```python
import torch

def _softmax(x, axis=-1):
    return torch.softmax(x, dim=axis)
def _gelu(x):
    return torch.nn.functional.gelu(x, approximate="tanh")
def _silu(x):
    return torch.nn.functional.silu(x)
def _sigmoid(x):
    return torch.sigmoid(x)
def _layernorm(x, axis=-1, eps=1e-5):
    m = x.mean(dim=axis, keepdim=True)
    v = x.var(dim=axis, keepdim=True, unbiased=False)
    return (x - m) / torch.sqrt(v + eps)
def _scatter_add(tgt, idx, src, axis=0):
    return tgt.clone().index_add_(axis, idx, src)
def _segment_sum(src, seg, n):
    out = torch.zeros((n,) + src.shape[1:], dtype=src.dtype)
    return out.index_add_(0, seg, src)
def _pad(x, pw):
    flat = tuple(v for pair in reversed(pw) for v in pair)
    return torch.nn.functional.pad(x, flat)

kernel_name = 'concat_heads__sliding_local_dilated__ssm_conv_h3__prompt'

def setup_inputs():

    _w = (lambda a: (lambda t: t.to(torch.bfloat16) if t.is_floating_point() else t)(torch.as_tensor(a)))
    def _A_setup():
        B, S, D = 1, 2048, 576
        return {
            "x": _w((lambda *s: torch.randn(*s, dtype=torch.bfloat16) * 0.2)(B, S, D)),
            "wqkv": _w((lambda *s: torch.randn(*s, dtype=torch.bfloat16) * 0.2)(D, 3 * D)),
            "wo": _w((lambda *s: torch.randn(*s, dtype=torch.bfloat16) * 0.05)(D, D)),
        }
    _A_in = _A_setup()

    def _B_setup():
        B, S, D = 1, 2048, 576
        ks = 4
        return {
            "q": _w((lambda *s: torch.randn(*s, dtype=torch.bfloat16) * 0.05)(B, S, D)),
            "k": _w((lambda *s: torch.randn(*s, dtype=torch.bfloat16) * 0.8)(B, S, D)),
            "v": _w((lambda *s: torch.randn(*s, dtype=torch.bfloat16) * 0.8)(B, S, D)),
            "shift_k": _w((lambda *s: torch.randn(*s, dtype=torch.bfloat16) * 0.8)(D, ks) * 0.5),
            "ssm_k": _w((lambda *s: torch.randn(*s, dtype=torch.bfloat16) * 3.2)(D, S) * (1.0 / S ** 0.5)),
            "ssm_D": _w((lambda *s: torch.randn(*s, dtype=torch.bfloat16) * 0.8)(D)),
        }
    _B_in = _B_setup()

    return {
        "A_x": _A_in["x"],
        "A_wqkv": _A_in["wqkv"],
        "A_wo": _A_in["wo"],
        "B_q": _B_in["q"],
        "B_k": _B_in["k"],
        "B_v": _B_in["v"],
        "B_shift_k": _B_in["shift_k"],
        "B_ssm_k": _B_in["ssm_k"],
        "B_ssm_D": _B_in["ssm_D"],
    }

def reference(A_x, A_wqkv, A_wo, B_q, B_k, B_v, B_shift_k, B_ssm_k, B_ssm_D):
    def _A_ref(x, wqkv, wo):
        B, S, D = x.shape
        H = 32; Dh = D // H
        W, dil = 8, 2
        qkv = (lambda x, *d: x.permute(*d))((x @ wqkv).reshape(B, S, 3, H, Dh), 2, 0, 3, 1, 4)
        q, k, v = qkv[0], qkv[1], qkv[2]
        scale = Dh ** -0.5
        pos = torch.arange(S)
        off = torch.arange(W) * dil
        idx = pos[:, None] - off[None, :]
        mask = idx >= 0
        idx_c = torch.where(mask, idx, 0).reshape(-1)
        kg = k[:, :, idx_c, :].reshape(B, H, S, W, Dh)
        vg = v[:, :, idx_c, :].reshape(B, H, S, W, Dh)
        logits = torch.einsum("bhsd,bhswd->bhsw", q, kg) * scale
        logits = torch.where(mask[None, None, :, :], logits, -1e9)
        attn = _softmax(logits, axis=-1)
        o = torch.einsum("bhsw,bhswd->bhsd", attn, vg)
        return (lambda x, *d: x.permute(*d))(o, 0, 2, 1, 3).reshape(B, S, D) @ wo

    def _B_ref(q, k, v, shift_k, ssm_k, ssm_D):
        B, S, D = q.shape
        ks = shift_k.shape[-1]
        k_pad = _pad(k, ((0, 0), (ks - 1, 0), (0, 0)))
        k_shift = torch.zeros_like(k)
        for t in range(ks):
            k_shift = k_shift + k_pad[:, t:t + S, :] * shift_k[:, ks - 1 - t][None, None, :]
        kv = k_shift * v
        L = 2 * S
        kv_pad = _pad(kv, ((0, 0), (0, S), (0, 0)))
        kf_pad = _pad(ssm_k, ((0, 0), (0, S)))
        kv_f = (lambda x, axes=(-2,-1): torch.fft.rfft2(x.float(), dim=axes))(kv_pad[:, None, :, :], axes=(1, 2))
        kf_f = (lambda x, axes=(-2,-1): torch.fft.rfft2(x.float(), dim=axes))(kf_pad[:, None, :], axes=(1, 2))
        kf_f = (lambda x, *d: x.permute(*d))(kf_f, 1, 2, 0)
        y_f = kv_f * kf_f[None, :, :, :]
        y = (lambda x, s, axes=(-2,-1): torch.fft.irfft2(x, s=s, dim=axes).to(torch.bfloat16))(y_f, (1, L), axes=(1, 2))[:, 0, :S, :]
        y = y + kv * ssm_D[None, None, :]
        return q * y

    a = _A_ref(A_x, A_wqkv, A_wo)
    b = _B_ref(B_q, B_k, B_v, B_shift_k, B_ssm_k, B_ssm_D)
    return torch.concatenate([a, b], axis=-1)
```

```python
import re

def v(n, cnt=1):
    return f"v{n}" if cnt == 1 else f"v[{n}:{n+cnt-1}]"
def a(n, cnt=1):
    return f"a{n}" if cnt == 1 else f"a[{n}:{n+cnt-1}]"
def s(n, cnt=1):
    return f"s{n}" if cnt == 1 else f"s[{n}:{n+cnt-1}]"

_REG = re.compile(r"^(-|\|)?(abs\()?([vsa])(?:(\d+)|\[(\d+):(\d+)\])\)?\|?$")

def parse_reg(tok):
    tok = tok.strip()
    if tok in ("vcc",): return {("s", "vcc_lo"), ("s", "vcc_hi")}
    if tok in ("vcc_lo", "vcc_hi"): return {("s", tok)}
    if tok == "exec": return {("s", "exec")}
    if tok == "m0": return {("s", "m0")}
    m = _REG.match(tok)
    if not m: return set()
    k = m.group(3)
    if m.group(4) is not None:
        return {(k, int(m.group(4)))}
    return {(k, i) for i in range(int(m.group(5)), int(m.group(6)) + 1)}

TRANS = ("v_exp_f32", "v_log_f32", "v_rcp_f32", "v_rsq_f32", "v_sqrt_f32", "v_sin_f32", "v_cos_f32", "v_rcp_iflag_f32")

class Ins:
    __slots__ = ("text", "op", "ops", "mods", "wr", "rd", "kind", "srcC", "srcAB", "comment")
    def __init__(self, text):
        self.text = text
        t = text.split(";")[0].strip()
        parts = t.split(None, 1)
        self.op = parts[0]
        rest = parts[1] if len(parts) > 1 else ""
        toks = [x.strip() for x in rest.split(",")] if rest else []
        ops = []
        mods = []
        for i, tk in enumerate(toks):
            sub = tk.split()
            if not sub: continue
            ops.append(sub[0])
            mods += sub[1:]
        self.ops = ops
        self.mods = mods
        self.wr = set(); self.rd = set(); self.srcC = set(); self.srcAB = set()
        op = self.op
        R = [parse_reg(o) for o in ops]
        def U(lst):
            r = set()
            for x in lst: r |= x
            return r
        if op.startswith("v_mfma"):
            self.kind = "mfma"
            self.wr = R[0]; self.srcAB = R[1] | R[2]; self.srcC = R[3] if len(R) > 3 else set()
            self.rd = self.srcAB | self.srcC
        elif op.startswith("v_cmp"):
            self.kind = "valu"
            self.wr = R[0]; self.rd = U(R[1:])
        elif op in ("v_readfirstlane_b32", "v_readlane_b32"):
            self.kind = "valu"
            self.wr = R[0]; self.rd = U(R[1:])
        elif op.startswith("v_permlane") and "swap" in op:
            self.kind = "valu"
            self.wr = R[0] | R[1]; self.rd = R[0] | R[1]
        elif op.startswith("v_add_co") or op.startswith("v_sub_co") or op.startswith("v_addc_co") or op.startswith("v_subb_co"):
            self.kind = "valu"
            self.wr = R[0] | R[1]; self.rd = U(R[2:])
        elif op.startswith("v_"):
            self.kind = "valu"
            self.wr = R[0]; self.rd = U(R[1:])
            if op.startswith("v_fmac") or op.startswith("v_dot2c") or op.startswith("v_writelane") or op.startswith("v_pk_fmac"):
                self.rd |= R[0]
            if op.startswith("v_cndmask") and len(ops) == 3:
                self.rd |= parse_reg("vcc")
        elif op.startswith("ds_read") or op.startswith("ds_bpermute") or op.startswith("ds_swizzle") or op.startswith("ds_permute"):
            self.kind = "ds"
            self.wr = R[0]; self.rd = U(R[1:])
        elif op.startswith("ds_"):
            self.kind = "ds"
            self.rd = U(R)
        elif op.startswith("buffer_load") or op.startswith("global_load"):
            self.kind = "vmem"
            if "lds" in mods or "_lds_" in op:
                self.rd = U(R) | {("s", "m0")}
            else:
                self.wr = R[0]; self.rd = U(R[1:])
        elif op.startswith("buffer_store") or op.startswith("global_store") or op.startswith("buffer_atomic") or op.startswith("global_atomic"):
            self.kind = "vmem"
            self.rd = U(R)
            if "atomic" in op and "sc0" in mods:
                self.wr = R[0] if op.startswith("buffer") else R[0]
        elif op.startswith("buffer_"):
            self.kind = "vmem"
        elif op.startswith("s_"):
            self.kind = "salu"
            if op.startswith("s_cmp") or op in ("s_waitcnt", "s_nop", "s_barrier", "s_branch", "s_endpgm", "s_sleep", "s_setprio") or op.startswith("s_cbranch"):
                self.rd = U(R)
            elif op.startswith("s_load") or op in ("s_memtime", "s_memrealtime"):
                self.wr = R[0]; self.rd = U(R[1:])
            else:
                self.wr = R[0] if R else set(); self.rd = U(R[1:])
                if "saveexec" in op:
                    self.wr |= {("s", "exec")}
        else:
            self.kind = "other"

def is_v(r): return r[0] in ("v", "a")

class Asm:
    def __init__(self, auto_hazard=True):
        self.items = []
        self.auto = auto_hazard
        self.nlabel = 0
    def __call__(self, text):
        for line in text.strip().split("\n"):
            line = line.strip()
            if not line: continue
            if line.startswith(";"):
                self.items.append("    " + line)
            elif line.endswith(":"):
                self.items.append(line)
            elif line.startswith("."):
                self.items.append(line)
            else:
                self.items.append(Ins(line))
    def label(self, name):
        self.items.append(name + ":")
    def newlabel(self, base="L"):
        self.nlabel += 1
        return f"{base}_{self.nlabel}"
    def comment(self, t):
        self.items.append("    ; " + t)
    def raw(self, t):
        self.items.append(t)

    def required(self, prev, cur):
        need = 0
        pk, ck = prev.kind, cur.kind
        pw_v = {r for r in prev.wr if is_v(r)}
        pw_s = {r for r in prev.wr if not is_v(r)}
        if pk == "valu":
            if ck == "mfma" and (pw_v & cur.rd): need = max(need, 2)
            if ck == "valu":
                if prev.op.split("_e")[0] in TRANS or any(prev.op.startswith(t) for t in TRANS):
                    if (pw_v & cur.rd) and not any(cur.op.startswith(t) for t in TRANS): need = max(need, 1)
                    if (pw_v & cur.rd): need = max(need, 1)
                if pw_s & cur.rd: need = max(need, 2)
                if cur.op in ("v_readfirstlane_b32", "v_readlane_b32") and (pw_v & cur.rd): need = max(need, 1)
                if cur.op in ("v_readlane_b32", "v_writelane_b32") and (pw_s & cur.rd): need = max(need, 4)
                if cur.op.startswith("v_permlane") and (pw_v & cur.rd): need = max(need, 2)
                if ("dpp" in cur.op or any(m.startswith("row_") or m.startswith("quad_perm") or m.startswith("wave_") for m in cur.mods)) and (pw_v & cur.rd): need = max(need, 2)
            if ck == "vmem" and (pw_s & cur.rd): need = max(need, 5)
            if ck == "salu" and (pw_s & cur.rd): need = max(need, 1)
            if ck == "ds" and (pw_s & cur.rd): need = max(need, 5)
        if pk == "mfma":
            passes = 8 if "32x32" in prev.op else 4
            d_rw = {4: 8, 8: 12}[passes]
            c_overlap = {4: 6, 8: 10}[passes]
            war = {4: 3, 8: 7}[passes]
            if ck == "mfma":
                if prev.wr & cur.srcAB: need = max(need, d_rw)
                if prev.wr & cur.srcC:
                    if not (prev.wr == cur.srcC and prev.op == cur.op): need = max(need, c_overlap)
                if (prev.wr & cur.wr) and not (prev.wr & cur.srcC):
                    need = max(need, c_overlap)
            else:
                if prev.wr & (cur.rd | cur.wr): need = max(need, d_rw)
                if ck == "valu" and (prev.srcC & cur.wr): need = max(need, war)
        if pk == "salu":
            if ("s", "m0") in pw_s and ("s", "m0") in cur.rd and ck in ("vmem", "ds"): need = max(need, 1)
            if ("s", "exec") in pw_s and ck == "mfma": need = max(need, 0)
        if pk == "vmem" and ("store" in prev.op or "atomic" in prev.op) and ("x4" in prev.op or "x3" in prev.op):
            data = parse_reg(prev.ops[0]) if prev.op.startswith("buffer") else parse_reg(prev.ops[1])
            if data & cur.wr and ck in ("valu", "mfma", "ds", "vmem"): need = max(need, 2)
        return need

    def finalize(self):
        out = []
        hist = []
        for it in self.items:
            if isinstance(it, str):
                out.append(it)
                continue
            if self.auto:
                dist = 0
                pad = 0
                for prev in reversed(hist):
                    if dist >= 13: break
                    if prev.op != "s_nop":
                        need = self.required(prev, it)
                        if need > dist: pad = max(pad, need - dist)
                    dist += (int(prev.ops[0]) + 1) if prev.op == "s_nop" else 1
                if pad > 0:
                    p = pad
                    while p > 0:
                        n = min(p, 16)
                        nop = Ins(f"s_nop {n-1}")
                        out.append("    " + nop.text)
                        hist.append(nop)
                        p -= n
            out.append("    " + it.text)
            hist.append(it)
            if len(hist) > 32: hist = hist[-32:]
        return "\n".join(out) + "\n"
```

```python
from asmlib import *
HEADER = open("concat_heads__sliding_local_dilated__ssm_conv_h3__prompt.s.ref").read().split("; Override launch")[0]

def kd(name, vgpr, sgpr=102, accum=None):
    accum = accum or ((vgpr + 3) // 4 * 4)
    return f""".amdhsa_kernel {name}
  .amdhsa_next_free_vgpr {vgpr}
  .amdhsa_next_free_sgpr {sgpr}
  .amdhsa_accum_offset {accum}
  .amdhsa_group_segment_fixed_size 0
  .amdhsa_kernarg_size 96
  .amdhsa_user_sgpr_count 2
  .amdhsa_user_sgpr_kernarg_segment_ptr 1
  .amdhsa_system_sgpr_workgroup_id_x 1
.end_amdhsa_kernel
"""

STAMP_OFF = 16 << 20
def stamp_store(A, sregs, ws, wg="s2", tmp_s=92, tmp_v=250, base_idx=0):
    t = tmp_s
    A(f"s_add_u32 s{t}, s{ws}, {STAMP_OFF}")
    A(f"s_addc_u32 s{t+1}, s{ws+1}, 0")
    A(f"s_and_b32 s{t+1}, s{t+1}, 0xffff")
    A(f"s_mov_b32 s{t+2}, 0x100000")
    A(f"s_mov_b32 s{t+3}, 0x00020000")
    A(f"s_lshl_b32 s{t+4}, {wg}, 7")
    A(f"v_cmp_eq_u32 vcc, 0, v0")
    A(f"s_and_saveexec_b64 s[{t+6}:{t+7}], vcc")
    lab = A.newlabel("stamp_skip")
    A(f"s_cbranch_execz {lab}")
    A(f"v_mov_b32 v{tmp_v+2}, s{t+4}")
    for i, sr in enumerate(sregs):
        A(f"v_mov_b32 v{tmp_v}, s{sr}")
        A(f"v_mov_b32 v{tmp_v+1}, s{sr+1}")
        A(f"buffer_store_dwordx2 v[{tmp_v}:{tmp_v+1}], v{tmp_v+2}, s[{t}:{t+3}], 0 offen offset:{8*(base_idx+i)}")
        A("s_nop 1")
    A.label(lab)
    A(f"s_mov_b64 exec, s[{t+6}:{t+7}]")
```

```python
from asmlib import *
from phases_b import make_srd, SZ_T, WS_O

BIGOFF = 0x7FFF0000

XS_BYTES = 14 * 1024
WS1_BYTES = 28 * 1024
ST1 = XS_BYTES + WS1_BYTES
HHS = 112 * 48
OB = 13 * HHS
A1_LDS = 3 * ST1

def x_loader_setup(A, vbase, s_R0, s_lw, nx=4):
    A(f"s_lshl_b32 s61, s{s_lw}, 2")
    A(f"s_cmp_eq_u32 s{s_lw}, 3")
    A(f"s_cselect_b32 s61, 11, s61")
    A("v_lshrrev_b32 v2, 3, v1")
    A("v_and_b32 v3, 7, v1")
    for j in range(nx):
        A(f"s_add_u32 s62, s61, {j}")
        A("s_lshl_b32 s62, s62, 3")
        A("v_add_u32 v4, s62, v2")
        A("v_bfe_u32 v5, v4, 1, 3")
        A("v_xor_b32 v5, v5, v3")
        A(f"s_sub_u32 s63, s{s_R0}, 16")
        A("v_add_u32 v6, s63, v4")
        A("v_mul_lo_u32 v7, v6, s64")
        A(f"v_lshl_add_u32 v{vbase+j}, v5, 4, v7")
        A("v_cmp_gt_i32 vcc, 0, v6")
        A(f"v_cndmask_b32 v{vbase+j}, v{vbase+j}, v8, vcc")

def gen_a1(A, name="a1_kernel", sc1=False, stamps=None):
    SC = " sc1" if sc1 else ""
    A.raw(f".globl {name}\n.p2align 8\n.type {name},@function\n{name}:")
    A("s_cmp_ge_u32 s2, 176")
    A(f"s_cbranch_scc1 {name}_end")
    A("s_load_dwordx4 s[4:7], s[0:1], 0")
    A("s_load_dwordx2 s[8:9], s[0:1], 88")
    if stamps: A("s_memrealtime s[52:53]")
    A("v_lshrrev_b32 v2, 6, v0")
    A("v_and_b32 v1, 63, v0")
    A("v_readfirstlane_b32 s27, v2")
    A("s_and_b32 s28, s2, 7")
    A("s_lshr_b32 s29, s2, 3")
    A("s_lshr_b32 s30, s28, 2")
    A("s_and_b32 s31, s28, 3")
    A("s_mul_i32 s24, s30, 11")
    A("s_lshr_b32 s32, s29, 1")
    A("s_add_u32 s24, s24, s32")
    A("s_and_b32 s32, s29, 1")
    A("s_lshl_b32 s25, s31, 1")
    A("s_add_u32 s25, s25, s32")
    A("s_mul_i32 s26, s24, 96")
    A("s_movk_i32 s64, 1152")
    A(f"v_mov_b32 v8, 0x{BIGOFF:x}")
    A("s_waitcnt lgkmcnt(0)")
    make_srd(A, 12, 4, SZ_T)
    make_srd(A, 16, 6, 576 * 3456)
    make_srd(A, 20, 8, SZ_T, WS_O)
    A("s_cmp_ge_u32 s27, 4")
    A(f"s_cbranch_scc1 {name}_loader")
    A("v_and_b32 v2, 15, v1")
    A("v_lshrrev_b32 v3, 4, v1")
    A("v_lshrrev_b32 v4, 2, v2")
    A("v_lshl_add_u32 v4, v3, 3, v4")
    A("v_mul_u32_u24 v4, 448, v4")
    A("v_and_b32 v5, 3, v2")
    A("v_lshl_add_u32 v4, v5, 3, v4")
    A("v_and_b32 v5, 1, v3")
    A("v_lshlrev_b32 v5, 5, v5")
    A("v_add_u32 v10, v4, v5")
    A("v_sub_u32 v11, v4, v5")
    A(f"v_add_u32 v10, {XS_BYTES}, v10")
    A(f"v_add_u32 v11, {XS_BYTES}, v11")
    A("v_lshrrev_b32 v6, 1, v2")
    A("v_xor_b32 v6, v6, v3")
    A("v_lshlrev_b32 v6, 4, v6")
    A("v_lshl_add_u32 v12, v2, 7, v6")
    A("v_xor_b32 v13, 64, v12")
    for st in (1, 2):
        for r in range(4):
            A(f"v_add_u32 v{10+4*st+r}, {st*ST1}, v{10+r}")
    for w in range(4):
        if w < 3:
            A(f"s_cmp_eq_u32 s27, {w}")
            A(f"s_cbranch_scc1 {name}_c{w}")
    order = [3, 0, 1, 2]
    for w in order:
        A.label(f"{name}_c{w}")
        if w < 3:
            nts = [3*w, 3*w+1, 3*w+2]
            units = [(t, st) for t in nts for st in range(7)] + [(13, 2*w+1), (13, 2*w+2)]
            ants = nts + [13]
            sts = list(range(7))
        else:
            nts = [9, 10, 11, 12]
            units = [(t, st) for t in nts for st in range(1, 7)]
            ants = nts
            sts = list(range(1, 7))
        ACC = 24
        acc = {u: ACC + 4*i for i, u in enumerate(units)}
        FR = [120, 164]
        def reads(stage, ks, base):
            lst = []
            for ai, t in enumerate(ants):
                va = 10 + 4*stage + (t & 1)
                for h in range(2):
                    lst.append(f"ds_read_b64_tr_b16 {v(base+4*ai+2*h,2)}, v{va} offset:{ks*32*448 + h*4*448 + 32*t}")
            for bi, st in enumerate(sts):
                vx = 10 + 4*stage + 2 + ks
                lst.append(f"ds_read_b128 {v(base+16+4*bi,4)}, v{vx} offset:{st*2048}")
            return lst
        def mfmas(base, first):
            lst = []
            for (t, st) in units:
                ai = ants.index(t); bi = sts.index(st)
                c = "0" if first else v(acc[(t, st)], 4)
                lst.append(f"v_mfma_f32_16x16x32_bf16 {v(acc[(t,st)],4)}, {v(base+4*ai,4)}, {v(base+16+4*bi,4)}, {c}")
            return lst
        def interleave(mf, rd):
            i = 0
            for m in mf:
                A(m)
                if i < len(rd): A(rd[i]); i += 1
            while i < len(rd): A(rd[i]); i += 1
        for kc in range(9):
            stage = kc % 3
            A("s_barrier")
            rd = reads(stage, 0, FR[0])
            if kc == 0:
                for r_ in rd: A(r_)
            else:
                interleave(mfmas(FR[1], False), rd)
            A("s_waitcnt lgkmcnt(0)")
            interleave(mfmas(FR[0], kc == 0), reads(stage, 1, FR[1]))
            A("s_waitcnt lgkmcnt(0)")
        for m in mfmas(FR[1], False): A(m)
        if stamps: A("s_memrealtime s[54:55]")
        A("s_barrier")
        A("v_mul_u32_u24 v4, 48, v2")
        for ai, t in enumerate(ants):
            for p in range(2):
                va = 120 + 2*ai + p
                A(f"v_lshl_add_u32 v5, v3, 2, {16*t+2*p}" if 16*t+2*p <= 64 else f"v_lshlrev_b32 v5, 2, v3")
                if 16*t+2*p > 64: A(f"v_add_u32 v5, {16*t+2*p}, v5")
                A("v_mul_u32_u24 v6, 3641, v5")
                A("v_lshrrev_b32 v6, 16, v6")
                A("v_mul_u32_u24 v6, 5340, v6")
                A(f"v_lshl_add_u32 v{va}, v5, 1, v6")
                A(f"v_add_u32 v{va}, v{va}, v4")
        k = 0
        for (t, st) in units:
            ai = ants.index(t)
            a0 = acc[(t, st)]
            tmp = 130 + 2*(k % 8); k += 1
            A(f"v_cvt_pk_bf16_f32 v{tmp}, v{a0}, v{a0+1}")
            A(f"v_cvt_pk_bf16_f32 v{tmp+1}, v{a0+2}, v{a0+3}")
            A(f"ds_write_b32 v{120+2*ai}, v{tmp} offset:{768*st}")
            A(f"ds_write_b32 v{120+2*ai+1}, v{tmp+1} offset:{768*st}")
        A(f"s_branch {name}_attn")
    A.label(f"{name}_loader")
    A("s_sub_u32 s33, s27, 4")
    XV = 10; WV = 14
    x_loader_setup(A, XV, 26, 33)
    A("s_mul_i32 s34, s33, 448")
    A("s_mul_i32 s35, s25, 144")
    for j in range(7):
        A(f"s_add_u32 s36, s34, {64*j}")
        A("v_add_u32 v2, s36, v1")
        A("v_mul_u32_u24 v3, 2341, v2")
        A("v_lshrrev_b32 v3, 16, v3")
        A("v_mul_u32_u24 v4, 28, v3")
        A("v_sub_u32 v4, v2, v4")
        A("v_bfe_u32 v5, v3, 3, 1")
        A("v_lshlrev_b32 v5, 1, v5")
        A("v_xor_b32 v4, v4, v5")
        A("v_mov_b32 v6, 1152")
        A("v_mov_b32 v7, 2160")
        A("v_cmp_le_u32 vcc, 9, v4")
        A("v_cndmask_b32 v6, v6, v7, vcc")
        A("v_mov_b32 v7, -288")
        A("v_cmp_le_u32 vcc, 18, v4")
        A("v_cndmask_b32 v6, v6, v7, vcc")
        A("v_lshl_add_u32 v6, v4, 4, v6")
        A("v_add_u32 v6, s35, v6")
        A("v_mul_u32_u24 v3, 3456, v3")
        A(f"v_add_u32 v{WV+j}, v3, v6")
        A("v_cmp_eq_u32 vcc, 27, v4")
        A(f"v_cndmask_b32 v{WV+j}, v{WV+j}, v8, vcc")
    A("s_lshl_b32 s37, s61, 10")
    A("s_mul_i32 s38, s33, 7168")
    A(f"s_add_u32 s38, s38, {XS_BYTES}")
    def issue(kc):
        stage = kc % 3
        A(f"s_mov_b32 s40, {128*kc}")
        A(f"s_mov_b32 s41, {221184*kc}")
        for j in range(7):
            A(f"s_add_u32 m0, s38, {stage*ST1 + 1024*j}")
            A(f"buffer_load_dwordx4 v{WV+j}, s[16:19], s41 offen lds")
        for j in range(3):
            A(f"s_add_u32 m0, s37, {stage*ST1 + 1024*j}")
            A(f"buffer_load_dwordx4 v{XV+j}, s[12:15], s40 offen lds")
        lab = A.newlabel(f"{name}_sk")
        A("s_cmp_ge_u32 s33, 2")
        A(f"s_cbranch_scc1 {lab}")
        A(f"s_add_u32 m0, s37, {stage*ST1 + 1024*3}")
        A(f"buffer_load_dwordx4 v{XV+3}, s[12:15], s40 offen lds")
        A.label(lab)
    issue(0); issue(1)
    for kc in range(9):
        A(f"s_waitcnt vmcnt({10 if kc < 8 else 0})")
        A("s_barrier")
        if kc + 2 < 9: issue(kc + 2)
    A("s_barrier")
    A("v_and_b32 v2, 15, v1")
    A("v_lshrrev_b32 v3, 4, v1")
    A.label(f"{name}_attn")
    A("s_waitcnt lgkmcnt(0)")
    A("s_barrier")
    if stamps: A("s_memrealtime s[56:57]")
    A("s_and_b32 s34, s27, 3")
    A("s_lshr_b32 s35, s27, 2")
    A("s_mul_i32 s35, s35, 3")
    A("v_lshlrev_b32 v4, 2, v3")
    A("v_sub_u32 v4, v2, v4")
    for tl in range(2):
        for r in range(4):
            d = (16 if tl == 0 else 0) - r
            A(f"v_add_u32 v5, {d}, v4" if d >= 0 else f"v_subrev_u32 v5, {-d}, v4")
            A("v_and_b32 v6, 0xfffffff1, v5")
            A(f"v_cmp_eq_u32 s[{76+2*(4*tl+r)}:{77+2*(4*tl+r)}], 0, v6")
    A("v_cmp_gt_u32 s[92:93], 2, v3")
    A("v_cmp_gt_u32 s[94:95], 3, v3")
    A("v_min_u32 v5, 2, v3")
    A("v_mul_u32_u24 v6, 48, v2")
    A("v_lshl_add_u32 v6, v5, 4, v6")
    A(f"s_mul_i32 s36, s34, {HHS}")
    A("s_mul_i32 s37, s35, 768")
    A("s_add_u32 s36, s36, s37")
    A("v_add_u32 v7, s36, v6")
    A("v_lshrrev_b32 v9, 2, v2")
    A("v_lshl_add_u32 v9, v3, 2, v9")
    A("v_mul_u32_u24 v9, 48, v9")
    A("v_and_b32 v10, 3, v2")
    A("v_lshl_add_u32 v9, v10, 3, v9")
    A("v_add_u32 v9, s36, v9")
    A("v_mul_u32_u24 v11, 144, v2")
    A("v_lshl_add_u32 v11, v3, 3, v11")
    A("s_mul_i32 s38, s34, 36")
    A("s_mul_i32 s39, s35, 2304")
    A("s_add_u32 s38, s38, s39")
    A(f"s_add_u32 s38, s38, {OB}")
    A("v_add_u32 v11, s38, v11")
    A("v_mov_b32 v12, 0xff800000")
    A("s_mov_b32 s42, 0x3eae1a4a")
    import struct, math
    cst = struct.unpack("<I", struct.pack("<f", (18 ** -0.5) * math.log2(math.e)))[0]
    A(f"s_mov_b32 s42, 0x{cst:08x}")
    A("s_or_b32 s43, s24, s35")
    B = 24
    def regs(b): return B + 40 * b
    for b in range(3):
        R = regs(b)
        A(f"ds_read_b128 {v(R,4)}, v7 offset:{8*HHS + 768*(b+1)}")
        A(f"ds_read_b128 {v(R+4,4)}, v7 offset:{768*b}")
        A(f"ds_read_b128 {v(R+8,4)}, v7 offset:{768*(b+1)}")
        A(f"ds_read_b64_tr_b16 {v(R+12,2)}, v9 offset:{4*HHS + 768*b}")
        A(f"ds_read_b64_tr_b16 {v(R+14,2)}, v9 offset:{4*HHS + 768*(b+1)}")
        A(f"ds_read_b64_tr_b16 {v(R+16,2)}, v9 offset:{4*HHS + 768*b + 32}")
        A(f"ds_read_b64_tr_b16 {v(R+18,2)}, v9 offset:{4*HHS + 768*(b+1) + 32}")
    A("s_waitcnt lgkmcnt(0)")
    for b in range(3):
        R = regs(b)
        A(f"v_cndmask_b32 v{R}, 0, v{R}, s[94:95]")
        for r in range(1, 4):
            A(f"v_cndmask_b32 v{R+r}, 0, v{R+r}, s[92:93]")
    for b in range(3):
        R = regs(b)
        A(f"v_mfma_f32_16x16x32_bf16 {v(R+20,4)}, {v(R+4,4)}, {v(R,4)}, 0")
        A(f"v_mfma_f32_16x16x32_bf16 {v(R+24,4)}, {v(R+8,4)}, {v(R,4)}, 0")
    for r in range(4):
        A(f"s_cmp_eq_u32 s43, 0")
        A(f"s_cselect_b64 s[{44+2*r}:{45+2*r}], 0, s[{76+2*r}:{77+2*r}]")
    for b in range(3):
        R = regs(b)
        S = R + 20
        for e in range(8):
            A(f"v_mul_f32 v{S+e}, s42, v{S+e}")
        for e in range(8):
            m = (44 + 2*e) if (b == 0 and e < 4) else (76 + 2*e)
            A(f"v_cndmask_b32 v{S+e}, v12, v{S+e}, s[{m}:{m+1}]")
        M = R + 28; T = R + 29
        A(f"v_max3_f32 v{M}, v{S}, v{S+1}, v{S+2}")
        A(f"v_max3_f32 v{M}, v{M}, v{S+3}, v{S+4}")
        A(f"v_max3_f32 v{M}, v{M}, v{S+5}, v{S+6}")
        A(f"v_max_f32 v{M}, v{M}, v{S+7}")
    def xlane(op, b_regs):
        for kind in ("16", "32"):
            for (M, T) in b_regs: A(f"v_mov_b32 v{T}, v{M}")
            for (M, T) in b_regs: A(f"v_permlane{kind}_swap_b32 v{M}, v{T}")
            for (M, T) in b_regs: A(f"{op} v{M}, v{M}, v{T}")
    mt = [(regs(b)+28, regs(b)+29) for b in range(3)]
    xlane("v_max_f32", mt)
    for b in range(3):
        R = regs(b); S = R + 20; M = R + 28
        for e in range(8):
            A(f"v_sub_f32 v{S+e}, v{S+e}, v{M}")
        for e in range(8):
            A(f"v_exp_f32 v{S+e}, v{S+e}")
    for b in range(3):
        R = regs(b); S = R + 20; M = R + 30
        A(f"v_add_f32 v{M}, v{S}, v{S+1}")
        for e in range(2, 8):
            A(f"v_add_f32 v{M}, v{M}, v{S+e}")
    st = [(regs(b)+30, regs(b)+31) for b in range(3)]
    xlane("v_add_f32", st)
    for b in range(3):
        R = regs(b); S = R + 20; M = R + 30
        A(f"v_rcp_f32 v{M}, v{M}")
    for b in range(3):
        R = regs(b); S = R + 20; M = R + 30
        for e in range(8):
            A(f"v_mul_f32 v{S+e}, v{S+e}, v{M}")
        for q in range(4):
            A(f"v_cvt_pk_bf16_f32 v{R+q}, v{S+2*q}, v{S+2*q+1}")
    for b in range(3):
        R = regs(b)
        A(f"v_mfma_f32_16x16x32_bf16 {v(R+32,4)}, {v(R+12,4)}, {v(R,4)}, 0")
        A(f"v_mfma_f32_16x16x32_bf16 {v(R+36,4)}, {v(R+16,4)}, {v(R,4)}, 0")
    for b in range(3):
        R = regs(b)
        A(f"v_cvt_pk_bf16_f32 v{R+4}, v{R+32}, v{R+33}")
        A(f"v_cvt_pk_bf16_f32 v{R+5}, v{R+34}, v{R+35}")
        A(f"v_cvt_pk_bf16_f32 v{R+6}, v{R+36}, v{R+37}")
        A(f"ds_write2_b32 v11, v{R+4}, v{R+5} offset0:0 offset1:1" if b == 0 else f"v_add_u32 v13, {2304*b}, v11")
        if b > 0:
            A(f"ds_write2_b32 v13, v{R+4}, v{R+5} offset0:0 offset1:1")
    A("s_mov_b64 exec, 0xffff")
    for b in range(3):
        R = regs(b)
        A(f"ds_write_b32 v11, v{R+6} offset:{2304*b+32}")
    A("s_mov_b64 exec, -1")
    A("s_waitcnt lgkmcnt(0)")
    A("s_barrier")
    A("s_mul_i32 s36, s25, 144")
    A("s_mul_i32 s37, s26, 1152")
    A("s_add_u32 s36, s36, s37")
    for rnd in range(2):
        A(f"v_add_u32 v4, {512*rnd}, v0")
        A("v_mul_u32_u24 v5, 7282, v4")
        A("v_lshrrev_b32 v5, 16, v5")
        A("v_mul_u32_u24 v6, 9, v5")
        A("v_sub_u32 v6, v4, v6")
        A("v_mul_u32_u24 v5, 1152, v5")
        A("v_lshl_add_u32 v5, v6, 4, v5")
        A(f"v_add_u32 v{14+rnd}, s36, v5")
        A(f"v_lshlrev_b32 v{16+rnd}, 4, v4")
        A(f"v_add_u32 v{16+rnd}, {OB}, v{16+rnd}")
        if rnd == 1:
            A("v_cmp_gt_u32 vcc, 864, v4")
            A(f"v_cndmask_b32 v{14+rnd}, v8, v{14+rnd}, vcc")
        A(f"ds_read_b128 {v(20+4*rnd,4)}, v{16+rnd}")
    A("s_waitcnt lgkmcnt(0)")
    for rnd in range(2):
        A(f"buffer_store_dwordx4 {v(20+4*rnd,4)}, v{14+rnd}, s[20:23], 0 offen{SC}")
    if stamps:
        A("s_waitcnt vmcnt(0)")
        A("s_memrealtime s[58:59]")
        A("s_waitcnt lgkmcnt(0)")
        stamps(A, [52, 54, 56, 58], 8)
    A.label(f"{name}_end")
    A("s_endpgm")
    return A1_LDS

WS2_BYTES = 8 * 1024
ST2 = XS_BYTES + WS2_BYTES
NST2 = 3
A2_LDS = NST2 * ST2

def gen_a2(A, name="a2_kernel", sc1=False, stamps=None):
    SC = " sc1" if sc1 else ""
    A.raw(f".globl {name}\n.p2align 8\n.type {name},@function\n{name}:")
    A("s_cmp_ge_u32 s2, 171")
    A(f"s_cbranch_scc1 {name}_end")
    A("s_load_dwordx2 s[6:7], s[0:1], 16")
    A("s_load_dwordx2 s[4:5], s[0:1], 72")
    A("s_load_dwordx2 s[8:9], s[0:1], 88")
    if stamps: A("s_memrealtime s[52:53]")
    A("v_lshrrev_b32 v2, 6, v0")
    A("v_and_b32 v1, 63, v0")
    A("v_readfirstlane_b32 s27, v2")
    A("s_mul_hi_u32 s24, s2, 0x1c71c71d")
    A("s_mul_i32 s25, s24, 9")
    A("s_sub_u32 s25, s2, s25")
    A("s_mul_i32 s26, s24, 112")
    A("s_movk_i32 s64, 1152")
    A(f"v_mov_b32 v8, 0x{BIGOFF:x}")
    A("s_waitcnt lgkmcnt(0)")
    make_srd(A, 12, 8, SZ_T, WS_O)
    make_srd(A, 16, 6, 576 * 1152)
    make_srd(A, 20, 4, 2048 * 2304)
    A("s_cmp_ge_u32 s27, 4")
    A(f"s_cbranch_scc1 {name}_loader")
    A("v_and_b32 v2, 15, v1")
    A("v_lshrrev_b32 v3, 4, v1")
    A("v_lshrrev_b32 v4, 2, v2")
    A("v_lshl_add_u32 v4, v3, 3, v4")
    A("v_lshlrev_b32 v4, 7, v4")
    A("v_bfe_u32 v5, v2, 3, 1")
    A("v_and_b32 v6, 1, v3")
    A("v_lshl_add_u32 v5, v6, 1, v5")
    A("v_lshlrev_b32 v5, 1, v5")
    A("v_bfe_u32 v6, v2, 1, 1")
    A("s_lshl_b32 s28, s27, 1")
    A("v_add_u32 v6, s28, v6")
    A("v_xor_b32 v6, v6, v5")
    A("v_lshl_add_u32 v4, v6, 4, v4")
    A("v_and_b32 v6, 1, v2")
    A("v_lshl_add_u32 v4, v6, 3, v4")
    A(f"v_add_u32 v10, {XS_BYTES}, v4")
    A("v_lshrrev_b32 v6, 1, v2")
    A("v_xor_b32 v6, v6, v3")
    A("v_lshlrev_b32 v6, 4, v6")
    A("v_lshl_add_u32 v11, v2, 7, v6")
    A("v_xor_b32 v12, 64, v11")
    for st in range(1, NST2):
        for r in range(3):
            A(f"v_add_u32 v{10+3*st+r}, {st*ST2}, v{10+r}")
    ACC = 24
    FR = [56, 92]
    def reads(stage, ks, base):
        lst = []
        for h in range(2):
            lst.append(f"ds_read_b64_tr_b16 {v(base+2*h,2)}, v{10+3*stage} offset:{ks*32*128 + h*4*128}")
        for st in range(7):
            lst.append(f"ds_read_b128 {v(base+4+4*st,4)}, v{10+3*stage+1+ks} offset:{st*2048}")
        return lst
    def mfmas(base, first):
        return [f"v_mfma_f32_16x16x32_bf16 {v(ACC+4*st,4)}, {v(base,4)}, {v(base+4+4*st,4)}, {'0' if first else v(ACC+4*st,4)}" for st in range(7)]
    def interleave(mf, rd):
        i = 0
        for m in mf:
            A(m)
            for _ in range(2):
                if i < len(rd): A(rd[i]); i += 1
        while i < len(rd): A(rd[i]); i += 1
    for kc in range(9):
        stage = kc % NST2
        A("s_barrier")
        rd = reads(stage, 0, FR[0])
        if kc == 0:
            for r_ in rd: A(r_)
        else:
            interleave(mfmas(FR[1], False), rd)
        A("s_waitcnt lgkmcnt(0)")
        interleave(mfmas(FR[0], kc == 0), reads(stage, 1, FR[1]))
        A("s_waitcnt lgkmcnt(0)")
    for m in mfmas(FR[1], False): A(m)
    A("s_barrier")
    A("v_mul_u32_u24 v4, 144, v2")
    A("v_lshl_add_u32 v4, v3, 3, v4")
    A("s_lshl_b32 s28, s27, 5")
    A("v_add_u32 v4, s28, v4")
    for st in range(7):
        t = 130 + 2*st
        A(f"v_cvt_pk_bf16_f32 v{t}, v{ACC+4*st}, v{ACC+4*st+1}")
        A(f"v_cvt_pk_bf16_f32 v{t+1}, v{ACC+4*st+2}, v{ACC+4*st+3}")
        A(f"ds_write_b64 v4, {v(t,2)} offset:{16*144*st}")
    A(f"s_branch {name}_out")
    A.label(f"{name}_loader")
    A("s_sub_u32 s33, s27, 4")
    XV = 10; WV = 14
    A("s_add_u32 s29, s26, 16")
    x_loader_setup(A, XV, 29, 33)
    A("v_lshrrev_b32 v2, 3, v1")
    A("v_and_b32 v3, 7, v1")
    A("s_lshl_b32 s35, s25, 7")
    for j in range(2):
        A("s_lshl_b32 s36, s33, 4")
        A(f"s_add_u32 s36, s36, {8*j}")
        A("v_add_u32 v4, s36, v2")
        A("v_bfe_u32 v5, v4, 1, 1")
        A("v_bfe_u32 v6, v4, 3, 1")
        A("v_lshl_add_u32 v5, v6, 1, v5")
        A("v_lshlrev_b32 v5, 1, v5")
        A("v_xor_b32 v5, v5, v3")
        A("v_mul_u32_u24 v4, 1152, v4")
        A("v_lshl_add_u32 v4, v5, 4, v4")
        A(f"v_add_u32 v{WV+j}, s35, v4")
    A("s_lshl_b32 s37, s61, 10")
    A("s_lshl_b32 s38, s33, 11")
    A(f"s_add_u32 s38, s38, {XS_BYTES}")
    def issue(kc):
        stage = kc % NST2
        A(f"s_mov_b32 s40, {128*kc}")
        A(f"s_mov_b32 s41, {64*1152*kc}")
        for j in range(2):
            A(f"s_add_u32 m0, s38, {stage*ST2 + 1024*j}")
            A(f"buffer_load_dwordx4 v{WV+j}, s[16:19], s41 offen lds")
        for j in range(3):
            A(f"s_add_u32 m0, s37, {stage*ST2 + 1024*j}")
            A(f"buffer_load_dwordx4 v{XV+j}, s[12:15], s40 offen{SC} lds")
        lab = A.newlabel(f"{name}_sk")
        A("s_cmp_ge_u32 s33, 2")
        A(f"s_cbranch_scc1 {lab}")
        A(f"s_add_u32 m0, s37, {stage*ST2 + 1024*3}")
        A(f"buffer_load_dwordx4 v{XV+3}, s[12:15], s40 offen{SC} lds")
        A.label(lab)
    issue(0); issue(1)
    for kc in range(9):
        A(f"s_waitcnt vmcnt({5 if kc < 8 else 0})")
        A("s_barrier")
        if kc + 2 < 9: issue(kc + 2)
    A("s_barrier")
    A.label(f"{name}_out")
    A("s_waitcnt lgkmcnt(0)")
    A("s_barrier")
    A("s_mul_i32 s36, s26, 2304")
    A("s_lshl_b32 s37, s25, 7")
    A("s_add_u32 s36, s36, s37")
    A(f"v_mov_b32 v8, 0x{BIGOFF:x}")
    for rnd in range(2):
        A(f"v_add_u32 v4, {512*rnd}, v0")
        A("v_lshrrev_b32 v5, 3, v4")
        A("v_and_b32 v6, 7, v4")
        A("v_mul_u32_u24 v7, 144, v5")
        A(f"v_lshl_add_u32 v{16+rnd}, v6, 4, v7")
        A("v_mul_u32_u24 v5, 2304, v5")
        A("v_lshl_add_u32 v5, v6, 4, v5")
        A(f"v_add_u32 v{14+rnd}, s36, v5")
        if rnd == 1:
            A("v_cmp_gt_u32 vcc, 896, v4")
            A(f"v_cndmask_b32 v{14+rnd}, v8, v{14+rnd}, vcc")
            A(f"v_cndmask_b32 v{16+rnd}, 0, v{16+rnd}, vcc")
        A(f"ds_read_b128 {v(20+4*rnd,4)}, v{16+rnd}")
    A("s_waitcnt lgkmcnt(0)")
    for rnd in range(2):
        A(f"buffer_store_dwordx4 {v(20+4*rnd,4)}, v{14+rnd}, s[20:23], 0 offen")
    if stamps:
        A("s_waitcnt vmcnt(0)")
        A("s_memrealtime s[58:59]")
        A("s_waitcnt lgkmcnt(0)")
        stamps(A, [52, 58], 8)
    A.label(f"{name}_end")
    A("s_endpgm")
    return A2_LDS
```

```python
from asmlib import *

SZ_T = 576 * 2048 * 2
WS_UR = 0
WS_QT = SZ_T
WS_O = 2 * SZ_T

def make_srd(A, dst, ptr, nbytes, add=0):
    if add:
        A(f"s_add_u32 s{dst}, s{ptr}, {add}")
        A(f"s_addc_u32 s{dst+1}, s{ptr+1}, 0")
        A(f"s_and_b32 s{dst+1}, s{dst+1}, 0xffff")
    else:
        A(f"s_mov_b32 s{dst}, s{ptr}")
        A(f"s_and_b32 s{dst+1}, s{ptr+1}, 0xffff")
    A(f"s_mov_b32 s{dst+2}, {nbytes}")
    A(f"s_mov_b32 s{dst+3}, 0x00020000")

def gen_b1(A, name="b1_kernel"):
    A.raw(f".globl {name}\n.p2align 8\n.type {name},@function\n{name}:")
    A("s_cmp_ge_u32 s2, 72")
    A(f"s_cbranch_scc1 {name}_end")
    A("s_load_dwordx8 s[4:11], s[0:1], 24")
    A("s_load_dwordx2 s[12:13], s[0:1], 88")
    A("s_mul_hi_u32 s14, s2, 0x1c71c71d")
    A("s_mul_i32 s15, s14, 9")
    A("s_sub_u32 s15, s2, s15")
    A("v_and_b32 v1, 7, v0")
    A("v_lshrrev_b32 v2, 3, v0")
    A("s_lshl_b32 s40, s14, 8")
    A("v_lshl_add_u32 v3, v2, 3, s40")
    A("s_lshl_b32 s41, s15, 7")
    A("v_lshl_add_u32 v4, v1, 4, s41")
    A("s_movk_i32 s42, 1152")
    A("v_mad_u32_u24 v5, v3, s42, v4")
    A("v_add_u32 v6, 4608, v5")
    A("v_subrev_u32 v7, 3456, v5")
    A("v_subrev_u32 v8, 2304, v5")
    A("v_subrev_u32 v9, 1152, v5")
    A("s_lshl_b32 s43, s15, 9")
    A("v_lshl_add_u32 v10, v1, 6, s43")
    A("s_lshl_b32 s44, s15, 18")
    A("v_lshl_add_u32 v11, v1, 15, s44")
    A("v_lshl_add_u32 v12, v3, 1, v11")
    A("v_lshlrev_b32 v13, 1, v3")
    A("v_sub_u32 v11, v11, v13")
    A("v_add_u32 v11, 4080, v11")
    for ch in range(8):
        A(f"s_mov_b32 s{48+ch}, {ch*4096}")
    A("s_mov_b32 s56, 0x05040100")
    A("s_mov_b32 s57, 0x07060302")
    A("s_waitcnt lgkmcnt(0)")
    make_srd(A, 16, 4, SZ_T)
    make_srd(A, 20, 6, SZ_T)
    make_srd(A, 24, 8, SZ_T)
    make_srd(A, 28, 10, 576 * 8)
    make_srd(A, 32, 12, SZ_T, WS_UR)
    make_srd(A, 36, 12, SZ_T, WS_QT)
    KR, VR, QR, SH, W = 16, 60, 92, 124, 140
    KF, VF, ACC, OUT = 172, 194, 210, 226
    for i in range(4):
        A(f"buffer_load_dwordx4 {v(SH+4*i,4)}, v10, s[28:31], 0 offen offset:{16*i}")
    for j, vo in enumerate((7, 8, 9)):
        A(f"buffer_load_dwordx4 {v(KR+4*j,4)}, v{vo}, s[20:23], 0 offen")
    for i in range(8):
        vo = 5 if i < 4 else 6
        A(f"buffer_load_dwordx4 {v(KR+4*(3+i),4)}, v{vo}, s[20:23], 0 offen offset:{1152*(i%4)}")
    for i in range(8):
        vo = 5 if i < 4 else 6
        A(f"buffer_load_dwordx4 {v(VR+4*i,4)}, v{vo}, s[24:27], 0 offen offset:{1152*(i%4)}")
    for i in range(8):
        vo = 5 if i < 4 else 6
        A(f"buffer_load_dwordx4 {v(QR+4*i,4)}, v{vo}, s[16:19], 0 offen offset:{1152*(i%4)}")
    A("s_waitcnt vmcnt(27)")
    for ch in range(8):
        A(f"v_lshlrev_b32 v{W+0*8+ch}, 16, v{SH+2*ch}")
        A(f"v_and_b32 v{W+1*8+ch}, 0xffff0000, v{SH+2*ch}")
        A(f"v_lshlrev_b32 v{W+2*8+ch}, 16, v{SH+2*ch+1}")
        A(f"v_and_b32 v{W+3*8+ch}, 0xffff0000, v{SH+2*ch+1}")
    A("s_waitcnt vmcnt(8)")
    for m in range(4):
        for j in range(11):
            A(f"v_lshlrev_b32 v{KF+2*j}, 16, v{KR+4*j+m}")
            A(f"v_and_b32 v{KF+2*j+1}, 0xffff0000, v{KR+4*j+m}")
        for i in range(8):
            A(f"v_lshlrev_b32 v{VF+2*i}, 16, v{VR+4*i+m}")
            A(f"v_and_b32 v{VF+2*i+1}, 0xffff0000, v{VR+4*i+m}")
        for i in range(8):
            A(f"v_pk_mul_f32 {v(ACC+2*i,2)}, {v(W+3*8+2*m,2)}, {v(KF+2*i,2)}")
        for t in (2, 1, 0):
            for i in range(8):
                A(f"v_pk_fma_f32 {v(ACC+2*i,2)}, {v(W+t*8+2*m,2)}, {v(KF+2*(i+3-t),2)}, {v(ACC+2*i,2)}")
        for i in range(8):
            A(f"v_pk_mul_f32 {v(ACC+2*i,2)}, {v(ACC+2*i,2)}, {v(VF+2*i,2)}")
        o = OUT + 8 * (m & 1)
        for h in range(2):
            for q in range(4):
                A(f"v_cvt_pk_bf16_f32 v{o+4*h+q}, v{ACC+2*(7-2*q)+h}, v{ACC+2*(6-2*q)+h}")
        for h in range(2):
            A(f"buffer_store_dwordx4 {v(o+4*h,4)}, v11, s[32:35], s{48+2*m+h} offen")
    A("s_waitcnt vmcnt(8)")
    QO = KF
    for m in range(4):
        o = OUT + 16 + 8 * (m & 1) if False else (KF + 8 * (m & 1))
        for q in range(4):
            A(f"v_perm_b32 v{o+q}, v{QR+4*(2*q+1)+m}, v{QR+4*(2*q)+m}, s56")
            A(f"v_perm_b32 v{o+4+q}, v{QR+4*(2*q+1)+m}, v{QR+4*(2*q)+m}, s57")
        for h in range(2):
            A(f"buffer_store_dwordx4 {v(o+4*h,4)}, v12, s[36:39], s{48+2*m+h} offen")
    A.label(f"{name}_end")
    A("s_endpgm")

HC = 4160
URB = 4 * HC
WB = URB + 4608
ZS = 4160

def gen_b2(A, name="b2_kernel"):
    A.raw(f".globl {name}\n.p2align 8\n.type {name},@function\n{name}:")
    A("s_cmp_ge_u32 s2, 144")
    A(f"s_cbranch_scc1 {name}_end")
    A("s_load_dwordx4 s[4:7], s[0:1], 56")
    A("s_load_dwordx2 s[8:9], s[0:1], 72")
    A("s_load_dwordx2 s[10:11], s[0:1], 88")
    A("v_lshrrev_b32 v1, 6, v0")
    A("v_and_b32 v2, 63, v0")
    A("v_readfirstlane_b32 s12, v1")
    A("v_and_b32 v3, 15, v2")
    A("v_lshrrev_b32 v4, 4, v2")
    A("s_lshl_b32 s13, s2, 2")
    A("s_add_u32 s13, s13, s12")
    A("s_lshl_b32 s14, s13, 12")
    A(f"s_mul_i32 s15, s12, {WB}")
    A("s_waitcnt lgkmcnt(0)")
    A("s_add_u32 s16, s4, s14"); A("s_addc_u32 s17, s5, 0"); A("s_and_b32 s17, s17, 0xffff")
    A("s_mov_b32 s18, 4096"); A("s_mov_b32 s19, 0x00020000")
    A("s_add_u32 s20, s10, s14"); A("s_addc_u32 s21, s11, 0"); A("s_and_b32 s21, s21, 0xffff")
    A("s_mov_b32 s22, 4096"); A("s_mov_b32 s23, 0x00020000")
    A(f"s_add_u32 s24, s20, {WS_QT}"); A("s_addc_u32 s25, s21, 0"); A("s_and_b32 s25, s25, 0xffff")
    A("s_mov_b32 s26, 4096"); A("s_mov_b32 s27, 0x00020000")
    make_srd(A, 28, 8, 2048 * 2304)
    A("s_lshl_b32 s32, s13, 1")
    A("s_and_b32 s33, s32, 0xfffffffc")
    A("s_load_dword s34, s[6:7], s33")
    A("v_lshlrev_b32 v5, 4, v2")
    A("v_add_u32 v6, 4, v5")
    A("v_add_u32 v7, 8, v5")
    L = 16
    for it in range(4):
        A(f"buffer_load_dwordx4 {v(L+12*it,4)}, v5, s[16:19], 0 offen offset:{1024*it}")
        A(f"buffer_load_dwordx4 {v(L+12*it+4,4)}, v6, s[16:19], 0 offen offset:{1024*it}")
        A(f"buffer_load_dwordx4 {v(L+12*it+8,4)}, v7, s[16:19], 0 offen offset:{1024*it}")
    A("v_mov_b32 v8, 0")
    A(f"buffer_load_dwordx2 v[64:65], v8, s[16:19], 0 offen")
    U = 68
    for it in range(4):
        A(f"buffer_load_dwordx4 {v(U+4*it,4)}, v5, s[20:23], 0 offen offset:{1024*it}")
    A("v_lshlrev_b32 v9, 5, v3")
    A("v_lshl_add_u32 v9, v4, 3, v9")
    Q = 84
    for c in range(8):
        A(f"buffer_load_dwordx2 {v(Q+2*c,2)}, v9, s[24:27], 0 offen offset:{512*c}")
    A("v_add_u32 v10, s15, v5")
    T = 100
    for it in range(4):
        A(f"s_waitcnt vmcnt({12+1+4+8-3*(it+1)})")
        b = L + 12 * it
        for i in range(4):
            A(f"v_alignbit_b32 v{T+i}, v{b+4+i}, v{b+i}, 16")
        for i in range(4):
            A(f"v_alignbit_b32 v{T+4+i}, v{b+8+i}, v{b+4+i}, 16")
        off = 32 + 1024 * it
        A(f"ds_write_b128 v10, {v(b,4)} offset:{off}")
        A(f"ds_write_b128 v10, {v(T,4)} offset:{off+HC}")
        A(f"ds_write_b128 v10, {v(b+4,4)} offset:{off+2*HC}")
        A(f"ds_write_b128 v10, {v(T+4,4)} offset:{off+3*HC}")
    A("s_waitcnt vmcnt(12)")
    A("v_lshlrev_b32 v108, 16, v64")
    A("v_alignbit_b32 v109, v65, v64, 16")
    A("v_mov_b32 v110, 0"); A("v_mov_b32 v111, 0"); A("v_mov_b32 v112, 0"); A("v_mov_b32 v113, 0")
    A("v_mov_b32 v114, 0"); A("v_mov_b32 v115, 0"); A("v_mov_b32 v116, 0"); A("v_mov_b32 v117, 0")
    A("v_cmp_eq_u32 s[36:37], 1, v2")
    A("v_cmp_eq_u32 s[38:39], 2, v2")
    A("v_cmp_eq_u32 s[40:41], 3, v2")
    A("v_cndmask_b32 v117, v117, v108, s[36:37]")
    A("v_cndmask_b32 v117, v117, v64, s[38:39]")
    A("v_cndmask_b32 v117, v117, v109, s[40:41]")
    A("v_cndmask_b32 v116, v116, v108, s[40:41]")
    A(f"v_mul_u32_u24 v11, {HC}, v2")
    A("v_add_u32 v11, s15, v11")
    A("v_cmp_gt_u32 vcc, 4, v2")
    A("s_and_saveexec_b64 s[42:43], vcc")
    A("ds_write_b128 v11, v[110:113]")
    A("ds_write_b128 v11, v[114:117] offset:16")
    A("s_mov_b64 exec, s[42:43]")
    A("s_waitcnt vmcnt(8)")
    for it in range(4):
        A(f"ds_write_b128 v10, {v(U+4*it,4)} offset:{URB+1024*it}")
    A("v_cmp_gt_u32 vcc, 32, v2")
    A("s_and_saveexec_b64 s[42:43], vcc")
    A(f"ds_write_b128 v10, v[110:113] offset:{URB+4096}")
    A("s_mov_b64 exec, s[42:43]")
    A("v_add_u32 v12, 1, v3")
    A("v_and_b32 v13, 3, v12")
    A("v_lshrrev_b32 v12, 2, v12")
    A(f"v_mul_u32_u24 v13, {HC}, v13")
    A("v_lshl_add_u32 v13, v4, 4, v13")
    A("v_lshl_add_u32 v13, v12, 3, v13")
    A("v_add_u32 v13, s15, v13")
    A("v_lshlrev_b32 v14, 4, v4")
    A("v_lshlrev_b32 v15, 5, v3")
    A("v_sub_u32 v14, v14, v15")
    A(f"v_add_u32 v14, {URB+480}, v14")
    A("v_add_u32 v14, s15, v14")
    A("s_waitcnt lgkmcnt(0)")
    FA = [104, 168]
    ACC = 232 - 0
    ACC = 216
    FA = [104, 16]
    def load_frags(rho, base):
        for aa in range(8):
            A(f"ds_read_b64 {v(base+4*aa,2)}, v13 offset:{512*aa+64*rho}")
            A(f"ds_read_b64 {v(base+4*aa+2,2)}, v13 offset:{512*aa+64*rho+8}")
        for b in range(8):
            A(f"ds_read_b128 {v(base+32+4*b,4)}, v14 offset:{64*rho+512*(7-b)}")
    load_frags(0, FA[0])
    for rho in range(8):
        base = FA[rho & 1]
        A("s_waitcnt lgkmcnt(0)")
        if rho < 7:
            load_frags(rho + 1, FA[(rho + 1) & 1])
        for aa in range(8):
            for b in range(8 - aa):
                c = aa + b
                src = "0" if (rho == 0 and aa == 0) else v(ACC+4*c, 4)
                A(f"v_mfma_f32_16x16x32_bf16 {v(ACC+4*c,4)}, {v(base+4*aa,4)}, {v(base+32+4*b,4)}, {src}")
    A("s_waitcnt lgkmcnt(0)")
    A("s_and_b32 s32, s32, 2")
    A("s_lshl_b32 s32, s32, 3")
    A("s_lshr_b32 s34, s34, s32")
    A("s_lshl_b32 s34, s34, 16")
    A("v_lshlrev_b32 v15, 5, v3")
    A("v_lshl_add_u32 v15, v4, 3, v15")
    A(f"v_sub_u32 v12, {URB+504}, v15")
    A("v_add_u32 v12, s15, v12")
    UU = 16
    for c in range(8):
        A(f"ds_read_b64 {v(UU+2*c,2)}, v12 offset:{512*(7-c)}")
    A("s_waitcnt lgkmcnt(0)")
    A("s_barrier")
    A(f"s_mul_i32 s35, s12, {ZS}")
    A("v_add_u32 v15, s35, v15")
    TT = 40
    for c in range(8):
        t = TT + 16 * (c & 1)
        A(f"v_and_b32 v{t+0}, 0xffff0000, v{UU+2*c+1}")
        A(f"v_lshlrev_b32 v{t+1}, 16, v{UU+2*c+1}")
        A(f"v_and_b32 v{t+2}, 0xffff0000, v{UU+2*c}")
        A(f"v_lshlrev_b32 v{t+3}, 16, v{UU+2*c}")
        A(f"v_lshlrev_b32 v{t+4}, 16, v{Q+2*c}")
        A(f"v_and_b32 v{t+5}, 0xffff0000, v{Q+2*c}")
        A(f"v_lshlrev_b32 v{t+6}, 16, v{Q+2*c+1}")
        A(f"v_and_b32 v{t+7}, 0xffff0000, v{Q+2*c+1}")
        for r in range(4):
            A(f"v_fma_f32 v{t+r}, v{t+r}, s34, v{ACC+4*c+r}")
        for r in range(4):
            A(f"v_mul_f32 v{t+r}, v{t+r}, v{t+4+r}")
        A(f"v_cvt_pk_bf16_f32 v{t+8}, v{t+0}, v{t+1}")
        A(f"v_cvt_pk_bf16_f32 v{t+9}, v{t+2}, v{t+3}")
        A(f"ds_write_b64 v15, {v(t+8,2)} offset:{512*c}")
    A("s_waitcnt lgkmcnt(0)")
    A("s_barrier")
    A("v_lshrrev_b32 v12, 2, v3")
    A(f"v_mul_u32_u24 v12, {ZS}, v12")
    A("v_and_b32 v13, 3, v3")
    A("v_lshl_add_u32 v12, v13, 3, v12")
    A("v_lshl_add_u32 v12, v4, 5, v12")
    A("s_lshl_b32 s35, s12, 10")
    A("v_add_u32 v12, s35, v12")
    for it in range(8):
        A(f"ds_read_b64_tr_b16 {v(16+2*it,2)}, v12 offset:{128*it}")
    A("s_lshl_b32 s35, s12, 9")
    A("v_add_u32 v13, s35, v2")
    A("s_movk_i32 s36, 2304")
    A("s_lshl_b32 s37, s2, 3")
    A("s_add_u32 s37, s37, 1152")
    A("v_mul_lo_u32 v13, v13, s36")
    A("v_add_u32 v13, s37, v13")
    for it in range(8):
        A(f"s_mov_b32 s{40+it}, {64*2304*it}")
    for it in range(8):
        A(f"s_waitcnt lgkmcnt({7-it})")
        A(f"buffer_store_dwordx2 {v(16+2*it,2)}, v13, s[28:31], s{40+it} offen")
    A.label(f"{name}_end")
    A("s_endpgm")
    return 4 * WB
```

```python
import sys
from asmlib import *
from gen_common import *
from phases_b import *
from phases_a import *

A = Asm()
gen_b1(A)
lds_a1 = gen_a1(A)
lds_b2 = gen_b2(A)
lds_a2 = gen_a2(A)
body = A.finalize()
out = HEADER
out += "; @launch kernel=b1_kernel grid=(72,1,1) block=(256,1,1) lds=0\n"
out += f"; @launch kernel=a1_kernel grid=(176,1,1) block=(512,1,1) lds={lds_a1}\n"
out += f"; @launch kernel=b2_kernel grid=(144,1,1) block=(256,1,1) lds={lds_b2}\n"
out += f"; @launch kernel=a2_kernel grid=(171,1,1) block=(512,1,1) lds={lds_a2}\n"
out += '.amdgcn_target "amdgcn-amd-amdhsa--gfx950"\n.text\n'
out += body
out += '.section .rodata,"a"\n.p2align 6\n'
for n in ("b1_kernel", "a1_kernel", "b2_kernel", "a2_kernel"):
    out += kd(n, 256) + ".p2align 6\n"
open(sys.argv[1], "w").write(out)
```

```python
from asmlib import *
from phases_b import make_srd, SZ_T, WS_O

BIGOFF = 0x7FFF0000

XS_BYTES = 14 * 1024
WS1_BYTES = 28 * 1024
ST1 = XS_BYTES + WS1_BYTES
HHS = 112 * 48
OB = 13 * HHS
A1_LDS = 3 * ST1

def x_loader_setup(A, vbase, s_R0, s_lw, nx=4):
    A(f"s_lshl_b32 s61, s{s_lw}, 2")
    A(f"s_cmp_eq_u32 s{s_lw}, 3")
    A(f"s_cselect_b32 s61, 11, s61")
    A("v_lshrrev_b32 v2, 3, v1")
    A("v_and_b32 v3, 7, v1")
    for j in range(nx):
        A(f"s_add_u32 s62, s61, {j}")
        A("s_lshl_b32 s62, s62, 3")
        A("v_add_u32 v4, s62, v2")
        A("v_bfe_u32 v5, v4, 1, 3")
        A("v_xor_b32 v5, v5, v3")
        A(f"s_sub_u32 s63, s{s_R0}, 16")
        A("v_add_u32 v6, s63, v4")
        A("v_mul_lo_u32 v7, v6, s64")
        A(f"v_lshl_add_u32 v{vbase+j}, v5, 4, v7")
        A("v_cmp_gt_i32 vcc, 0, v6")
        A(f"v_cndmask_b32 v{vbase+j}, v{vbase+j}, v8, vcc")

def gen_a1(A, name="a1_kernel", sc1=False, stamps=None, embed=False):
    SC = " sc1" if sc1 else ""
    if embed: A.label(name)
    else: A.raw(f".globl {name}\n.p2align 8\n.type {name},@function\n{name}:")
    A("s_cmp_ge_u32 s2, 176")
    A(f"s_cbranch_scc1 {name}_end")
    A("s_load_dwordx4 s[4:7], s[0:1], 0")
    A("s_load_dwordx2 s[8:9], s[0:1], 88")
    if stamps: A("s_memrealtime s[52:53]")
    A("v_lshrrev_b32 v2, 6, v0")
    A("v_and_b32 v1, 63, v0")
    A("v_readfirstlane_b32 s27, v2")
    A("s_and_b32 s28, s2, 7")
    A("s_lshr_b32 s29, s2, 3")
    A("s_lshr_b32 s30, s28, 2")
    A("s_and_b32 s31, s28, 3")
    A("s_mul_i32 s24, s30, 11")
    A("s_lshr_b32 s32, s29, 1")
    A("s_add_u32 s24, s24, s32")
    A("s_and_b32 s32, s29, 1")
    A("s_lshl_b32 s25, s31, 1")
    A("s_add_u32 s25, s25, s32")
    A("s_mul_i32 s26, s24, 96")
    A("s_movk_i32 s64, 1152")
    A(f"v_mov_b32 v8, 0x{BIGOFF:x}")
    A("s_waitcnt lgkmcnt(0)")
    make_srd(A, 12, 4, SZ_T)
    make_srd(A, 16, 6, 576 * 3456)
    make_srd(A, 20, 8, SZ_T, WS_O)
    A("s_cmp_ge_u32 s27, 4")
    A(f"s_cbranch_scc1 {name}_loader")
    A("v_and_b32 v2, 15, v1")
    A("v_lshrrev_b32 v3, 4, v1")
    A("v_lshrrev_b32 v4, 2, v2")
    A("v_lshl_add_u32 v4, v3, 3, v4")
    A("v_mul_u32_u24 v4, 448, v4")
    A("v_and_b32 v5, 3, v2")
    A("v_lshl_add_u32 v4, v5, 3, v4")
    A("v_and_b32 v5, 1, v3")
    A("v_lshlrev_b32 v5, 5, v5")
    A("v_add_u32 v10, v4, v5")
    A("v_sub_u32 v11, v4, v5")
    A(f"v_add_u32 v10, {XS_BYTES}, v10")
    A(f"v_add_u32 v11, {XS_BYTES}, v11")
    A("v_lshrrev_b32 v6, 1, v2")
    A("v_xor_b32 v6, v6, v3")
    A("v_lshlrev_b32 v6, 4, v6")
    A("v_lshl_add_u32 v12, v2, 7, v6")
    A("v_xor_b32 v13, 64, v12")
    for st in (1, 2):
        for r in range(4):
            A(f"v_add_u32 v{10+4*st+r}, {st*ST1}, v{10+r}")
    for w in range(4):
        if w < 3:
            A(f"s_cmp_eq_u32 s27, {w}")
            A(f"s_cbranch_scc1 {name}_c{w}")
    order = [3, 0, 1, 2]
    for w in order:
        A.label(f"{name}_c{w}")
        if w < 3:
            nts = [3*w, 3*w+1, 3*w+2]
            units = [(t, st) for t in nts for st in range(7)] + [(13, 2*w+1), (13, 2*w+2)]
            ants = nts + [13]
            sts = list(range(7))
        else:
            nts = [9, 10, 11, 12]
            units = [(t, st) for t in nts for st in range(1, 7)]
            ants = nts
            sts = list(range(1, 7))
        ACC = 24
        acc = {u: ACC + 4*i for i, u in enumerate(units)}
        FR = [120, 164]
        def reads(stage, ks, base):
            lst = []
            for ai, t in enumerate(ants):
                va = 10 + 4*stage + (t & 1)
                for h in range(2):
                    lst.append(f"ds_read_b64_tr_b16 {v(base+4*ai+2*h,2)}, v{va} offset:{ks*32*448 + h*4*448 + 32*t}")
            for bi, st in enumerate(sts):
                vx = 10 + 4*stage + 2 + ks
                lst.append(f"ds_read_b128 {v(base+16+4*bi,4)}, v{vx} offset:{st*2048}")
            return lst
        def mfmas(base, first):
            lst = []
            for (t, st) in units:
                ai = ants.index(t); bi = sts.index(st)
                c = "0" if first else v(acc[(t, st)], 4)
                lst.append(f"v_mfma_f32_16x16x32_bf16 {v(acc[(t,st)],4)}, {v(base+4*ai,4)}, {v(base+16+4*bi,4)}, {c}")
            return lst
        def interleave(mf, rd):
            i = 0
            for m in mf:
                A(m)
                if i < len(rd): A(rd[i]); i += 1
            while i < len(rd): A(rd[i]); i += 1
        for kc in range(9):
            stage = kc % 3
            A("s_barrier")
            rd = reads(stage, 0, FR[0])
            if kc == 0:
                for r_ in rd: A(r_)
            else:
                interleave(mfmas(FR[1], False), rd)
            A("s_waitcnt lgkmcnt(0)")
            interleave(mfmas(FR[0], kc == 0), reads(stage, 1, FR[1]))
            A("s_waitcnt lgkmcnt(0)")
        for m in mfmas(FR[1], False): A(m)
        if stamps: A("s_memrealtime s[54:55]")
        A("s_barrier")
        A("v_mul_u32_u24 v4, 48, v2")
        for ai, t in enumerate(ants):
            for p in range(2):
                va = 120 + 2*ai + p
                A(f"v_lshl_add_u32 v5, v3, 2, {16*t+2*p}" if 16*t+2*p <= 64 else f"v_lshlrev_b32 v5, 2, v3")
                if 16*t+2*p > 64: A(f"v_add_u32 v5, {16*t+2*p}, v5")
                A("v_mul_u32_u24 v6, 3641, v5")
                A("v_lshrrev_b32 v6, 16, v6")
                A("v_mul_u32_u24 v6, 5340, v6")
                A(f"v_lshl_add_u32 v{va}, v5, 1, v6")
                A(f"v_add_u32 v{va}, v{va}, v4")
        k = 0
        for (t, st) in units:
            ai = ants.index(t)
            a0 = acc[(t, st)]
            tmp = 130 + 2*(k % 8); k += 1
            A(f"v_cvt_pk_bf16_f32 v{tmp}, v{a0}, v{a0+1}")
            A(f"v_cvt_pk_bf16_f32 v{tmp+1}, v{a0+2}, v{a0+3}")
            A(f"ds_write_b32 v{120+2*ai}, v{tmp} offset:{768*st}")
            A(f"ds_write_b32 v{120+2*ai+1}, v{tmp+1} offset:{768*st}")
        A(f"s_branch {name}_attn")
    A.label(f"{name}_loader")
    A("s_sub_u32 s33, s27, 4")
    XV = 10; WV = 14
    x_loader_setup(A, XV, 26, 33)
    A("s_mul_i32 s34, s33, 448")
    A("s_mul_i32 s35, s25, 144")
    for j in range(7):
        A(f"s_add_u32 s36, s34, {64*j}")
        A("v_add_u32 v2, s36, v1")
        A("v_mul_u32_u24 v3, 2341, v2")
        A("v_lshrrev_b32 v3, 16, v3")
        A("v_mul_u32_u24 v4, 28, v3")
        A("v_sub_u32 v4, v2, v4")
        A("v_bfe_u32 v5, v3, 3, 1")
        A("v_lshlrev_b32 v5, 1, v5")
        A("v_xor_b32 v4, v4, v5")
        A("v_mov_b32 v6, 1152")
        A("v_mov_b32 v7, 2160")
        A("v_cmp_le_u32 vcc, 9, v4")
        A("v_cndmask_b32 v6, v6, v7, vcc")
        A("v_mov_b32 v7, -288")
        A("v_cmp_le_u32 vcc, 18, v4")
        A("v_cndmask_b32 v6, v6, v7, vcc")
        A("v_lshl_add_u32 v6, v4, 4, v6")
        A("v_add_u32 v6, s35, v6")
        A("v_mul_u32_u24 v3, 3456, v3")
        A(f"v_add_u32 v{WV+j}, v3, v6")
        A("v_cmp_eq_u32 vcc, 27, v4")
        A(f"v_cndmask_b32 v{WV+j}, v{WV+j}, v8, vcc")
    A("s_lshl_b32 s37, s61, 10")
    A("s_mul_i32 s38, s33, 7168")
    A(f"s_add_u32 s38, s38, {XS_BYTES}")
    def issue(kc):
        stage = kc % 3
        A(f"s_mov_b32 s40, {128*kc}")
        A(f"s_mov_b32 s41, {221184*kc}")
        for j in range(7):
            A(f"s_add_u32 m0, s38, {stage*ST1 + 1024*j}")
            A(f"buffer_load_dwordx4 v{WV+j}, s[16:19], s41 offen lds")
        for j in range(3):
            A(f"s_add_u32 m0, s37, {stage*ST1 + 1024*j}")
            A(f"buffer_load_dwordx4 v{XV+j}, s[12:15], s40 offen lds")
        lab = A.newlabel(f"{name}_sk")
        A("s_cmp_ge_u32 s33, 2")
        A(f"s_cbranch_scc1 {lab}")
        A(f"s_add_u32 m0, s37, {stage*ST1 + 1024*3}")
        A(f"buffer_load_dwordx4 v{XV+3}, s[12:15], s40 offen lds")
        A.label(lab)
    issue(0); issue(1)
    for kc in range(9):
        A(f"s_waitcnt vmcnt({10 if kc < 8 else 0})")
        A("s_barrier")
        if kc + 2 < 9: issue(kc + 2)
    A("s_barrier")
    A("v_and_b32 v2, 15, v1")
    A("v_lshrrev_b32 v3, 4, v1")
    A.label(f"{name}_attn")
    A("s_waitcnt lgkmcnt(0)")
    A("s_barrier")
    if stamps: A("s_memrealtime s[56:57]")
    A("s_and_b32 s34, s27, 3")
    A("s_lshr_b32 s35, s27, 2")
    A("s_mul_i32 s35, s35, 3")
    A("v_lshlrev_b32 v4, 2, v3")
    A("v_sub_u32 v4, v2, v4")
    for tl in range(2):
        for r in range(4):
            d = (16 if tl == 0 else 0) - r
            A(f"v_add_u32 v5, {d}, v4" if d >= 0 else f"v_subrev_u32 v5, {-d}, v4")
            A("v_and_b32 v6, 0xfffffff1, v5")
            A(f"v_cmp_eq_u32 s[{76+2*(4*tl+r)}:{77+2*(4*tl+r)}], 0, v6")
    A("v_cmp_gt_u32 s[92:93], 2, v3")
    A("v_cmp_gt_u32 s[94:95], 3, v3")
    A("v_min_u32 v5, 2, v3")
    A("v_mul_u32_u24 v6, 48, v2")
    A("v_lshl_add_u32 v6, v5, 4, v6")
    A(f"s_mul_i32 s36, s34, {HHS}")
    A("s_mul_i32 s37, s35, 768")
    A("s_add_u32 s36, s36, s37")
    A("v_add_u32 v7, s36, v6")
    A("v_lshrrev_b32 v9, 2, v2")
    A("v_lshl_add_u32 v9, v3, 2, v9")
    A("v_mul_u32_u24 v9, 48, v9")
    A("v_and_b32 v10, 3, v2")
    A("v_lshl_add_u32 v9, v10, 3, v9")
    A("v_add_u32 v9, s36, v9")
    A("v_mul_u32_u24 v11, 144, v2")
    A("v_lshl_add_u32 v11, v3, 3, v11")
    A("s_mul_i32 s38, s34, 36")
    A("s_mul_i32 s39, s35, 2304")
    A("s_add_u32 s38, s38, s39")
    A(f"s_add_u32 s38, s38, {OB}")
    A("v_add_u32 v11, s38, v11")
    A("v_mov_b32 v12, 0xff800000")
    A("s_mov_b32 s42, 0x3eae1a4a")
    import struct, math
    cst = struct.unpack("<I", struct.pack("<f", (18 ** -0.5) * math.log2(math.e)))[0]
    A(f"s_mov_b32 s42, 0x{cst:08x}")
    A("s_or_b32 s43, s24, s35")
    B = 24
    def regs(b): return B + 40 * b
    for b in range(3):
        R = regs(b)
        A(f"ds_read_b128 {v(R,4)}, v7 offset:{8*HHS + 768*(b+1)}")
        A(f"ds_read_b128 {v(R+4,4)}, v7 offset:{768*b}")
        A(f"ds_read_b128 {v(R+8,4)}, v7 offset:{768*(b+1)}")
        A(f"ds_read_b64_tr_b16 {v(R+12,2)}, v9 offset:{4*HHS + 768*b}")
        A(f"ds_read_b64_tr_b16 {v(R+14,2)}, v9 offset:{4*HHS + 768*(b+1)}")
        A(f"ds_read_b64_tr_b16 {v(R+16,2)}, v9 offset:{4*HHS + 768*b + 32}")
        A(f"ds_read_b64_tr_b16 {v(R+18,2)}, v9 offset:{4*HHS + 768*(b+1) + 32}")
    A("s_waitcnt lgkmcnt(0)")
    for b in range(3):
        R = regs(b)
        A(f"v_cndmask_b32 v{R}, 0, v{R}, s[94:95]")
        for r in range(1, 4):
            A(f"v_cndmask_b32 v{R+r}, 0, v{R+r}, s[92:93]")
    for b in range(3):
        R = regs(b)
        A(f"v_mfma_f32_16x16x32_bf16 {v(R+20,4)}, {v(R+4,4)}, {v(R,4)}, 0")
        A(f"v_mfma_f32_16x16x32_bf16 {v(R+24,4)}, {v(R+8,4)}, {v(R,4)}, 0")
    for r in range(4):
        A(f"s_cmp_eq_u32 s43, 0")
        A(f"s_cselect_b64 s[{44+2*r}:{45+2*r}], 0, s[{76+2*r}:{77+2*r}]")
    for b in range(3):
        R = regs(b)
        S = R + 20
        for e in range(8):
            A(f"v_mul_f32 v{S+e}, s42, v{S+e}")
        for e in range(8):
            m = (44 + 2*e) if (b == 0 and e < 4) else (76 + 2*e)
            A(f"v_cndmask_b32 v{S+e}, v12, v{S+e}, s[{m}:{m+1}]")
        M = R + 28; T = R + 29
        A(f"v_max3_f32 v{M}, v{S}, v{S+1}, v{S+2}")
        A(f"v_max3_f32 v{M}, v{M}, v{S+3}, v{S+4}")
        A(f"v_max3_f32 v{M}, v{M}, v{S+5}, v{S+6}")
        A(f"v_max_f32 v{M}, v{M}, v{S+7}")
    def xlane(op, b_regs):
        for kind in ("16", "32"):
            for (M, T) in b_regs: A(f"v_mov_b32 v{T}, v{M}")
            for (M, T) in b_regs: A(f"v_permlane{kind}_swap_b32 v{M}, v{T}")
            for (M, T) in b_regs: A(f"{op} v{M}, v{M}, v{T}")
    mt = [(regs(b)+28, regs(b)+29) for b in range(3)]
    xlane("v_max_f32", mt)
    for b in range(3):
        R = regs(b); S = R + 20; M = R + 28
        for e in range(8):
            A(f"v_sub_f32 v{S+e}, v{S+e}, v{M}")
        for e in range(8):
            A(f"v_exp_f32 v{S+e}, v{S+e}")
    for b in range(3):
        R = regs(b); S = R + 20; M = R + 30
        A(f"v_add_f32 v{M}, v{S}, v{S+1}")
        for e in range(2, 8):
            A(f"v_add_f32 v{M}, v{M}, v{S+e}")
    st = [(regs(b)+30, regs(b)+31) for b in range(3)]
    xlane("v_add_f32", st)
    for b in range(3):
        R = regs(b); S = R + 20; M = R + 30
        A(f"v_rcp_f32 v{M}, v{M}")
    for b in range(3):
        R = regs(b); S = R + 20; M = R + 30
        for e in range(8):
            A(f"v_mul_f32 v{S+e}, v{S+e}, v{M}")
        for q in range(4):
            A(f"v_cvt_pk_bf16_f32 v{R+q}, v{S+2*q}, v{S+2*q+1}")
    for b in range(3):
        R = regs(b)
        A(f"v_mfma_f32_16x16x32_bf16 {v(R+32,4)}, {v(R+12,4)}, {v(R,4)}, 0")
        A(f"v_mfma_f32_16x16x32_bf16 {v(R+36,4)}, {v(R+16,4)}, {v(R,4)}, 0")
    for b in range(3):
        R = regs(b)
        A(f"v_cvt_pk_bf16_f32 v{R+4}, v{R+32}, v{R+33}")
        A(f"v_cvt_pk_bf16_f32 v{R+5}, v{R+34}, v{R+35}")
        A(f"v_cvt_pk_bf16_f32 v{R+6}, v{R+36}, v{R+37}")
        A(f"ds_write2_b32 v11, v{R+4}, v{R+5} offset0:0 offset1:1" if b == 0 else f"v_add_u32 v13, {2304*b}, v11")
        if b > 0:
            A(f"ds_write2_b32 v13, v{R+4}, v{R+5} offset0:0 offset1:1")
    A("s_mov_b64 exec, 0xffff")
    for b in range(3):
        R = regs(b)
        A(f"ds_write_b32 v11, v{R+6} offset:{2304*b+32}")
    A("s_mov_b64 exec, -1")
    A("s_waitcnt lgkmcnt(0)")
    A("s_barrier")
    A("s_mul_i32 s36, s25, 144")
    A("s_mul_i32 s37, s26, 1152")
    A("s_add_u32 s36, s36, s37")
    for rnd in range(2):
        A(f"v_add_u32 v4, {512*rnd}, v0")
        A("v_mul_u32_u24 v5, 7282, v4")
        A("v_lshrrev_b32 v5, 16, v5")
        A("v_mul_u32_u24 v6, 9, v5")
        A("v_sub_u32 v6, v4, v6")
        A("v_mul_u32_u24 v5, 1152, v5")
        A("v_lshl_add_u32 v5, v6, 4, v5")
        A(f"v_add_u32 v{14+rnd}, s36, v5")
        A(f"v_lshlrev_b32 v{16+rnd}, 4, v4")
        A(f"v_add_u32 v{16+rnd}, {OB}, v{16+rnd}")
        if rnd == 1:
            A("v_cmp_gt_u32 vcc, 864, v4")
            A(f"v_cndmask_b32 v{14+rnd}, v8, v{14+rnd}, vcc")
        A(f"ds_read_b128 {v(20+4*rnd,4)}, v{16+rnd}")
    A("s_waitcnt lgkmcnt(0)")
    for rnd in range(2):
        A(f"buffer_store_dwordx4 {v(20+4*rnd,4)}, v{14+rnd}, s[20:23], 0 offen{SC}")
    if stamps:
        A("s_waitcnt vmcnt(0)")
        A("s_memrealtime s[58:59]")
        A("s_waitcnt lgkmcnt(0)")
        stamps(A, [52, 54, 56, 58], 8)
    A.label(f"{name}_end")
    A("s_endpgm")
    return A1_LDS

WS2_BYTES = 8 * 1024
ST2 = XS_BYTES + WS2_BYTES
NST2 = 3
A2_LDS = NST2 * ST2

def gen_a2(A, name="a2_kernel", sc1=False, stamps=None, embed=False):
    SC = " sc1" if sc1 else ""
    if embed: A.label(name)
    else: A.raw(f".globl {name}\n.p2align 8\n.type {name},@function\n{name}:")
    A("s_cmp_ge_u32 s2, 171")
    A(f"s_cbranch_scc1 {name}_end")
    A("s_load_dwordx2 s[6:7], s[0:1], 16")
    A("s_load_dwordx2 s[4:5], s[0:1], 72")
    A("s_load_dwordx2 s[8:9], s[0:1], 88")
    if stamps: A("s_memrealtime s[52:53]")
    A("v_lshrrev_b32 v2, 6, v0")
    A("v_and_b32 v1, 63, v0")
    A("v_readfirstlane_b32 s27, v2")
    A("s_mul_hi_u32 s24, s2, 0x1c71c71d")
    A("s_mul_i32 s25, s24, 9")
    A("s_sub_u32 s25, s2, s25")
    A("s_mul_i32 s26, s24, 112")
    A("s_movk_i32 s64, 1152")
    A(f"v_mov_b32 v8, 0x{BIGOFF:x}")
    A("s_waitcnt lgkmcnt(0)")
    make_srd(A, 12, 8, SZ_T, WS_O)
    make_srd(A, 16, 6, 576 * 1152)
    make_srd(A, 20, 4, 2048 * 2304)
    A("s_cmp_ge_u32 s27, 4")
    A(f"s_cbranch_scc1 {name}_loader")
    A("v_and_b32 v2, 15, v1")
    A("v_lshrrev_b32 v3, 4, v1")
    A("v_lshrrev_b32 v4, 2, v2")
    A("v_lshl_add_u32 v4, v3, 3, v4")
    A("v_lshlrev_b32 v4, 7, v4")
    A("v_bfe_u32 v5, v2, 3, 1")
    A("v_and_b32 v6, 1, v3")
    A("v_lshl_add_u32 v5, v6, 1, v5")
    A("v_lshlrev_b32 v5, 1, v5")
    A("v_bfe_u32 v6, v2, 1, 1")
    A("s_lshl_b32 s28, s27, 1")
    A("v_add_u32 v6, s28, v6")
    A("v_xor_b32 v6, v6, v5")
    A("v_lshl_add_u32 v4, v6, 4, v4")
    A("v_and_b32 v6, 1, v2")
    A("v_lshl_add_u32 v4, v6, 3, v4")
    A(f"v_add_u32 v10, {XS_BYTES}, v4")
    A("v_lshrrev_b32 v6, 1, v2")
    A("v_xor_b32 v6, v6, v3")
    A("v_lshlrev_b32 v6, 4, v6")
    A("v_lshl_add_u32 v11, v2, 7, v6")
    A("v_xor_b32 v12, 64, v11")
    for st in range(1, NST2):
        for r in range(3):
            A(f"v_add_u32 v{10+3*st+r}, {st*ST2}, v{10+r}")
    ACC = 24
    FR = [56, 92]
    def reads(stage, ks, base):
        lst = []
        for h in range(2):
            lst.append(f"ds_read_b64_tr_b16 {v(base+2*h,2)}, v{10+3*stage} offset:{ks*32*128 + h*4*128}")
        for st in range(7):
            lst.append(f"ds_read_b128 {v(base+4+4*st,4)}, v{10+3*stage+1+ks} offset:{st*2048}")
        return lst
    def mfmas(base, first):
        return [f"v_mfma_f32_16x16x32_bf16 {v(ACC+4*st,4)}, {v(base,4)}, {v(base+4+4*st,4)}, {'0' if first else v(ACC+4*st,4)}" for st in range(7)]
    def interleave(mf, rd):
        i = 0
        for m in mf:
            A(m)
            for _ in range(2):
                if i < len(rd): A(rd[i]); i += 1
        while i < len(rd): A(rd[i]); i += 1
    for kc in range(9):
        stage = kc % NST2
        A("s_barrier")
        rd = reads(stage, 0, FR[0])
        if kc == 0:
            for r_ in rd: A(r_)
        else:
            interleave(mfmas(FR[1], False), rd)
        A("s_waitcnt lgkmcnt(0)")
        interleave(mfmas(FR[0], kc == 0), reads(stage, 1, FR[1]))
        A("s_waitcnt lgkmcnt(0)")
    for m in mfmas(FR[1], False): A(m)
    A("s_barrier")
    A("v_mul_u32_u24 v4, 144, v2")
    A("v_lshl_add_u32 v4, v3, 3, v4")
    A("s_lshl_b32 s28, s27, 5")
    A("v_add_u32 v4, s28, v4")
    for st in range(7):
        t = 130 + 2*st
        A(f"v_cvt_pk_bf16_f32 v{t}, v{ACC+4*st}, v{ACC+4*st+1}")
        A(f"v_cvt_pk_bf16_f32 v{t+1}, v{ACC+4*st+2}, v{ACC+4*st+3}")
        A(f"ds_write_b64 v4, {v(t,2)} offset:{16*144*st}")
    A(f"s_branch {name}_out")
    A.label(f"{name}_loader")
    A("s_sub_u32 s33, s27, 4")
    XV = 10; WV = 14
    A("s_add_u32 s29, s26, 16")
    x_loader_setup(A, XV, 29, 33)
    A("v_lshrrev_b32 v2, 3, v1")
    A("v_and_b32 v3, 7, v1")
    A("s_lshl_b32 s35, s25, 7")
    for j in range(2):
        A("s_lshl_b32 s36, s33, 4")
        A(f"s_add_u32 s36, s36, {8*j}")
        A("v_add_u32 v4, s36, v2")
        A("v_bfe_u32 v5, v4, 1, 1")
        A("v_bfe_u32 v6, v4, 3, 1")
        A("v_lshl_add_u32 v5, v6, 1, v5")
        A("v_lshlrev_b32 v5, 1, v5")
        A("v_xor_b32 v5, v5, v3")
        A("v_mul_u32_u24 v4, 1152, v4")
        A("v_lshl_add_u32 v4, v5, 4, v4")
        A(f"v_add_u32 v{WV+j}, s35, v4")
    A("s_lshl_b32 s37, s61, 10")
    A("s_lshl_b32 s38, s33, 11")
    A(f"s_add_u32 s38, s38, {XS_BYTES}")
    def issue(kc):
        stage = kc % NST2
        A(f"s_mov_b32 s40, {128*kc}")
        A(f"s_mov_b32 s41, {64*1152*kc}")
        for j in range(2):
            A(f"s_add_u32 m0, s38, {stage*ST2 + 1024*j}")
            A(f"buffer_load_dwordx4 v{WV+j}, s[16:19], s41 offen lds")
        for j in range(3):
            A(f"s_add_u32 m0, s37, {stage*ST2 + 1024*j}")
            A(f"buffer_load_dwordx4 v{XV+j}, s[12:15], s40 offen{SC} lds")
        lab = A.newlabel(f"{name}_sk")
        A("s_cmp_ge_u32 s33, 2")
        A(f"s_cbranch_scc1 {lab}")
        A(f"s_add_u32 m0, s37, {stage*ST2 + 1024*3}")
        A(f"buffer_load_dwordx4 v{XV+3}, s[12:15], s40 offen{SC} lds")
        A.label(lab)
    issue(0); issue(1)
    for kc in range(9):
        A(f"s_waitcnt vmcnt({5 if kc < 8 else 0})")
        A("s_barrier")
        if kc + 2 < 9: issue(kc + 2)
    A("s_barrier")
    A.label(f"{name}_out")
    A("s_waitcnt lgkmcnt(0)")
    A("s_barrier")
    A("s_mul_i32 s36, s26, 2304")
    A("s_lshl_b32 s37, s25, 7")
    A("s_add_u32 s36, s36, s37")
    A(f"v_mov_b32 v8, 0x{BIGOFF:x}")
    for rnd in range(2):
        A(f"v_add_u32 v4, {512*rnd}, v0")
        A("v_lshrrev_b32 v5, 3, v4")
        A("v_and_b32 v6, 7, v4")
        A("v_mul_u32_u24 v7, 144, v5")
        A(f"v_lshl_add_u32 v{16+rnd}, v6, 4, v7")
        A("v_mul_u32_u24 v5, 2304, v5")
        A("v_lshl_add_u32 v5, v6, 4, v5")
        A(f"v_add_u32 v{14+rnd}, s36, v5")
        if rnd == 1:
            A("v_cmp_gt_u32 vcc, 896, v4")
            A(f"v_cndmask_b32 v{14+rnd}, v8, v{14+rnd}, vcc")
            A(f"v_cndmask_b32 v{16+rnd}, 0, v{16+rnd}, vcc")
        A(f"ds_read_b128 {v(20+4*rnd,4)}, v{16+rnd}")
    A("s_waitcnt lgkmcnt(0)")
    for rnd in range(2):
        A(f"buffer_store_dwordx4 {v(20+4*rnd,4)}, v{14+rnd}, s[20:23], 0 offen")
    if stamps:
        A("s_waitcnt vmcnt(0)")
        A("s_memrealtime s[58:59]")
        A("s_waitcnt lgkmcnt(0)")
        stamps(A, [52, 58], 8)
    A.label(f"{name}_end")
    A("s_endpgm")
    return A2_LDS
```

```python
from asmlib import *

SZ_T = 576 * 2048 * 2
WS_UR = 0
WS_QT = SZ_T
WS_O = 2 * SZ_T

def make_srd(A, dst, ptr, nbytes, add=0):
    if add:
        A(f"s_add_u32 s{dst}, s{ptr}, {add}")
        A(f"s_addc_u32 s{dst+1}, s{ptr+1}, 0")
        A(f"s_and_b32 s{dst+1}, s{dst+1}, 0xffff")
    else:
        A(f"s_mov_b32 s{dst}, s{ptr}")
        A(f"s_and_b32 s{dst+1}, s{ptr+1}, 0xffff")
    A(f"s_mov_b32 s{dst+2}, {nbytes}")
    A(f"s_mov_b32 s{dst+3}, 0x00020000")

def gen_b1(A, name="b1_kernel", embed=False):
    if embed:
        A.label(name)
        A("v_cmp_le_u32 vcc, 256, v0")
        A(f"s_cbranch_vccnz {name}_end")
    else:
        A.raw(f".globl {name}\n.p2align 8\n.type {name},@function\n{name}:")
    A("s_cmp_ge_u32 s2, 72")
    A(f"s_cbranch_scc1 {name}_end")
    A("s_load_dwordx8 s[4:11], s[0:1], 24")
    A("s_load_dwordx2 s[12:13], s[0:1], 88")
    A("s_mul_hi_u32 s14, s2, 0x1c71c71d")
    A("s_mul_i32 s15, s14, 9")
    A("s_sub_u32 s15, s2, s15")
    A("v_and_b32 v1, 7, v0")
    A("v_lshrrev_b32 v2, 3, v0")
    A("s_lshl_b32 s40, s14, 8")
    A("v_lshl_add_u32 v3, v2, 3, s40")
    A("s_lshl_b32 s41, s15, 7")
    A("v_lshl_add_u32 v4, v1, 4, s41")
    A("s_movk_i32 s42, 1152")
    A("v_mad_u32_u24 v5, v3, s42, v4")
    A("v_add_u32 v6, 4608, v5")
    A("v_subrev_u32 v7, 3456, v5")
    A("v_subrev_u32 v8, 2304, v5")
    A("v_subrev_u32 v9, 1152, v5")
    A("s_lshl_b32 s43, s15, 9")
    A("v_lshl_add_u32 v10, v1, 6, s43")
    A("s_lshl_b32 s44, s15, 18")
    A("v_lshl_add_u32 v11, v1, 15, s44")
    A("v_lshl_add_u32 v12, v3, 1, v11")
    A("v_lshlrev_b32 v13, 1, v3")
    A("v_sub_u32 v11, v11, v13")
    A("v_add_u32 v11, 4080, v11")
    for ch in range(8):
        A(f"s_mov_b32 s{48+ch}, {ch*4096}")
    A("s_mov_b32 s56, 0x05040100")
    A("s_mov_b32 s57, 0x07060302")
    A("s_waitcnt lgkmcnt(0)")
    make_srd(A, 16, 4, SZ_T)
    make_srd(A, 20, 6, SZ_T)
    make_srd(A, 24, 8, SZ_T)
    make_srd(A, 28, 10, 576 * 8)
    make_srd(A, 32, 12, SZ_T, WS_UR)
    make_srd(A, 36, 12, SZ_T, WS_QT)
    KR, VR, QR, SH, W = 16, 60, 92, 124, 140
    KF, VF, ACC, OUT = 172, 194, 210, 226
    for i in range(4):
        A(f"buffer_load_dwordx4 {v(SH+4*i,4)}, v10, s[28:31], 0 offen offset:{16*i}")
    for j, vo in enumerate((7, 8, 9)):
        A(f"buffer_load_dwordx4 {v(KR+4*j,4)}, v{vo}, s[20:23], 0 offen")
    for i in range(8):
        vo = 5 if i < 4 else 6
        A(f"buffer_load_dwordx4 {v(KR+4*(3+i),4)}, v{vo}, s[20:23], 0 offen offset:{1152*(i%4)}")
    for i in range(8):
        vo = 5 if i < 4 else 6
        A(f"buffer_load_dwordx4 {v(VR+4*i,4)}, v{vo}, s[24:27], 0 offen offset:{1152*(i%4)}")
    for i in range(8):
        vo = 5 if i < 4 else 6
        A(f"buffer_load_dwordx4 {v(QR+4*i,4)}, v{vo}, s[16:19], 0 offen offset:{1152*(i%4)}")
    A("s_waitcnt vmcnt(27)")
    for ch in range(8):
        A(f"v_lshlrev_b32 v{W+0*8+ch}, 16, v{SH+2*ch}")
        A(f"v_and_b32 v{W+1*8+ch}, 0xffff0000, v{SH+2*ch}")
        A(f"v_lshlrev_b32 v{W+2*8+ch}, 16, v{SH+2*ch+1}")
        A(f"v_and_b32 v{W+3*8+ch}, 0xffff0000, v{SH+2*ch+1}")
    A("s_waitcnt vmcnt(8)")
    for m in range(4):
        for j in range(11):
            A(f"v_lshlrev_b32 v{KF+2*j}, 16, v{KR+4*j+m}")
            A(f"v_and_b32 v{KF+2*j+1}, 0xffff0000, v{KR+4*j+m}")
        for i in range(8):
            A(f"v_lshlrev_b32 v{VF+2*i}, 16, v{VR+4*i+m}")
            A(f"v_and_b32 v{VF+2*i+1}, 0xffff0000, v{VR+4*i+m}")
        for i in range(8):
            A(f"v_pk_mul_f32 {v(ACC+2*i,2)}, {v(W+3*8+2*m,2)}, {v(KF+2*i,2)}")
        for t in (2, 1, 0):
            for i in range(8):
                A(f"v_pk_fma_f32 {v(ACC+2*i,2)}, {v(W+t*8+2*m,2)}, {v(KF+2*(i+3-t),2)}, {v(ACC+2*i,2)}")
        for i in range(8):
            A(f"v_pk_mul_f32 {v(ACC+2*i,2)}, {v(ACC+2*i,2)}, {v(VF+2*i,2)}")
        o = OUT + 8 * (m & 1)
        for h in range(2):
            for q in range(4):
                A(f"v_cvt_pk_bf16_f32 v{o+4*h+q}, v{ACC+2*(7-2*q)+h}, v{ACC+2*(6-2*q)+h}")
        for h in range(2):
            A(f"buffer_store_dwordx4 {v(o+4*h,4)}, v11, s[32:35], s{48+2*m+h} offen")
    A("s_waitcnt vmcnt(8)")
    QO = KF
    for m in range(4):
        o = OUT + 16 + 8 * (m & 1) if False else (KF + 8 * (m & 1))
        for q in range(4):
            A(f"v_perm_b32 v{o+q}, v{QR+4*(2*q+1)+m}, v{QR+4*(2*q)+m}, s56")
            A(f"v_perm_b32 v{o+4+q}, v{QR+4*(2*q+1)+m}, v{QR+4*(2*q)+m}, s57")
        for h in range(2):
            A(f"buffer_store_dwordx4 {v(o+4*h,4)}, v12, s[36:39], s{48+2*m+h} offen")
    A.label(f"{name}_end")
    A("s_endpgm")

HC = 4160
URB = 4 * HC
WB = URB + 4608
ZS = 4160

def gen_b2(A, name="b2_kernel", embed=False):
    if embed:
        A.label(name)
        A("v_cmp_le_u32 vcc, 256, v0")
        A(f"s_cbranch_vccnz {name}_end")
    else:
        A.raw(f".globl {name}\n.p2align 8\n.type {name},@function\n{name}:")
    A("s_cmp_ge_u32 s2, 144")
    A(f"s_cbranch_scc1 {name}_end")
    A("s_load_dwordx4 s[4:7], s[0:1], 56")
    A("s_load_dwordx2 s[8:9], s[0:1], 72")
    A("s_load_dwordx2 s[10:11], s[0:1], 88")
    A("v_lshrrev_b32 v1, 6, v0")
    A("v_and_b32 v2, 63, v0")
    A("v_readfirstlane_b32 s12, v1")
    A("v_and_b32 v3, 15, v2")
    A("v_lshrrev_b32 v4, 4, v2")
    A("s_lshl_b32 s13, s2, 2")
    A("s_add_u32 s13, s13, s12")
    A("s_lshl_b32 s14, s13, 12")
    A(f"s_mul_i32 s15, s12, {WB}")
    A("s_waitcnt lgkmcnt(0)")
    A("s_add_u32 s16, s4, s14"); A("s_addc_u32 s17, s5, 0"); A("s_and_b32 s17, s17, 0xffff")
    A("s_mov_b32 s18, 4096"); A("s_mov_b32 s19, 0x00020000")
    A("s_add_u32 s20, s10, s14"); A("s_addc_u32 s21, s11, 0"); A("s_and_b32 s21, s21, 0xffff")
    A("s_mov_b32 s22, 4096"); A("s_mov_b32 s23, 0x00020000")
    A(f"s_add_u32 s24, s20, {WS_QT}"); A("s_addc_u32 s25, s21, 0"); A("s_and_b32 s25, s25, 0xffff")
    A("s_mov_b32 s26, 4096"); A("s_mov_b32 s27, 0x00020000")
    make_srd(A, 28, 8, 2048 * 2304)
    A("s_lshl_b32 s32, s13, 1")
    A("s_and_b32 s33, s32, 0xfffffffc")
    A("s_load_dword s34, s[6:7], s33")
    A("v_lshlrev_b32 v5, 4, v2")
    A("v_add_u32 v6, 4, v5")
    A("v_add_u32 v7, 8, v5")
    L = 16
    for it in range(4):
        A(f"buffer_load_dwordx4 {v(L+12*it,4)}, v5, s[16:19], 0 offen offset:{1024*it}")
        A(f"buffer_load_dwordx4 {v(L+12*it+4,4)}, v6, s[16:19], 0 offen offset:{1024*it}")
        A(f"buffer_load_dwordx4 {v(L+12*it+8,4)}, v7, s[16:19], 0 offen offset:{1024*it}")
    A("v_mov_b32 v8, 0")
    A(f"buffer_load_dwordx2 v[64:65], v8, s[16:19], 0 offen")
    U = 68
    for it in range(4):
        A(f"buffer_load_dwordx4 {v(U+4*it,4)}, v5, s[20:23], 0 offen offset:{1024*it}")
    A("v_lshlrev_b32 v9, 5, v3")
    A("v_lshl_add_u32 v9, v4, 3, v9")
    Q = 84
    for c in range(8):
        A(f"buffer_load_dwordx2 {v(Q+2*c,2)}, v9, s[24:27], 0 offen offset:{512*c}")
    A("v_add_u32 v10, s15, v5")
    T = 100
    for it in range(4):
        A(f"s_waitcnt vmcnt({12+1+4+8-3*(it+1)})")
        b = L + 12 * it
        for i in range(4):
            A(f"v_alignbit_b32 v{T+i}, v{b+4+i}, v{b+i}, 16")
        for i in range(4):
            A(f"v_alignbit_b32 v{T+4+i}, v{b+8+i}, v{b+4+i}, 16")
        off = 32 + 1024 * it
        A(f"ds_write_b128 v10, {v(b,4)} offset:{off}")
        A(f"ds_write_b128 v10, {v(T,4)} offset:{off+HC}")
        A(f"ds_write_b128 v10, {v(b+4,4)} offset:{off+2*HC}")
        A(f"ds_write_b128 v10, {v(T+4,4)} offset:{off+3*HC}")
    A("s_waitcnt vmcnt(12)")
    A("v_lshlrev_b32 v108, 16, v64")
    A("v_alignbit_b32 v109, v65, v64, 16")
    A("v_mov_b32 v110, 0"); A("v_mov_b32 v111, 0"); A("v_mov_b32 v112, 0"); A("v_mov_b32 v113, 0")
    A("v_mov_b32 v114, 0"); A("v_mov_b32 v115, 0"); A("v_mov_b32 v116, 0"); A("v_mov_b32 v117, 0")
    A("v_cmp_eq_u32 s[36:37], 1, v2")
    A("v_cmp_eq_u32 s[38:39], 2, v2")
    A("v_cmp_eq_u32 s[40:41], 3, v2")
    A("v_cndmask_b32 v117, v117, v108, s[36:37]")
    A("v_cndmask_b32 v117, v117, v64, s[38:39]")
    A("v_cndmask_b32 v117, v117, v109, s[40:41]")
    A("v_cndmask_b32 v116, v116, v108, s[40:41]")
    A(f"v_mul_u32_u24 v11, {HC}, v2")
    A("v_add_u32 v11, s15, v11")
    A("v_cmp_gt_u32 vcc, 4, v2")
    A("s_and_saveexec_b64 s[42:43], vcc")
    A("ds_write_b128 v11, v[110:113]")
    A("ds_write_b128 v11, v[114:117] offset:16")
    A("s_mov_b64 exec, s[42:43]")
    A("s_waitcnt vmcnt(8)")
    for it in range(4):
        A(f"ds_write_b128 v10, {v(U+4*it,4)} offset:{URB+1024*it}")
    A("v_cmp_gt_u32 vcc, 32, v2")
    A("s_and_saveexec_b64 s[42:43], vcc")
    A(f"ds_write_b128 v10, v[110:113] offset:{URB+4096}")
    A("s_mov_b64 exec, s[42:43]")
    A("v_add_u32 v12, 1, v3")
    A("v_and_b32 v13, 3, v12")
    A("v_lshrrev_b32 v12, 2, v12")
    A(f"v_mul_u32_u24 v13, {HC}, v13")
    A("v_lshl_add_u32 v13, v4, 4, v13")
    A("v_lshl_add_u32 v13, v12, 3, v13")
    A("v_add_u32 v13, s15, v13")
    A("v_lshlrev_b32 v14, 4, v4")
    A("v_lshlrev_b32 v15, 5, v3")
    A("v_sub_u32 v14, v14, v15")
    A(f"v_add_u32 v14, {URB+480}, v14")
    A("v_add_u32 v14, s15, v14")
    A("s_waitcnt lgkmcnt(0)")
    FA = [104, 168]
    ACC = 232 - 0
    ACC = 216
    FA = [104, 16]
    def load_frags(rho, base):
        for aa in range(8):
            A(f"ds_read_b64 {v(base+4*aa,2)}, v13 offset:{512*aa+64*rho}")
            A(f"ds_read_b64 {v(base+4*aa+2,2)}, v13 offset:{512*aa+64*rho+8}")
        for b in range(8):
            A(f"ds_read_b128 {v(base+32+4*b,4)}, v14 offset:{64*rho+512*(7-b)}")
    load_frags(0, FA[0])
    for rho in range(8):
        base = FA[rho & 1]
        A("s_waitcnt lgkmcnt(0)")
        if rho < 7:
            load_frags(rho + 1, FA[(rho + 1) & 1])
        for aa in range(8):
            for b in range(8 - aa):
                c = aa + b
                src = "0" if (rho == 0 and aa == 0) else v(ACC+4*c, 4)
                A(f"v_mfma_f32_16x16x32_bf16 {v(ACC+4*c,4)}, {v(base+4*aa,4)}, {v(base+32+4*b,4)}, {src}")
    A("s_waitcnt lgkmcnt(0)")
    A("s_and_b32 s32, s32, 2")
    A("s_lshl_b32 s32, s32, 3")
    A("s_lshr_b32 s34, s34, s32")
    A("s_lshl_b32 s34, s34, 16")
    A("v_lshlrev_b32 v15, 5, v3")
    A("v_lshl_add_u32 v15, v4, 3, v15")
    A(f"v_sub_u32 v12, {URB+504}, v15")
    A("v_add_u32 v12, s15, v12")
    UU = 16
    for c in range(8):
        A(f"ds_read_b64 {v(UU+2*c,2)}, v12 offset:{512*(7-c)}")
    A("s_waitcnt lgkmcnt(0)")
    A("s_barrier")
    A(f"s_mul_i32 s35, s12, {ZS}")
    A("v_add_u32 v15, s35, v15")
    TT = 40
    for c in range(8):
        t = TT + 16 * (c & 1)
        A(f"v_and_b32 v{t+0}, 0xffff0000, v{UU+2*c+1}")
        A(f"v_lshlrev_b32 v{t+1}, 16, v{UU+2*c+1}")
        A(f"v_and_b32 v{t+2}, 0xffff0000, v{UU+2*c}")
        A(f"v_lshlrev_b32 v{t+3}, 16, v{UU+2*c}")
        A(f"v_lshlrev_b32 v{t+4}, 16, v{Q+2*c}")
        A(f"v_and_b32 v{t+5}, 0xffff0000, v{Q+2*c}")
        A(f"v_lshlrev_b32 v{t+6}, 16, v{Q+2*c+1}")
        A(f"v_and_b32 v{t+7}, 0xffff0000, v{Q+2*c+1}")
        for r in range(4):
            A(f"v_fma_f32 v{t+r}, v{t+r}, s34, v{ACC+4*c+r}")
        for r in range(4):
            A(f"v_mul_f32 v{t+r}, v{t+r}, v{t+4+r}")
        A(f"v_cvt_pk_bf16_f32 v{t+8}, v{t+0}, v{t+1}")
        A(f"v_cvt_pk_bf16_f32 v{t+9}, v{t+2}, v{t+3}")
        A(f"ds_write_b64 v15, {v(t+8,2)} offset:{512*c}")
    A("s_waitcnt lgkmcnt(0)")
    A("s_barrier")
    A("v_lshrrev_b32 v12, 2, v3")
    A(f"v_mul_u32_u24 v12, {ZS}, v12")
    A("v_and_b32 v13, 3, v3")
    A("v_lshl_add_u32 v12, v13, 3, v12")
    A("v_lshl_add_u32 v12, v4, 5, v12")
    A("s_lshl_b32 s35, s12, 10")
    A("v_add_u32 v12, s35, v12")
    for it in range(8):
        A(f"ds_read_b64_tr_b16 {v(16+2*it,2)}, v12 offset:{128*it}")
    A("s_lshl_b32 s35, s12, 9")
    A("v_add_u32 v13, s35, v2")
    A("s_movk_i32 s36, 2304")
    A("s_lshl_b32 s37, s2, 3")
    A("s_add_u32 s37, s37, 1152")
    A("v_mul_lo_u32 v13, v13, s36")
    A("v_add_u32 v13, s37, v13")
    for it in range(8):
        A(f"s_mov_b32 s{40+it}, {64*2304*it}")
    for it in range(8):
        A(f"s_waitcnt lgkmcnt({7-it})")
        A(f"buffer_store_dwordx2 {v(16+2*it,2)}, v13, s[28:31], s{40+it} offen")
    A.label(f"{name}_end")
    A("s_endpgm")
    return 4 * WB
```

```python
import sys
from asmlib import *
from gen_common import *
from phases_b import *
from phases_a import *

A = Asm()
def entry(name):
    A.raw(f".globl {name}\n.p2align 8\n.type {name},@function\n{name}:")
entry("k1_kernel")
A("s_cmp_lt_u32 s2, 176")
A("s_cbranch_scc1 a1_body")
A("s_sub_u32 s2, s2, 176")
gen_b1(A, "b1_body", embed=True)
lds_a1 = gen_a1(A, "a1_body", embed=True)
entry("k2_kernel")
A("s_cmp_lt_u32 s2, 144")
A("s_cbranch_scc1 b2_body")
A("s_sub_u32 s2, s2, 144")
lds_a2 = gen_a2(A, "a2_body", embed=True)
lds_b2 = gen_b2(A, "b2_body", embed=True)
body = A.finalize()
out = HEADER
out += f"; @launch kernel=k1_kernel grid=(248,1,1) block=(512,1,1) lds={lds_a1}\n"
out += f"; @launch kernel=k2_kernel grid=(315,1,1) block=(512,1,1) lds={max(lds_a2, lds_b2)}\n"
out += '.amdgcn_target "amdgcn-amd-amdhsa--gfx950"\n.text\n'
out += body
out += '.section .rodata,"a"\n.p2align 6\n'
for n in ("k1_kernel", "k2_kernel"):
    out += kd(n, 256) + ".p2align 6\n"
open(sys.argv[1], "w").write(out)
```

```python
import sys, struct, math
from asmlib import *
from gen_common import HEADER, kd

NAME = "concat_heads__sliding_local_dilated__ssm_conv_h3__prompt_kernel"
SZ_T = 576 * 2048 * 2
WS_UR = 0
WS_QT = SZ_T
WS_OF = 2 * SZ_T
WS_FA = 8 << 20
WS_FB = WS_FA + 65536
STAMP_OFF = 16 << 20
BIGOFF = 0x7FFF0000

P_X, P_W, P_WO, P_Q, P_K, P_V, P_SH, P_H, P_D, P_OUT, P_DBG, P_WS = 4, 6, 8, 10, 12, 14, 16, 18, 20, 22, 24, 26
S_MY, S_WAVE, S_NA, S_NB = 28, 29, 30, 31
V_NA, V_NB = 252, 254

STAMPS = False

def make_srd(A, dst, ptr, nbytes, add=0, add_s=None):
    if add_s is not None:
        A(f"s_add_u32 s{dst}, s{ptr}, s{add_s}")
        A(f"s_addc_u32 s{dst+1}, s{ptr+1}, 0")
        if add:
            A(f"s_add_u32 s{dst}, s{dst}, {add}")
            A(f"s_addc_u32 s{dst+1}, s{dst+1}, 0")
        A(f"s_and_b32 s{dst+1}, s{dst+1}, 0xffff")
    elif add:
        A(f"s_add_u32 s{dst}, s{ptr}, {add}")
        A(f"s_addc_u32 s{dst+1}, s{ptr+1}, 0")
        A(f"s_and_b32 s{dst+1}, s{dst+1}, 0xffff")
    else:
        A(f"s_mov_b32 s{dst}, s{ptr}")
        A(f"s_and_b32 s{dst+1}, s{ptr+1}, 0xffff")
    A(f"s_mov_b32 s{dst+2}, {nbytes}")
    A(f"s_mov_b32 s{dst+3}, 0x00020000")

def stamp(A, idx, cond_wave=None):
    if not STAMPS: return
    lab = A.newlabel("stp")
    A(f"s_cmp_lg_u32 s{S_WAVE}, {0 if cond_wave is None else cond_wave}")
    A(f"s_cbranch_scc1 {lab}")
    A("s_memrealtime s[100:101]")
    A(f"s_add_u32 s96, s{P_WS}, {STAMP_OFF}")
    A(f"s_addc_u32 s97, s{P_WS+1}, 0")
    A("s_and_b32 s97, s97, 0xffff")
    A("s_mov_b32 s98, 0x100000")
    A("s_mov_b32 s99, 0x00020000")
    A("v_mov_b32 v250, s2")
    A("v_lshlrev_b32 v250, 7, v250")
    A("s_waitcnt lgkmcnt(0)")
    A("v_mov_b32 v248, s100")
    A("v_mov_b32 v249, s101")
    A(f"buffer_store_dwordx2 v[248:249], v250, s[96:99], 0 offen offset:{8*idx}")
    A.label(lab)

def get_nonce_issue(A, which):
    vn = V_NA if which == "A" else V_NB
    lab = A.newlabel("nz")
    A(f"s_cmp_lg_u32 s{S_WAVE}, 0")
    A(f"s_cbranch_scc1 {lab}")
    make_srd(A, 92, P_DBG, 256)
    A(f"v_mov_b32 v{vn}, s{S_MY}")
    A(f"v_mov_b32 v{vn+1}, 0")
    A(f"v_mov_b32 v251, {0 if which == 'A' else 128}")
    A("s_mov_b64 exec, 1")
    A(f"buffer_atomic_cmpswap v[{vn}:{vn+1}], v251, s[92:95], 0 offen sc0 sc1")
    A("s_mov_b64 exec, -1")
    A.label(lab)

def nonce_resolve(A, which):
    vn = V_NA if which == "A" else V_NB
    sn = S_NA if which == "A" else S_NB
    A(f"v_readfirstlane_b32 s{sn}, v{vn}")
    A(f"s_cmp_eq_u32 s{sn}, 0")
    A(f"s_cselect_b32 s{sn}, s{S_MY}, s{sn}")

def flag_store(A, which, s_off):
    sn = S_NA if which == "A" else S_NB
    make_srd(A, 92, P_WS, 65536, WS_FA if which == "A" else WS_FB)
    A(f"v_mov_b32 v250, s{s_off}")
    A(f"v_mov_b32 v251, s{sn}")
    A("s_mov_b64 exec, 1")
    A("buffer_store_dword v251, v250, s[92:95], 0 offen sc1")
    A("s_mov_b64 exec, -1")

def flag_poll(A, which, s_off0, s_off1=None):
    sn = S_NA if which == "A" else S_NB
    make_srd(A, 92, P_WS, 65536, WS_FA if which == "A" else WS_FB)
    A("v_and_b32 v250, 7, v1")
    A("v_lshlrev_b32 v250, 2, v250")
    if s_off1 is not None:
        A(f"v_mov_b32 v249, s{s_off0}")
        A(f"v_mov_b32 v248, s{s_off1}")
        A("v_cmp_gt_u32 vcc, 8, v1")
        A("v_cndmask_b32 v249, v248, v249, vcc")
        A("v_add_u32 v250, v250, v249")
        A("s_mov_b64 exec, 0xffff")
    else:
        A(f"v_add_u32 v250, s{s_off0}, v250")
        A("s_mov_b64 exec, 0xff")
    lp = A.newlabel("poll"); done = A.newlabel("polld")
    A("s_mov_b32 s88, 100000")
    A.label(lp)
    A("buffer_load_dword v251, v250, s[92:95], 0 offen sc1")
    A("s_waitcnt vmcnt(0)")
    A(f"v_cmp_ne_u32 vcc, s{sn}, v251")
    A("s_nop 4")
    A(f"s_cbranch_vccz {done}")
    A("s_sleep 4")
    A("s_sub_u32 s88, s88, 1")
    A("s_cmp_lg_u32 s88, 0")
    A(f"s_cbranch_scc1 {lp}")
    A.label(done)
    A("s_mov_b64 exec, -1")

XS = 14 * 1024
W1 = 32 * 1024
ST1 = XS + W1
HHS = 112 * 48
OB = 13 * HHS

def gen_a1(A):
    n = "a1"
    A("s_and_b32 s36, s2, 7")
    A("s_lshr_b32 s37, s2, 3")
    A("s_lshr_b32 s38, s36, 2")
    A("s_and_b32 s39, s36, 3")
    A("s_mul_i32 s32, s38, 11")
    A("s_lshr_b32 s40, s37, 1")
    A("s_add_u32 s32, s32, s40")
    A("s_and_b32 s40, s37, 1")
    A("s_lshl_b32 s33, s39, 1")
    A("s_add_u32 s33, s33, s40")
    A("s_mul_i32 s34, s32, 96")
    make_srd(A, 44, P_X, SZ_T)
    make_srd(A, 48, P_W, 576 * 3456)
    A(f"s_cmp_ge_u32 s{S_WAVE}, 4")
    A(f"s_cbranch_scc1 {n}_loader")
    A("s_and_b32 s40, s33, 1")
    A("s_mul_i32 s40, s40, 504")
    A(f"s_lshl_b32 s41, s{S_WAVE}, 7")
    A("s_add_u32 s40, s40, s41")
    A("v_add_u32 v2, s40, v1")
    A("v_lshlrev_b32 v2, 7, v2")
    A("s_sub_u32 s41, s34, 16")
    A("s_mul_i32 s41, s41, 1152")
    A("v_add_u32 v2, s41, v2")
    A("v_add_u32 v3, 8192, v2")
    A("buffer_load_dword v4, v2, s[44:47], 0 offen")
    A("buffer_load_dword v5, v3, s[44:47], 0 offen")
    get_nonce_issue(A, "A")
    A("v_and_b32 v2, 15, v1")
    A("v_lshrrev_b32 v3, 4, v1")
    A("v_lshrrev_b32 v6, 2, v2")
    A("v_lshl_add_u32 v7, v3, 3, v6")
    A("v_lshlrev_b32 v7, 9, v7")
    A("v_and_b32 v8, 3, v2")
    A("v_lshl_add_u32 v7, v8, 3, v7")
    A(f"v_add_u32 v7, {XS}, v7")
    A("v_and_b32 v8, 1, v3")
    A("v_lshl_add_u32 v8, v8, 2, v6")
    A("v_lshrrev_b32 v9, 1, v2")
    A("v_xor_b32 v9, v9, v3")
    A("v_lshlrev_b32 v9, 4, v9")
    XA = 22
    A(f"v_lshl_add_u32 v{XA}, v2, 7, v9")
    A(f"v_xor_b32 v{XA+1}, 64, v{XA}")
    for st in (1, 2):
        A(f"v_add_u32 v{XA+2*st}, {st*ST1}, v{XA}")
        A(f"v_add_u32 v{XA+2*st+1}, {st*ST1}, v{XA+1}")
    for w in range(3):
        A(f"s_cmp_eq_u32 s{S_WAVE}, {w}")
        A(f"s_cbranch_scc1 {n}_c{w}")
    for w in [3, 0, 1, 2]:
        A.label(f"{n}_c{w}")
        if w < 3:
            nts = [3*w, 3*w+1, 3*w+2]
            units = [(t, st) for t in nts for st in range(7)] + [(13, 2*w+1), (13, 2*w+2)]
            ants = nts + [13]
            sts = list(range(7))
        else:
            nts = [9, 10, 11, 12]
            units = [(t, st) for t in nts for st in range(1, 7)]
            ants = nts
            sts = list(range(1, 7))
        WA = 10
        for ai, t in enumerate(ants):
            A(f"v_xor_b32 v9, {t}, v8")
            A(f"v_lshl_add_u32 v{WA+ai}, v9, 5, v7")
            for st in (1, 2):
                A(f"v_add_u32 v{WA+4*st+ai}, {st*ST1}, v{WA+ai}")
        ACC = 28
        acc = {u: ACC + 4*i for i, u in enumerate(units)}
        FR = [124, 168]
        def reads(stage, ks, base):
            lst = []
            for ai, t in enumerate(ants):
                for h in range(2):
                    lst.append(f"ds_read_b64_tr_b16 {v(base+4*ai+2*h,2)}, v{WA+4*stage+ai} offset:{ks*16384 + h*2048}")
            for bi, st in enumerate(sts):
                lst.append(f"ds_read_b128 {v(base+16+4*bi,4)}, v{XA+2*stage+ks} offset:{st*2048}")
            return lst
        def mfmas(base, first):
            lst = []
            for (t, st) in units:
                ai = ants.index(t); bi = sts.index(st)
                c = "0" if first else v(acc[(t, st)], 4)
                lst.append(f"v_mfma_f32_16x16x32_bf16 {v(acc[(t,st)],4)}, {v(base+4*ai,4)}, {v(base+16+4*bi,4)}, {c}")
            return lst
        def interleave(mf, rd):
            i = 0
            for m in mf:
                A(m)
                if i < len(rd): A(rd[i]); i += 1
            while i < len(rd): A(rd[i]); i += 1
        for kc in range(9):
            stage = kc % 3
            A("s_barrier")
            if kc in (0, 1, 5):
                if w == 0: stamp(A, {0: 1, 1: 2, 5: 3}[kc])
            rd = reads(stage, 0, FR[0])
            if kc == 0:
                for r_ in rd: A(r_)
            else:
                interleave(mfmas(FR[1], False), rd)
            A("s_waitcnt lgkmcnt(0)")
            interleave(mfmas(FR[0], kc == 0), reads(stage, 1, FR[1]))
            A("s_waitcnt lgkmcnt(0)")
        for m in mfmas(FR[1], False): A(m)
        if w == 0: stamp(A, 4)
        A("s_barrier")
        A("v_mul_u32_u24 v4, 48, v2")
        for ai, t in enumerate(ants):
            for p in range(2):
                va = 124 + 2*ai + p
                c0 = 16*t + 2*p
                A("v_lshlrev_b32 v5, 2, v3")
                A(f"v_add_u32 v5, {c0}, v5")
                A("v_mul_u32_u24 v6, 3641, v5")
                A("v_lshrrev_b32 v6, 16, v6")
                A("v_mul_u32_u24 v6, 5340, v6")
                A(f"v_lshl_add_u32 v{va}, v5, 1, v6")
                A(f"v_add_u32 v{va}, v{va}, v4")
        k = 0
        for (t, st) in units:
            ai = ants.index(t)
            a0 = acc[(t, st)]
            tmp = 134 + 2*(k % 8); k += 1
            A(f"v_cvt_pk_bf16_f32 v{tmp}, v{a0}, v{a0+1}")
            A(f"v_cvt_pk_bf16_f32 v{tmp+1}, v{a0+2}, v{a0+3}")
            A(f"ds_write_b32 v{124+2*ai}, v{tmp} offset:{768*st}")
            A(f"ds_write_b32 v{124+2*ai+1}, v{tmp+1} offset:{768*st}")
        A(f"s_branch {n}_attn")
    A.label(f"{n}_loader")
    A(f"s_sub_u32 s35, s{S_WAVE}, 4")
    A("v_lshrrev_b32 v2, 3, v1")
    A("v_and_b32 v3, 7, v1")
    A("v_lshrrev_b32 v4, 4, v1")
    A("v_mul_u32_u24 v5, 1152, v2")
    A("v_xor_b32 v6, v3, v4")
    A("v_lshl_add_u32 v10, v6, 4, v5")
    A("v_xor_b32 v11, 64, v10")
    A("s_lshl_b32 s36, s35, 2")
    A("s_cmp_eq_u32 s35, 3")
    A("s_cselect_b32 s36, 11, s36")
    A("s_sub_u32 s37, s34, 16")
    A("s_mul_i32 s37, s37, 1152")
    A("s_mul_i32 s38, s36, 9216")
    A("s_add_u32 s37, s37, s38")
    A("s_lshl_b32 s38, s36, 10")
    A("s_mul_hi_u32 s39, s32, 0x1c71c71d")
    A("s_mul_i32 s39, s39, 9")
    A("s_sub_u32 s39, s32, s39")
    A("v_lshrrev_b32 v2, 5, v1")
    A("v_and_b32 v3, 31, v1")
    A("v_mul_u32_u24 v4, 3456, v2")
    A("s_mul_i32 s40, s33, 144")
    A("v_add_u32 v4, s40, v4")
    A(f"v_mov_b32 v9, 0x{BIGOFF:x}")
    WV = 12
    for var in range(4):
        j1, j4 = var & 1, var >> 1
        A(f"v_add_u32 v5, {2*j1+4*j4}, v2")
        A("v_lshlrev_b32 v5, 1, v5")
        A("v_xor_b32 v5, v5, v3")
        A("v_mov_b32 v6, 1152")
        A("v_mov_b32 v7, 2160")
        A("v_cmp_le_u32 vcc, 9, v5")
        A("v_cndmask_b32 v6, v6, v7, vcc")
        A("v_mov_b32 v7, -288")
        A("v_cmp_le_u32 vcc, 18, v5")
        A("v_cndmask_b32 v6, v6, v7, vcc")
        A("v_lshl_add_u32 v6, v5, 4, v6")
        A(f"v_add_u32 v{WV+var}, v4, v6")
        A("v_cmp_le_u32 vcc, 27, v5")
        A(f"v_cndmask_b32 v{WV+var}, v{WV+var}, v9, vcc")
    A("s_mul_i32 s40, s35, 55296")
    A("s_lshl_b32 s41, s35, 13")
    A(f"s_add_u32 s41, s41, {XS}")
    def issue(kc):
        stage = kc % 3
        A("s_lshl_b32 s42, s39, 7")
        A("s_add_u32 s42, s42, s37")
        A("s_mul_i32 s43, s39, 221184")
        A("s_add_u32 s43, s43, s40")
        for j in range(4):
            lab = None
            if j == 3:
                lab = A.newlabel(f"{n}_sk")
                A("s_cmp_ge_u32 s35, 2")
                A(f"s_cbranch_scc1 {lab}")
            A(f"s_add_u32 m0, s38, {stage*ST1 + 1024*j}")
            A(f"s_add_u32 s52, s42, {9216*j}")
            if j < 2:
                A("s_cmp_lt_i32 s52, 0")
                A(f"s_cselect_b32 s52, 0x{BIGOFF:x}, s52")
            A(f"buffer_load_dwordx4 v{16+(j&1)}, s[44:47], s52 offen lds")
            if lab: A.label(lab)
        for j in range(8):
            var = (j & 1) + 2 * (j >> 2)
            A(f"s_add_u32 m0, s41, {stage*ST1 + 1024*j}")
            A(f"s_add_u32 s52, s43, {6912*j}")
            A(f"buffer_load_dwordx4 v{WV+var}, s[48:51], s52 offen lds")
        A("s_add_u32 s39, s39, 1")
        A("s_cmp_eq_u32 s39, 9")
        A("s_cselect_b32 s39, 0, s39")
    A("s_cmp_eq_u32 s35, 3")
    A("s_cselect_b64 s[54:55], -1, 0")
    A("v_cndmask_b32 v16, v10, v11, s[54:55]")
    A("v_cndmask_b32 v17, v11, v10, s[54:55]")
    issue(0); issue(1)
    for kc in range(9):
        A(f"s_waitcnt vmcnt({11 if kc < 8 else 0})")
        A("s_barrier")
        if kc + 2 < 9: issue(kc + 2)
    A("s_barrier")
    A("v_and_b32 v2, 15, v1")
    A("v_lshrrev_b32 v3, 4, v1")
    A.label(f"{n}_attn")
    A("s_waitcnt lgkmcnt(0)")
    A("s_barrier")
    stamp(A, 5)
    A(f"s_and_b32 s36, s{S_WAVE}, 3")
    A(f"s_lshr_b32 s37, s{S_WAVE}, 2")
    A("s_mul_i32 s37, s37, 3")
    A("v_lshlrev_b32 v4, 2, v3")
    A("v_sub_u32 v4, v2, v4")
    for tl in range(2):
        for r in range(4):
            d = (16 if tl == 0 else 0) - r
            A(f"v_add_u32 v5, {d}, v4" if d >= 0 else f"v_subrev_u32 v5, {-d}, v4")
            A("v_and_b32 v6, 0xfffffff1, v5")
            A(f"v_cmp_eq_u32 s[{64+2*(4*tl+r)}:{65+2*(4*tl+r)}], 0, v6")
    A("v_cmp_gt_u32 s[80:81], 2, v3")
    A("v_cmp_gt_u32 s[82:83], 3, v3")
    A("v_min_u32 v5, 2, v3")
    A("v_mul_u32_u24 v6, 48, v2")
    A("v_lshl_add_u32 v6, v5, 4, v6")
    A(f"s_mul_i32 s38, s36, {HHS}")
    A("s_mul_i32 s39, s37, 768")
    A("s_add_u32 s38, s38, s39")
    A("v_add_u32 v7, s38, v6")
    A("v_lshrrev_b32 v9, 2, v2")
    A("v_lshl_add_u32 v9, v3, 2, v9")
    A("v_mul_u32_u24 v9, 48, v9")
    A("v_and_b32 v10, 3, v2")
    A("v_lshl_add_u32 v9, v10, 3, v9")
    A("v_add_u32 v9, s38, v9")
    A("v_mul_u32_u24 v11, 144, v2")
    A("v_lshl_add_u32 v11, v3, 3, v11")
    A("s_mul_i32 s40, s36, 36")
    A("s_mul_i32 s41, s37, 2304")
    A("s_add_u32 s40, s40, s41")
    A(f"s_add_u32 s40, s40, {OB}")
    A("v_add_u32 v11, s40, v11")
    A("v_mov_b32 v12, 0xff800000")
    cst = struct.unpack("<I", struct.pack("<f", (18 ** -0.5) * math.log2(math.e)))[0]
    A(f"s_mov_b32 s42, 0x{cst:08x}")
    A("s_or_b32 s43, s32, s37")
    B = 24
    def regs(b): return B + 40 * b
    for b in range(3):
        R = regs(b)
        A(f"ds_read_b128 {v(R,4)}, v7 offset:{8*HHS + 768*(b+1)}")
        A(f"ds_read_b128 {v(R+4,4)}, v7 offset:{768*b}")
        A(f"ds_read_b128 {v(R+8,4)}, v7 offset:{768*(b+1)}")
        A(f"ds_read_b64_tr_b16 {v(R+12,2)}, v9 offset:{4*HHS + 768*b}")
        A(f"ds_read_b64_tr_b16 {v(R+14,2)}, v9 offset:{4*HHS + 768*(b+1)}")
        A(f"ds_read_b64_tr_b16 {v(R+16,2)}, v9 offset:{4*HHS + 768*b + 32}")
        A(f"ds_read_b64_tr_b16 {v(R+18,2)}, v9 offset:{4*HHS + 768*(b+1) + 32}")
    for r in range(4):
        A(f"s_cmp_eq_u32 s43, 0")
        A(f"s_cselect_b64 s[{84+2*r}:{85+2*r}], 0, s[{64+2*r}:{65+2*r}]")
    A("s_waitcnt lgkmcnt(0)")
    for b in range(3):
        R = regs(b)
        A(f"v_cndmask_b32 v{R}, 0, v{R}, s[82:83]")
        for r in range(1, 4):
            A(f"v_cndmask_b32 v{R+r}, 0, v{R+r}, s[80:81]")
    for b in range(3):
        R = regs(b)
        A(f"v_mfma_f32_16x16x32_bf16 {v(R+20,4)}, {v(R+4,4)}, {v(R,4)}, 0")
        A(f"v_mfma_f32_16x16x32_bf16 {v(R+24,4)}, {v(R+8,4)}, {v(R,4)}, 0")
    for b in range(3):
        R = regs(b); S = R + 20
        for e in range(8):
            A(f"v_mul_f32 v{S+e}, s42, v{S+e}")
        for e in range(8):
            m = (84 + 2*e) if (b == 0 and e < 4) else (64 + 2*e)
            A(f"v_cndmask_b32 v{S+e}, v12, v{S+e}, s[{m}:{m+1}]")
        M = R + 28
        A(f"v_max3_f32 v{M}, v{S}, v{S+1}, v{S+2}")
        A(f"v_max3_f32 v{M}, v{M}, v{S+3}, v{S+4}")
        A(f"v_max3_f32 v{M}, v{M}, v{S+5}, v{S+6}")
        A(f"v_max_f32 v{M}, v{M}, v{S+7}")
    def xlane(op, b_regs):
        for kind in ("16", "32"):
            for (M, T) in b_regs: A(f"v_mov_b32 v{T}, v{M}")
            for (M, T) in b_regs: A(f"v_permlane{kind}_swap_b32 v{M}, v{T}")
            for (M, T) in b_regs: A(f"{op} v{M}, v{M}, v{T}")
    xlane("v_max_f32", [(regs(b)+28, regs(b)+29) for b in range(3)])
    for b in range(3):
        R = regs(b); S = R + 20; M = R + 28
        for e in range(8): A(f"v_sub_f32 v{S+e}, v{S+e}, v{M}")
        for e in range(8): A(f"v_exp_f32 v{S+e}, v{S+e}")
    for b in range(3):
        R = regs(b); S = R + 20; M = R + 30
        A(f"v_add_f32 v{M}, v{S}, v{S+1}")
        for e in range(2, 8): A(f"v_add_f32 v{M}, v{M}, v{S+e}")
    xlane("v_add_f32", [(regs(b)+30, regs(b)+31) for b in range(3)])
    for b in range(3):
        A(f"v_rcp_f32 v{regs(b)+30}, v{regs(b)+30}")
    for b in range(3):
        R = regs(b); S = R + 20; M = R + 30
        for e in range(8): A(f"v_mul_f32 v{S+e}, v{S+e}, v{M}")
        for q in range(4): A(f"v_cvt_pk_bf16_f32 v{R+q}, v{S+2*q}, v{S+2*q+1}")
    for b in range(3):
        R = regs(b)
        A(f"v_mfma_f32_16x16x32_bf16 {v(R+32,4)}, {v(R+12,4)}, {v(R,4)}, 0")
        A(f"v_mfma_f32_16x16x32_bf16 {v(R+36,4)}, {v(R+16,4)}, {v(R,4)}, 0")
    for b in range(3):
        R = regs(b)
        A(f"v_cvt_pk_bf16_f32 v{R+4}, v{R+32}, v{R+33}")
        A(f"v_cvt_pk_bf16_f32 v{R+5}, v{R+34}, v{R+35}")
        A(f"v_cvt_pk_bf16_f32 v{R+6}, v{R+36}, v{R+37}")
        if b > 0: A(f"v_add_u32 v13, {2304*b}, v11")
        A(f"ds_write2_b32 v{11 if b == 0 else 13}, v{R+4}, v{R+5} offset0:0 offset1:1")
    A("s_mov_b64 exec, 0xffff")
    for b in range(3):
        A(f"ds_write_b32 v11, v{regs(b)+6} offset:{2304*b+32}")
    A("s_mov_b64 exec, -1")
    A("s_waitcnt lgkmcnt(0)")
    A("s_barrier")
    stamp(A, 6)
    make_srd(A, 44, P_WS, SZ_T, WS_OF)
    A("s_mul_i32 s36, s32, 110592")
    A("s_mul_i32 s37, s33, 2304")
    A("s_add_u32 s36, s36, s37")
    A(f"v_mov_b32 v8, 0x{BIGOFF:x}")
    for rnd in range(2):
        A(f"v_add_u32 v4, {512*rnd}, v0")
        A("v_and_b32 v5, 15, v4")
        A("v_lshrrev_b32 v6, 4, v4")
        A("v_mul_u32_u24 v7, 7282, v6")
        A("v_lshrrev_b32 v7, 16, v7")
        A("v_mul_u32_u24 v9, 9, v7")
        A("v_sub_u32 v9, v6, v9")
        A("v_lshl_add_u32 v10, v7, 4, v5")
        A("v_mul_u32_u24 v10, 144, v10")
        A("v_lshl_add_u32 v10, v9, 4, v10")
        A(f"v_add_u32 v{16+rnd}, {OB}, v10")
        A("v_mul_u32_u24 v7, 18432, v7")
        A("v_lshl_add_u32 v7, v9, 8, v7")
        A("v_lshl_add_u32 v7, v5, 4, v7")
        A(f"v_add_u32 v{14+rnd}, s36, v7")
        if rnd == 1:
            A("v_cmp_gt_u32 vcc, 864, v4")
            A(f"v_cndmask_b32 v{14+rnd}, v8, v{14+rnd}, vcc")
        A(f"ds_read_b128 {v(20+4*rnd,4)}, v{16+rnd}")
    A("s_waitcnt lgkmcnt(0)")
    for rnd in range(2):
        A(f"buffer_store_dwordx4 {v(20+4*rnd,4)}, v{14+rnd}, s[44:47], 0 offen sc1")
    A("s_waitcnt vmcnt(0)")
    A("s_barrier")
    lab = A.newlabel("a1f")
    A(f"s_cmp_lg_u32 s{S_WAVE}, 0")
    A(f"s_cbranch_scc1 {lab}")
    nonce_resolve(A, "A")
    A("s_lshl_b32 s36, s32, 8")
    A("s_lshl_b32 s37, s33, 2")
    A("s_add_u32 s36, s36, s37")
    flag_store(A, "A", 36)
    A.label(lab)
    stamp(A, 7)

def gen_b1(A, s_tile):
    A.comment("===== B1 =====")
    A(f"s_mul_hi_u32 s32, s{s_tile}, 0x1c71c71d")
    A("s_mul_i32 s33, s32, 9")
    A(f"s_sub_u32 s33, s{s_tile}, s33")
    A("v_and_b32 v2, 15, v0")
    A("v_lshrrev_b32 v3, 4, v0")
    A("s_lshl_b32 s34, s32, 8")
    A("v_lshl_add_u32 v4, v3, 3, s34")
    A("s_lshl_b32 s35, s33, 7")
    A("v_lshl_add_u32 v5, v2, 3, s35")
    A("s_movk_i32 s36, 1152")
    A("v_mad_u32_u24 v6, v4, s36, v5")
    A("v_add_u32 v7, 4608, v6")
    A("v_subrev_u32 v8, 3456, v6")
    A("v_subrev_u32 v9, 2304, v6")
    A("v_subrev_u32 v10, 1152, v6")
    make_srd(A, 44, P_K, SZ_T)
    make_srd(A, 48, P_V, SZ_T)
    make_srd(A, 52, P_Q, SZ_T)
    make_srd(A, 56, P_SH, 576 * 8)
    KR, VR, QR, SH = 16, 38, 54, 70
    for j, vo in enumerate((8, 9, 10)):
        A(f"buffer_load_dwordx2 {v(KR+2*j,2)}, v{vo}, s[44:47], 0 offen")
    for i in range(8):
        A(f"buffer_load_dwordx2 {v(KR+2*(3+i),2)}, v{6 if i < 4 else 7}, s[44:47], 0 offen offset:{1152*(i%4)}")
    for i in range(8):
        A(f"buffer_load_dwordx2 {v(VR+2*i,2)}, v{6 if i < 4 else 7}, s[48:51], 0 offen offset:{1152*(i%4)}")
    A("s_lshl_b32 s37, s33, 9")
    A("v_lshl_add_u32 v11, v2, 5, s37")
    A(f"buffer_load_dwordx4 {v(SH,4)}, v11, s[56:59], 0 offen")
    A(f"buffer_load_dwordx4 {v(SH+4,4)}, v11, s[56:59], 0 offen offset:16")
    for i in range(8):
        A(f"buffer_load_dwordx2 {v(QR+2*i,2)}, v{6 if i < 4 else 7}, s[52:55], 0 offen offset:{1152*(i%4)}")
    get_nonce_issue(A, "B")
    stamp(A, 1)
    make_srd(A, 60, P_WS, SZ_T, WS_UR)
    make_srd(A, 64, P_WS, SZ_T, WS_QT)
    A("s_lshl_b32 s37, s33, 18")
    A("v_lshl_add_u32 v12, v2, 14, s37")
    A("v_lshl_add_u32 v13, v4, 1, v12")
    A("v_lshlrev_b32 v14, 1, v4")
    A("v_sub_u32 v12, v12, v14")
    A("v_add_u32 v12, 4080, v12")
    for ch in range(4): A(f"s_mov_b32 s{68+ch}, {ch*4096}")
    A("s_mov_b32 s72, 0x05040100")
    A("s_mov_b32 s73, 0x07060302")
    W = 80
    KF, VF, ACC, OUT = 96, 118, 134, 150
    A("s_waitcnt vmcnt(8)")
    stamp(A, 2)
    for ch in range(4):
        A(f"v_lshlrev_b32 v{W+0*4+ch}, 16, v{SH+2*ch}")
        A(f"v_and_b32 v{W+1*4+ch}, 0xffff0000, v{SH+2*ch}")
        A(f"v_lshlrev_b32 v{W+2*4+ch}, 16, v{SH+2*ch+1}")
        A(f"v_and_b32 v{W+3*4+ch}, 0xffff0000, v{SH+2*ch+1}")
    for m in range(2):
        for j in range(11):
            A(f"v_lshlrev_b32 v{KF+2*j}, 16, v{KR+2*j+m}")
            A(f"v_and_b32 v{KF+2*j+1}, 0xffff0000, v{KR+2*j+m}")
        for i in range(8):
            A(f"v_lshlrev_b32 v{VF+2*i}, 16, v{VR+2*i+m}")
            A(f"v_and_b32 v{VF+2*i+1}, 0xffff0000, v{VR+2*i+m}")
        for i in range(8):
            A(f"v_pk_mul_f32 {v(ACC+2*i,2)}, {v(W+3*4+2*m,2)}, {v(KF+2*i,2)}")
        for t in (2, 1, 0):
            for i in range(8):
                A(f"v_pk_fma_f32 {v(ACC+2*i,2)}, {v(W+t*4+2*m,2)}, {v(KF+2*(i+3-t),2)}, {v(ACC+2*i,2)}")
        for i in range(8):
            A(f"v_pk_mul_f32 {v(ACC+2*i,2)}, {v(ACC+2*i,2)}, {v(VF+2*i,2)}")
        o = OUT + 8 * m
        for h in range(2):
            for q in range(4):
                A(f"v_cvt_pk_bf16_f32 v{o+4*h+q}, v{ACC+2*(7-2*q)+h}, v{ACC+2*(6-2*q)+h}")
        for h in range(2):
            A(f"buffer_store_dwordx4 {v(o+4*h,4)}, v12, s[60:63], s{68+2*m+h} offen sc1")
    A("s_waitcnt vmcnt(4)")
    for m in range(2):
        o = OUT + 16 + 8 * m
        for q in range(4):
            A(f"v_perm_b32 v{o+q}, v{QR+2*(2*q+1)+m}, v{QR+2*(2*q)+m}, s72")
            A(f"v_perm_b32 v{o+4+q}, v{QR+2*(2*q+1)+m}, v{QR+2*(2*q)+m}, s73")
        for h in range(2):
            A(f"buffer_store_dwordx4 {v(o+4*h,4)}, v13, s[64:67], s{68+2*m+h} offen sc1")
    stamp(A, 3)
    A("s_waitcnt vmcnt(0)")
    A("s_barrier")
    lab = A.newlabel("b1f")
    A(f"s_cmp_lg_u32 s{S_WAVE}, 0")
    A(f"s_cbranch_scc1 {lab}")
    nonce_resolve(A, "B")
    A("s_lshl_b32 s36, s33, 8")
    A("s_lshl_b32 s37, s32, 2")
    A("s_add_u32 s36, s36, s37")
    flag_store(A, "B", 36)
    A.label(lab)
    stamp(A, 4)

HC = 4160
URB = 4 * HC
WB = URB + 4608
XCH = 4 * WB
ZS = 4160

def gen_b2(A, s_grp, sb, resolved):
    A.comment("===== B2 =====")
    A(f"s_and_b32 s32, s{S_WAVE}, 3")
    A(f"s_lshr_b32 s33, s{S_WAVE}, 2")
    A(f"s_lshl_b32 s34, s{s_grp}, 2")
    A("s_add_u32 s34, s34, s32")
    A("s_lshl_b32 s35, s34, 12")
    A(f"s_mul_i32 s36, s32, {WB}")
    make_srd(A, 44, P_H, 4096, add_s=35)
    make_srd(A, 48, P_WS, 4096, WS_UR, add_s=35)
    make_srd(A, 52, P_WS, 4096, WS_QT, add_s=35)
    make_srd(A, 56, P_OUT, 2048 * 2304)
    A("s_lshl_b32 s37, s34, 1")
    A("s_and_b32 s38, s37, 0xfffffffc")
    A(f"s_load_dword s39, s[{P_D}:{P_D+1}], s38")
    A("v_and_b32 v3, 15, v1")
    A("v_lshrrev_b32 v4, 4, v1")
    A("v_lshlrev_b32 v5, 4, v1")
    A("s_lshl_b32 s40, s33, 11")
    A("v_add_u32 v5, s40, v5")
    A("v_add_u32 v6, 4, v5")
    A("v_add_u32 v7, 8, v5")
    L = 16
    for it in range(2):
        A(f"buffer_load_dwordx4 {v(L+12*it,4)}, v5, s[44:47], 0 offen offset:{1024*it}")
        A(f"buffer_load_dwordx4 {v(L+12*it+4,4)}, v6, s[44:47], 0 offen offset:{1024*it}")
        A(f"buffer_load_dwordx4 {v(L+12*it+8,4)}, v7, s[44:47], 0 offen offset:{1024*it}")
    A("v_mov_b32 v8, 0")
    A("buffer_load_dwordx2 v[64:65], v8, s[44:47], 0 offen")
    A("v_add_u32 v10, s36, v5")
    T = 100
    for it in range(2):
        A(f"s_waitcnt vmcnt({1+3*(1-it)})")
        b = L + 12 * it
        for i in range(4): A(f"v_alignbit_b32 v{T+i}, v{b+4+i}, v{b+i}, 16")
        for i in range(4): A(f"v_alignbit_b32 v{T+4+i}, v{b+8+i}, v{b+4+i}, 16")
        off = 32 + 1024 * it
        A(f"ds_write_b128 v10, {v(b,4)} offset:{off}")
        A(f"ds_write_b128 v10, {v(T,4)} offset:{off+HC}")
        A(f"ds_write_b128 v10, {v(b+4,4)} offset:{off+2*HC}")
        A(f"ds_write_b128 v10, {v(T+4,4)} offset:{off+3*HC}")
    A("s_waitcnt vmcnt(0)")
    A("v_lshlrev_b32 v108, 16, v64")
    A("v_alignbit_b32 v109, v65, v64, 16")
    for r in range(110, 118): A(f"v_mov_b32 v{r}, 0")
    A("v_cmp_eq_u32 s[60:61], 1, v1")
    A("v_cmp_eq_u32 s[62:63], 2, v1")
    A("v_cmp_eq_u32 s[64:65], 3, v1")
    A("v_cndmask_b32 v117, v117, v108, s[60:61]")
    A("v_cndmask_b32 v117, v117, v64, s[62:63]")
    A("v_cndmask_b32 v117, v117, v109, s[64:65]")
    A("v_cndmask_b32 v116, v116, v108, s[64:65]")
    A(f"v_mul_u32_u24 v11, {HC}, v1")
    A("v_add_u32 v11, s36, v11")
    A("s_mov_b64 exec, 0xf")
    A("ds_write_b128 v11, v[110:113]")
    A("ds_write_b128 v11, v[114:117] offset:16")
    A("s_mov_b64 exec, 0xffffffff")
    A("v_lshlrev_b32 v11, 4, v1")
    A("v_add_u32 v11, s36, v11")
    A(f"ds_write_b128 v11, v[110:113] offset:{URB+4096}")
    A("s_mov_b64 exec, -1")
    stamp(A, sb + 0)
    lab = A.newlabel("b2w")
    A(f"s_cmp_lg_u32 s{S_WAVE}, 0")
    A(f"s_cbranch_scc1 {lab}")
    if not resolved:
        nonce_resolve(A, "B")
    A(f"s_lshr_b32 s41, s{s_grp}, 4")
    A("s_lshl_b32 s41, s41, 8")
    flag_poll(A, "B", 41)
    A.label(lab)
    A("s_barrier")
    stamp(A, sb + 1)
    U = 68
    for it in range(2):
        A(f"buffer_load_dwordx4 {v(U+4*it,4)}, v5, s[48:51], 0 offen offset:{1024*it} sc1")
    A("v_lshlrev_b32 v9, 5, v3")
    A("v_lshl_add_u32 v9, v4, 3, v9")
    A("s_lshl_b32 s41, s33, 11")
    A("v_add_u32 v12, s41, v9")
    Q = 84
    for c in range(4):
        A(f"buffer_load_dwordx2 {v(Q+2*c,2)}, v12, s[52:55], 0 offen offset:{512*c} sc1")
    A("v_add_u32 v12, 1, v3")
    A("v_and_b32 v13, 3, v12")
    A("v_lshrrev_b32 v12, 2, v12")
    A(f"v_mul_u32_u24 v13, {HC}, v13")
    A("v_lshl_add_u32 v13, v4, 4, v13")
    A("v_lshl_add_u32 v13, v12, 3, v13")
    A("s_lshl_b32 s41, s33, 8")
    A("s_add_u32 s41, s41, s36")
    A("v_add_u32 v13, s41, v13")
    A("v_lshlrev_b32 v14, 4, v4")
    A("v_lshlrev_b32 v15, 5, v3")
    A("v_sub_u32 v14, v14, v15")
    A(f"v_add_u32 v14, {URB+480}, v14")
    A("v_add_u32 v14, s41, v14")
    A("s_waitcnt vmcnt(4)")
    for it in range(2):
        A(f"ds_write_b128 v10, {v(U+4*it,4)} offset:{URB+1024*it}")
    A("s_waitcnt lgkmcnt(0)")
    A("s_barrier")
    stamp(A, sb + 2)
    ACC = 216
    FA = [104, 16]
    def frag_reads(rho, base):
        lst = []
        for b in range(8):
            lst.append(f"ds_read_b128 {v(base+32+4*b,4)}, v14 offset:{64*rho+512*(7-b)}")
        aa_l = []
        for aa in range(8):
            aa_l.append(f"ds_read_b64 {v(base+4*aa,2)}, v13 offset:{512*aa+64*rho}")
            aa_l.append(f"ds_read_b64 {v(base+4*aa+2,2)}, v13 offset:{512*aa+64*rho+8}")
        return aa_l[:2] + lst + aa_l[2:]
    for r_ in frag_reads(0, FA[0]): A(r_)
    for rho in range(4):
        base = FA[rho & 1]
        A("s_waitcnt lgkmcnt(0)")
        rd = frag_reads(rho + 1, FA[(rho + 1) & 1]) if rho < 3 else []
        i = 0
        for aa in range(8):
            for b in range(8 - aa):
                c = aa + b
                src = "0" if (rho == 0 and aa == 0) else v(ACC+4*c, 4)
                A(f"v_mfma_f32_16x16x32_bf16 {v(ACC+4*c,4)}, {v(base+4*aa,4)}, {v(base+32+4*b,4)}, {src}")
                if i < len(rd): A(rd[i]); i += 1
    stamp(A, sb + 3)
    A(f"s_lshl_b32 s41, s{S_WAVE}, 12")
    A("v_lshlrev_b32 v15, 4, v1")
    A(f"v_add_u32 v15, {XCH}, v15")
    A("v_add_u32 v12, s41, v15")
    A(f"s_xor_b32 s42, s{S_WAVE}, 4")
    A("s_lshl_b32 s42, s42, 12")
    A("v_add_u32 v15, s42, v15")
    A(f"v_sub_u32 v11, {URB+504}, v9")
    A("s_lshl_b32 s41, s33, 11")
    A("s_sub_u32 s41, s36, s41")
    A("v_add_u32 v11, s41, v11")
    UU = 16
    for c in range(4):
        A(f"ds_read_b64 {v(UU+2*c,2)}, v11 offset:{512*(7-c)}")
    l1 = A.newlabel("b2h1"); l2 = A.newlabel("b2x")
    A("s_cmp_eq_u32 s33, 1")
    A(f"s_cbranch_scc1 {l1}")
    for c in range(4): A(f"ds_write_b128 v12, {v(ACC+16+4*c,4)} offset:{1024*c}")
    for c in range(16): A(f"v_mov_b32 v{200+c}, v{ACC+c}")
    A(f"s_branch {l2}")
    A.label(l1)
    for c in range(4): A(f"ds_write_b128 v12, {v(ACC+4*c,4)} offset:{1024*c}")
    for c in range(16): A(f"v_mov_b32 v{200+c}, v{ACC+16+c}")
    A.label(l2)
    A("s_waitcnt lgkmcnt(0)")
    A("s_barrier")
    KP = 200
    for c in range(4): A(f"ds_read_b128 {v(32+4*c,4)}, v15 offset:{1024*c}")
    A("s_and_b32 s37, s37, 2")
    A("s_lshl_b32 s37, s37, 3")
    A("s_lshr_b32 s39, s39, s37")
    A("s_lshl_b32 s39, s39, 16")
    A(f"s_mul_i32 s41, s32, {ZS}")
    A("s_lshl_b32 s42, s33, 11")
    A("s_add_u32 s41, s41, s42")
    A("v_add_u32 v9, s41, v9")
    A("s_waitcnt vmcnt(0) lgkmcnt(0)")
    for c in range(16): A(f"v_add_f32 v{KP+c}, v{KP+c}, v{32+c}")
    TT = 48
    for c in range(4):
        t = TT + 16 * (c & 1)
        A(f"v_and_b32 v{t+0}, 0xffff0000, v{UU+2*c+1}")
        A(f"v_lshlrev_b32 v{t+1}, 16, v{UU+2*c+1}")
        A(f"v_and_b32 v{t+2}, 0xffff0000, v{UU+2*c}")
        A(f"v_lshlrev_b32 v{t+3}, 16, v{UU+2*c}")
        A(f"v_lshlrev_b32 v{t+4}, 16, v{Q+2*c}")
        A(f"v_and_b32 v{t+5}, 0xffff0000, v{Q+2*c}")
        A(f"v_lshlrev_b32 v{t+6}, 16, v{Q+2*c+1}")
        A(f"v_and_b32 v{t+7}, 0xffff0000, v{Q+2*c+1}")
        for r in range(4): A(f"v_fma_f32 v{t+r}, v{t+r}, s39, v{KP+4*c+r}")
        for r in range(4): A(f"v_mul_f32 v{t+r}, v{t+r}, v{t+4+r}")
        A(f"v_cvt_pk_bf16_f32 v{t+8}, v{t+0}, v{t+1}")
        A(f"v_cvt_pk_bf16_f32 v{t+9}, v{t+2}, v{t+3}")
        A(f"ds_write_b64 v9, {v(t+8,2)} offset:{512*c}")
    A("s_waitcnt lgkmcnt(0)")
    A("s_barrier")
    A("v_lshrrev_b32 v12, 2, v3")
    A(f"v_mul_u32_u24 v12, {ZS}, v12")
    A("v_and_b32 v13, 3, v3")
    A("v_lshl_add_u32 v12, v13, 3, v12")
    A("v_lshl_add_u32 v12, v4, 5, v12")
    A(f"s_lshl_b32 s41, s{S_WAVE}, 9")
    A("v_add_u32 v12, s41, v12")
    for it in range(4):
        A(f"ds_read_b64_tr_b16 {v(16+2*it,2)}, v12 offset:{128*it}")
    A(f"s_lshl_b32 s41, s{S_WAVE}, 8")
    A("v_add_u32 v13, s41, v1")
    A("s_movk_i32 s42, 2304")
    A(f"s_lshl_b32 s43, s{s_grp}, 3")
    A("s_add_u32 s43, s43, 1152")
    A("v_mul_lo_u32 v13, v13, s42")
    A("v_add_u32 v13, s43, v13")
    for it in range(4): A(f"s_mov_b32 s{60+it}, {64*2304*it}")
    for it in range(4):
        A(f"s_waitcnt lgkmcnt({3-it})")
        A(f"buffer_store_dwordx2 {v(16+2*it,2)}, v13, s[56:59], s{60+it} offen")
    stamp(A, sb + 4)
    A("s_barrier")

WO_B = 72 * 1024

def gen_a2(A, s_tile, sb, resolvedA):
    A.comment("===== A2 =====")
    A(f"s_mul_hi_u32 s32, s{s_tile}, 0x1c71c71d")
    A("s_mul_i32 s33, s32, 9")
    A(f"s_sub_u32 s33, s{s_tile}, s33")
    make_srd(A, 44, P_WO, 576 * 1152)
    make_srd(A, 48, P_WS, SZ_T, WS_OF)
    make_srd(A, 52, P_OUT, 2048 * 2304)
    A("v_lshrrev_b32 v2, 3, v1")
    A("v_and_b32 v3, 7, v1")
    A("v_bfe_u32 v4, v1, 4, 1")
    A("v_lshlrev_b32 v4, 1, v4")
    A("v_xor_b32 v4, v4, v3")
    A("v_mul_u32_u24 v5, 1152, v2")
    A("v_lshl_add_u32 v5, v4, 4, v5")
    A("s_lshl_b32 s34, s33, 7")
    A("v_add_u32 v10, s34, v5")
    A("v_xor_b32 v11, 64, v10")
    A(f"s_mul_i32 s35, s{S_WAVE}, 9")
    A("s_and_b32 s36, s35, 1")
    A("s_cmp_eq_u32 s36, 1")
    A("s_cselect_b64 s[56:57], -1, 0")
    A("v_cndmask_b32 v12, v10, v11, s[56:57]")
    A("v_cndmask_b32 v13, v11, v10, s[56:57]")
    A("s_mul_i32 s36, s35, 9216")
    A("s_lshl_b32 s37, s35, 10")
    for j in range(9):
        A(f"s_add_u32 m0, s37, {1024*j}")
        A(f"s_add_u32 s38, s36, {9216*j}")
        A(f"buffer_load_dwordx4 v{12+(j&1)}, s[44:47], s38 offen lds")
    stamp(A, sb + 0)
    lab = A.newlabel("a2w")
    A(f"s_cmp_lg_u32 s{S_WAVE}, 0")
    A(f"s_cbranch_scc1 {lab}")
    if not resolvedA:
        nonce_resolve(A, "A")
    A("s_mul_i32 s38, s32, 112")
    A("s_mul_hi_u32 s39, s38, 0x2aaaaab")
    A("s_add_u32 s38, s38, 111")
    A("s_mul_hi_u32 s40, s38, 0x2aaaaab")
    A("s_min_u32 s40, s40, 21")
    A("s_lshl_b32 s39, s39, 8")
    A("s_lshl_b32 s40, s40, 8")
    flag_poll(A, "A", 39, 40)
    A.label(lab)
    A("s_waitcnt vmcnt(0)")
    A("s_barrier")
    stamp(A, sb + 1)
    end = A.newlabel("a2end")
    A(f"s_cmp_eq_u32 s{S_WAVE}, 7")
    A(f"s_cbranch_scc1 {end}")
    A("s_mul_i32 s38, s32, 7")
    A(f"s_add_u32 s38, s38, s{S_WAVE}")
    A("s_mul_i32 s39, s38, 18432")
    A("v_lshlrev_b32 v2, 4, v1")
    A("v_add_u32 v2, s39, v2")
    A("v_add_u32 v3, 4096, v2"); A("v_add_u32 v4, 8192, v2"); A("v_add_u32 v5, 12288, v2"); A("v_add_u32 v6, 16384, v2")
    BF = 24
    for ks in range(18):
        A(f"buffer_load_dwordx4 {v(BF+4*ks,4)}, v{2+ks//4}, s[48:51], 0 offen offset:{1024*(ks%4)} sc1")
    A("v_and_b32 v7, 15, v1")
    A("v_lshrrev_b32 v8, 4, v1")
    A("v_lshrrev_b32 v9, 2, v7")
    A("v_lshl_add_u32 v9, v8, 3, v9")
    A("v_lshlrev_b32 v9, 7, v9")
    A("v_and_b32 v10, 1, v7")
    A("v_lshl_add_u32 v9, v10, 3, v9")
    A("v_bfe_u32 v10, v7, 3, 1")
    A("v_and_b32 v11, 1, v8")
    A("v_lshl_add_u32 v10, v11, 1, v10")
    A("v_lshlrev_b32 v10, 1, v10")
    A("v_bfe_u32 v11, v7, 1, 1")
    for nt in range(4):
        A(f"v_add_u32 v12, {2*nt}, v11")
        A("v_xor_b32 v12, v12, v10")
        A(f"v_lshl_add_u32 v{16+nt}, v12, 4, v9")
        A(f"v_add_u32 v{20+nt}, 36864, v{16+nt}")
    ACC = 96
    AF = [112, 128]
    def reads(ks, base):
        lst = []
        for nt in range(4):
            va = (16 if ks < 9 else 20) + nt
            for h in range(2):
                lst.append(f"ds_read_b64_tr_b16 {v(base+4*nt+2*h,2)}, v{va} offset:{(ks%9)*4096 + h*512}")
        return lst
    for r_ in reads(0, AF[0]): A(r_)
    for ks in range(18):
        rd = reads(ks + 1, AF[(ks+1) & 1]) if ks < 17 else []
        A(f"s_waitcnt vmcnt({17-ks}) lgkmcnt(0)")
        i = 0
        for nt in range(4):
            c = "0" if ks == 0 else v(ACC+4*nt, 4)
            A(f"v_mfma_f32_16x16x32_bf16 {v(ACC+4*nt,4)}, {v(AF[ks&1]+4*nt,4)}, {v(BF+4*ks,4)}, {c}")
            for _ in range(2):
                if i < len(rd): A(rd[i]); i += 1
    stamp(A, sb + 2)
    A(f"s_mul_i32 s40, s{S_WAVE}, 2304")
    A(f"s_add_u32 s40, s40, {WO_B}")
    A("v_mul_u32_u24 v9, 144, v7")
    A("v_lshl_add_u32 v9, v8, 3, v9")
    A("v_add_u32 v9, s40, v9")
    for nt in range(4):
        A(f"v_cvt_pk_bf16_f32 v{112+2*nt}, v{ACC+4*nt}, v{ACC+4*nt+1}")
        A(f"v_cvt_pk_bf16_f32 v{113+2*nt}, v{ACC+4*nt+2}, v{ACC+4*nt+3}")
        A(f"ds_write_b64 v9, {v(112+2*nt,2)} offset:{32*nt}")
    A("v_lshrrev_b32 v10, 3, v1")
    A("v_and_b32 v11, 7, v1")
    A("v_mul_u32_u24 v12, 144, v10")
    A("v_lshl_add_u32 v12, v11, 4, v12")
    A("v_add_u32 v12, s40, v12")
    A("s_waitcnt lgkmcnt(0)")
    A("ds_read_b128 v[24:27], v12")
    A("ds_read_b128 v[28:31], v12 offset:1152")
    A("s_mul_i32 s39, s38, 36864")
    A("s_lshl_b32 s41, s33, 7")
    A("s_add_u32 s39, s39, s41")
    A("v_mul_u32_u24 v13, 2304, v10")
    A("v_lshl_add_u32 v13, v11, 4, v13")
    A("v_add_u32 v13, s39, v13")
    A("v_add_u32 v14, 18432, v13")
    A("s_waitcnt lgkmcnt(0)")
    A("buffer_store_dwordx4 v[24:27], v13, s[52:55], 0 offen")
    A("buffer_store_dwordx4 v[28:31], v14, s[52:55], 0 offen")
    A.label(end)
    stamp(A, sb + 3)

def build(path, stamps=False):
    global STAMPS
    STAMPS = stamps
    A = Asm()
    A.raw(f".globl {NAME}\n.p2align 8\n.type {NAME},@function\n{NAME}:")
    A("s_cmp_ge_u32 s2, 256")
    A("s_cbranch_scc1 L_end")
    A("s_load_dwordx16 s[4:19], s[0:1], 0")
    A("s_load_dwordx8 s[20:27], s[0:1], 64")
    A("s_memrealtime s[30:31]")
    A("v_lshrrev_b32 v2, 6, v0")
    A("v_and_b32 v1, 63, v0")
    A(f"v_readfirstlane_b32 s{S_WAVE}, v2")
    A("s_waitcnt lgkmcnt(0)")
    A(f"s_or_b32 s{S_MY}, s30, 1")
    stamp(A, 0)
    A("s_cmp_ge_u32 s2, 176")
    A("s_cbranch_scc1 L_bset")
    gen_a1(A)
    A("s_cmp_lt_u32 s2, 64")
    A("s_cbranch_scc1 L_a_b2")
    A("s_sub_u32 s90, s2, 64")
    A("s_barrier")
    A.label("L_a2")
    gen_a2(A, 90, 8, resolvedA=True)
    A("s_branch L_end")
    A.label("L_a_b2")
    A("s_and_b32 s90, s2, 7")
    A("s_mul_i32 s90, s90, 18")
    A("s_lshr_b32 s91, s2, 3")
    A("s_add_u32 s90, s90, s91")
    A("s_add_u32 s90, s90, 10")
    get_nonce_issue(A, "B")
    A("s_barrier")
    gen_b2(A, 90, 8, resolved=False)
    A("s_branch L_end")
    A.label("L_bset")
    A("s_sub_u32 s91, s2, 176")
    A("s_cmp_ge_u32 s91, 72")
    A("s_cbranch_scc1 L_b_nob1")
    gen_b1(A, 91)
    A("s_branch L_b_b2")
    A.label("L_b_nob1")
    get_nonce_issue(A, "B")
    A("s_waitcnt vmcnt(0)")
    lab = A.newlabel("bz")
    A(f"s_cmp_lg_u32 s{S_WAVE}, 0")
    A(f"s_cbranch_scc1 {lab}")
    nonce_resolve(A, "B")
    A.label(lab)
    A.label("L_b_b2")
    get_nonce_issue(A, "A")
    A("s_and_b32 s90, s91, 7")
    A("s_mul_i32 s90, s90, 18")
    A("s_lshr_b32 s89, s91, 3")
    A("s_add_u32 s90, s90, s89")
    gen_b2(A, 90, 5, resolved=True)
    A("s_add_u32 s90, s91, 112")
    A("s_cmp_ge_u32 s90, 171")
    A("s_cbranch_scc1 L_end")
    gen_a2(A, 90, 10, resolvedA=False)
    A.label("L_end")
    A("s_endpgm")
    body = A.finalize()
    lds = max(3 * ST1, XCH + 8 * 4096, WO_B + 8 * 2304)
    out = HEADER + f"; @launch grid=(256,1,1) block=(512,1,1) lds={lds}\n"
    out += '.amdgcn_target "amdgcn-amd-amdhsa--gfx950"\n.text\n' + body
    out += '.section .rodata,"a"\n.p2align 6\n' + kd(NAME, 256)
    open(path, "w").write(out)

if __name__ == "__main__":
    build(sys.argv[1], stamps=(len(sys.argv) > 2 and sys.argv[2] == "stamps"))
```

```python
import sys, struct, math
from asmlib import *
from gen_common import HEADER, kd

NAME = "concat_heads__sliding_local_dilated__ssm_conv_h3__prompt_kernel"
SZ_T = 576 * 2048 * 2
WS_UR = 0
WS_QT = SZ_T
WS_OF = 2 * SZ_T
WS_FA = 8 << 20
WS_FB = WS_FA + 65536
STAMP_OFF = 16 << 20
BIGOFF = 0x7FFF0000

P_X, P_W, P_WO, P_Q, P_K, P_V, P_SH, P_H, P_D, P_OUT, P_DBG, P_WS = 4, 6, 8, 10, 12, 14, 16, 18, 20, 22, 24, 26
S_MY, S_WAVE, S_NA, S_NB = 28, 29, 30, 31
V_NA, V_NB = 252, 254
STAMPS = False
OPT = {}

def make_srd(A, dst, ptr, nbytes, add=0, add_s=None):
    if add_s is not None:
        A(f"s_add_u32 s{dst}, s{ptr}, s{add_s}")
        A(f"s_addc_u32 s{dst+1}, s{ptr+1}, 0")
        if add:
            A(f"s_add_u32 s{dst}, s{dst}, {add}")
            A(f"s_addc_u32 s{dst+1}, s{dst+1}, 0")
        A(f"s_and_b32 s{dst+1}, s{dst+1}, 0xffff")
    elif add:
        A(f"s_add_u32 s{dst}, s{ptr}, {add}")
        A(f"s_addc_u32 s{dst+1}, s{ptr+1}, 0")
        A(f"s_and_b32 s{dst+1}, s{dst+1}, 0xffff")
    else:
        A(f"s_mov_b32 s{dst}, s{ptr}")
        A(f"s_and_b32 s{dst+1}, s{ptr+1}, 0xffff")
    A(f"s_mov_b32 s{dst+2}, {nbytes}")
    A(f"s_mov_b32 s{dst+3}, 0x00020000")

def stamp(A, idx):
    if not STAMPS: return
    A("s_memrealtime s[100:101]")
    A("s_waitcnt lgkmcnt(0)")
    A(f"v_writelane_b32 v246, s100, {idx}")

def stamp_flush(A):
    if not STAMPS: return
    A("s_memtime s[100:101]")
    A("s_waitcnt lgkmcnt(0)")
    A("v_writelane_b32 v246, s100, 17")
    A("s_memrealtime s[100:101]")
    A("s_waitcnt lgkmcnt(0)")
    A("v_writelane_b32 v246, s100, 18")
    lab = A.newlabel("stf")
    A(f"s_and_b32 s96, s{S_WAVE}, 3")
    A("s_cmp_lg_u32 s96, 0")
    A(f"s_cbranch_scc1 {lab}")
    A(f"s_lshr_b32 s100, s{S_WAVE}, 2")
    A("s_lshl_b32 s100, s100, 8")
    A("s_add_u32 s100, s100, s2")
    A("s_lshl_b32 s100, s100, 7")
    A(f"s_add_u32 s96, s{P_WS}, {STAMP_OFF}")
    A(f"s_addc_u32 s97, s{P_WS+1}, 0")
    A("s_and_b32 s97, s97, 0xffff")
    A("s_mov_b32 s98, 0x100000")
    A("s_mov_b32 s99, 0x00020000")
    A("v_lshlrev_b32 v250, 2, v1")
    A("v_add_u32 v250, s100, v250")
    A("s_mov_b64 exec, 0xffffffff")
    A("buffer_store_dword v246, v250, s[96:99], 0 offen")
    A("s_mov_b64 exec, -1")
    A.label(lab)

def get_nonce_issue(A, which):
    vn = V_NA if which == "A" else V_NB
    lab = A.newlabel("nz")
    A(f"s_cmp_lg_u32 s{S_WAVE}, 0")
    A(f"s_cbranch_scc1 {lab}")
    make_srd(A, 92, P_DBG, 256)
    A(f"v_mov_b32 v{vn}, s{S_MY}")
    A(f"v_mov_b32 v{vn+1}, 0")
    A(f"v_mov_b32 v251, {0 if which == 'A' else 128}")
    A("s_mov_b64 exec, 1")
    A(f"buffer_atomic_cmpswap v[{vn}:{vn+1}], v251, s[92:95], 0 offen sc0 sc1")
    A("s_mov_b64 exec, -1")
    A.label(lab)

def nonce_resolve(A, which):
    vn = V_NA if which == "A" else V_NB
    sn = S_NA if which == "A" else S_NB
    A(f"v_readfirstlane_b32 s{sn}, v{vn}")
    A(f"s_cmp_eq_u32 s{sn}, 0")
    A(f"s_cselect_b32 s{sn}, s{S_MY}, s{sn}")

def flag_store(A, which, s_off):
    sn = S_NA if which == "A" else S_NB
    make_srd(A, 92, P_WS, 65536, WS_FA if which == "A" else WS_FB)
    A(f"v_mov_b32 v250, s{s_off}")
    A(f"v_mov_b32 v251, s{sn}")
    A("s_mov_b64 exec, 1")
    A("buffer_store_dword v251, v250, s[92:95], 0 offen sc1")
    A("s_mov_b64 exec, -1")

def flag_poll(A, which, s_off0, s_off1=None):
    sn = S_NA if which == "A" else S_NB
    make_srd(A, 92, P_WS, 65536, WS_FA if which == "A" else WS_FB)
    A("v_and_b32 v250, 7, v1")
    A("v_lshlrev_b32 v250, 2, v250")
    if s_off1 is not None:
        A(f"v_mov_b32 v249, s{s_off0}")
        A(f"v_mov_b32 v248, s{s_off1}")
        A("v_cmp_gt_u32 vcc, 8, v1")
        A("v_cndmask_b32 v249, v248, v249, vcc")
        A("v_add_u32 v250, v250, v249")
        A("s_mov_b64 exec, 0xffff")
    else:
        A(f"v_add_u32 v250, s{s_off0}, v250")
        A("s_mov_b64 exec, 0xff")
    lp = A.newlabel("poll"); done = A.newlabel("polld")
    A("s_mov_b32 s88, 100000")
    A.label(lp)
    A("buffer_load_dword v251, v250, s[92:95], 0 offen sc1")
    A("s_waitcnt vmcnt(0)")
    A(f"v_cmp_ne_u32 vcc, s{sn}, v251")
    A("s_nop 4")
    A(f"s_cbranch_vccz {done}")
    A("s_sleep 2")
    A("s_sub_u32 s88, s88, 1")
    A("s_cmp_lg_u32 s88, 0")
    A(f"s_cbranch_scc1 {lp}")
    A.label(done)
    A("s_mov_b64 exec, -1")

def a_prefetch_setup(A, vx, vw, t0, srd_x, srd_w):
    A("s_and_b32 s96, s2, 7")
    A("s_lshr_b32 s97, s2, 3")
    A("s_lshr_b32 s98, s96, 2")
    A("s_and_b32 s96, s96, 3")
    A("s_mul_i32 s98, s98, 1056")
    A("s_mul_i32 s99, s97, 34")
    A("s_add_u32 s98, s98, s99")
    A("s_sub_u32 s98, s98, 16")
    A(f"v_add_u32 v{t0}, s98, v1")
    A("s_movk_i32 s99, 1152")
    A(f"v_mul_lo_u32 v{vx}, v{t0}, s99")
    A(f"v_mov_b32 v{t0+1}, 0x{BIGOFF:x}")
    A(f"v_cmp_gt_i32 vcc, 0, v{t0}")
    A(f"v_cndmask_b32 v{vx}, v{vx}, v{t0+1}, vcc")
    A(f"v_cmp_le_u32 vcc, 34, v1")
    A(f"v_cndmask_b32 v{vx}, v{vx}, v{t0+1}, vcc")
    A("s_mul_i32 s99, s97, 18")
    A(f"v_add_u32 v{t0}, s99, v1")
    A(f"v_mul_u32_u24 v{t0+2}, 7282, v{t0}")
    A(f"v_lshrrev_b32 v{t0+2}, 16, v{t0+2}")
    A(f"v_mul_u32_u24 v{t0+3}, 9, v{t0+2}")
    A(f"v_sub_u32 v{t0+3}, v{t0}, v{t0+3}")
    A(f"v_mul_u32_u24 v{t0+4}, 21846, v{t0+3}")
    A(f"v_lshrrev_b32 v{t0+4}, 16, v{t0+4}")
    A(f"v_mul_u32_u24 v{vw}, 3456, v{t0+2}")
    A(f"v_mul_u32_u24 v{t0+2}, 1152, v{t0+4}")
    A(f"v_add_u32 v{vw}, v{vw}, v{t0+2}")
    A(f"v_mul_u32_u24 v{t0+4}, 3, v{t0+4}")
    A(f"v_sub_u32 v{t0+3}, v{t0+3}, v{t0+4}")
    A(f"v_lshl_add_u32 v{vw}, v{t0+3}, 7, v{vw}")
    A("s_lshl_b32 s96, s96, 8")
    A(f"v_add_u32 v{vw}, s96, v{vw}")
    A(f"v_cmp_le_u32 vcc, 18, v1")
    A(f"v_cndmask_b32 v{vw}, v{vw}, v{t0+1}, vcc")

def a_prefetch_issue(A, vx, vw, s_kc, srd_x, srd_w, vd):
    A(f"s_lshl_b32 s96, s{s_kc}, 7")
    A(f"s_mul_i32 s97, s{s_kc}, 221184")
    A(f"buffer_load_dword v{vd}, v{vw}, s[{srd_w}:{srd_w+3}], s97 offen")
    A(f"buffer_load_dword v{vd+1}, v{vx}, s[{srd_x}:{srd_x+3}], s96 offen")

XS = 14 * 1024
W1 = 32 * 1024
ST1 = XS + W1
HHS = 112 * 48
OB = 13 * HHS
V_KQ, V_VT, V_OW, V_NINF, V_OG, V_OL = 220, 221, 222, 225, 226, 228

def attn_setup(A, t0=4):
    a, b, c, d = t0, t0+1, t0+2, t0+3
    A(f"s_and_b32 s56, s{S_WAVE}, 3")
    A(f"s_lshr_b32 s57, s{S_WAVE}, 2")
    A("s_mul_i32 s57, s57, 3")
    A(f"v_lshlrev_b32 v{a}, 2, v3")
    A(f"v_sub_u32 v{a}, v2, v{a}")
    for tl in range(2):
        for r in range(4):
            dd = (16 if tl == 0 else 0) - r
            A(f"v_add_u32 v{b}, {dd}, v{a}" if dd >= 0 else f"v_subrev_u32 v{b}, {-dd}, v{a}")
            A(f"v_and_b32 v{b}, 0xfffffff1, v{b}")
            A(f"v_cmp_eq_u32 s[{64+2*(4*tl+r)}:{65+2*(4*tl+r)}], 0, v{b}")
    A("v_cmp_gt_u32 s[80:81], 2, v3")
    A("v_cmp_gt_u32 s[82:83], 3, v3")
    A("s_or_b32 s58, s32, s57")
    for r in range(4):
        A(f"s_cmp_eq_u32 s58, 0")
        A(f"s_cselect_b64 s[{84+2*r}:{85+2*r}], 0, s[{64+2*r}:{65+2*r}]")
    A(f"v_min_u32 v{b}, 2, v3")
    A(f"v_mul_u32_u24 v{c}, 48, v2")
    A(f"v_lshl_add_u32 v{c}, v{b}, 4, v{c}")
    A(f"s_mul_i32 s58, s56, {HHS}")
    A("s_mul_i32 s59, s57, 768")
    A("s_add_u32 s58, s58, s59")
    A(f"v_add_u32 v{V_KQ}, s58, v{c}")
    A(f"v_lshrrev_b32 v{b}, 2, v2")
    A(f"v_lshl_add_u32 v{b}, v3, 2, v{b}")
    A(f"v_mul_u32_u24 v{b}, 48, v{b}")
    A(f"v_and_b32 v{c}, 3, v2")
    A(f"v_lshl_add_u32 v{b}, v{c}, 3, v{b}")
    A(f"v_add_u32 v{V_VT}, s58, v{b}")
    A(f"v_mul_u32_u24 v{b}, 144, v2")
    A(f"v_lshl_add_u32 v{b}, v3, 3, v{b}")
    A("s_mul_i32 s58, s56, 36")
    A("s_mul_i32 s59, s57, 2304")
    A("s_add_u32 s58, s58, s59")
    A(f"s_add_u32 s58, s58, {OB}")
    A(f"v_add_u32 v{V_OW}, s58, v{b}")
    A(f"v_add_u32 v{V_OW+1}, 2304, v{V_OW}")
    A(f"v_add_u32 v{V_OW+2}, 4608, v{V_OW}")
    A(f"v_mov_b32 v{V_NINF}, 0xff800000")
    A("s_mul_i32 s58, s32, 110592")
    A("s_mul_i32 s59, s33, 2304")
    A("s_add_u32 s58, s58, s59")
    for rnd in range(2):
        A(f"v_add_u32 v{a}, {512*rnd}, v0")
        A(f"v_and_b32 v{b}, 15, v{a}")
        A(f"v_lshrrev_b32 v{c}, 4, v{a}")
        A(f"v_mul_u32_u24 v{d}, 7282, v{c}")
        A(f"v_lshrrev_b32 v{d}, 16, v{d}")
        A(f"v_mul_u32_u24 v{d+1}, 9, v{d}")
        A(f"v_sub_u32 v{c}, v{c}, v{d+1}")
        A(f"v_lshl_add_u32 v{d+1}, v{d}, 4, v{b}")
        A(f"v_mul_u32_u24 v{d+1}, 144, v{d+1}")
        A(f"v_lshl_add_u32 v{d+1}, v{c}, 4, v{d+1}")
        A(f"v_add_u32 v{V_OL+rnd}, {OB}, v{d+1}")
        A(f"v_mul_u32_u24 v{d}, 18432, v{d}")
        A(f"v_lshl_add_u32 v{d}, v{c}, 8, v{d}")
        A(f"v_lshl_add_u32 v{d}, v{b}, 4, v{d}")
        A(f"v_add_u32 v{V_OG+rnd}, s58, v{d}")
        if rnd == 1:
            A(f"v_mov_b32 v{b}, 0x{BIGOFF:x}")
            A(f"v_cmp_gt_u32 vcc, 864, v{a}")
            A(f"v_cndmask_b32 v{V_OG+rnd}, v{b}, v{V_OG+rnd}, vcc")

def gen_a1(A):
    n = "a1"
    A("s_and_b32 s36, s2, 7")
    A("s_lshr_b32 s37, s2, 3")
    A("s_lshr_b32 s38, s36, 2")
    A("s_and_b32 s39, s36, 3")
    A("s_mul_i32 s32, s38, 11")
    A("s_lshr_b32 s40, s37, 1")
    A("s_add_u32 s32, s32, s40")
    A("s_and_b32 s40, s37, 1")
    A("s_lshl_b32 s33, s39, 1")
    A("s_add_u32 s33, s33, s40")
    A("s_mul_i32 s34, s32, 96")
    make_srd(A, 44, P_X, SZ_T)
    make_srd(A, 48, P_W, 576 * 3456)
    A(f"s_cmp_ge_u32 s{S_WAVE}, 4")
    A(f"s_cbranch_scc1 {n}_loader")
    a_prefetch_setup(A, 10, 11, 4, 44, 48)
    for rep in range(3):
        lab = A.newlabel("pf")
        A(f"s_add_u32 s40, s{S_WAVE}, {4*rep}")
        if rep == 2:
            A("s_cmp_gt_u32 s40, 8")
            A(f"s_cbranch_scc1 {lab}")
        a_prefetch_issue(A, 10, 11, 40, 44, 48, 240 + 2*rep)
        A.label(lab)
    get_nonce_issue(A, "A")
    A("v_and_b32 v2, 15, v1")
    A("v_lshrrev_b32 v3, 4, v1")
    attn_setup(A)
    A("v_lshrrev_b32 v6, 2, v2")
    A("v_lshl_add_u32 v7, v3, 3, v6")
    A("v_lshlrev_b32 v7, 9, v7")
    A("v_and_b32 v8, 3, v2")
    A("v_lshl_add_u32 v7, v8, 3, v7")
    A(f"v_add_u32 v7, {XS}, v7")
    A("v_and_b32 v8, 1, v3")
    A("v_lshl_add_u32 v8, v8, 2, v6")
    A("v_lshrrev_b32 v9, 1, v2")
    A("v_xor_b32 v9, v9, v3")
    A("v_lshlrev_b32 v9, 4, v9")
    XA = 14
    A(f"v_lshl_add_u32 v{XA}, v2, 7, v9")
    A(f"v_xor_b32 v{XA+1}, 64, v{XA}")
    for w in range(3):
        A(f"s_cmp_eq_u32 s{S_WAVE}, {w}")
        A(f"s_cbranch_scc1 {n}_c{w}")
    for w in [3, 0, 1, 2]:
        A.label(f"{n}_c{w}")
        if w < 3:
            nts = [3*w, 3*w+1, 3*w+2]
            units = [(t, st) for t in nts for st in range(7)] + [(13, 2*w+1), (13, 2*w+2)]
            ants = nts + [13]
            sts = list(range(7))
        else:
            nts = [9, 10, 11, 12]
            units = [(t, st) for t in nts for st in range(1, 7)]
            ants = nts
            sts = list(range(1, 7))
        WA = 10
        for ai, t in enumerate(ants):
            A(f"v_xor_b32 v9, {t}, v8")
            A(f"v_lshl_add_u32 v{WA+ai}, v9, 5, v7")
        A("v_mul_u32_u24 v4, 48, v2")
        for ai, t in enumerate(ants):
            for p in range(2):
                va = 212 + 2*ai + p
                A("v_lshlrev_b32 v5, 2, v3")
                A(f"v_add_u32 v5, {16*t + 2*p}, v5")
                A("v_mul_u32_u24 v6, 3641, v5")
                A("v_lshrrev_b32 v6, 16, v6")
                A("v_mul_u32_u24 v6, 5340, v6")
                A(f"v_lshl_add_u32 v{va}, v5, 1, v6")
                A(f"v_add_u32 v{va}, v{va}, v4")
        ACC = 28
        acc = {u: ACC + 4*i for i, u in enumerate(units)}
        FR = [124, 168]
        def reads(ks, base):
            lst = []
            for ai, t in enumerate(ants):
                for h in range(2):
                    lst.append(f"ds_read_b64_tr_b16 {v(base+4*ai+2*h,2)}, v{WA+ai} offset:{ks*16384 + h*2048}")
            for bi, st in enumerate(sts):
                lst.append(f"ds_read_b128 {v(base+16+4*bi,4)}, v{XA+ks} offset:{st*2048}")
            return lst
        def mfmas(base, first):
            lst = []
            for (t, st) in units:
                ai = ants.index(t); bi = sts.index(st)
                c = "0" if first else v(acc[(t, st)], 4)
                lst.append(f"v_mfma_f32_16x16x32_bf16 {v(acc[(t,st)],4)}, {v(base+4*ai,4)}, {v(base+16+4*bi,4)}, {c}")
            return lst
        def interleave(mf, rd):
            i = 0
            for m in mf:
                A(m)
                if i < len(rd): A(rd[i]); i += 1
            while i < len(rd): A(rd[i]); i += 1
        for u in units:
            for r in range(0, 4, 2): A(f"v_mov_b64 {v(acc[u]+r,2)}, 0")
        A("s_mov_b32 s60, 0")
        A("s_mov_b32 s61, 0")
        A(f"s_mov_b32 s52, {ST1}")
        A(f"s_mov_b32 s53, {(-2*ST1) & 0xffffffff}")
        A("s_barrier")
        stamp(A, 1)
        for r_ in reads(0, FR[0]): A(r_)
        A("s_waitcnt lgkmcnt(0)")
        A(f"s_branch {n}_q{w}")
        A.label(f"{n}_l{w}")
        A("s_barrier")
        interleave(mfmas(FR[1], False), reads(0, FR[0]))
        A("s_waitcnt lgkmcnt(0)")
        A.label(f"{n}_q{w}")
        A("s_add_u32 s61, s61, 1")
        A("s_cmp_eq_u32 s61, 3")
        A("s_cselect_b32 s62, s53, s52")
        A("s_cselect_b32 s61, 0, s61")
        interleave(mfmas(FR[0], False), reads(1, FR[1]))
        for r in range(6): A(f"v_add_u32 v{10+r}, s62, v{10+r}")
        A("s_add_u32 s60, s60, 1")
        A("s_cmp_lt_u32 s60, 9")
        A("s_waitcnt lgkmcnt(0)")
        A(f"s_cbranch_scc1 {n}_l{w}")
        A("s_barrier")
        last = mfmas(FR[1], False)
        pend = []
        k = 0
        def flush_one(u):
            nonlocal k
            (t, st) = u
            ai = ants.index(t); a0 = acc[(t, st)]
            tmp = 124 + 2*(k % 8); k += 1
            A(f"v_cvt_pk_bf16_f32 v{tmp}, v{a0}, v{a0+1}")
            A(f"v_cvt_pk_bf16_f32 v{tmp+1}, v{a0+2}, v{a0+3}")
            A(f"ds_write_b32 v{212+2*ai}, v{tmp} offset:{768*st}")
            A(f"ds_write_b32 v{212+2*ai+1}, v{tmp+1} offset:{768*st}")
        for m, u in zip(last, units):
            A(m)
            pend.append(u)
            if len(pend) > 3: flush_one(pend.pop(0))
        for u in pend: flush_one(u)
        stamp(A, 4)
        A(f"s_branch {n}_attn")
    A.label(f"{n}_loader")
    A(f"s_sub_u32 s35, s{S_WAVE}, 4")
    A("v_lshrrev_b32 v2, 3, v1")
    A("v_and_b32 v3, 7, v1")
    A("v_lshrrev_b32 v4, 4, v1")
    A("v_mul_u32_u24 v5, 1152, v2")
    A("v_xor_b32 v6, v3, v4")
    A("v_lshl_add_u32 v10, v6, 4, v5")
    A("v_xor_b32 v11, 64, v10")
    A("s_lshl_b32 s36, s35, 2")
    A("s_cmp_eq_u32 s35, 3")
    A("s_cselect_b32 s36, 11, s36")
    A("s_cselect_b64 s[54:55], -1, 0")
    A("v_cndmask_b32 v16, v10, v11, s[54:55]")
    A("v_cndmask_b32 v17, v11, v10, s[54:55]")
    A("s_sub_u32 s37, s34, 16")
    A("s_mul_i32 s37, s37, 1152")
    A("s_mul_i32 s38, s36, 9216")
    A("s_add_u32 s37, s37, s38")
    A("s_lshl_b32 s38, s36, 10")
    WV = 12
    A("v_lshrrev_b32 v2, 5, v1")
    A("v_and_b32 v3, 31, v1")
    A("v_mul_u32_u24 v4, 3456, v2")
    A("s_mul_i32 s40, s33, 144")
    A("v_add_u32 v4, s40, v4")
    A(f"v_mov_b32 v9, 0x{BIGOFF:x}")
    for var in range(4):
        j1, j4 = var & 1, var >> 1
        A(f"v_add_u32 v5, {2*j1+4*j4}, v2")
        A("v_lshlrev_b32 v5, 1, v5")
        A("v_xor_b32 v5, v5, v3")
        A("v_mov_b32 v6, 1152")
        A("v_mov_b32 v7, 2160")
        A("v_cmp_le_u32 vcc, 9, v5")
        A("v_cndmask_b32 v6, v6, v7, vcc")
        A("v_mov_b32 v7, -288")
        A("v_cmp_le_u32 vcc, 18, v5")
        A("v_cndmask_b32 v6, v6, v7, vcc")
        A("v_lshl_add_u32 v6, v5, 4, v6")
        A(f"v_add_u32 v{WV+var}, v4, v6")
        A("v_cmp_le_u32 vcc, 27, v5")
        A(f"v_cndmask_b32 v{WV+var}, v{WV+var}, v9, vcc")
    A("s_mul_i32 s40, s35, 55296")
    A("s_lshl_b32 s41, s35, 13")
    A(f"s_add_u32 s41, s41, {XS}")
    def issue_block():
        A(f"s_mul_i32 s62, s61, {ST1}")
        A("s_add_u32 s63, s38, s62")
        A("s_add_u32 s62, s41, s62")
        for j in range(4):
            lab = None
            if j == 3:
                lab = A.newlabel(f"{n}_sk")
                A("s_cmp_ge_u32 s35, 2")
                A(f"s_cbranch_scc1 {lab}")
            A(f"s_add_u32 m0, s63, {1024*j}")
            A(f"s_add_u32 s52, s37, {9216*j}")
            if j < 2:
                A("s_cmp_lt_i32 s52, 0")
                A(f"s_cselect_b32 s52, 0x{BIGOFF:x}, s52")
            A(f"buffer_load_dwordx4 v{16+(j&1)}, s[44:47], s52 offen lds")
            if lab: A.label(lab)
        for j in range(8):
            var = (j & 1) + 2 * (j >> 2)
            A(f"s_add_u32 m0, s62, {1024*j}")
            A(f"s_add_u32 s52, s40, {6912*j}")
            A(f"buffer_load_dwordx4 v{WV+var}, s[48:51], s52 offen lds")
        A("s_add_u32 s37, s37, 128")
        A("s_add_u32 s40, s40, 221184")
        A("s_add_u32 s61, s61, 1")
        A("s_cmp_eq_u32 s61, 3")
        A("s_cselect_b32 s61, 0, s61")
    A("s_mov_b32 s60, 0")
    A("s_mov_b32 s61, 0")
    A.label(f"{n}_lp")
    issue_block()
    A("s_add_u32 s60, s60, 1")
    A("s_cmp_lt_u32 s60, 2")
    A(f"s_cbranch_scc1 {n}_lp")
    stamp(A, 1)
    A("v_and_b32 v2, 15, v1")
    A("v_lshrrev_b32 v3, 4, v1")
    attn_setup(A)
    A("s_mov_b32 s60, 0")
    A.label(f"{n}_ll")
    A("s_waitcnt vmcnt(11)")
    A("s_barrier")
    issue_block()
    A("s_add_u32 s60, s60, 1")
    A("s_cmp_lt_u32 s60, 7")
    A(f"s_cbranch_scc1 {n}_ll")
    A("s_waitcnt vmcnt(11)")
    A("s_barrier")
    A("s_waitcnt vmcnt(0)")
    A("s_barrier")
    A("s_barrier")
    A.label(f"{n}_attn")
    A("s_waitcnt lgkmcnt(0)")
    A("s_barrier")
    stamp(A, 5)
    cst = struct.unpack("<I", struct.pack("<f", (18 ** -0.5) * math.log2(math.e)))[0]
    A(f"s_mov_b32 s42, 0x{cst:08x}")
    B = 24
    def regs(b): return B + 40 * b
    for b in range(3):
        R = regs(b)
        A(f"ds_read_b128 {v(R,4)}, v{V_KQ} offset:{8*HHS + 768*(b+1)}")
        A(f"ds_read_b128 {v(R+4,4)}, v{V_KQ} offset:{768*b}")
        A(f"ds_read_b128 {v(R+8,4)}, v{V_KQ} offset:{768*(b+1)}")
    for b in range(3):
        R = regs(b)
        A(f"ds_read_b64_tr_b16 {v(R+12,2)}, v{V_VT} offset:{4*HHS + 768*b}")
        A(f"ds_read_b64_tr_b16 {v(R+14,2)}, v{V_VT} offset:{4*HHS + 768*(b+1)}")
        A(f"ds_read_b64_tr_b16 {v(R+16,2)}, v{V_VT} offset:{4*HHS + 768*b + 32}")
        A(f"ds_read_b64_tr_b16 {v(R+18,2)}, v{V_VT} offset:{4*HHS + 768*(b+1) + 32}")
    for b in range(3):
        R = regs(b)
        A(f"s_waitcnt lgkmcnt({12 + 3*(2-b)})" if 12 + 3*(2-b) <= 15 else "s_waitcnt lgkmcnt(15)")
        A(f"v_cndmask_b32 v{R}, 0, v{R}, s[82:83]")
        for r in range(1, 4):
            A(f"v_cndmask_b32 v{R+r}, 0, v{R+r}, s[80:81]")
        A(f"v_mfma_f32_16x16x32_bf16 {v(R+20,4)}, {v(R+4,4)}, {v(R,4)}, 0")
        A(f"v_mfma_f32_16x16x32_bf16 {v(R+24,4)}, {v(R+8,4)}, {v(R,4)}, 0")
    for b in range(3):
        R = regs(b); S = R + 20
        for e in range(8):
            m = (84 + 2*e) if (b == 0 and e < 4) else (64 + 2*e)
            A(f"v_cndmask_b32 v{S+e}, v{V_NINF}, v{S+e}, s[{m}:{m+1}]")
        M = R + 28
        A(f"v_max3_f32 v{M}, v{S}, v{S+1}, v{S+2}")
        A(f"v_max3_f32 v{M}, v{M}, v{S+3}, v{S+4}")
        A(f"v_max3_f32 v{M}, v{M}, v{S+5}, v{S+6}")
        A(f"v_max_f32 v{M}, v{M}, v{S+7}")
    def xlane(op, b_regs):
        for kind in ("16", "32"):
            for (M, T) in b_regs: A(f"v_mov_b32 v{T}, v{M}")
            for (M, T) in b_regs: A(f"v_permlane{kind}_swap_b32 v{M}, v{T}")
            for (M, T) in b_regs: A(f"{op} v{M}, v{M}, v{T}")
    xlane("v_max_f32", [(regs(b)+28, regs(b)+29) for b in range(3)])
    for b in range(3):
        R = regs(b); M = R + 28
        A(f"v_mul_f32 v{M}, s42, v{M}")
    for b in range(3):
        R = regs(b); S = R + 20; M = R + 28
        for e in range(8): A(f"v_fma_f32 v{S+e}, v{S+e}, s42, -v{M}")
        for e in range(8): A(f"v_exp_f32 v{S+e}, v{S+e}")
    for b in range(3):
        R = regs(b); S = R + 20; M = R + 30
        A(f"v_add_f32 v{M}, v{S}, v{S+1}")
        A(f"v_add_f32 v{M+1}, v{S+2}, v{S+3}")
        A(f"v_add_f32 v{M}, v{M}, v{S+4}")
        A(f"v_add_f32 v{M+1}, v{M+1}, v{S+5}")
        A(f"v_add_f32 v{M}, v{M}, v{S+6}")
        A(f"v_add_f32 v{M+1}, v{M+1}, v{S+7}")
        A(f"v_add_f32 v{M}, v{M}, v{M+1}")
    xlane("v_add_f32", [(regs(b)+30, regs(b)+31) for b in range(3)])
    for b in range(3):
        A(f"v_rcp_f32 v{regs(b)+30}, v{regs(b)+30}")
    A("s_waitcnt lgkmcnt(0)")
    for b in range(3):
        R = regs(b); S = R + 20; M = R + 30
        for e in range(8): A(f"v_mul_f32 v{S+e}, v{S+e}, v{M}")
        for q in range(4): A(f"v_cvt_pk_bf16_f32 v{R+q}, v{S+2*q}, v{S+2*q+1}")
        A(f"v_mfma_f32_16x16x32_bf16 {v(R+32,4)}, {v(R+12,4)}, {v(R,4)}, 0")
        A(f"v_mfma_f32_16x16x32_bf16 {v(R+36,4)}, {v(R+16,4)}, {v(R,4)}, 0")
    for b in range(3):
        R = regs(b)
        A(f"v_cvt_pk_bf16_f32 v{R+4}, v{R+32}, v{R+33}")
        A(f"v_cvt_pk_bf16_f32 v{R+5}, v{R+34}, v{R+35}")
        A(f"v_cvt_pk_bf16_f32 v{R+6}, v{R+36}, v{R+37}")
        A(f"ds_write2_b32 v{V_OW+b}, v{R+4}, v{R+5} offset0:0 offset1:1")
    A("s_mov_b64 exec, 0xffff")
    for b in range(3):
        A(f"ds_write_b32 v{V_OW+b}, v{regs(b)+6} offset:32")
    A("s_mov_b64 exec, -1")
    make_srd(A, 44, P_WS, SZ_T, WS_OF)
    A("s_waitcnt lgkmcnt(0)")
    A("s_barrier")
    stamp(A, 6)
    for rnd in range(2):
        A(f"ds_read_b128 {v(20+4*rnd,4)}, v{V_OL+rnd}")
    for rnd in range(2):
        A(f"s_waitcnt lgkmcnt({1-rnd})")
        A(f"buffer_store_dwordx4 {v(20+4*rnd,4)}, v{V_OG+rnd}, s[44:47], 0 offen sc1")
    A("s_waitcnt vmcnt(0)")
    A("s_barrier")
    lab = A.newlabel("a1f")
    A(f"s_cmp_lg_u32 s{S_WAVE}, 0")
    A(f"s_cbranch_scc1 {lab}")
    nonce_resolve(A, "A")
    A("s_lshl_b32 s36, s32, 8")
    A("s_lshl_b32 s37, s33, 2")
    A("s_add_u32 s36, s36, s37")
    flag_store(A, "A", 36)
    A.label(lab)
    stamp(A, 7)

HC = 4160
URB = 4 * HC
WB = URB + 4608
XCH = 4 * WB
ZS = 4160

def b2_common(A, s_grp):
    A(f"s_and_b32 s32, s{S_WAVE}, 3")
    A(f"s_lshr_b32 s33, s{S_WAVE}, 2")
    A(f"s_lshl_b32 s34, s{s_grp}, 2")
    A("s_add_u32 s34, s34, s32")
    A("s_lshl_b32 s35, s34, 12")
    A(f"s_mul_i32 s36, s32, {WB}")
    make_srd(A, 44, P_H, 4096, add_s=35)
    A("s_lshl_b32 s37, s34, 1")
    A("s_and_b32 s38, s37, 0xfffffffc")
    A(f"s_load_dword s39, s[{P_D}:{P_D+1}], s38")

def b2_h_loads(A, HL, nits=2):
    a = HL + 12 * nits + 2
    A(f"v_lshlrev_b32 v{a}, 4, v1")
    if nits == 2:
        A("s_lshl_b32 s40, s33, 11")
        A(f"v_add_u32 v{a}, s40, v{a}")
    A(f"v_add_u32 v{a+1}, 4, v{a}")
    A(f"v_add_u32 v{a+2}, 8, v{a}")
    for it in range(nits):
        A(f"buffer_load_dwordx4 {v(HL+12*it,4)}, v{a}, s[44:47], 0 offen offset:{1024*it}")
        A(f"buffer_load_dwordx4 {v(HL+12*it+4,4)}, v{a+1}, s[44:47], 0 offen offset:{1024*it}")
        A(f"buffer_load_dwordx4 {v(HL+12*it+8,4)}, v{a+2}, s[44:47], 0 offen offset:{1024*it}")
    A(f"v_mov_b32 v{a+3}, 0")
    A(f"buffer_load_dwordx2 {v(HL+12*nits,2)}, v{a+3}, s[44:47], 0 offen")

def b2_h_stage(A, HL, T, nits=2):
    a = HL + 12 * nits + 2
    A(f"v_add_u32 v{a+1}, s36, v{a}")
    for it in range(nits):
        b = HL + 12 * it
        for i in range(4): A(f"v_alignbit_b32 v{T+i}, v{b+4+i}, v{b+i}, 16")
        for i in range(4): A(f"v_alignbit_b32 v{T+4+i}, v{b+8+i}, v{b+4+i}, 16")
        off = 32 + 1024 * it
        A(f"ds_write_b128 v{a+1}, {v(b,4)} offset:{off}")
        A(f"ds_write_b128 v{a+1}, {v(T,4)} offset:{off+HC}")
        A(f"ds_write_b128 v{a+1}, {v(b+4,4)} offset:{off+2*HC}")
        A(f"ds_write_b128 v{a+1}, {v(T+4,4)} offset:{off+3*HC}")
    d0, d1 = HL + 12*nits, HL + 12*nits + 1
    A(f"v_lshlrev_b32 v{T+8}, 16, v{d0}")
    A(f"v_alignbit_b32 v{T+9}, v{d1}, v{d0}, 16")
    Z = T + 10
    for r in range(0, 8, 2): A(f"v_mov_b64 {v(Z+r,2)}, 0")
    A("v_cmp_eq_u32 s[60:61], 1, v1")
    A("v_cmp_eq_u32 s[62:63], 2, v1")
    A("v_cmp_eq_u32 s[64:65], 3, v1")
    A(f"v_cndmask_b32 v{Z+7}, v{Z+7}, v{T+8}, s[60:61]")
    A(f"v_cndmask_b32 v{Z+7}, v{Z+7}, v{d0}, s[62:63]")
    A(f"v_cndmask_b32 v{Z+7}, v{Z+7}, v{T+9}, s[64:65]")
    A(f"v_cndmask_b32 v{Z+6}, v{Z+6}, v{T+8}, s[64:65]")
    A(f"v_mul_u32_u24 v{a+2}, {HC}, v1")
    A(f"v_add_u32 v{a+2}, s36, v{a+2}")
    A("s_mov_b64 exec, 0xf")
    A(f"ds_write_b128 v{a+2}, {v(Z,4)}")
    A(f"ds_write_b128 v{a+2}, {v(Z+4,4)} offset:16")
    A("s_mov_b64 exec, 0xffffffff")
    A(f"v_lshlrev_b32 v{a+2}, 4, v1")
    A(f"v_add_u32 v{a+2}, s36, v{a+2}")
    A(f"ds_write_b128 v{a+2}, {v(Z,4)} offset:{URB+4096}")
    A("s_mov_b64 exec, -1")

def b2_main(A, s_grp, sb, resolved):
    make_srd(A, 48, P_WS, 4096, WS_UR, add_s=35)
    make_srd(A, 52, P_WS, 4096, WS_QT, add_s=35)
    make_srd(A, 56, P_OUT, 2048 * 2304)
    A("v_and_b32 v3, 15, v1")
    A("v_lshrrev_b32 v4, 4, v1")
    A("v_lshlrev_b32 v5, 4, v1")
    A("s_lshl_b32 s40, s33, 11")
    A("v_add_u32 v5, s40, v5")
    A("v_add_u32 v10, s36, v5")
    A("v_lshlrev_b32 v9, 5, v3")
    A("v_lshl_add_u32 v9, v4, 3, v9")
    A("v_add_u32 v8, s40, v9")
    A("v_add_u32 v12, 1, v3")
    A("v_and_b32 v13, 3, v12")
    A("v_lshrrev_b32 v12, 2, v12")
    A(f"v_mul_u32_u24 v13, {HC}, v13")
    A("v_lshl_add_u32 v13, v4, 4, v13")
    A("v_lshl_add_u32 v13, v12, 3, v13")
    A("s_lshl_b32 s41, s33, 8")
    A("s_add_u32 s41, s41, s36")
    A("v_add_u32 v13, s41, v13")
    A("v_lshlrev_b32 v14, 4, v4")
    A("v_lshlrev_b32 v15, 5, v3")
    A("v_sub_u32 v14, v14, v15")
    A(f"v_add_u32 v14, {URB+480}, v14")
    A("v_add_u32 v14, s41, v14")
    stamp(A, sb + 0)
    lab = A.newlabel("b2w")
    A(f"s_cmp_lg_u32 s{S_WAVE}, 0")
    A(f"s_cbranch_scc1 {lab}")
    if not resolved:
        A("s_waitcnt vmcnt(0)")
        nonce_resolve(A, "B")
    A(f"s_lshr_b32 s41, s{s_grp}, 4")
    A("s_lshl_b32 s41, s41, 8")
    flag_poll(A, "B", 41)
    A.label(lab)
    A("s_barrier")
    stamp(A, sb + 1)
    U = 68
    for it in range(2):
        A(f"buffer_load_dwordx4 {v(U+4*it,4)}, v5, s[48:51], 0 offen offset:{1024*it} sc1")
    Q = 84
    for c in range(4):
        A(f"buffer_load_dwordx2 {v(Q+2*c,2)}, v8, s[52:55], 0 offen offset:{512*c} sc1")
    A(f"s_lshl_b32 s41, s{S_WAVE}, 12")
    A("v_lshlrev_b32 v6, 4, v1")
    A(f"v_add_u32 v6, {XCH}, v6")
    A("v_add_u32 v7, s41, v6")
    A(f"s_xor_b32 s42, s{S_WAVE}, 4")
    A("s_lshl_b32 s42, s42, 12")
    A("v_add_u32 v6, s42, v6")
    A(f"v_sub_u32 v11, {URB+504}, v9")
    A("s_lshl_b32 s41, s33, 11")
    A("s_sub_u32 s42, s36, s41")
    A("v_add_u32 v11, s42, v11")
    A(f"s_mul_i32 s42, s32, {ZS}")
    A("s_add_u32 s42, s42, s41")
    A("v_add_u32 v9, s42, v9")
    A("s_waitcnt vmcnt(4)")
    for it in range(2):
        A(f"ds_write_b128 v10, {v(U+4*it,4)} offset:{URB+1024*it}")
    A("s_waitcnt lgkmcnt(0)")
    A("s_barrier")
    stamp(A, sb + 2)
    ACC = 208
    FA = [104, 16]
    def frag_reads(rho, base):
        lst = []
        for b in range(8):
            lst.append(f"ds_read_b128 {v(base+32+4*b,4)}, v14 offset:{64*rho+512*(7-b)}")
        aa_l = []
        for aa in range(8):
            aa_l.append(f"ds_read_b64 {v(base+4*aa,2)}, v13 offset:{512*aa+64*rho}")
            aa_l.append(f"ds_read_b64 {v(base+4*aa+2,2)}, v13 offset:{512*aa+64*rho+8}")
        return aa_l[:2] + lst + aa_l[2:]
    for r_ in frag_reads(0, FA[0]): A(r_)
    UU = 88
    UU = 92
    for rho in range(4):
        base = FA[rho & 1]
        A("s_waitcnt lgkmcnt(0)")
        rd = frag_reads(rho + 1, FA[(rho + 1) & 1]) if rho < 3 else [f"ds_read_b64 {v(UU+2*c,2)}, v11 offset:{512*(7-c)}" for c in range(4)]
        i = 0
        for aa in range(8):
            for b in range(8 - aa):
                c = aa + b
                src = "0" if (rho == 0 and aa == 0) else v(ACC+4*c, 4)
                A(f"v_mfma_f32_16x16x32_bf16 {v(ACC+4*c,4)}, {v(base+4*aa,4)}, {v(base+32+4*b,4)}, {src}")
                if i < len(rd): A(rd[i]); i += 1
    stamp(A, sb + 3)
    l1 = A.newlabel("b2h1"); l2 = A.newlabel("b2x")
    KP = 192
    A("s_cmp_eq_u32 s33, 1")
    A(f"s_cbranch_scc1 {l1}")
    for c in range(4): A(f"ds_write_b128 v7, {v(ACC+16+4*c,4)} offset:{1024*c}")
    for c in range(8): A(f"v_mov_b64 {v(KP+2*c,2)}, {v(ACC+2*c,2)}")
    A(f"s_branch {l2}")
    A.label(l1)
    for c in range(4): A(f"ds_write_b128 v7, {v(ACC+4*c,4)} offset:{1024*c}")
    for c in range(8): A(f"v_mov_b64 {v(KP+2*c,2)}, {v(ACC+16+2*c,2)}")
    A.label(l2)
    A("s_and_b32 s37, s37, 2")
    A("s_lshl_b32 s37, s37, 3")
    A("s_waitcnt lgkmcnt(0)")
    A("s_lshr_b32 s39, s39, s37")
    A("s_lshl_b32 s39, s39, 16")
    TT = 16
    A("s_waitcnt vmcnt(0)")
    for c in range(4):
        A(f"v_and_b32 v{TT+4*c+0}, 0xffff0000, v{UU+2*c+1}")
        A(f"v_lshlrev_b32 v{TT+4*c+1}, 16, v{UU+2*c+1}")
        A(f"v_and_b32 v{TT+4*c+2}, 0xffff0000, v{UU+2*c}")
        A(f"v_lshlrev_b32 v{TT+4*c+3}, 16, v{UU+2*c}")
        A(f"v_lshlrev_b32 v{TT+16+4*c+0}, 16, v{Q+2*c}")
        A(f"v_and_b32 v{TT+16+4*c+1}, 0xffff0000, v{Q+2*c}")
        A(f"v_lshlrev_b32 v{TT+16+4*c+2}, 16, v{Q+2*c+1}")
        A(f"v_and_b32 v{TT+16+4*c+3}, 0xffff0000, v{Q+2*c+1}")
    for e in range(16): A(f"v_fma_f32 v{KP+e}, v{TT+e}, s39, v{KP+e}")
    A("s_barrier")
    for c in range(4): A(f"ds_read_b128 {v(48+4*c,4)}, v6 offset:{1024*c}")
    for c in range(4):
        A(f"s_waitcnt lgkmcnt({3-c})")
        A(f"v_pk_add_f32 {v(KP+4*c,2)}, {v(KP+4*c,2)}, {v(48+4*c,2)}")
        A(f"v_pk_add_f32 {v(KP+4*c+2,2)}, {v(KP+4*c+2,2)}, {v(48+4*c+2,2)}")
        A(f"v_pk_mul_f32 {v(KP+4*c,2)}, {v(KP+4*c,2)}, {v(TT+16+4*c,2)}")
        A(f"v_pk_mul_f32 {v(KP+4*c+2,2)}, {v(KP+4*c+2,2)}, {v(TT+16+4*c+2,2)}")
        A(f"v_cvt_pk_bf16_f32 v{64+2*c}, v{KP+4*c}, v{KP+4*c+1}")
        A(f"v_cvt_pk_bf16_f32 v{65+2*c}, v{KP+4*c+2}, v{KP+4*c+3}")
        A(f"ds_write_b64 v9, {v(64+2*c,2)} offset:{512*c}")
    A("v_lshrrev_b32 v12, 2, v3")
    A(f"v_mul_u32_u24 v12, {ZS}, v12")
    A("v_and_b32 v13, 3, v3")
    A("v_lshl_add_u32 v12, v13, 3, v12")
    A("v_lshl_add_u32 v12, v4, 5, v12")
    A(f"s_lshl_b32 s41, s{S_WAVE}, 9")
    A("v_add_u32 v12, s41, v12")
    A(f"s_lshl_b32 s41, s{S_WAVE}, 8")
    A("v_add_u32 v13, s41, v1")
    A("s_movk_i32 s42, 2304")
    A(f"s_lshl_b32 s43, s{s_grp}, 3")
    A("s_add_u32 s43, s43, 1152")
    A("v_mul_lo_u32 v13, v13, s42")
    A("v_add_u32 v13, s43, v13")
    for it in range(4): A(f"s_mov_b32 s{60+it}, {64*2304*it}")
    A("s_waitcnt lgkmcnt(0)")
    A("s_barrier")
    for it in range(4):
        A(f"ds_read_b64_tr_b16 {v(16+2*it,2)}, v12 offset:{128*it}")
    for it in range(4):
        A(f"s_waitcnt lgkmcnt({3-it})")
        A(f"buffer_store_dwordx2 {v(16+2*it,2)}, v13, s[56:59], s{60+it} offen")
    stamp(A, sb + 4)

def b1_addr(A, s_tile, vt):
    A(f"s_mul_hi_u32 s66, s{s_tile}, 0x1c71c71d")
    A("s_mul_i32 s67, s66, 9")
    A(f"s_sub_u32 s67, s{s_tile}, s67")
    A(f"v_and_b32 v2, 7, v{vt}")
    A(f"v_lshrrev_b32 v3, 3, v{vt}")
    A("s_lshl_b32 s40, s66, 8")
    A("v_lshl_add_u32 v4, v3, 3, s40")
    A("s_lshl_b32 s41, s67, 7")
    A("v_lshl_add_u32 v5, v2, 4, s41")
    A("s_movk_i32 s42, 1152")
    A("v_mad_u32_u24 v6, v4, s42, v5")
    A("v_add_u32 v7, 4608, v6")

def gen_b1_kv(A, s_tile):
    A.comment("===== B1 kv (waves 0-3) =====")
    b1_addr(A, s_tile, 0)
    A("v_subrev_u32 v8, 3456, v6")
    A("v_subrev_u32 v9, 2304, v6")
    A("v_subrev_u32 v10, 1152, v6")
    make_srd(A, 48, P_K, SZ_T)
    make_srd(A, 52, P_V, SZ_T)
    make_srd(A, 56, P_SH, 576 * 8)
    KR, VR, SH, W = 16, 60, 92, 108
    KF, VF, ACC, OUT = 140, 162, 178, 194
    for j, vo in enumerate((8, 9, 10)):
        A(f"buffer_load_dwordx4 {v(KR+4*j,4)}, v{vo}, s[48:51], 0 offen")
    for i in range(8):
        A(f"buffer_load_dwordx4 {v(KR+4*(3+i),4)}, v{6 if i < 4 else 7}, s[48:51], 0 offen offset:{1152*(i%4)}")
    for i in range(8):
        A(f"buffer_load_dwordx4 {v(VR+4*i,4)}, v{6 if i < 4 else 7}, s[52:55], 0 offen offset:{1152*(i%4)}")
    A("s_lshl_b32 s43, s67, 9")
    A("v_lshl_add_u32 v11, v2, 6, s43")
    for i in range(4):
        A(f"buffer_load_dwordx4 {v(SH+4*i,4)}, v11, s[56:59], 0 offen offset:{16*i}")
    get_nonce_issue(A, "B")
    stamp(A, 2)
    make_srd(A, 52+8, P_WS, SZ_T, WS_UR)
    A("s_lshl_b32 s43, s67, 18")
    A("v_lshl_add_u32 v12, v2, 15, s43")
    A("v_lshlrev_b32 v14, 1, v4")
    A("v_sub_u32 v12, v12, v14")
    A("v_add_u32 v12, 4080, v12")
    for ch in range(8): A(f"s_mov_b32 s{68+ch}, {ch*4096}")
    A("s_waitcnt vmcnt(0)")
    stamp(A, 3)
    for ch in range(8):
        A(f"v_lshlrev_b32 v{W+0*8+ch}, 16, v{SH+2*ch}")
        A(f"v_and_b32 v{W+1*8+ch}, 0xffff0000, v{SH+2*ch}")
        A(f"v_lshlrev_b32 v{W+2*8+ch}, 16, v{SH+2*ch+1}")
        A(f"v_and_b32 v{W+3*8+ch}, 0xffff0000, v{SH+2*ch+1}")
    for m in range(4):
        for j in range(11):
            A(f"v_lshlrev_b32 v{KF+2*j}, 16, v{KR+4*j+m}")
            A(f"v_and_b32 v{KF+2*j+1}, 0xffff0000, v{KR+4*j+m}")
        for i in range(8):
            A(f"v_lshlrev_b32 v{VF+2*i}, 16, v{VR+4*i+m}")
            A(f"v_and_b32 v{VF+2*i+1}, 0xffff0000, v{VR+4*i+m}")
        for i in range(8):
            A(f"v_pk_mul_f32 {v(ACC+2*i,2)}, {v(W+3*8+2*m,2)}, {v(KF+2*i,2)}")
        for t in (2, 1, 0):
            for i in range(8):
                A(f"v_pk_fma_f32 {v(ACC+2*i,2)}, {v(W+t*8+2*m,2)}, {v(KF+2*(i+3-t),2)}, {v(ACC+2*i,2)}")
        for i in range(8):
            A(f"v_pk_mul_f32 {v(ACC+2*i,2)}, {v(ACC+2*i,2)}, {v(VF+2*i,2)}")
        o = OUT + 8 * (m & 1)
        for h in range(2):
            for q in range(4):
                A(f"v_cvt_pk_bf16_f32 v{o+4*h+q}, v{ACC+2*(7-2*q)+h}, v{ACC+2*(6-2*q)+h}")
        for h in range(2):
            A(f"buffer_store_dwordx4 {v(o+4*h,4)}, v12, s[60:63], s{68+2*m+h} offen sc1")
    stamp(A, 4)

def gen_b1_aux(A, s_tile, has_tile):
    A.comment("===== B1 aux (waves 4-7) =====")
    make_srd(A, 48, P_X, SZ_T)
    make_srd(A, 52, P_W, 576 * 3456)
    a_prefetch_setup(A, 10, 11, 4, 48, 52)
    A(f"s_sub_u32 s40, s{S_WAVE}, 4")
    for rep in range(3):
        lab = A.newlabel("bpf")
        if rep == 2:
            A("s_cmp_gt_u32 s40, 8")
            A(f"s_cbranch_scc1 {lab}")
        a_prefetch_issue(A, 10, 11, 40, 48, 52, 240 + 2*rep)
        A("s_add_u32 s40, s40, 4")
        A.label(lab)
    A("s_waitcnt vmcnt(0)")
    stamp(A, 1)
    HL = 130
    b2_h_loads(A, HL, 4)
    if has_tile:
        A("v_subrev_u32 v13, 256, v0")
        b1_addr(A, s_tile, 13)
        make_srd(A, 48, P_Q, SZ_T)
        QR = 16
        for i in range(8):
            A(f"buffer_load_dwordx4 {v(QR+4*i,4)}, v{6 if i < 4 else 7}, s[48:51], 0 offen offset:{1152*(i%4)}")
        make_srd(A, 56, P_WS, SZ_T, WS_QT)
        A("s_lshl_b32 s43, s67, 18")
        A("v_lshl_add_u32 v12, v2, 15, s43")
        A("v_lshl_add_u32 v12, v4, 1, v12")
        for ch in range(8): A(f"s_mov_b32 s{68+ch}, {ch*4096}")
        A("s_mov_b32 s76, 0x05040100")
        A("s_mov_b32 s77, 0x07060302")
        A("s_waitcnt vmcnt(8)")
    else:
        A("s_waitcnt vmcnt(0)")
    stamp(A, 2)
    b2_h_stage(A, HL, 100, 4)
    if has_tile:
        A("s_waitcnt vmcnt(0)")
        stamp(A, 3)
        for m in range(4):
            o = 48 + 8 * m
            for q in range(4):
                A(f"v_perm_b32 v{o+q}, v{QR+4*(2*q+1)+m}, v{QR+4*(2*q)+m}, s76")
                A(f"v_perm_b32 v{o+4+q}, v{QR+4*(2*q+1)+m}, v{QR+4*(2*q)+m}, s77")
            for h in range(2):
                A(f"buffer_store_dwordx4 {v(o+4*h,4)}, v12, s[56:59], s{68+2*m+h} offen sc1")
        stamp(A, 4)

WO_B = 72 * 1024

def gen_a2(A, s_x, s_u, sb, resolvedA):
    A.comment("===== A2 =====")
    A(f"s_mul_hi_u32 s32, s{s_u}, 0x1c71c71d")
    A("s_mul_i32 s33, s32, 9")
    A(f"s_sub_u32 s33, s{s_u}, s33")
    A(f"s_lshl_b32 s34, s{s_x}, 1")
    A("s_add_u32 s32, s32, s34")
    make_srd(A, 44, P_WO, 576 * 1152)
    A("v_lshrrev_b32 v2, 3, v1")
    A("v_and_b32 v3, 7, v1")
    A("v_bfe_u32 v4, v1, 4, 1")
    A("v_lshlrev_b32 v4, 1, v4")
    A("v_xor_b32 v4, v4, v3")
    A("v_mul_u32_u24 v5, 1152, v2")
    A("v_lshl_add_u32 v5, v4, 4, v5")
    A("s_lshl_b32 s34, s33, 7")
    A("v_add_u32 v10, s34, v5")
    A("v_xor_b32 v11, 64, v10")
    A(f"s_mul_i32 s35, s{S_WAVE}, 9")
    A("s_and_b32 s36, s35, 1")
    A("s_cmp_eq_u32 s36, 1")
    A("s_cselect_b64 s[56:57], -1, 0")
    A("v_cndmask_b32 v12, v10, v11, s[56:57]")
    A("v_cndmask_b32 v13, v11, v10, s[56:57]")
    A("s_mul_i32 s36, s35, 9216")
    A("s_lshl_b32 s37, s35, 10")
    for j in range(9):
        A(f"s_add_u32 m0, s37, {1024*j}")
        A(f"s_add_u32 s38, s36, {9216*j}")
        A(f"buffer_load_dwordx4 v{12+(j&1)}, s[44:47], s38 offen lds")
    make_srd(A, 48, P_WS, SZ_T, WS_OF)
    make_srd(A, 52, P_OUT, 2048 * 2304)
    A("s_lshl_b32 s38, s32, 3")
    A(f"s_add_u32 s38, s38, s{S_WAVE}")
    A("s_mul_i32 s39, s38, 18432")
    A("v_lshlrev_b32 v2, 4, v1")
    A("v_add_u32 v2, s39, v2")
    A("v_add_u32 v3, 4096, v2"); A("v_add_u32 v4, 8192, v2"); A("v_add_u32 v5, 12288, v2"); A("v_add_u32 v6, 16384, v2")
    A("v_and_b32 v7, 15, v1")
    A("v_lshrrev_b32 v8, 4, v1")
    A("v_lshrrev_b32 v9, 2, v7")
    A("v_lshl_add_u32 v9, v8, 3, v9")
    A("v_lshlrev_b32 v9, 7, v9")
    A("v_and_b32 v10, 1, v7")
    A("v_lshl_add_u32 v9, v10, 3, v9")
    A("v_bfe_u32 v10, v7, 3, 1")
    A("v_and_b32 v11, 1, v8")
    A("v_lshl_add_u32 v10, v11, 1, v10")
    A("v_lshlrev_b32 v10, 1, v10")
    A("v_bfe_u32 v11, v7, 1, 1")
    for nt in range(4):
        A(f"v_add_u32 v14, {2*nt}, v11")
        A("v_xor_b32 v14, v14, v10")
        A(f"v_lshl_add_u32 v{16+nt}, v14, 4, v9")
        A(f"v_add_u32 v{20+nt}, 36864, v{16+nt}")
    A(f"s_mul_i32 s40, s{S_WAVE}, 2304")
    A(f"s_add_u32 s40, s40, {WO_B}")
    A("v_mul_u32_u24 v9, 144, v7")
    A("v_lshl_add_u32 v9, v8, 3, v9")
    A("v_add_u32 v9, s40, v9")
    A("v_lshrrev_b32 v10, 3, v1")
    A("v_and_b32 v11, 7, v1")
    A("v_mul_u32_u24 v12, 144, v10")
    A("v_lshl_add_u32 v12, v11, 4, v12")
    A("v_add_u32 v12, s40, v12")
    A("s_mul_i32 s39, s38, 36864")
    A("s_lshl_b32 s41, s33, 7")
    A("s_add_u32 s39, s39, s41")
    A("v_mul_u32_u24 v13, 2304, v10")
    A("v_lshl_add_u32 v13, v11, 4, v13")
    A("v_add_u32 v13, s39, v13")
    A("v_add_u32 v14, 18432, v13")
    stamp(A, sb + 0)
    lab = A.newlabel("a2w")
    A(f"s_cmp_lg_u32 s{S_WAVE}, 0")
    A(f"s_cbranch_scc1 {lab}")
    if not resolvedA:
        A("s_waitcnt vmcnt(0)")
        nonce_resolve(A, "A")
    A("s_lshl_b32 s39, s32, 7")
    A("s_mul_hi_u32 s40, s39, 0x2aaaaab")
    A("s_add_u32 s39, s39, 127")
    A("s_mul_hi_u32 s41, s39, 0x2aaaaab")
    A("s_lshl_b32 s40, s40, 8")
    A("s_lshl_b32 s41, s41, 8")
    flag_poll(A, "A", 40, 41)
    A.label(lab)
    A("s_waitcnt vmcnt(0)")
    A("s_barrier")
    stamp(A, sb + 1)
    BF = 24
    for ks in range(18):
        A(f"buffer_load_dwordx4 {v(BF+4*ks,4)}, v{2+ks//4}, s[48:51], 0 offen offset:{1024*(ks%4)} sc1")
    ACC = 96
    AF = [112, 128]
    def reads(ks, base):
        lst = []
        for nt in range(4):
            va = (16 if ks < 9 else 20) + nt
            for h in range(2):
                lst.append(f"ds_read_b64_tr_b16 {v(base+4*nt+2*h,2)}, v{va} offset:{(ks%9)*4096 + h*512}")
        return lst
    for r_ in reads(0, AF[0]): A(r_)
    for ks in range(18):
        rd = reads(ks + 1, AF[(ks+1) & 1]) if ks < 17 else []
        A(f"s_waitcnt vmcnt({17-ks}) lgkmcnt(0)")
        i = 0
        for nt in range(4):
            c = "0" if ks == 0 else v(ACC+4*nt, 4)
            A(f"v_mfma_f32_16x16x32_bf16 {v(ACC+4*nt,4)}, {v(AF[ks&1]+4*nt,4)}, {v(BF+4*ks,4)}, {c}")
            for _ in range(2):
                if i < len(rd): A(rd[i]); i += 1
    stamp(A, sb + 2)
    for nt in range(4):
        A(f"v_cvt_pk_bf16_f32 v{112+2*nt}, v{ACC+4*nt}, v{ACC+4*nt+1}")
        A(f"v_cvt_pk_bf16_f32 v{113+2*nt}, v{ACC+4*nt+2}, v{ACC+4*nt+3}")
        A(f"ds_write_b64 v9, {v(112+2*nt,2)} offset:{32*nt}")
    A("s_waitcnt lgkmcnt(0)")
    A("ds_read_b128 v[24:27], v12")
    A("ds_read_b128 v[28:31], v12 offset:1152")
    A("s_waitcnt lgkmcnt(1)")
    A("buffer_store_dwordx4 v[24:27], v13, s[52:55], 0 offen")
    A("s_waitcnt lgkmcnt(0)")
    A("buffer_store_dwordx4 v[28:31], v14, s[52:55], 0 offen")
    stamp(A, sb + 3)

def build(path, stamps=False):
    global STAMPS
    STAMPS = stamps
    A = Asm()
    A.raw(f".globl {NAME}\n.p2align 8\n.type {NAME},@function\n{NAME}:")
    A("s_cmp_ge_u32 s2, 256")
    A("s_cbranch_scc1 L_end")
    A("s_load_dwordx16 s[4:19], s[0:1], 0")
    A("s_load_dwordx8 s[20:27], s[0:1], 64")
    A("s_memrealtime s[30:31]")
    if OPT.get("codepf", 1):
        A("s_getpc_b64 s[32:33]")
        A.label("L_pc")
        A("s_lshr_b32 s34, s2, 3")
        A("s_mul_i32 s34, s34, CODE_LPW*128")
        A("v_and_b32 v3, 63, v0")
        A("v_lshlrev_b32 v3, 7, v3")
        A("v_add_u32 v3, s34, v3")
        A("v_cmp_gt_u32 vcc, (L_end-L_pc), v3")
        A("v_cmp_gt_u32 s[36:37], CODE_LPW, v0")
        A("s_and_b64 vcc, vcc, s[36:37]")
        A("s_and_saveexec_b64 s[36:37], vcc")
        labc = A.newlabel("cpf")
        A(f"s_cbranch_execz {labc}")
        A("global_load_dword v247, v3, s[32:33]")
        A.label(labc)
        A("s_mov_b64 exec, s[36:37]")
    A("v_lshrrev_b32 v2, 6, v0")
    A("v_and_b32 v1, 63, v0")
    A(f"v_readfirstlane_b32 s{S_WAVE}, v2")
    A("s_waitcnt lgkmcnt(0)")
    A(f"s_or_b32 s{S_MY}, s30, 1")
    if STAMPS: A("v_mov_b32 v246, -1")
    stamp(A, 0)
    if STAMPS:
        A("s_memtime s[100:101]")
        A("s_waitcnt lgkmcnt(0)")
        A("v_writelane_b32 v246, s100, 16")
    A("s_cmp_ge_u32 s2, 176")
    A("s_cbranch_scc1 L_bset")
    gen_a1(A)
    A("s_cmp_lt_u32 s2, 64")
    A("s_cbranch_scc1 L_a_b2")
    A("s_and_b32 s90, s2, 7")
    A("s_sub_u32 s91, s2, 64")
    A("s_lshr_b32 s91, s91, 3")
    gen_a2(A, 90, 91, 8, resolvedA=True)
    A("s_branch L_fin")
    A.label("L_a_b2")
    A("s_and_b32 s90, s2, 7")
    A("s_mul_i32 s90, s90, 18")
    A("s_lshr_b32 s91, s2, 3")
    A("s_add_u32 s90, s90, s91")
    A("s_add_u32 s90, s90, 10")
    get_nonce_issue(A, "B")
    b2_common(A, 90)
    b2_h_loads(A, 170, 2)
    A("s_waitcnt vmcnt(0)")
    b2_h_stage(A, 170, 112, 2)
    b2_main(A, 90, 8, resolved=False)
    A("s_branch L_fin")
    A.label("L_bset")
    A("s_sub_u32 s91, s2, 176")
    A("s_and_b32 s90, s91, 7")
    A("s_mul_i32 s90, s90, 18")
    A("s_lshr_b32 s89, s91, 3")
    A("s_add_u32 s90, s90, s89")
    A("s_cmp_ge_u32 s91, 72")
    A("s_cbranch_scc1 L_b_nob1")
    A(f"s_cmp_ge_u32 s{S_WAVE}, 4")
    A("s_cbranch_scc1 L_b_aux")
    gen_b1_kv(A, 91)
    b2_common(A, 90)
    A("s_branch L_b_join")
    A.label("L_b_aux")
    b2_common(A, 90)
    gen_b1_aux(A, 91, True)
    A.label("L_b_join")
    A("s_waitcnt vmcnt(0) lgkmcnt(0)")
    A("s_barrier")
    lab = A.newlabel("b1f")
    A(f"s_cmp_lg_u32 s{S_WAVE}, 0")
    A(f"s_cbranch_scc1 {lab}")
    nonce_resolve(A, "B")
    A("s_lshl_b32 s40, s67, 8")
    A("s_lshl_b32 s41, s66, 2")
    A("s_add_u32 s40, s40, s41")
    flag_store(A, "B", 40)
    A.label(lab)
    A("s_branch L_b_b2")
    A.label("L_b_nob1")
    get_nonce_issue(A, "B")
    b2_common(A, 90)
    lab = A.newlabel("bnx")
    A(f"s_cmp_lt_u32 s{S_WAVE}, 4")
    A(f"s_cbranch_scc1 {lab}")
    gen_b1_aux(A, 91, False)
    A.label(lab)
    A("s_waitcnt vmcnt(0)")
    lab = A.newlabel("bz")
    A(f"s_cmp_lg_u32 s{S_WAVE}, 0")
    A(f"s_cbranch_scc1 {lab}")
    nonce_resolve(A, "B")
    A.label(lab)
    A.label("L_b_b2")
    get_nonce_issue(A, "A")
    b2_main(A, 90, 5, resolved=True)
    A("s_lshr_b32 s89, s91, 3")
    A("s_cmp_ge_u32 s89, 4")
    A("s_cbranch_scc1 L_fin")
    A("s_add_u32 s89, s89, 14")
    A("s_and_b32 s90, s91, 7")
    A("s_barrier")
    gen_a2(A, 90, 89, 10, resolvedA=False)
    A.label("L_fin")
    stamp_flush(A)
    A.label("L_end")
    A("s_endpgm")
    body = A.finalize()
    lds = max(3 * ST1, XCH + 8 * 4096, WO_B + 8 * 2304)
    out = HEADER + f"; @launch grid=(256,1,1) block=(512,1,1) lds={lds}\n"
    out += '.amdgcn_target "amdgcn-amd-amdhsa--gfx950"\n.text\n.set CODE_LPW, 16\n' + body
    out += '.section .rodata,"a"\n.p2align 6\n' + kd(NAME, 256)
    open(path, "w").write(out)

if __name__ == "__main__":
    for a in sys.argv[3:]:
        k, x = a.split("="); OPT[k] = int(x)
    build(sys.argv[1], stamps=(len(sys.argv) > 2 and sys.argv[2] == "stamps"))
```

```python
import sys, struct, math
from asmlib import *
from gen_common import HEADER, kd

NAME = "concat_heads__sliding_local_dilated__ssm_conv_h3__prompt_kernel"
SZ_T = 576 * 2048 * 2
WS_UR = 0
WS_QT = SZ_T
WS_OF = 2 * SZ_T
WS_FA = 8 << 20
WS_FB = WS_FA + 65536
STAMP_OFF = 16 << 20
BIGOFF = 0x7FFF0000

P_X, P_W, P_WO, P_Q, P_K, P_V, P_SH, P_H, P_D, P_OUT, P_DBG, P_WS = 4, 6, 8, 10, 12, 14, 16, 18, 20, 22, 24, 26
S_MY, S_WAVE, S_NA, S_NB = 28, 29, 30, 31
V_NA, V_NB = 252, 254
STAMPS = False
OPT = {}

def make_srd(A, dst, ptr, nbytes, add=0, add_s=None):
    if add_s is not None:
        A(f"s_add_u32 s{dst}, s{ptr}, s{add_s}")
        A(f"s_addc_u32 s{dst+1}, s{ptr+1}, 0")
        if add:
            A(f"s_add_u32 s{dst}, s{dst}, {add}")
            A(f"s_addc_u32 s{dst+1}, s{dst+1}, 0")
        A(f"s_and_b32 s{dst+1}, s{dst+1}, 0xffff")
    elif add:
        A(f"s_add_u32 s{dst}, s{ptr}, {add}")
        A(f"s_addc_u32 s{dst+1}, s{ptr+1}, 0")
        A(f"s_and_b32 s{dst+1}, s{dst+1}, 0xffff")
    else:
        A(f"s_mov_b32 s{dst}, s{ptr}")
        A(f"s_and_b32 s{dst+1}, s{ptr+1}, 0xffff")
    A(f"s_mov_b32 s{dst+2}, {nbytes}")
    A(f"s_mov_b32 s{dst+3}, 0x00020000")

def stamp(A, idx):
    if not STAMPS: return
    A("s_memrealtime s[100:101]")
    A("s_waitcnt lgkmcnt(0)")
    A(f"v_writelane_b32 v246, s100, {idx}")

def stamp_flush(A):
    if not STAMPS: return
    A("s_memtime s[100:101]")
    A("s_waitcnt lgkmcnt(0)")
    A("v_writelane_b32 v246, s100, 17")
    A("s_memrealtime s[100:101]")
    A("s_waitcnt lgkmcnt(0)")
    A("v_writelane_b32 v246, s100, 18")
    lab = A.newlabel("stf")
    A(f"s_and_b32 s96, s{S_WAVE}, 3")
    A("s_cmp_lg_u32 s96, 0")
    A(f"s_cbranch_scc1 {lab}")
    A(f"s_lshr_b32 s100, s{S_WAVE}, 2")
    A("s_lshl_b32 s100, s100, 8")
    A("s_add_u32 s100, s100, s2")
    A("s_lshl_b32 s100, s100, 7")
    A(f"s_add_u32 s96, s{P_WS}, {STAMP_OFF}")
    A(f"s_addc_u32 s97, s{P_WS+1}, 0")
    A("s_and_b32 s97, s97, 0xffff")
    A("s_mov_b32 s98, 0x100000")
    A("s_mov_b32 s99, 0x00020000")
    A("v_lshlrev_b32 v250, 2, v1")
    A("v_add_u32 v250, s100, v250")
    A("s_mov_b64 exec, 0xffffffff")
    A("buffer_store_dword v246, v250, s[96:99], 0 offen")
    A("s_mov_b64 exec, -1")
    A.label(lab)

def get_nonce_issue(A, which):
    vn = V_NA if which == "A" else V_NB
    lab = A.newlabel("nz")
    A(f"s_cmp_lg_u32 s{S_WAVE}, 0")
    A(f"s_cbranch_scc1 {lab}")
    make_srd(A, 92, P_DBG, 256)
    A(f"v_mov_b32 v{vn}, s{S_MY}")
    A(f"v_mov_b32 v{vn+1}, 0")
    A(f"v_mov_b32 v251, {0 if which == 'A' else 128}")
    A("s_mov_b64 exec, 1")
    A(f"buffer_atomic_cmpswap v[{vn}:{vn+1}], v251, s[92:95], 0 offen sc0 sc1")
    A("s_mov_b64 exec, -1")
    A.label(lab)

def nonce_resolve(A, which):
    vn = V_NA if which == "A" else V_NB
    sn = S_NA if which == "A" else S_NB
    A(f"v_readfirstlane_b32 s{sn}, v{vn}")
    A(f"s_cmp_eq_u32 s{sn}, 0")
    A(f"s_cselect_b32 s{sn}, s{S_MY}, s{sn}")

def flag_store(A, which, s_off):
    sn = S_NA if which == "A" else S_NB
    make_srd(A, 92, P_WS, 65536, WS_FA if which == "A" else WS_FB)
    A(f"v_mov_b32 v250, s{s_off}")
    A(f"v_mov_b32 v251, s{sn}")
    A("s_mov_b64 exec, 1")
    A("buffer_store_dword v251, v250, s[92:95], 0 offen sc1")
    A("s_mov_b64 exec, -1")

def flag_poll(A, which, s_off0, s_off1=None):
    sn = S_NA if which == "A" else S_NB
    make_srd(A, 92, P_WS, 65536, WS_FA if which == "A" else WS_FB)
    A("v_and_b32 v250, 7, v1")
    A("v_lshlrev_b32 v250, 2, v250")
    if s_off1 is not None:
        A(f"v_mov_b32 v249, s{s_off0}")
        A(f"v_mov_b32 v248, s{s_off1}")
        A("v_cmp_gt_u32 vcc, 8, v1")
        A("v_cndmask_b32 v249, v248, v249, vcc")
        A("v_add_u32 v250, v250, v249")
        A("s_mov_b64 exec, 0xffff")
    else:
        A(f"v_add_u32 v250, s{s_off0}, v250")
        A("s_mov_b64 exec, 0xff")
    lp = A.newlabel("poll"); done = A.newlabel("polld")
    A("s_mov_b32 s88, 100000")
    A.label(lp)
    A("buffer_load_dword v251, v250, s[92:95], 0 offen sc1")
    A("s_waitcnt vmcnt(0)")
    A(f"v_cmp_ne_u32 vcc, s{sn}, v251")
    A("s_nop 4")
    A(f"s_cbranch_vccz {done}")
    A("s_sleep 2")
    A("s_sub_u32 s88, s88, 1")
    A("s_cmp_lg_u32 s88, 0")
    A(f"s_cbranch_scc1 {lp}")
    A.label(done)
    A("s_mov_b64 exec, -1")

def a_prefetch_setup(A, vx, vw, t0, s_idx, nshare):
    px = -(-1072 // nshare); pw = -(-576 // nshare)
    A("s_and_b32 s96, s2, 7")
    A("s_lshr_b32 s98, s96, 2")
    A("s_and_b32 s96, s96, 3")
    A("s_mul_i32 s98, s98, 1056")
    A(f"s_mul_i32 s99, s{s_idx}, {px}")
    A("s_add_u32 s98, s98, s99")
    A("s_sub_u32 s98, s98, 16")
    A(f"v_mov_b32 v{t0+1}, 0x{BIGOFF:x}")
    A("s_movk_i32 s99, 1152")
    for e in range(2 if px > 64 else 1):
        A(f"v_add_u32 v{t0}, s98, v1")
        if e: A(f"v_add_u32 v{t0}, 64, v{t0}")
        A(f"v_mul_lo_u32 v{vx+e}, v{t0}, s99")
        A(f"v_cmp_gt_i32 vcc, 0, v{t0}")
        A(f"v_cndmask_b32 v{vx+e}, v{vx+e}, v{t0+1}, vcc")
        lim = min(px - 64*e, 64)
        if lim < 64:
            A(f"v_cmp_le_u32 vcc, {lim}, v1")
            A(f"v_cndmask_b32 v{vx+e}, v{vx+e}, v{t0+1}, vcc")
    A(f"s_mul_i32 s99, s{s_idx}, {pw}")
    A(f"v_add_u32 v{t0}, s99, v1")
    A(f"v_mul_u32_u24 v{t0+2}, 7282, v{t0}")
    A(f"v_lshrrev_b32 v{t0+2}, 16, v{t0+2}")
    A(f"v_mul_u32_u24 v{t0+3}, 9, v{t0+2}")
    A(f"v_sub_u32 v{t0+3}, v{t0}, v{t0+3}")
    A(f"v_mul_u32_u24 v{t0+4}, 21846, v{t0+3}")
    A(f"v_lshrrev_b32 v{t0+4}, 16, v{t0+4}")
    A(f"v_mul_u32_u24 v{vw}, 3456, v{t0+2}")
    A(f"v_mul_u32_u24 v{t0+2}, 1152, v{t0+4}")
    A(f"v_add_u32 v{vw}, v{vw}, v{t0+2}")
    A(f"v_mul_u32_u24 v{t0+4}, 3, v{t0+4}")
    A(f"v_sub_u32 v{t0+3}, v{t0+3}, v{t0+4}")
    A(f"v_lshl_add_u32 v{vw}, v{t0+3}, 7, v{vw}")
    A("s_lshl_b32 s96, s96, 8")
    A(f"v_add_u32 v{vw}, s96, v{vw}")
    A(f"v_cmp_le_u32 vcc, {pw}, v1")
    A(f"v_cndmask_b32 v{vw}, v{vw}, v{t0+1}, vcc")
    A(f"v_cmp_le_u32 vcc, 576, v{t0}")
    A(f"v_cndmask_b32 v{vw}, v{vw}, v{t0+1}, vcc")

def a_prefetch_issue(A, vx, vw, s_kc, srd_x, srd_w, vd, two=False):
    A(f"s_lshl_b32 s96, s{s_kc}, 7")
    A(f"s_mul_i32 s97, s{s_kc}, 221184")
    A(f"buffer_load_dword v{vd}, v{vw}, s[{srd_w}:{srd_w+3}], s97 offen")
    A(f"buffer_load_dword v{vd+1}, v{vx}, s[{srd_x}:{srd_x+3}], s96 offen")
    if two:
        A(f"buffer_load_dword v{vd+2}, v{vx+1}, s[{srd_x}:{srd_x+3}], s96 offen")

XS = 14 * 1024
W1 = 32 * 1024
ST1 = XS + W1
HHS = 112 * 48
OB = 13 * HHS
V_KQ, V_VT, V_OW, V_NINF, V_OG, V_OL = 220, 221, 222, 225, 226, 228

def attn_setup(A, t0=4):
    a, b, c, d = t0, t0+1, t0+2, t0+3
    A(f"s_and_b32 s56, s{S_WAVE}, 3")
    A(f"s_lshr_b32 s57, s{S_WAVE}, 2")
    A("s_mul_i32 s57, s57, 3")
    A(f"v_lshlrev_b32 v{a}, 2, v3")
    A(f"v_sub_u32 v{a}, v2, v{a}")
    for tl in range(2):
        for r in range(4):
            dd = (16 if tl == 0 else 0) - r
            A(f"v_add_u32 v{b}, {dd}, v{a}" if dd >= 0 else f"v_subrev_u32 v{b}, {-dd}, v{a}")
            A(f"v_and_b32 v{b}, 0xfffffff1, v{b}")
            A(f"v_cmp_eq_u32 s[{64+2*(4*tl+r)}:{65+2*(4*tl+r)}], 0, v{b}")
    A("v_cmp_gt_u32 s[80:81], 2, v3")
    A("v_cmp_gt_u32 s[82:83], 3, v3")
    A("s_or_b32 s58, s32, s57")
    for r in range(4):
        A(f"s_cmp_eq_u32 s58, 0")
        A(f"s_cselect_b64 s[{84+2*r}:{85+2*r}], 0, s[{64+2*r}:{65+2*r}]")
    A(f"v_min_u32 v{b}, 2, v3")
    A(f"v_mul_u32_u24 v{c}, 48, v2")
    A(f"v_lshl_add_u32 v{c}, v{b}, 4, v{c}")
    A(f"s_mul_i32 s58, s56, {HHS}")
    A("s_mul_i32 s59, s57, 768")
    A("s_add_u32 s58, s58, s59")
    A(f"v_add_u32 v{V_KQ}, s58, v{c}")
    A(f"v_lshrrev_b32 v{b}, 2, v2")
    A(f"v_lshl_add_u32 v{b}, v3, 2, v{b}")
    A(f"v_mul_u32_u24 v{b}, 48, v{b}")
    A(f"v_and_b32 v{c}, 3, v2")
    A(f"v_lshl_add_u32 v{b}, v{c}, 3, v{b}")
    A(f"v_add_u32 v{V_VT}, s58, v{b}")
    A(f"v_mul_u32_u24 v{b}, 144, v2")
    A(f"v_lshl_add_u32 v{b}, v3, 3, v{b}")
    A("s_mul_i32 s58, s56, 36")
    A("s_mul_i32 s59, s57, 2304")
    A("s_add_u32 s58, s58, s59")
    A(f"s_add_u32 s58, s58, {OB}")
    A(f"v_add_u32 v{V_OW}, s58, v{b}")
    A(f"v_add_u32 v{V_OW+1}, 2304, v{V_OW}")
    A(f"v_add_u32 v{V_OW+2}, 4608, v{V_OW}")
    A(f"v_mov_b32 v{V_NINF}, 0xff800000")
    A("s_mul_i32 s58, s32, 110592")
    A("s_mul_i32 s59, s33, 2304")
    A("s_add_u32 s58, s58, s59")
    for rnd in range(2):
        A(f"v_add_u32 v{a}, {512*rnd}, v0")
        A(f"v_and_b32 v{b}, 15, v{a}")
        A(f"v_lshrrev_b32 v{c}, 4, v{a}")
        A(f"v_mul_u32_u24 v{d}, 7282, v{c}")
        A(f"v_lshrrev_b32 v{d}, 16, v{d}")
        A(f"v_mul_u32_u24 v{d+1}, 9, v{d}")
        A(f"v_sub_u32 v{c}, v{c}, v{d+1}")
        A(f"v_lshl_add_u32 v{d+1}, v{d}, 4, v{b}")
        A(f"v_mul_u32_u24 v{d+1}, 144, v{d+1}")
        A(f"v_lshl_add_u32 v{d+1}, v{c}, 4, v{d+1}")
        A(f"v_add_u32 v{V_OL+rnd}, {OB}, v{d+1}")
        A(f"v_mul_u32_u24 v{d}, 18432, v{d}")
        A(f"v_lshl_add_u32 v{d}, v{c}, 8, v{d}")
        A(f"v_lshl_add_u32 v{d}, v{b}, 4, v{d}")
        A(f"v_add_u32 v{V_OG+rnd}, s58, v{d}")
        if rnd == 1:
            A(f"v_mov_b32 v{b}, 0x{BIGOFF:x}")
            A(f"v_cmp_gt_u32 vcc, 864, v{a}")
            A(f"v_cndmask_b32 v{V_OG+rnd}, v{b}, v{V_OG+rnd}, vcc")

def gen_a1(A):
    n = "a1"
    A("s_and_b32 s36, s2, 7")
    A("s_lshr_b32 s37, s2, 3")
    A("s_lshr_b32 s38, s36, 2")
    A("s_and_b32 s39, s36, 3")
    A("s_mul_i32 s32, s38, 11")
    A("s_lshr_b32 s40, s37, 1")
    A("s_add_u32 s32, s32, s40")
    A("s_and_b32 s40, s37, 1")
    A("s_lshl_b32 s33, s39, 1")
    A("s_add_u32 s33, s33, s40")
    A("s_mul_i32 s34, s32, 96")
    make_srd(A, 44, P_X, SZ_T)
    make_srd(A, 48, P_W, 576 * 3456)
    A(f"s_cmp_ge_u32 s{S_WAVE}, 4")
    A(f"s_cbranch_scc1 {n}_loader")
    a_prefetch_setup(A, 230, 231, 4, 37, 22)
    get_nonce_issue(A, "A")
    A("v_and_b32 v2, 15, v1")
    A("v_lshrrev_b32 v3, 4, v1")
    attn_setup(A)
    A("v_lshrrev_b32 v6, 2, v2")
    A("v_lshl_add_u32 v7, v3, 3, v6")
    A("v_lshlrev_b32 v7, 9, v7")
    A("v_and_b32 v8, 3, v2")
    A("v_lshl_add_u32 v7, v8, 3, v7")
    A(f"v_add_u32 v7, {XS}, v7")
    A("v_and_b32 v8, 1, v3")
    A("v_lshl_add_u32 v8, v8, 2, v6")
    A("v_lshrrev_b32 v9, 1, v2")
    A("v_xor_b32 v9, v9, v3")
    A("v_lshlrev_b32 v9, 4, v9")
    XA = 14
    A(f"v_lshl_add_u32 v{XA}, v2, 7, v9")
    A(f"v_xor_b32 v{XA+1}, 64, v{XA}")
    for w in range(3):
        A(f"s_cmp_eq_u32 s{S_WAVE}, {w}")
        A(f"s_cbranch_scc1 {n}_c{w}")
    for w in [3, 0, 1, 2]:
        A.label(f"{n}_c{w}")
        if w < 3:
            nts = [3*w, 3*w+1, 3*w+2]
            units = [(t, st) for t in nts for st in range(7)] + [(13, 2*w+1), (13, 2*w+2)]
            ants = nts + [13]
            sts = list(range(7))
        else:
            nts = [9, 10, 11, 12]
            units = [(t, st) for t in nts for st in range(1, 7)]
            ants = nts
            sts = list(range(1, 7))
        WA = 10
        for ai, t in enumerate(ants):
            A(f"v_xor_b32 v9, {t}, v8")
            A(f"v_lshl_add_u32 v{WA+ai}, v9, 5, v7")
        A("v_mul_u32_u24 v4, 48, v2")
        for ai, t in enumerate(ants):
            for p in range(2):
                va = 212 + 2*ai + p
                A("v_lshlrev_b32 v5, 2, v3")
                A(f"v_add_u32 v5, {16*t + 2*p}, v5")
                A("v_mul_u32_u24 v6, 3641, v5")
                A("v_lshrrev_b32 v6, 16, v6")
                A("v_mul_u32_u24 v6, 5340, v6")
                A(f"v_lshl_add_u32 v{va}, v5, 1, v6")
                A(f"v_add_u32 v{va}, v{va}, v4")
        ACC = 28
        acc = {u: ACC + 4*i for i, u in enumerate(units)}
        FR = [124, 168]
        def reads(ks, base):
            lst = []
            for ai, t in enumerate(ants):
                for h in range(2):
                    lst.append(f"ds_read_b64_tr_b16 {v(base+4*ai+2*h,2)}, v{WA+ai} offset:{ks*16384 + h*2048}")
            for bi, st in enumerate(sts):
                lst.append(f"ds_read_b128 {v(base+16+4*bi,4)}, v{XA+ks} offset:{st*2048}")
            return lst
        def mfmas(base, first):
            lst = []
            for (t, st) in units:
                ai = ants.index(t); bi = sts.index(st)
                c = "0" if first else v(acc[(t, st)], 4)
                lst.append(f"v_mfma_f32_16x16x32_bf16 {v(acc[(t,st)],4)}, {v(base+4*ai,4)}, {v(base+16+4*bi,4)}, {c}")
            return lst
        def interleave(mf, rd):
            i = 0
            for m in mf:
                A(m)
                if i < len(rd): A(rd[i]); i += 1
            while i < len(rd): A(rd[i]); i += 1
        for u in units:
            for r in range(0, 4, 2): A(f"v_mov_b64 {v(acc[u]+r,2)}, 0")
        A("s_mov_b32 s60, 0")
        A("s_mov_b32 s61, 0")
        A(f"s_mov_b32 s52, {ST1}")
        A(f"s_mov_b32 s53, {(-2*ST1) & 0xffffffff}")
        A("s_barrier")
        stamp(A, 1)
        for r_ in reads(0, FR[0]): A(r_)
        A("s_waitcnt lgkmcnt(0)")
        A(f"s_branch {n}_q{w}")
        A.label(f"{n}_l{w}")
        A("s_barrier")
        interleave(mfmas(FR[1], False), reads(0, FR[0]))
        A("s_waitcnt lgkmcnt(0)")
        A.label(f"{n}_q{w}")
        labp = A.newlabel("lpf")
        A(f"s_cmp_lg_u32 s60, {w}")
        A(f"s_cbranch_scc1 {labp}")
        A(f"s_add_u32 s63, s60, {OPT.get('nb', 5) + 1}")
        A("s_cmp_gt_u32 s63, 8")
        A(f"s_cbranch_scc1 {labp}")
        a_prefetch_issue(A, 230, 231, 63, 44, 48, 240)
        A.label(labp)
        A("s_add_u32 s61, s61, 1")
        A("s_cmp_eq_u32 s61, 3")
        A("s_cselect_b32 s62, s53, s52")
        A("s_cselect_b32 s61, 0, s61")
        interleave(mfmas(FR[0], False), reads(1, FR[1]))
        for r in range(6): A(f"v_add_u32 v{10+r}, s62, v{10+r}")
        A("s_add_u32 s60, s60, 1")
        A("s_cmp_lt_u32 s60, 9")
        A("s_waitcnt lgkmcnt(0)")
        A(f"s_cbranch_scc1 {n}_l{w}")
        A("s_barrier")
        last = mfmas(FR[1], False)
        pend = []
        k = 0
        def flush_one(u):
            nonlocal k
            (t, st) = u
            ai = ants.index(t); a0 = acc[(t, st)]
            tmp = 124 + 2*(k % 8); k += 1
            A(f"v_cvt_pk_bf16_f32 v{tmp}, v{a0}, v{a0+1}")
            A(f"v_cvt_pk_bf16_f32 v{tmp+1}, v{a0+2}, v{a0+3}")
            A(f"ds_write_b32 v{212+2*ai}, v{tmp} offset:{768*st}")
            A(f"ds_write_b32 v{212+2*ai+1}, v{tmp+1} offset:{768*st}")
        for m, u in zip(last, units):
            A(m)
            pend.append(u)
            if len(pend) > 3: flush_one(pend.pop(0))
        for u in pend: flush_one(u)
        stamp(A, 4)
        A(f"s_branch {n}_attn")
    A.label(f"{n}_loader")
    A(f"s_sub_u32 s35, s{S_WAVE}, 4")
    A("v_lshrrev_b32 v2, 3, v1")
    A("v_and_b32 v3, 7, v1")
    A("v_lshrrev_b32 v4, 4, v1")
    A("v_mul_u32_u24 v5, 1152, v2")
    A("v_xor_b32 v6, v3, v4")
    A("v_lshl_add_u32 v10, v6, 4, v5")
    A("v_xor_b32 v11, 64, v10")
    A("s_lshl_b32 s36, s35, 2")
    A("s_cmp_eq_u32 s35, 3")
    A("s_cselect_b32 s36, 11, s36")
    A("s_cselect_b64 s[54:55], -1, 0")
    A("v_cndmask_b32 v16, v10, v11, s[54:55]")
    A("v_cndmask_b32 v17, v11, v10, s[54:55]")
    A("s_sub_u32 s37, s34, 16")
    A("s_mul_i32 s37, s37, 1152")
    A("s_mul_i32 s38, s36, 9216")
    A("s_add_u32 s37, s37, s38")
    A("s_lshl_b32 s38, s36, 10")
    WV = 12
    A("v_lshrrev_b32 v2, 5, v1")
    A("v_and_b32 v3, 31, v1")
    A("v_mul_u32_u24 v4, 3456, v2")
    A("s_mul_i32 s40, s33, 144")
    A("v_add_u32 v4, s40, v4")
    A(f"v_mov_b32 v9, 0x{BIGOFF:x}")
    for var in range(4):
        j1, j4 = var & 1, var >> 1
        A(f"v_add_u32 v5, {2*j1+4*j4}, v2")
        A("v_lshlrev_b32 v5, 1, v5")
        A("v_xor_b32 v5, v5, v3")
        A("v_mov_b32 v6, 1152")
        A("v_mov_b32 v7, 2160")
        A("v_cmp_le_u32 vcc, 9, v5")
        A("v_cndmask_b32 v6, v6, v7, vcc")
        A("v_mov_b32 v7, -288")
        A("v_cmp_le_u32 vcc, 18, v5")
        A("v_cndmask_b32 v6, v6, v7, vcc")
        A("v_lshl_add_u32 v6, v5, 4, v6")
        A(f"v_add_u32 v{WV+var}, v4, v6")
        A("v_cmp_le_u32 vcc, 27, v5")
        A(f"v_cndmask_b32 v{WV+var}, v{WV+var}, v9, vcc")
    A("s_mul_i32 s40, s35, 55296")
    A("s_lshl_b32 s41, s35, 13")
    A(f"s_add_u32 s41, s41, {XS}")
    def issue_block():
        A(f"s_mul_i32 s62, s61, {ST1}")
        A("s_add_u32 s63, s38, s62")
        A("s_add_u32 s62, s41, s62")
        for j in range(4):
            lab = None
            if j == 3:
                lab = A.newlabel(f"{n}_sk")
                A("s_cmp_ge_u32 s35, 2")
                A(f"s_cbranch_scc1 {lab}")
            A(f"s_add_u32 m0, s63, {1024*j}")
            A(f"s_add_u32 s52, s37, {9216*j}")
            if j < 2:
                A("s_cmp_lt_i32 s52, 0")
                A(f"s_cselect_b32 s52, 0x{BIGOFF:x}, s52")
            A(f"buffer_load_dwordx4 v{16+(j&1)}, s[44:47], s52 offen lds")
            if lab: A.label(lab)
        for j in range(8):
            var = (j & 1) + 2 * (j >> 2)
            A(f"s_add_u32 m0, s62, {1024*j}")
            A(f"s_add_u32 s52, s40, {6912*j}")
            A(f"buffer_load_dwordx4 v{WV+var}, s[48:51], s52 offen lds")
        A("s_add_u32 s37, s37, 128")
        A("s_add_u32 s40, s40, 221184")
        A("s_add_u32 s61, s61, 1")
        A("s_cmp_eq_u32 s61, 3")
        A("s_cselect_b32 s61, 0, s61")
    A("s_mov_b32 s61, 0")
    issue_block()
    stamp(A, 1)
    A("v_and_b32 v2, 15, v1")
    A("v_lshrrev_b32 v3, 4, v1")
    attn_setup(A)
    A("s_waitcnt vmcnt(0)")
    stamp(A, 2)
    A("s_barrier")
    A("s_mov_b32 s60, 0")
    A.label(f"{n}_lp")
    issue_block()
    A("s_add_u32 s60, s60, 1")
    A("s_cmp_lt_u32 s60, 2")
    A(f"s_cbranch_scc1 {n}_lp")
    stamp(A, 3)
    A("s_mov_b32 s60, 0")
    A.label(f"{n}_ll")
    A("s_waitcnt vmcnt(11)")
    A("s_barrier")
    issue_block()
    A("s_add_u32 s60, s60, 1")
    A("s_cmp_lt_u32 s60, 6")
    A(f"s_cbranch_scc1 {n}_ll")
    A("s_waitcnt vmcnt(11)")
    A("s_barrier")
    A("s_waitcnt vmcnt(0)")
    A("s_barrier")
    A("s_barrier")
    A.label(f"{n}_attn")
    A("s_waitcnt lgkmcnt(0)")
    A("s_barrier")
    stamp(A, 5)
    cst = struct.unpack("<I", struct.pack("<f", (18 ** -0.5) * math.log2(math.e)))[0]
    A(f"s_mov_b32 s42, 0x{cst:08x}")
    B = 24
    def regs(b): return B + 40 * b
    for b in range(3):
        R = regs(b)
        A(f"ds_read_b128 {v(R,4)}, v{V_KQ} offset:{8*HHS + 768*(b+1)}")
        A(f"ds_read_b128 {v(R+4,4)}, v{V_KQ} offset:{768*b}")
        A(f"ds_read_b128 {v(R+8,4)}, v{V_KQ} offset:{768*(b+1)}")
    for b in range(3):
        R = regs(b)
        A(f"ds_read_b64_tr_b16 {v(R+12,2)}, v{V_VT} offset:{4*HHS + 768*b}")
        A(f"ds_read_b64_tr_b16 {v(R+14,2)}, v{V_VT} offset:{4*HHS + 768*(b+1)}")
        A(f"ds_read_b64_tr_b16 {v(R+16,2)}, v{V_VT} offset:{4*HHS + 768*b + 32}")
        A(f"ds_read_b64_tr_b16 {v(R+18,2)}, v{V_VT} offset:{4*HHS + 768*(b+1) + 32}")
    for b in range(3):
        R = regs(b)
        A(f"s_waitcnt lgkmcnt({12 + 3*(2-b)})" if 12 + 3*(2-b) <= 15 else "s_waitcnt lgkmcnt(15)")
        A(f"v_cndmask_b32 v{R}, 0, v{R}, s[82:83]")
        for r in range(1, 4):
            A(f"v_cndmask_b32 v{R+r}, 0, v{R+r}, s[80:81]")
        A(f"v_mfma_f32_16x16x32_bf16 {v(R+20,4)}, {v(R+4,4)}, {v(R,4)}, 0")
        A(f"v_mfma_f32_16x16x32_bf16 {v(R+24,4)}, {v(R+8,4)}, {v(R,4)}, 0")
    for b in range(3):
        R = regs(b); S = R + 20
        for e in range(8):
            m = (84 + 2*e) if (b == 0 and e < 4) else (64 + 2*e)
            A(f"v_cndmask_b32 v{S+e}, v{V_NINF}, v{S+e}, s[{m}:{m+1}]")
        M = R + 28
        A(f"v_max3_f32 v{M}, v{S}, v{S+1}, v{S+2}")
        A(f"v_max3_f32 v{M}, v{M}, v{S+3}, v{S+4}")
        A(f"v_max3_f32 v{M}, v{M}, v{S+5}, v{S+6}")
        A(f"v_max_f32 v{M}, v{M}, v{S+7}")
    def xlane(op, b_regs):
        for kind in ("16", "32"):
            for (M, T) in b_regs: A(f"v_mov_b32 v{T}, v{M}")
            for (M, T) in b_regs: A(f"v_permlane{kind}_swap_b32 v{M}, v{T}")
            for (M, T) in b_regs: A(f"{op} v{M}, v{M}, v{T}")
    xlane("v_max_f32", [(regs(b)+28, regs(b)+29) for b in range(3)])
    for b in range(3):
        R = regs(b); M = R + 28
        A(f"v_mul_f32 v{M}, s42, v{M}")
    for b in range(3):
        R = regs(b); S = R + 20; M = R + 28
        for e in range(8): A(f"v_fma_f32 v{S+e}, v{S+e}, s42, -v{M}")
        for e in range(8): A(f"v_exp_f32 v{S+e}, v{S+e}")
    for b in range(3):
        R = regs(b); S = R + 20; M = R + 30
        A(f"v_add_f32 v{M}, v{S}, v{S+1}")
        A(f"v_add_f32 v{M+1}, v{S+2}, v{S+3}")
        A(f"v_add_f32 v{M}, v{M}, v{S+4}")
        A(f"v_add_f32 v{M+1}, v{M+1}, v{S+5}")
        A(f"v_add_f32 v{M}, v{M}, v{S+6}")
        A(f"v_add_f32 v{M+1}, v{M+1}, v{S+7}")
        A(f"v_add_f32 v{M}, v{M}, v{M+1}")
    xlane("v_add_f32", [(regs(b)+30, regs(b)+31) for b in range(3)])
    for b in range(3):
        A(f"v_rcp_f32 v{regs(b)+30}, v{regs(b)+30}")
    A("s_waitcnt lgkmcnt(0)")
    for b in range(3):
        R = regs(b); S = R + 20; M = R + 30
        for e in range(8): A(f"v_mul_f32 v{S+e}, v{S+e}, v{M}")
        for q in range(4): A(f"v_cvt_pk_bf16_f32 v{R+q}, v{S+2*q}, v{S+2*q+1}")
        A(f"v_mfma_f32_16x16x32_bf16 {v(R+32,4)}, {v(R+12,4)}, {v(R,4)}, 0")
        A(f"v_mfma_f32_16x16x32_bf16 {v(R+36,4)}, {v(R+16,4)}, {v(R,4)}, 0")
    for b in range(3):
        R = regs(b)
        A(f"v_cvt_pk_bf16_f32 v{R+4}, v{R+32}, v{R+33}")
        A(f"v_cvt_pk_bf16_f32 v{R+5}, v{R+34}, v{R+35}")
        A(f"v_cvt_pk_bf16_f32 v{R+6}, v{R+36}, v{R+37}")
        A(f"ds_write2_b32 v{V_OW+b}, v{R+4}, v{R+5} offset0:0 offset1:1")
    A("s_mov_b64 exec, 0xffff")
    for b in range(3):
        A(f"ds_write_b32 v{V_OW+b}, v{regs(b)+6} offset:32")
    A("s_mov_b64 exec, -1")
    make_srd(A, 44, P_WS, SZ_T, WS_OF)
    A("s_waitcnt lgkmcnt(0)")
    A("s_barrier")
    stamp(A, 6)
    for rnd in range(2):
        A(f"ds_read_b128 {v(20+4*rnd,4)}, v{V_OL+rnd}")
    for rnd in range(2):
        A(f"s_waitcnt lgkmcnt({1-rnd})")
        A(f"buffer_store_dwordx4 {v(20+4*rnd,4)}, v{V_OG+rnd}, s[44:47], 0 offen sc1")
    A("s_waitcnt vmcnt(0)")
    A("s_barrier")
    lab = A.newlabel("a1f")
    A(f"s_cmp_lg_u32 s{S_WAVE}, 0")
    A(f"s_cbranch_scc1 {lab}")
    nonce_resolve(A, "A")
    A("s_lshl_b32 s36, s32, 8")
    A("s_lshl_b32 s37, s33, 2")
    A("s_add_u32 s36, s36, s37")
    flag_store(A, "A", 36)
    A.label(lab)
    stamp(A, 7)

HC = 4160
URB = 4 * HC
WB = URB + 4608
XCH = 4 * WB
ZS = 4160

def b2_common(A, s_grp):
    A(f"s_and_b32 s32, s{S_WAVE}, 3")
    A(f"s_lshr_b32 s33, s{S_WAVE}, 2")
    A(f"s_lshl_b32 s34, s{s_grp}, 2")
    A("s_add_u32 s34, s34, s32")
    A("s_lshl_b32 s35, s34, 12")
    A(f"s_mul_i32 s36, s32, {WB}")
    make_srd(A, 44, P_H, 4096, add_s=35)
    A("s_lshl_b32 s37, s34, 1")
    A("s_and_b32 s38, s37, 0xfffffffc")
    A(f"s_load_dword s39, s[{P_D}:{P_D+1}], s38")

def b2_h_loads(A, HL, nits=2):
    a = HL + 12 * nits + 2
    A(f"v_lshlrev_b32 v{a}, 4, v1")
    if nits == 2:
        A("s_lshl_b32 s40, s33, 11")
        A(f"v_add_u32 v{a}, s40, v{a}")
    A(f"v_add_u32 v{a+1}, 4, v{a}")
    A(f"v_add_u32 v{a+2}, 8, v{a}")
    for it in range(nits):
        A(f"buffer_load_dwordx4 {v(HL+12*it,4)}, v{a}, s[44:47], 0 offen offset:{1024*it}")
        A(f"buffer_load_dwordx4 {v(HL+12*it+4,4)}, v{a+1}, s[44:47], 0 offen offset:{1024*it}")
        A(f"buffer_load_dwordx4 {v(HL+12*it+8,4)}, v{a+2}, s[44:47], 0 offen offset:{1024*it}")
    A(f"v_mov_b32 v{a+3}, 0")
    A(f"buffer_load_dwordx2 {v(HL+12*nits,2)}, v{a+3}, s[44:47], 0 offen")

def b2_h_stage(A, HL, T, nits=2):
    a = HL + 12 * nits + 2
    A(f"v_add_u32 v{a+1}, s36, v{a}")
    for it in range(nits):
        b = HL + 12 * it
        for i in range(4): A(f"v_alignbit_b32 v{T+i}, v{b+4+i}, v{b+i}, 16")
        for i in range(4): A(f"v_alignbit_b32 v{T+4+i}, v{b+8+i}, v{b+4+i}, 16")
        off = 32 + 1024 * it
        A(f"ds_write_b128 v{a+1}, {v(b,4)} offset:{off}")
        A(f"ds_write_b128 v{a+1}, {v(T,4)} offset:{off+HC}")
        A(f"ds_write_b128 v{a+1}, {v(b+4,4)} offset:{off+2*HC}")
        A(f"ds_write_b128 v{a+1}, {v(T+4,4)} offset:{off+3*HC}")
    d0, d1 = HL + 12*nits, HL + 12*nits + 1
    A(f"v_lshlrev_b32 v{T+8}, 16, v{d0}")
    A(f"v_alignbit_b32 v{T+9}, v{d1}, v{d0}, 16")
    Z = T + 10
    for r in range(0, 8, 2): A(f"v_mov_b64 {v(Z+r,2)}, 0")
    A("v_cmp_eq_u32 s[60:61], 1, v1")
    A("v_cmp_eq_u32 s[62:63], 2, v1")
    A("v_cmp_eq_u32 s[64:65], 3, v1")
    A(f"v_cndmask_b32 v{Z+7}, v{Z+7}, v{T+8}, s[60:61]")
    A(f"v_cndmask_b32 v{Z+7}, v{Z+7}, v{d0}, s[62:63]")
    A(f"v_cndmask_b32 v{Z+7}, v{Z+7}, v{T+9}, s[64:65]")
    A(f"v_cndmask_b32 v{Z+6}, v{Z+6}, v{T+8}, s[64:65]")
    A(f"v_mul_u32_u24 v{a+2}, {HC}, v1")
    A(f"v_add_u32 v{a+2}, s36, v{a+2}")
    A("s_mov_b64 exec, 0xf")
    A(f"ds_write_b128 v{a+2}, {v(Z,4)}")
    A(f"ds_write_b128 v{a+2}, {v(Z+4,4)} offset:16")
    A("s_mov_b64 exec, 0xffffffff")
    A(f"v_lshlrev_b32 v{a+2}, 4, v1")
    A(f"v_add_u32 v{a+2}, s36, v{a+2}")
    A(f"ds_write_b128 v{a+2}, {v(Z,4)} offset:{URB+4096}")
    A("s_mov_b64 exec, -1")

def b2_main(A, s_grp, sb, resolved):
    make_srd(A, 48, P_WS, 4096, WS_UR, add_s=35)
    make_srd(A, 52, P_WS, 4096, WS_QT, add_s=35)
    make_srd(A, 56, P_OUT, 2048 * 2304)
    A("v_and_b32 v3, 15, v1")
    A("v_lshrrev_b32 v4, 4, v1")
    A("v_lshlrev_b32 v5, 4, v1")
    A("s_lshl_b32 s40, s33, 11")
    A("v_add_u32 v5, s40, v5")
    A("v_add_u32 v10, s36, v5")
    A("v_lshlrev_b32 v9, 5, v3")
    A("v_lshl_add_u32 v9, v4, 3, v9")
    A("v_add_u32 v8, s40, v9")
    A("v_add_u32 v12, 1, v3")
    A("v_and_b32 v13, 3, v12")
    A("v_lshrrev_b32 v12, 2, v12")
    A(f"v_mul_u32_u24 v13, {HC}, v13")
    A("v_lshl_add_u32 v13, v4, 4, v13")
    A("v_lshl_add_u32 v13, v12, 3, v13")
    A("s_lshl_b32 s41, s33, 8")
    A("s_add_u32 s41, s41, s36")
    A("v_add_u32 v13, s41, v13")
    A("v_lshlrev_b32 v14, 4, v4")
    A("v_lshlrev_b32 v15, 5, v3")
    A("v_sub_u32 v14, v14, v15")
    A(f"v_add_u32 v14, {URB+480}, v14")
    A("v_add_u32 v14, s41, v14")
    stamp(A, sb + 0)
    lab = A.newlabel("b2w")
    A(f"s_cmp_lg_u32 s{S_WAVE}, 0")
    A(f"s_cbranch_scc1 {lab}")
    if not resolved:
        A("s_waitcnt vmcnt(0)")
        nonce_resolve(A, "B")
    A(f"s_lshr_b32 s41, s{s_grp}, 4")
    A("s_lshl_b32 s41, s41, 8")
    flag_poll(A, "B", 41)
    A.label(lab)
    A("s_barrier")
    stamp(A, sb + 1)
    U = 68
    for it in range(2):
        A(f"buffer_load_dwordx4 {v(U+4*it,4)}, v5, s[48:51], 0 offen offset:{1024*it} sc1")
    Q = 84
    for c in range(4):
        A(f"buffer_load_dwordx2 {v(Q+2*c,2)}, v8, s[52:55], 0 offen offset:{512*c} sc1")
    A(f"s_lshl_b32 s41, s{S_WAVE}, 12")
    A("v_lshlrev_b32 v6, 4, v1")
    A(f"v_add_u32 v6, {XCH}, v6")
    A("v_add_u32 v7, s41, v6")
    A(f"s_xor_b32 s42, s{S_WAVE}, 4")
    A("s_lshl_b32 s42, s42, 12")
    A("v_add_u32 v6, s42, v6")
    A(f"v_sub_u32 v11, {URB+504}, v9")
    A("s_lshl_b32 s41, s33, 11")
    A("s_sub_u32 s42, s36, s41")
    A("v_add_u32 v11, s42, v11")
    A(f"s_mul_i32 s42, s32, {ZS}")
    A("s_add_u32 s42, s42, s41")
    A("v_add_u32 v9, s42, v9")
    A("s_waitcnt vmcnt(4)")
    for it in range(2):
        A(f"ds_write_b128 v10, {v(U+4*it,4)} offset:{URB+1024*it}")
    A("s_waitcnt lgkmcnt(0)")
    A("s_barrier")
    stamp(A, sb + 2)
    ACC = 208
    FA = [104, 16]
    def frag_reads(rho, base):
        lst = []
        for b in range(8):
            lst.append(f"ds_read_b128 {v(base+32+4*b,4)}, v14 offset:{64*rho+512*(7-b)}")
        aa_l = []
        for aa in range(8):
            aa_l.append(f"ds_read_b64 {v(base+4*aa,2)}, v13 offset:{512*aa+64*rho}")
            aa_l.append(f"ds_read_b64 {v(base+4*aa+2,2)}, v13 offset:{512*aa+64*rho+8}")
        return aa_l[:2] + lst + aa_l[2:]
    for r_ in frag_reads(0, FA[0]): A(r_)
    UU = 88
    UU = 92
    for rho in range(4):
        base = FA[rho & 1]
        A("s_waitcnt lgkmcnt(0)")
        rd = frag_reads(rho + 1, FA[(rho + 1) & 1]) if rho < 3 else [f"ds_read_b64 {v(UU+2*c,2)}, v11 offset:{512*(7-c)}" for c in range(4)]
        i = 0
        for aa in range(8):
            for b in range(8 - aa):
                c = aa + b
                src = "0" if (rho == 0 and aa == 0) else v(ACC+4*c, 4)
                A(f"v_mfma_f32_16x16x32_bf16 {v(ACC+4*c,4)}, {v(base+4*aa,4)}, {v(base+32+4*b,4)}, {src}")
                if i < len(rd): A(rd[i]); i += 1
    stamp(A, sb + 3)
    l1 = A.newlabel("b2h1"); l2 = A.newlabel("b2x")
    KP = 192
    A("s_cmp_eq_u32 s33, 1")
    A(f"s_cbranch_scc1 {l1}")
    for c in range(4): A(f"ds_write_b128 v7, {v(ACC+16+4*c,4)} offset:{1024*c}")
    for c in range(8): A(f"v_mov_b64 {v(KP+2*c,2)}, {v(ACC+2*c,2)}")
    A(f"s_branch {l2}")
    A.label(l1)
    for c in range(4): A(f"ds_write_b128 v7, {v(ACC+4*c,4)} offset:{1024*c}")
    for c in range(8): A(f"v_mov_b64 {v(KP+2*c,2)}, {v(ACC+16+2*c,2)}")
    A.label(l2)
    A("s_and_b32 s37, s37, 2")
    A("s_lshl_b32 s37, s37, 3")
    A("s_waitcnt lgkmcnt(0)")
    A("s_lshr_b32 s39, s39, s37")
    A("s_lshl_b32 s39, s39, 16")
    TT = 16
    A("s_waitcnt vmcnt(0)")
    for c in range(4):
        A(f"v_and_b32 v{TT+4*c+0}, 0xffff0000, v{UU+2*c+1}")
        A(f"v_lshlrev_b32 v{TT+4*c+1}, 16, v{UU+2*c+1}")
        A(f"v_and_b32 v{TT+4*c+2}, 0xffff0000, v{UU+2*c}")
        A(f"v_lshlrev_b32 v{TT+4*c+3}, 16, v{UU+2*c}")
        A(f"v_lshlrev_b32 v{TT+16+4*c+0}, 16, v{Q+2*c}")
        A(f"v_and_b32 v{TT+16+4*c+1}, 0xffff0000, v{Q+2*c}")
        A(f"v_lshlrev_b32 v{TT+16+4*c+2}, 16, v{Q+2*c+1}")
        A(f"v_and_b32 v{TT+16+4*c+3}, 0xffff0000, v{Q+2*c+1}")
    for e in range(16): A(f"v_fma_f32 v{KP+e}, v{TT+e}, s39, v{KP+e}")
    A("s_barrier")
    for c in range(4): A(f"ds_read_b128 {v(48+4*c,4)}, v6 offset:{1024*c}")
    for c in range(4):
        A(f"s_waitcnt lgkmcnt({3-c})")
        A(f"v_pk_add_f32 {v(KP+4*c,2)}, {v(KP+4*c,2)}, {v(48+4*c,2)}")
        A(f"v_pk_add_f32 {v(KP+4*c+2,2)}, {v(KP+4*c+2,2)}, {v(48+4*c+2,2)}")
        A(f"v_pk_mul_f32 {v(KP+4*c,2)}, {v(KP+4*c,2)}, {v(TT+16+4*c,2)}")
        A(f"v_pk_mul_f32 {v(KP+4*c+2,2)}, {v(KP+4*c+2,2)}, {v(TT+16+4*c+2,2)}")
        A(f"v_cvt_pk_bf16_f32 v{64+2*c}, v{KP+4*c}, v{KP+4*c+1}")
        A(f"v_cvt_pk_bf16_f32 v{65+2*c}, v{KP+4*c+2}, v{KP+4*c+3}")
        A(f"ds_write_b64 v9, {v(64+2*c,2)} offset:{512*c}")
    A("v_lshrrev_b32 v12, 2, v3")
    A(f"v_mul_u32_u24 v12, {ZS}, v12")
    A("v_and_b32 v13, 3, v3")
    A("v_lshl_add_u32 v12, v13, 3, v12")
    A("v_lshl_add_u32 v12, v4, 5, v12")
    A(f"s_lshl_b32 s41, s{S_WAVE}, 9")
    A("v_add_u32 v12, s41, v12")
    A(f"s_lshl_b32 s41, s{S_WAVE}, 8")
    A("v_add_u32 v13, s41, v1")
    A("s_movk_i32 s42, 2304")
    A(f"s_lshl_b32 s43, s{s_grp}, 3")
    A("s_add_u32 s43, s43, 1152")
    A("v_mul_lo_u32 v13, v13, s42")
    A("v_add_u32 v13, s43, v13")
    for it in range(4): A(f"s_mov_b32 s{60+it}, {64*2304*it}")
    A("s_waitcnt lgkmcnt(0)")
    A("s_barrier")
    for it in range(4):
        A(f"ds_read_b64_tr_b16 {v(16+2*it,2)}, v12 offset:{128*it}")
    for it in range(4):
        A(f"s_waitcnt lgkmcnt({3-it})")
        A(f"buffer_store_dwordx2 {v(16+2*it,2)}, v13, s[56:59], s{60+it} offen")
    stamp(A, sb + 4)

def b1_addr(A, s_tile, vt):
    A(f"s_mul_hi_u32 s66, s{s_tile}, 0x1c71c71d")
    A("s_mul_i32 s67, s66, 9")
    A(f"s_sub_u32 s67, s{s_tile}, s67")
    A(f"v_and_b32 v2, 7, v{vt}")
    A(f"v_lshrrev_b32 v3, 3, v{vt}")
    A("s_lshl_b32 s40, s66, 8")
    A("v_lshl_add_u32 v4, v3, 3, s40")
    A("s_lshl_b32 s41, s67, 7")
    A("v_lshl_add_u32 v5, v2, 4, s41")
    A("s_movk_i32 s42, 1152")
    A("v_mad_u32_u24 v6, v4, s42, v5")
    A("v_add_u32 v7, 4608, v6")

def gen_b1_kv(A, s_tile):
    A.comment("===== B1 kv (waves 0-3) =====")
    b1_addr(A, s_tile, 0)
    A("v_subrev_u32 v8, 3456, v6")
    A("v_subrev_u32 v9, 2304, v6")
    A("v_subrev_u32 v10, 1152, v6")
    make_srd(A, 48, P_K, SZ_T)
    make_srd(A, 52, P_V, SZ_T)
    make_srd(A, 56, P_SH, 576 * 8)
    KR, VR, SH, W = 16, 60, 92, 108
    KF, VF, ACC, OUT = 140, 162, 178, 194
    for j, vo in enumerate((8, 9, 10)):
        A(f"buffer_load_dwordx4 {v(KR+4*j,4)}, v{vo}, s[48:51], 0 offen")
    for i in range(8):
        A(f"buffer_load_dwordx4 {v(KR+4*(3+i),4)}, v{6 if i < 4 else 7}, s[48:51], 0 offen offset:{1152*(i%4)}")
    for i in range(8):
        A(f"buffer_load_dwordx4 {v(VR+4*i,4)}, v{6 if i < 4 else 7}, s[52:55], 0 offen offset:{1152*(i%4)}")
    A("s_lshl_b32 s43, s67, 9")
    A("v_lshl_add_u32 v11, v2, 6, s43")
    for i in range(4):
        A(f"buffer_load_dwordx4 {v(SH+4*i,4)}, v11, s[56:59], 0 offen offset:{16*i}")
    stamp(A, 2)
    make_srd(A, 52+8, P_WS, SZ_T, WS_UR)
    A("s_lshl_b32 s43, s67, 18")
    A("v_lshl_add_u32 v12, v2, 15, s43")
    A("v_lshlrev_b32 v14, 1, v4")
    A("v_sub_u32 v12, v12, v14")
    A("v_add_u32 v12, 4080, v12")
    for ch in range(8): A(f"s_mov_b32 s{68+ch}, {ch*4096}")
    A("s_waitcnt vmcnt(0)")
    A("s_barrier")
    stamp(A, 3)
    for ch in range(8):
        A(f"v_lshlrev_b32 v{W+0*8+ch}, 16, v{SH+2*ch}")
        A(f"v_and_b32 v{W+1*8+ch}, 0xffff0000, v{SH+2*ch}")
        A(f"v_lshlrev_b32 v{W+2*8+ch}, 16, v{SH+2*ch+1}")
        A(f"v_and_b32 v{W+3*8+ch}, 0xffff0000, v{SH+2*ch+1}")
    for m in range(4):
        for j in range(11):
            A(f"v_lshlrev_b32 v{KF+2*j}, 16, v{KR+4*j+m}")
            A(f"v_and_b32 v{KF+2*j+1}, 0xffff0000, v{KR+4*j+m}")
        for i in range(8):
            A(f"v_lshlrev_b32 v{VF+2*i}, 16, v{VR+4*i+m}")
            A(f"v_and_b32 v{VF+2*i+1}, 0xffff0000, v{VR+4*i+m}")
        for i in range(8):
            A(f"v_pk_mul_f32 {v(ACC+2*i,2)}, {v(W+3*8+2*m,2)}, {v(KF+2*i,2)}")
        for t in (2, 1, 0):
            for i in range(8):
                A(f"v_pk_fma_f32 {v(ACC+2*i,2)}, {v(W+t*8+2*m,2)}, {v(KF+2*(i+3-t),2)}, {v(ACC+2*i,2)}")
        for i in range(8):
            A(f"v_pk_mul_f32 {v(ACC+2*i,2)}, {v(ACC+2*i,2)}, {v(VF+2*i,2)}")
        o = OUT + 8 * (m & 1)
        for h in range(2):
            for q in range(4):
                A(f"v_cvt_pk_bf16_f32 v{o+4*h+q}, v{ACC+2*(7-2*q)+h}, v{ACC+2*(6-2*q)+h}")
        for h in range(2):
            A(f"buffer_store_dwordx4 {v(o+4*h,4)}, v12, s[60:63], s{68+2*m+h} offen sc1")
    stamp(A, 4)

def b_prefetch(A):
    lab = A.newlabel("bpf")
    A(f"s_cmp_ge_u32 s{S_WAVE}, {OPT.get('nb', 5)}")
    A(f"s_cbranch_scc1 {lab}")
    make_srd(A, 48, P_X, SZ_T)
    make_srd(A, 52, P_W, 576 * 3456)
    A("s_lshr_b32 s40, s91, 3")
    a_prefetch_setup(A, 10, 12, 4, 40, 10)
    A(f"s_add_u32 s40, s{S_WAVE}, 1")
    a_prefetch_issue(A, 10, 12, 40, 48, 52, 240, two=True)
    A.label(lab)
    get_nonce_issue(A, "B")

def gen_b1_aux(A, s_tile, has_tile):
    A.comment("===== B1 aux (waves 4-7) =====")
    HL = 130
    QR = 16
    if has_tile:
        A("v_subrev_u32 v13, 256, v0")
        b1_addr(A, s_tile, 13)
        make_srd(A, 48, P_Q, SZ_T)
        make_srd(A, 56, P_WS, SZ_T, WS_QT)
        A("s_lshl_b32 s43, s67, 18")
        A("v_lshl_add_u32 v12, v2, 15, s43")
        A("v_lshl_add_u32 v12, v4, 1, v12")
        for ch in range(8): A(f"s_mov_b32 s{68+ch}, {ch*4096}")
        A("s_mov_b32 s76, 0x05040100")
        A("s_mov_b32 s77, 0x07060302")
        A("s_barrier")
        for i in range(8):
            A(f"buffer_load_dwordx4 {v(QR+4*i,4)}, v{6 if i < 4 else 7}, s[48:51], 0 offen offset:{1152*(i%4)}")
    b2_h_loads(A, HL, 4)
    stamp(A, 2)
    if has_tile:
        A("s_waitcnt vmcnt(13)")
        stamp(A, 3)
        for m in range(4):
            o = 48 + 8 * m
            for q in range(4):
                A(f"v_perm_b32 v{o+q}, v{QR+4*(2*q+1)+m}, v{QR+4*(2*q)+m}, s76")
                A(f"v_perm_b32 v{o+4+q}, v{QR+4*(2*q+1)+m}, v{QR+4*(2*q)+m}, s77")
            for h in range(2):
                A(f"buffer_store_dwordx4 {v(o+4*h,4)}, v12, s[56:59], s{68+2*m+h} offen sc1")
        A("s_waitcnt vmcnt(8)")
    else:
        A("s_waitcnt vmcnt(0)")
    stamp(A, 4)
    b2_h_stage(A, HL, 100, 4)

WO_B = 72 * 1024

def gen_a2(A, s_x, s_a, sb):
    A.comment("===== A2 =====")
    A(f"s_sub_u32 s34, s{s_a}, 4")
    A("s_lshr_b32 s33, s34, 1")
    A("s_add_u32 s33, s33, 4")
    A("s_and_b32 s34, s34, 1")
    A(f"s_cmp_lt_u32 s{s_a}, 4")
    A(f"s_cselect_b32 s33, s{s_a}, s33")
    A("s_cselect_b32 s34, 0, s34")
    A("s_cselect_b32 s42, 2, 1")
    A(f"s_lshl_b32 s32, s{s_x}, 1")
    A("s_add_u32 s32, s32, s34")
    make_srd(A, 44, P_WO, 576 * 1152)
    A("v_lshrrev_b32 v2, 3, v1")
    A("v_and_b32 v3, 7, v1")
    A("v_bfe_u32 v4, v1, 4, 1")
    A("v_lshlrev_b32 v4, 1, v4")
    A("v_xor_b32 v4, v4, v3")
    A("v_mul_u32_u24 v5, 1152, v2")
    A("v_lshl_add_u32 v5, v4, 4, v5")
    A("s_lshl_b32 s34, s33, 7")
    A("v_add_u32 v10, s34, v5")
    A("v_xor_b32 v11, 64, v10")
    A(f"s_mul_i32 s35, s{S_WAVE}, 9")
    A("s_and_b32 s36, s35, 1")
    A("s_cmp_eq_u32 s36, 1")
    A("s_cselect_b64 s[56:57], -1, 0")
    A("v_cndmask_b32 v12, v10, v11, s[56:57]")
    A("v_cndmask_b32 v13, v11, v10, s[56:57]")
    A("s_lshl_b32 s36, s33, 3")
    A("s_add_u32 s36, s36, s35")
    A("s_lshl_b32 s37, s35, 10")
    for j in range(9):
        A(f"s_add_u32 s38, s36, {j}")
        A("s_sub_u32 s39, s38, 72")
        A("s_cmp_ge_u32 s38, 72")
        A("s_cselect_b32 s38, s39, s38")
        A("s_mul_i32 s38, s38, 9216")
        A(f"s_add_u32 m0, s37, {1024*j}")
        A(f"buffer_load_dwordx4 v{12+(j&1)}, s[44:47], s38 offen lds")
    make_srd(A, 48, P_WS, SZ_T, WS_OF)
    make_srd(A, 52, P_OUT, 2048 * 2304)
    A("s_lshl_b32 s38, s32, 3")
    A(f"s_add_u32 s38, s38, s{S_WAVE}")
    A("s_mul_i32 s39, s38, 18432")
    A("v_lshlrev_b32 v2, 4, v1")
    A("v_add_u32 v2, s39, v2")
    A("v_add_u32 v3, 4096, v2"); A("v_add_u32 v4, 8192, v2"); A("v_add_u32 v5, 12288, v2"); A("v_add_u32 v6, 16384, v2")
    A("v_and_b32 v7, 15, v1")
    A("v_lshrrev_b32 v8, 4, v1")
    A("v_lshrrev_b32 v9, 2, v7")
    A("v_lshl_add_u32 v9, v8, 3, v9")
    A("v_lshlrev_b32 v9, 7, v9")
    A("v_and_b32 v10, 1, v7")
    A("v_lshl_add_u32 v9, v10, 3, v9")
    A("v_bfe_u32 v10, v7, 3, 1")
    A("v_and_b32 v11, 1, v8")
    A("v_lshl_add_u32 v10, v11, 1, v10")
    A("v_lshlrev_b32 v10, 1, v10")
    A("v_bfe_u32 v11, v7, 1, 1")
    for nt in range(4):
        A(f"v_add_u32 v14, {2*nt}, v11")
        A("v_xor_b32 v14, v14, v10")
        A(f"v_lshl_add_u32 v{16+nt}, v14, 4, v9")
        A(f"v_add_u32 v{20+nt}, 36864, v{16+nt}")
    A(f"s_mul_i32 s40, s{S_WAVE}, 2304")
    A(f"s_add_u32 s40, s40, {WO_B}")
    A("v_mul_u32_u24 v9, 144, v7")
    A("v_lshl_add_u32 v9, v8, 3, v9")
    A("v_add_u32 v9, s40, v9")
    A("v_lshrrev_b32 v10, 3, v1")
    A("v_and_b32 v11, 7, v1")
    A("v_mul_u32_u24 v12, 144, v10")
    A("v_lshl_add_u32 v12, v11, 4, v12")
    A("v_add_u32 v12, s40, v12")
    A("s_mul_i32 s39, s38, 36864")
    A("s_lshl_b32 s41, s33, 7")
    A("s_add_u32 s39, s39, s41")
    A("v_mul_u32_u24 v13, 2304, v10")
    A("v_lshl_add_u32 v13, v11, 4, v13")
    A("v_add_u32 v13, s39, v13")
    A("v_add_u32 v14, 18432, v13")
    stamp(A, sb + 0)
    lab = A.newlabel("a2w")
    A(f"s_cmp_lg_u32 s{S_WAVE}, 0")
    A(f"s_cbranch_scc1 {lab}")
    A("s_lshl_b32 s39, s32, 7")
    A("s_mul_hi_u32 s40, s39, 0x2aaaaab")
    A("s_lshl_b32 s41, s42, 7")
    A("s_add_u32 s39, s39, s41")
    A("s_sub_u32 s39, s39, 1")
    A("s_mul_hi_u32 s41, s39, 0x2aaaaab")
    make_srd(A, 92, P_WS, 65536, WS_FA)
    A("v_lshrrev_b32 v250, 3, v1")
    A("v_add_u32 v250, s40, v250")
    A("v_min_u32 v250, s41, v250")
    A("v_lshlrev_b32 v250, 8, v250")
    A("v_and_b32 v249, 7, v1")
    A("v_lshl_add_u32 v250, v249, 2, v250")
    A("s_mov_b64 exec, 0xffffffff")
    lp = A.newlabel("poll"); done = A.newlabel("polld")
    A("s_mov_b32 s88, 100000")
    A.label(lp)
    A("buffer_load_dword v251, v250, s[92:95], 0 offen sc1")
    A("s_waitcnt vmcnt(0)")
    A(f"v_cmp_ne_u32 vcc, s{S_NA}, v251")
    A("s_nop 4")
    A(f"s_cbranch_vccz {done}")
    A("s_sleep 2")
    A("s_sub_u32 s88, s88, 1")
    A("s_cmp_lg_u32 s88, 0")
    A(f"s_cbranch_scc1 {lp}")
    A.label(done)
    A("s_mov_b64 exec, -1")
    A.label(lab)
    A("s_waitcnt vmcnt(0)")
    A("s_barrier")
    stamp(A, sb + 1)
    BF = [24, 136]
    ACC = 96
    AF = [112, 120]
    AF = [112, 208, 224]
    def oloads(base, extra):
        A("s_lshl_b32 s44, s33, 1")
        for j in range(18):
            A("s_lshl_b32 s45, s44, 10")
            if extra: A("s_add_u32 s45, s45, s43")
            A(f"buffer_load_dwordx4 {v(base+4*j,4)}, v2, s[48:51], s45 offen sc1")
            A("s_add_u32 s44, s44, 1")
            A("s_cmp_eq_u32 s44, 18")
            A("s_cselect_b32 s44, 0, s44")
    def reads(ks, base):
        lst = []
        for nt in range(4):
            va = (16 if ks < 9 else 20) + nt
            for h in range(2):
                lst.append(f"ds_read_b64_tr_b16 {v(base+4*nt+2*h,2)}, v{va} offset:{(ks%9)*4096 + h*512}")
        return lst
    def tile(bf, pending_after, soff):
        for r_ in reads(0, AF[0]): A(r_)
        for r_ in reads(1, AF[1]): A(r_)
        for ks in range(18):
            rd = reads(ks + 2, AF[(ks+2) % 3]) if ks < 16 else []
            A(f"s_waitcnt vmcnt({min(63, 17-ks+pending_after)}) lgkmcnt({8 if ks < 17 else 0})")
            i = 0
            for nt in range(4):
                c = "0" if ks == 0 else v(ACC+4*nt, 4)
                A(f"v_mfma_f32_16x16x32_bf16 {v(ACC+4*nt,4)}, {v(AF[ks%3]+4*nt,4)}, {v(bf+4*ks,4)}, {c}")
                for _ in range(2):
                    if i < len(rd): A(rd[i]); i += 1
        for nt in range(4):
            A(f"v_cvt_pk_bf16_f32 v{128+2*nt}, v{ACC+4*nt}, v{ACC+4*nt+1}")
            A(f"v_cvt_pk_bf16_f32 v{129+2*nt}, v{ACC+4*nt+2}, v{ACC+4*nt+3}")
            A(f"ds_write_b64 v9, {v(128+2*nt,2)} offset:{32*nt}")
        A("s_waitcnt lgkmcnt(0)")
        A("ds_read_b128 v[128:131], v12")
        A("ds_read_b128 v[132:135], v12 offset:1152")
        A("s_waitcnt lgkmcnt(1)")
        A(f"buffer_store_dwordx4 v[128:131], v13, s[52:55], {soff} offen")
        A("s_waitcnt lgkmcnt(0)")
        A(f"buffer_store_dwordx4 v[132:135], v14, s[52:55], {soff} offen")
    oloads(BF[0], False)
    l2 = A.newlabel("a2two"); lend = A.newlabel("a2end")
    A("s_cmp_eq_u32 s42, 2")
    A(f"s_cbranch_scc1 {l2}")
    tile(BF[0], 0, "0")
    A(f"s_branch {lend}")
    A.label(l2)
    A(f"s_mov_b32 s43, {8*18432}")
    oloads(BF[1], True)
    tile(BF[0], 18, "0")
    stamp(A, sb + 2)
    A(f"s_mov_b32 s43, {128*2304}")
    tile(BF[1], 2, "s43")
    A.label(lend)
    stamp(A, sb + 3)

def build(path, stamps=False):
    global STAMPS
    STAMPS = stamps
    A = Asm()
    A.raw(f".globl {NAME}\n.p2align 8\n.type {NAME},@function\n{NAME}:")
    A("s_cmp_ge_u32 s2, 256")
    A("s_cbranch_scc1 L_end")
    A("s_load_dwordx16 s[4:19], s[0:1], 0")
    A("s_load_dwordx8 s[20:27], s[0:1], 64")
    A("s_memrealtime s[30:31]")
    if OPT.get("codepf", 1):
        A("s_getpc_b64 s[32:33]")
        A.label("L_pc")
        A("s_lshr_b32 s34, s2, 3")
        A("s_mul_i32 s34, s34, CODE_LPW*128")
        A("v_and_b32 v3, 63, v0")
        A("v_lshlrev_b32 v3, 7, v3")
        A("v_add_u32 v3, s34, v3")
        A("v_cmp_gt_u32 vcc, (L_end-L_pc), v3")
        A("v_cmp_gt_u32 s[36:37], CODE_LPW, v0")
        A("s_and_b64 vcc, vcc, s[36:37]")
        A("s_and_saveexec_b64 s[36:37], vcc")
        labc = A.newlabel("cpf")
        A(f"s_cbranch_execz {labc}")
        A("global_load_dword v247, v3, s[32:33]")
        A.label(labc)
        A("s_mov_b64 exec, s[36:37]")
    A("v_lshrrev_b32 v2, 6, v0")
    A("v_and_b32 v1, 63, v0")
    A(f"v_readfirstlane_b32 s{S_WAVE}, v2")
    A("s_waitcnt lgkmcnt(0)")
    A(f"s_or_b32 s{S_MY}, s30, 1")
    if STAMPS: A("v_mov_b32 v246, -1")
    stamp(A, 0)
    if STAMPS:
        A("s_memtime s[100:101]")
        A("s_waitcnt lgkmcnt(0)")
        A("v_writelane_b32 v246, s100, 16")
    A("s_cmp_ge_u32 s2, 176")
    A("s_cbranch_scc1 L_bset")
    gen_a1(A)
    A("s_cmp_lt_u32 s2, 64")
    A("s_cbranch_scc1 L_a_b2")
    A("s_and_b32 s90, s2, 7")
    A("s_sub_u32 s91, s2, 64")
    A("s_lshr_b32 s91, s91, 3")
    gen_a2(A, 90, 91, 8)
    A("s_branch L_fin")
    A.label("L_a_b2")
    A("s_and_b32 s90, s2, 7")
    A("s_mul_i32 s90, s90, 18")
    A("s_lshr_b32 s91, s2, 3")
    A("s_add_u32 s90, s90, s91")
    A("s_add_u32 s90, s90, 10")
    get_nonce_issue(A, "B")
    b2_common(A, 90)
    b2_h_loads(A, 170, 2)
    A("s_waitcnt vmcnt(0)")
    b2_h_stage(A, 170, 112, 2)
    b2_main(A, 90, 8, resolved=False)
    A("s_branch L_fin")
    A.label("L_bset")
    A("s_sub_u32 s91, s2, 176")
    A("s_and_b32 s90, s91, 7")
    A("s_mul_i32 s90, s90, 18")
    A("s_lshr_b32 s89, s91, 3")
    A("s_add_u32 s90, s90, s89")
    b_prefetch(A)
    b2_common(A, 90)
    if OPT.get("bwait", 1):
        A("s_waitcnt vmcnt(0)")
        A("s_barrier")
    stamp(A, 1)
    A("s_cmp_ge_u32 s91, 72")
    A("s_cbranch_scc1 L_b_nob1")
    A(f"s_cmp_ge_u32 s{S_WAVE}, 4")
    A("s_cbranch_scc1 L_b_aux")
    gen_b1_kv(A, 91)
    A("s_branch L_b_join")
    A.label("L_b_aux")
    gen_b1_aux(A, 91, True)
    A.label("L_b_join")
    A("s_waitcnt vmcnt(0) lgkmcnt(0)")
    A("s_barrier")
    lab = A.newlabel("b1f")
    A(f"s_cmp_lg_u32 s{S_WAVE}, 0")
    A(f"s_cbranch_scc1 {lab}")
    nonce_resolve(A, "B")
    A("s_lshl_b32 s40, s67, 8")
    A("s_lshl_b32 s41, s66, 2")
    A("s_add_u32 s40, s40, s41")
    flag_store(A, "B", 40)
    A.label(lab)
    A("s_branch L_b_b2")
    A.label("L_b_nob1")
    lab = A.newlabel("bnx")
    A(f"s_cmp_lt_u32 s{S_WAVE}, 4")
    A(f"s_cbranch_scc1 {lab}")
    gen_b1_aux(A, 91, False)
    A.label(lab)
    A("s_waitcnt vmcnt(0)")
    lab = A.newlabel("bz")
    A(f"s_cmp_lg_u32 s{S_WAVE}, 0")
    A(f"s_cbranch_scc1 {lab}")
    nonce_resolve(A, "B")
    A.label(lab)
    A.label("L_b_b2")
    b2_main(A, 90, 5, resolved=True)
    A.label("L_fin")
    stamp_flush(A)
    A.label("L_end")
    A("s_endpgm")
    body = A.finalize()
    lds = max(3 * ST1, XCH + 8 * 4096, WO_B + 8 * 2304)
    out = HEADER + f"; @launch grid=(256,1,1) block=(512,1,1) lds={lds}\n"
    out += '.amdgcn_target "amdgcn-amd-amdhsa--gfx950"\n.text\n.set CODE_LPW, 16\n' + body
    out += '.section .rodata,"a"\n.p2align 6\n' + kd(NAME, 256)
    open(path, "w").write(out)

if __name__ == "__main__":
    for a in sys.argv[3:]:
        k, x = a.split("="); OPT[k] = int(x)
    build(sys.argv[1], stamps=(len(sys.argv) > 2 and sys.argv[2] == "stamps"))
```

```python
import sys, struct, math
from asmlib import *
from gen_common import HEADER, kd

NAME = "concat_heads__sliding_local_dilated__ssm_conv_h3__prompt_kernel"
SZ_T = 576 * 2048 * 2
WS_UR = 4096
WS_QT = (4 << 20) + 4096
WS_OF = (8 << 20) + 4096
WS_FA = (12 << 20) + 4096
WS_FB = WS_FA + 65536
STAMP_OFF = 16 << 20
BIGOFF = 0x7FFF0000

P_X, P_W, P_WO, P_Q, P_K, P_V, P_SH, P_H, P_D, P_OUT, P_DBG, P_WS = 4, 6, 8, 10, 12, 14, 16, 18, 20, 22, 24, 26
S_MY, S_WAVE, S_NA, S_NB = 28, 29, 30, 31
V_NA, V_NB = 252, 254
STAMPS = False
OPT = {}

def make_srd(A, dst, ptr, nbytes, add=0, add_s=None):
    if add_s is not None:
        A(f"s_add_u32 s{dst}, s{ptr}, s{add_s}")
        A(f"s_addc_u32 s{dst+1}, s{ptr+1}, 0")
        if add:
            A(f"s_add_u32 s{dst}, s{dst}, {add}")
            A(f"s_addc_u32 s{dst+1}, s{dst+1}, 0")
        A(f"s_and_b32 s{dst+1}, s{dst+1}, 0xffff")
    elif add:
        A(f"s_add_u32 s{dst}, s{ptr}, {add}")
        A(f"s_addc_u32 s{dst+1}, s{ptr+1}, 0")
        A(f"s_and_b32 s{dst+1}, s{dst+1}, 0xffff")
    else:
        A(f"s_mov_b32 s{dst}, s{ptr}")
        A(f"s_and_b32 s{dst+1}, s{ptr+1}, 0xffff")
    A(f"s_mov_b32 s{dst+2}, {nbytes}")
    A(f"s_mov_b32 s{dst+3}, 0x00020000")

def stamp(A, idx):
    if not STAMPS: return
    A("s_memrealtime s[100:101]")
    A("s_waitcnt lgkmcnt(0)")
    A(f"v_writelane_b32 v246, s100, {idx}")

def stamp_flush(A):
    if not STAMPS: return
    A("s_memtime s[100:101]")
    A("s_waitcnt lgkmcnt(0)")
    A("v_writelane_b32 v246, s100, 17")
    A("s_memrealtime s[100:101]")
    A("s_waitcnt lgkmcnt(0)")
    A("v_writelane_b32 v246, s100, 18")
    lab = A.newlabel("stf")
    A(f"s_and_b32 s96, s{S_WAVE}, 3")
    A("s_cmp_lg_u32 s96, 0")
    A(f"s_cbranch_scc1 {lab}")
    A(f"s_lshr_b32 s100, s{S_WAVE}, 2")
    A("s_lshl_b32 s100, s100, 8")
    A("s_add_u32 s100, s100, s2")
    A("s_lshl_b32 s100, s100, 7")
    A(f"s_add_u32 s96, s{P_WS}, {STAMP_OFF}")
    A(f"s_addc_u32 s97, s{P_WS+1}, 0")
    A("s_and_b32 s97, s97, 0xffff")
    A("s_mov_b32 s98, 0x100000")
    A("s_mov_b32 s99, 0x00020000")
    A("v_lshlrev_b32 v250, 2, v1")
    A("v_add_u32 v250, s100, v250")
    A("s_mov_b64 exec, 0xffffffff")
    A("buffer_store_dword v246, v250, s[96:99], 0 offen")
    A("s_mov_b64 exec, -1")
    A.label(lab)

def get_nonce_issue(A, which):
    vn = V_NA if which == "A" else V_NB
    lab = A.newlabel("nz")
    A(f"s_cmp_lg_u32 s{S_WAVE}, 0")
    A(f"s_cbranch_scc1 {lab}")
    make_srd(A, 92, P_DBG, 256)
    A(f"v_mov_b32 v{vn}, s{S_MY}")
    A(f"v_mov_b32 v{vn+1}, 0")
    A(f"v_mov_b32 v251, {0 if which == 'A' else 128}")
    A("s_mov_b64 exec, 1")
    A(f"buffer_atomic_cmpswap v[{vn}:{vn+1}], v251, s[92:95], 0 offen sc0 sc1")
    A("s_mov_b64 exec, -1")
    A.label(lab)

def nonce_resolve(A, which):
    vn = V_NA if which == "A" else V_NB
    sn = S_NA if which == "A" else S_NB
    A(f"v_readfirstlane_b32 s{sn}, v{vn}")
    A(f"s_cmp_eq_u32 s{sn}, 0")
    A(f"s_cselect_b32 s{sn}, s{S_MY}, s{sn}")

def flag_store(A, which, s_off):
    sn = S_NA if which == "A" else S_NB
    make_srd(A, 92, P_WS, 65536, WS_FA if which == "A" else WS_FB)
    A(f"v_mov_b32 v250, s{s_off}")
    A(f"v_mov_b32 v251, s{sn}")
    A("s_mov_b64 exec, 1")
    A("buffer_store_dword v251, v250, s[92:95], 0 offen sc1")
    A("s_mov_b64 exec, -1")

def flag_poll(A, which, s_off0, s_off1=None):
    sn = S_NA if which == "A" else S_NB
    make_srd(A, 92, P_WS, 65536, WS_FA if which == "A" else WS_FB)
    A("v_and_b32 v250, 7, v1")
    A("v_lshlrev_b32 v250, 2, v250")
    if s_off1 is not None:
        A(f"v_mov_b32 v249, s{s_off0}")
        A(f"v_mov_b32 v248, s{s_off1}")
        A("v_cmp_gt_u32 vcc, 8, v1")
        A("v_cndmask_b32 v249, v248, v249, vcc")
        A("v_add_u32 v250, v250, v249")
        A("s_mov_b64 exec, 0xffff")
    else:
        A(f"v_add_u32 v250, s{s_off0}, v250")
        A("s_mov_b64 exec, 0xff")
    lp = A.newlabel("poll"); done = A.newlabel("polld")
    A("s_mov_b32 s88, 100000")
    A.label(lp)
    A("buffer_load_dword v251, v250, s[92:95], 0 offen sc1")
    A("s_waitcnt vmcnt(0)")
    A(f"v_cmp_ne_u32 vcc, s{sn}, v251")
    A("s_nop 4")
    A(f"s_cbranch_vccz {done}")
    A("s_sleep 2")
    A("s_sub_u32 s88, s88, 1")
    A("s_cmp_lg_u32 s88, 0")
    A(f"s_cbranch_scc1 {lp}")
    A.label(done)
    A("s_mov_b64 exec, -1")

def a_prefetch_setup(A, vx, vw, t0, s_idx, nshare):
    px = -(-1072 // nshare); pw = -(-576 // nshare)
    A("s_and_b32 s96, s2, 7")
    A("s_lshr_b32 s98, s96, 2")
    A("s_and_b32 s96, s96, 3")
    A("s_mul_i32 s98, s98, 1056")
    A(f"s_mul_i32 s99, s{s_idx}, {px}")
    A("s_add_u32 s98, s98, s99")
    A("s_sub_u32 s98, s98, 16")
    A(f"v_mov_b32 v{t0+1}, 0x{BIGOFF:x}")
    A("s_movk_i32 s99, 1152")
    for e in range(2 if px > 64 else 1):
        A(f"v_add_u32 v{t0}, s98, v1")
        if e: A(f"v_add_u32 v{t0}, 64, v{t0}")
        A(f"v_mul_lo_u32 v{vx+e}, v{t0}, s99")
        A(f"v_cmp_gt_i32 vcc, 0, v{t0}")
        A(f"v_cndmask_b32 v{vx+e}, v{vx+e}, v{t0+1}, vcc")
        lim = min(px - 64*e, 64)
        if lim < 64:
            A(f"v_cmp_le_u32 vcc, {lim}, v1")
            A(f"v_cndmask_b32 v{vx+e}, v{vx+e}, v{t0+1}, vcc")
    A(f"s_mul_i32 s99, s{s_idx}, {pw}")
    A(f"v_add_u32 v{t0}, s99, v1")
    A(f"v_mul_u32_u24 v{t0+2}, 7282, v{t0}")
    A(f"v_lshrrev_b32 v{t0+2}, 16, v{t0+2}")
    A(f"v_mul_u32_u24 v{t0+3}, 9, v{t0+2}")
    A(f"v_sub_u32 v{t0+3}, v{t0}, v{t0+3}")
    A(f"v_mul_u32_u24 v{t0+4}, 21846, v{t0+3}")
    A(f"v_lshrrev_b32 v{t0+4}, 16, v{t0+4}")
    A(f"v_mul_u32_u24 v{vw}, 3456, v{t0+2}")
    A(f"v_mul_u32_u24 v{t0+2}, 1152, v{t0+4}")
    A(f"v_add_u32 v{vw}, v{vw}, v{t0+2}")
    A(f"v_mul_u32_u24 v{t0+4}, 3, v{t0+4}")
    A(f"v_sub_u32 v{t0+3}, v{t0+3}, v{t0+4}")
    A(f"v_lshl_add_u32 v{vw}, v{t0+3}, 7, v{vw}")
    A("s_lshl_b32 s96, s96, 8")
    A(f"v_add_u32 v{vw}, s96, v{vw}")
    A(f"v_cmp_le_u32 vcc, {pw}, v1")
    A(f"v_cndmask_b32 v{vw}, v{vw}, v{t0+1}, vcc")
    A(f"v_cmp_le_u32 vcc, 576, v{t0}")
    A(f"v_cndmask_b32 v{vw}, v{vw}, v{t0+1}, vcc")

def a_prefetch_issue(A, vx, vw, s_kc, srd_x, srd_w, vd, two=False):
    A(f"s_lshl_b32 s96, s{s_kc}, 7")
    A(f"s_mul_i32 s97, s{s_kc}, 221184")
    A(f"buffer_load_dword v{vd}, v{vw}, s[{srd_w}:{srd_w+3}], s97 offen")
    A(f"buffer_load_dword v{vd+1}, v{vx}, s[{srd_x}:{srd_x+3}], s96 offen")
    if two:
        A(f"buffer_load_dword v{vd+2}, v{vx+1}, s[{srd_x}:{srd_x+3}], s96 offen")

XS = 14 * 1024
W1 = 32 * 1024
ST1 = XS + W1
HHS = 112 * 48
OB = 13 * HHS
V_KQ, V_VT, V_OW, V_NINF, V_OG, V_OL = 220, 221, 222, 225, 226, 228

def attn_setup(A, t0=4):
    a, b, c, d = t0, t0+1, t0+2, t0+3
    A(f"s_and_b32 s56, s{S_WAVE}, 3")
    A(f"s_lshr_b32 s57, s{S_WAVE}, 2")
    A("s_mul_i32 s57, s57, 3")
    A(f"v_lshlrev_b32 v{a}, 2, v3")
    A(f"v_sub_u32 v{a}, v2, v{a}")
    for tl in range(2):
        for r in range(4):
            dd = (16 if tl == 0 else 0) - r
            A(f"v_add_u32 v{b}, {dd}, v{a}" if dd >= 0 else f"v_subrev_u32 v{b}, {-dd}, v{a}")
            A(f"v_and_b32 v{b}, 0xfffffff1, v{b}")
            A(f"v_cmp_eq_u32 s[{64+2*(4*tl+r)}:{65+2*(4*tl+r)}], 0, v{b}")
    A("v_cmp_gt_u32 s[80:81], 2, v3")
    A("v_cmp_gt_u32 s[82:83], 3, v3")
    A("s_or_b32 s58, s32, s57")
    for r in range(4):
        A(f"s_cmp_eq_u32 s58, 0")
        A(f"s_cselect_b64 s[{84+2*r}:{85+2*r}], 0, s[{64+2*r}:{65+2*r}]")
    A(f"v_min_u32 v{b}, 2, v3")
    A(f"v_mul_u32_u24 v{c}, 48, v2")
    A(f"v_lshl_add_u32 v{c}, v{b}, 4, v{c}")
    A(f"s_mul_i32 s58, s56, {HHS}")
    A("s_mul_i32 s59, s57, 768")
    A("s_add_u32 s58, s58, s59")
    A(f"v_add_u32 v{V_KQ}, s58, v{c}")
    A(f"v_lshrrev_b32 v{b}, 2, v2")
    A(f"v_lshl_add_u32 v{b}, v3, 2, v{b}")
    A(f"v_mul_u32_u24 v{b}, 48, v{b}")
    A(f"v_and_b32 v{c}, 3, v2")
    A(f"v_lshl_add_u32 v{b}, v{c}, 3, v{b}")
    A(f"v_add_u32 v{V_VT}, s58, v{b}")
    A(f"v_mul_u32_u24 v{b}, 144, v2")
    A(f"v_lshl_add_u32 v{b}, v3, 3, v{b}")
    A("s_mul_i32 s58, s56, 36")
    A("s_mul_i32 s59, s57, 2304")
    A("s_add_u32 s58, s58, s59")
    A(f"s_add_u32 s58, s58, {OB}")
    A(f"v_add_u32 v{V_OW}, s58, v{b}")
    A(f"v_add_u32 v{V_OW+1}, 2304, v{V_OW}")
    A(f"v_add_u32 v{V_OW+2}, 4608, v{V_OW}")
    A(f"v_mov_b32 v{V_NINF}, 0xff800000")
    A("s_mul_i32 s58, s32, 110592")
    A("s_mul_i32 s59, s33, 2304")
    A("s_add_u32 s58, s58, s59")
    for rnd in range(2):
        A(f"v_add_u32 v{a}, {512*rnd}, v0")
        A(f"v_and_b32 v{b}, 15, v{a}")
        A(f"v_lshrrev_b32 v{c}, 4, v{a}")
        A(f"v_mul_u32_u24 v{d}, 7282, v{c}")
        A(f"v_lshrrev_b32 v{d}, 16, v{d}")
        A(f"v_mul_u32_u24 v{d+1}, 9, v{d}")
        A(f"v_sub_u32 v{c}, v{c}, v{d+1}")
        A(f"v_lshl_add_u32 v{d+1}, v{d}, 4, v{b}")
        A(f"v_mul_u32_u24 v{d+1}, 144, v{d+1}")
        A(f"v_lshl_add_u32 v{d+1}, v{c}, 4, v{d+1}")
        A(f"v_add_u32 v{V_OL+rnd}, {OB}, v{d+1}")
        A(f"v_mul_u32_u24 v{d}, 18432, v{d}")
        A(f"v_lshl_add_u32 v{d}, v{c}, 8, v{d}")
        A(f"v_lshl_add_u32 v{d}, v{b}, 4, v{d}")
        A(f"v_add_u32 v{V_OG+rnd}, s58, v{d}")
        if rnd == 1:
            A(f"v_mov_b32 v{b}, 0x{BIGOFF:x}")
            A(f"v_cmp_gt_u32 vcc, 864, v{a}")
            A(f"v_cndmask_b32 v{V_OG+rnd}, v{b}, v{V_OG+rnd}, vcc")

def gen_a1(A):
    n = "a1"
    A("s_and_b32 s36, s2, 7")
    A("s_lshr_b32 s37, s2, 3")
    A("s_lshr_b32 s38, s36, 2")
    A("s_and_b32 s39, s36, 3")
    A("s_mul_i32 s32, s38, 11")
    A("s_lshr_b32 s40, s37, 1")
    A("s_add_u32 s32, s32, s40")
    A("s_and_b32 s40, s37, 1")
    A("s_lshl_b32 s33, s39, 1")
    A("s_add_u32 s33, s33, s40")
    A("s_mul_i32 s34, s32, 96")
    make_srd(A, 44, P_X, SZ_T)
    make_srd(A, 48, P_W, 576 * 3456)
    A(f"s_cmp_ge_u32 s{S_WAVE}, 4")
    A(f"s_cbranch_scc1 {n}_loader")
    a_prefetch_setup(A, 230, 231, 4, 37, 22)
    get_nonce_issue(A, "A")
    A("v_and_b32 v2, 15, v1")
    A("v_lshrrev_b32 v3, 4, v1")
    attn_setup(A)
    A("v_lshrrev_b32 v6, 2, v2")
    A("v_lshl_add_u32 v7, v3, 3, v6")
    A("v_lshlrev_b32 v7, 9, v7")
    A("v_and_b32 v8, 3, v2")
    A("v_lshl_add_u32 v7, v8, 3, v7")
    A(f"v_add_u32 v7, {XS}, v7")
    A("v_and_b32 v8, 1, v3")
    A("v_lshl_add_u32 v8, v8, 2, v6")
    A("v_lshrrev_b32 v9, 1, v2")
    A("v_xor_b32 v9, v9, v3")
    A("v_lshlrev_b32 v9, 4, v9")
    XA = 14
    A(f"v_lshl_add_u32 v{XA}, v2, 7, v9")
    A(f"v_xor_b32 v{XA+1}, 64, v{XA}")
    for w in range(3):
        A(f"s_cmp_eq_u32 s{S_WAVE}, {w}")
        A(f"s_cbranch_scc1 {n}_c{w}")
    for w in [3, 0, 1, 2]:
        A.label(f"{n}_c{w}")
        if w < 3:
            nts = [3*w, 3*w+1, 3*w+2]
            units = [(t, st) for t in nts for st in range(7)] + [(13, 2*w+1), (13, 2*w+2)]
            ants = nts + [13]
            sts = list(range(7))
        else:
            nts = [9, 10, 11, 12]
            units = [(t, st) for t in nts for st in range(1, 7)]
            ants = nts
            sts = list(range(1, 7))
        WA = 10
        for ai, t in enumerate(ants):
            A(f"v_xor_b32 v9, {t}, v8")
            A(f"v_lshl_add_u32 v{WA+ai}, v9, 5, v7")
        A("v_mul_u32_u24 v4, 48, v2")
        for ai, t in enumerate(ants):
            for p in range(2):
                va = 212 + 2*ai + p
                A("v_lshlrev_b32 v5, 2, v3")
                A(f"v_add_u32 v5, {16*t + 2*p}, v5")
                A("v_mul_u32_u24 v6, 3641, v5")
                A("v_lshrrev_b32 v6, 16, v6")
                A("v_mul_u32_u24 v6, 5340, v6")
                A(f"v_lshl_add_u32 v{va}, v5, 1, v6")
                A(f"v_add_u32 v{va}, v{va}, v4")
        ACC = 28
        acc = {u: ACC + 4*i for i, u in enumerate(units)}
        FR = [124, 168]
        def reads(ks, base):
            lst = []
            for ai, t in enumerate(ants):
                for h in range(2):
                    lst.append(f"ds_read_b64_tr_b16 {v(base+4*ai+2*h,2)}, v{WA+ai} offset:{ks*16384 + h*2048}")
            for bi, st in enumerate(sts):
                lst.append(f"ds_read_b128 {v(base+16+4*bi,4)}, v{XA+ks} offset:{st*2048}")
            return lst
        def mfmas(base, first):
            lst = []
            for (t, st) in units:
                ai = ants.index(t); bi = sts.index(st)
                c = "0" if first else v(acc[(t, st)], 4)
                lst.append(f"v_mfma_f32_16x16x32_bf16 {v(acc[(t,st)],4)}, {v(base+4*ai,4)}, {v(base+16+4*bi,4)}, {c}")
            return lst
        def interleave(mf, rd):
            i = 0
            for m in mf:
                A(m)
                if i < len(rd): A(rd[i]); i += 1
            while i < len(rd): A(rd[i]); i += 1
        for u in units:
            for r in range(0, 4, 2): A(f"v_mov_b64 {v(acc[u]+r,2)}, 0")
        A("s_mov_b32 s60, 0")
        A("s_mov_b32 s61, 0")
        A(f"s_mov_b32 s52, {ST1}")
        A(f"s_mov_b32 s53, {(-2*ST1) & 0xffffffff}")
        A("s_barrier")
        stamp(A, 1)
        for r_ in reads(0, FR[0]): A(r_)
        A("s_waitcnt lgkmcnt(0)")
        A(f"s_branch {n}_q{w}")
        A.label(f"{n}_l{w}")
        A("s_barrier")
        interleave(mfmas(FR[1], False), reads(0, FR[0]))
        A("s_waitcnt lgkmcnt(0)")
        A.label(f"{n}_q{w}")
        labp = A.newlabel("lpf")
        A(f"s_cmp_lg_u32 s60, {w}")
        A(f"s_cbranch_scc1 {labp}")
        A(f"s_add_u32 s63, s60, {OPT.get('nb', 5) + 1}")
        A("s_cmp_gt_u32 s63, 8")
        A(f"s_cbranch_scc1 {labp}")
        a_prefetch_issue(A, 230, 231, 63, 44, 48, 240)
        A.label(labp)
        A("s_add_u32 s61, s61, 1")
        A("s_cmp_eq_u32 s61, 3")
        A("s_cselect_b32 s62, s53, s52")
        A("s_cselect_b32 s61, 0, s61")
        interleave(mfmas(FR[0], False), reads(1, FR[1]))
        for r in range(6): A(f"v_add_u32 v{10+r}, s62, v{10+r}")
        A("s_add_u32 s60, s60, 1")
        A("s_cmp_lt_u32 s60, 9")
        A("s_waitcnt lgkmcnt(0)")
        A(f"s_cbranch_scc1 {n}_l{w}")
        A("s_barrier")
        last = mfmas(FR[1], False)
        pend = []
        k = 0
        def flush_one(u):
            nonlocal k
            (t, st) = u
            ai = ants.index(t); a0 = acc[(t, st)]
            tmp = 124 + 2*(k % 8); k += 1
            A(f"v_cvt_pk_bf16_f32 v{tmp}, v{a0}, v{a0+1}")
            A(f"v_cvt_pk_bf16_f32 v{tmp+1}, v{a0+2}, v{a0+3}")
            A(f"ds_write_b32 v{212+2*ai}, v{tmp} offset:{768*st}")
            A(f"ds_write_b32 v{212+2*ai+1}, v{tmp+1} offset:{768*st}")
        for m, u in zip(last, units):
            A(m)
            pend.append(u)
            if len(pend) > 3: flush_one(pend.pop(0))
        for u in pend: flush_one(u)
        stamp(A, 4)
        A(f"s_branch {n}_attn")
    A.label(f"{n}_loader")
    A(f"s_sub_u32 s35, s{S_WAVE}, 4")
    A("v_lshrrev_b32 v2, 3, v1")
    A("v_and_b32 v3, 7, v1")
    A("v_lshrrev_b32 v4, 4, v1")
    A("v_mul_u32_u24 v5, 1152, v2")
    A("v_xor_b32 v6, v3, v4")
    A("v_lshl_add_u32 v10, v6, 4, v5")
    A("v_xor_b32 v11, 64, v10")
    A("s_lshl_b32 s36, s35, 2")
    A("s_cmp_eq_u32 s35, 3")
    A("s_cselect_b32 s36, 11, s36")
    A("s_cselect_b64 s[54:55], -1, 0")
    A("v_cndmask_b32 v16, v10, v11, s[54:55]")
    A("v_cndmask_b32 v17, v11, v10, s[54:55]")
    A("s_sub_u32 s37, s34, 16")
    A("s_mul_i32 s37, s37, 1152")
    A("s_mul_i32 s38, s36, 9216")
    A("s_add_u32 s37, s37, s38")
    A("s_lshl_b32 s38, s36, 10")
    WV = 12
    A("v_lshrrev_b32 v2, 5, v1")
    A("v_and_b32 v3, 31, v1")
    A("v_mul_u32_u24 v4, 3456, v2")
    A("s_mul_i32 s40, s33, 144")
    A("v_add_u32 v4, s40, v4")
    A(f"v_mov_b32 v9, 0x{BIGOFF:x}")
    for var in range(4):
        j1, j4 = var & 1, var >> 1
        A(f"v_add_u32 v5, {2*j1+4*j4}, v2")
        A("v_lshlrev_b32 v5, 1, v5")
        A("v_xor_b32 v5, v5, v3")
        A("v_mov_b32 v6, 1152")
        A("v_mov_b32 v7, 2160")
        A("v_cmp_le_u32 vcc, 9, v5")
        A("v_cndmask_b32 v6, v6, v7, vcc")
        A("v_mov_b32 v7, -288")
        A("v_cmp_le_u32 vcc, 18, v5")
        A("v_cndmask_b32 v6, v6, v7, vcc")
        A("v_lshl_add_u32 v6, v5, 4, v6")
        A(f"v_add_u32 v{WV+var}, v4, v6")
        A("v_cmp_le_u32 vcc, 27, v5")
        A(f"v_cndmask_b32 v{WV+var}, v{WV+var}, v9, vcc")
    A("s_mul_i32 s40, s35, 55296")
    A("s_lshl_b32 s41, s35, 13")
    A(f"s_add_u32 s41, s41, {XS}")
    def issue_block():
        A(f"s_mul_i32 s62, s61, {ST1}")
        A("s_add_u32 s63, s38, s62")
        A("s_add_u32 s62, s41, s62")
        for j in range(4):
            lab = None
            if j == 3:
                lab = A.newlabel(f"{n}_sk")
                A("s_cmp_ge_u32 s35, 2")
                A(f"s_cbranch_scc1 {lab}")
            A(f"s_add_u32 m0, s63, {1024*j}")
            A(f"s_add_u32 s52, s37, {9216*j}")
            if j < 2:
                A("s_cmp_lt_i32 s52, 0")
                A(f"s_cselect_b32 s52, 0x{BIGOFF:x}, s52")
            A(f"buffer_load_dwordx4 v{16+(j&1)}, s[44:47], s52 offen lds")
            if lab: A.label(lab)
        for j in range(8):
            var = (j & 1) + 2 * (j >> 2)
            A(f"s_add_u32 m0, s62, {1024*j}")
            A(f"s_add_u32 s52, s40, {6912*j}")
            A(f"buffer_load_dwordx4 v{WV+var}, s[48:51], s52 offen lds")
        A("s_add_u32 s37, s37, 128")
        A("s_add_u32 s40, s40, 221184")
        A("s_add_u32 s61, s61, 1")
        A("s_cmp_eq_u32 s61, 3")
        A("s_cselect_b32 s61, 0, s61")
    A("s_mov_b32 s61, 0")
    issue_block()
    stamp(A, 1)
    A("v_and_b32 v2, 15, v1")
    A("v_lshrrev_b32 v3, 4, v1")
    attn_setup(A)
    A("s_waitcnt vmcnt(0)")
    stamp(A, 2)
    A("s_barrier")
    A("s_mov_b32 s60, 0")
    A.label(f"{n}_lp")
    issue_block()
    A("s_add_u32 s60, s60, 1")
    A("s_cmp_lt_u32 s60, 2")
    A(f"s_cbranch_scc1 {n}_lp")
    stamp(A, 3)
    A("s_mov_b32 s60, 0")
    A.label(f"{n}_ll")
    A("s_waitcnt vmcnt(11)")
    A("s_barrier")
    issue_block()
    A("s_add_u32 s60, s60, 1")
    A("s_cmp_lt_u32 s60, 6")
    A(f"s_cbranch_scc1 {n}_ll")
    A("s_waitcnt vmcnt(11)")
    A("s_barrier")
    A("s_waitcnt vmcnt(0)")
    A("s_barrier")
    A("s_barrier")
    A.label(f"{n}_attn")
    A("s_waitcnt lgkmcnt(0)")
    A("s_barrier")
    stamp(A, 5)
    cst = struct.unpack("<I", struct.pack("<f", (18 ** -0.5) * math.log2(math.e)))[0]
    A(f"s_mov_b32 s42, 0x{cst:08x}")
    B = 24
    def regs(b): return B + 40 * b
    for b in range(3):
        R = regs(b)
        A(f"ds_read_b128 {v(R,4)}, v{V_KQ} offset:{8*HHS + 768*(b+1)}")
        A(f"ds_read_b128 {v(R+4,4)}, v{V_KQ} offset:{768*b}")
        A(f"ds_read_b128 {v(R+8,4)}, v{V_KQ} offset:{768*(b+1)}")
    for b in range(3):
        R = regs(b)
        A(f"ds_read_b64_tr_b16 {v(R+12,2)}, v{V_VT} offset:{4*HHS + 768*b}")
        A(f"ds_read_b64_tr_b16 {v(R+14,2)}, v{V_VT} offset:{4*HHS + 768*(b+1)}")
        A(f"ds_read_b64_tr_b16 {v(R+16,2)}, v{V_VT} offset:{4*HHS + 768*b + 32}")
        A(f"ds_read_b64_tr_b16 {v(R+18,2)}, v{V_VT} offset:{4*HHS + 768*(b+1) + 32}")
    for b in range(3):
        R = regs(b)
        A(f"s_waitcnt lgkmcnt({12 + 3*(2-b)})" if 12 + 3*(2-b) <= 15 else "s_waitcnt lgkmcnt(15)")
        A(f"v_cndmask_b32 v{R}, 0, v{R}, s[82:83]")
        for r in range(1, 4):
            A(f"v_cndmask_b32 v{R+r}, 0, v{R+r}, s[80:81]")
        A(f"v_mfma_f32_16x16x32_bf16 {v(R+20,4)}, {v(R+4,4)}, {v(R,4)}, 0")
        A(f"v_mfma_f32_16x16x32_bf16 {v(R+24,4)}, {v(R+8,4)}, {v(R,4)}, 0")
    for b in range(3):
        R = regs(b); S = R + 20
        for e in range(8):
            m = (84 + 2*e) if (b == 0 and e < 4) else (64 + 2*e)
            A(f"v_cndmask_b32 v{S+e}, v{V_NINF}, v{S+e}, s[{m}:{m+1}]")
        M = R + 28
        A(f"v_max3_f32 v{M}, v{S}, v{S+1}, v{S+2}")
        A(f"v_max3_f32 v{M}, v{M}, v{S+3}, v{S+4}")
        A(f"v_max3_f32 v{M}, v{M}, v{S+5}, v{S+6}")
        A(f"v_max_f32 v{M}, v{M}, v{S+7}")
    def xlane(op, b_regs):
        for kind in ("16", "32"):
            for (M, T) in b_regs: A(f"v_mov_b32 v{T}, v{M}")
            for (M, T) in b_regs: A(f"v_permlane{kind}_swap_b32 v{M}, v{T}")
            for (M, T) in b_regs: A(f"{op} v{M}, v{M}, v{T}")
    xlane("v_max_f32", [(regs(b)+28, regs(b)+29) for b in range(3)])
    for b in range(3):
        R = regs(b); M = R + 28
        A(f"v_mul_f32 v{M}, s42, v{M}")
    for b in range(3):
        R = regs(b); S = R + 20; M = R + 28
        for e in range(8): A(f"v_fma_f32 v{S+e}, v{S+e}, s42, -v{M}")
        for e in range(8): A(f"v_exp_f32 v{S+e}, v{S+e}")
    for b in range(3):
        R = regs(b); S = R + 20; M = R + 30
        A(f"v_add_f32 v{M}, v{S}, v{S+1}")
        A(f"v_add_f32 v{M+1}, v{S+2}, v{S+3}")
        A(f"v_add_f32 v{M}, v{M}, v{S+4}")
        A(f"v_add_f32 v{M+1}, v{M+1}, v{S+5}")
        A(f"v_add_f32 v{M}, v{M}, v{S+6}")
        A(f"v_add_f32 v{M+1}, v{M+1}, v{S+7}")
        A(f"v_add_f32 v{M}, v{M}, v{M+1}")
    xlane("v_add_f32", [(regs(b)+30, regs(b)+31) for b in range(3)])
    for b in range(3):
        A(f"v_rcp_f32 v{regs(b)+30}, v{regs(b)+30}")
    A("s_waitcnt lgkmcnt(0)")
    for b in range(3):
        R = regs(b); S = R + 20; M = R + 30
        for e in range(8): A(f"v_mul_f32 v{S+e}, v{S+e}, v{M}")
        for q in range(4): A(f"v_cvt_pk_bf16_f32 v{R+q}, v{S+2*q}, v{S+2*q+1}")
        A(f"v_mfma_f32_16x16x32_bf16 {v(R+32,4)}, {v(R+12,4)}, {v(R,4)}, 0")
        A(f"v_mfma_f32_16x16x32_bf16 {v(R+36,4)}, {v(R+16,4)}, {v(R,4)}, 0")
    for b in range(3):
        R = regs(b)
        A(f"v_cvt_pk_bf16_f32 v{R+4}, v{R+32}, v{R+33}")
        A(f"v_cvt_pk_bf16_f32 v{R+5}, v{R+34}, v{R+35}")
        A(f"v_cvt_pk_bf16_f32 v{R+6}, v{R+36}, v{R+37}")
        A(f"ds_write2_b32 v{V_OW+b}, v{R+4}, v{R+5} offset0:0 offset1:1")
    A("s_mov_b64 exec, 0xffff")
    for b in range(3):
        A(f"ds_write_b32 v{V_OW+b}, v{regs(b)+6} offset:32")
    A("s_mov_b64 exec, -1")
    make_srd(A, 44, P_WS, SZ_T, WS_OF)
    A("s_waitcnt lgkmcnt(0)")
    A("s_barrier")
    stamp(A, 6)
    for rnd in range(2):
        A(f"ds_read_b128 {v(20+4*rnd,4)}, v{V_OL+rnd}")
    for rnd in range(2):
        A(f"s_waitcnt lgkmcnt({1-rnd})")
        A(f"buffer_store_dwordx4 {v(20+4*rnd,4)}, v{V_OG+rnd}, s[44:47], 0 offen sc1")
    A("s_waitcnt vmcnt(0)")
    A("s_barrier")
    lab = A.newlabel("a1f")
    A(f"s_cmp_lg_u32 s{S_WAVE}, 0")
    A(f"s_cbranch_scc1 {lab}")
    nonce_resolve(A, "A")
    A("s_lshl_b32 s36, s32, 8")
    A("s_lshl_b32 s37, s33, 2")
    A("s_add_u32 s36, s36, s37")
    flag_store(A, "A", 36)
    A.label(lab)
    stamp(A, 7)

HC = 4160
URB = 4 * HC
WB = URB + 4608
XCH = 4 * WB
ZS = 4160

def b2_common(A, s_grp):
    A(f"s_and_b32 s32, s{S_WAVE}, 3")
    A(f"s_lshr_b32 s33, s{S_WAVE}, 2")
    A(f"s_lshl_b32 s34, s{s_grp}, 2")
    A("s_add_u32 s34, s34, s32")
    A("s_lshl_b32 s35, s34, 12")
    A(f"s_mul_i32 s36, s32, {WB}")
    make_srd(A, 44, P_H, 4096, add_s=35)
    A("s_lshl_b32 s37, s34, 1")
    A("s_and_b32 s38, s37, 0xfffffffc")
    A(f"s_load_dword s39, s[{P_D}:{P_D+1}], s38")

def b2_h_loads(A, HL, nits=2):
    a = HL + 12 * nits + 2
    A(f"v_lshlrev_b32 v{a}, 4, v1")
    if nits == 2:
        A("s_lshl_b32 s40, s33, 11")
        A(f"v_add_u32 v{a}, s40, v{a}")
    A(f"v_add_u32 v{a+1}, 4, v{a}")
    A(f"v_add_u32 v{a+2}, 8, v{a}")
    for it in range(nits):
        A(f"buffer_load_dwordx4 {v(HL+12*it,4)}, v{a}, s[44:47], 0 offen offset:{1024*it}")
        A(f"buffer_load_dwordx4 {v(HL+12*it+4,4)}, v{a+1}, s[44:47], 0 offen offset:{1024*it}")
        A(f"buffer_load_dwordx4 {v(HL+12*it+8,4)}, v{a+2}, s[44:47], 0 offen offset:{1024*it}")
    A(f"v_mov_b32 v{a+3}, 0")
    A(f"buffer_load_dwordx2 {v(HL+12*nits,2)}, v{a+3}, s[44:47], 0 offen")

def b2_h_stage(A, HL, T, nits=2):
    a = HL + 12 * nits + 2
    A(f"v_add_u32 v{a+1}, s36, v{a}")
    for it in range(nits):
        b = HL + 12 * it
        for i in range(4): A(f"v_alignbit_b32 v{T+i}, v{b+4+i}, v{b+i}, 16")
        for i in range(4): A(f"v_alignbit_b32 v{T+4+i}, v{b+8+i}, v{b+4+i}, 16")
        off = 32 + 1024 * it
        A(f"ds_write_b128 v{a+1}, {v(b,4)} offset:{off}")
        A(f"ds_write_b128 v{a+1}, {v(T,4)} offset:{off+HC}")
        A(f"ds_write_b128 v{a+1}, {v(b+4,4)} offset:{off+2*HC}")
        A(f"ds_write_b128 v{a+1}, {v(T+4,4)} offset:{off+3*HC}")
    d0, d1 = HL + 12*nits, HL + 12*nits + 1
    A(f"v_lshlrev_b32 v{T+8}, 16, v{d0}")
    A(f"v_alignbit_b32 v{T+9}, v{d1}, v{d0}, 16")
    Z = T + 10
    for r in range(0, 8, 2): A(f"v_mov_b64 {v(Z+r,2)}, 0")
    A("v_cmp_eq_u32 s[60:61], 1, v1")
    A("v_cmp_eq_u32 s[62:63], 2, v1")
    A("v_cmp_eq_u32 s[64:65], 3, v1")
    A(f"v_cndmask_b32 v{Z+7}, v{Z+7}, v{T+8}, s[60:61]")
    A(f"v_cndmask_b32 v{Z+7}, v{Z+7}, v{d0}, s[62:63]")
    A(f"v_cndmask_b32 v{Z+7}, v{Z+7}, v{T+9}, s[64:65]")
    A(f"v_cndmask_b32 v{Z+6}, v{Z+6}, v{T+8}, s[64:65]")
    A(f"v_mul_u32_u24 v{a+2}, {HC}, v1")
    A(f"v_add_u32 v{a+2}, s36, v{a+2}")
    A("s_mov_b64 exec, 0xf")
    A(f"ds_write_b128 v{a+2}, {v(Z,4)}")
    A(f"ds_write_b128 v{a+2}, {v(Z+4,4)} offset:16")
    A("s_mov_b64 exec, 0xffffffff")
    A(f"v_lshlrev_b32 v{a+2}, 4, v1")
    A(f"v_add_u32 v{a+2}, s36, v{a+2}")
    A(f"ds_write_b128 v{a+2}, {v(Z,4)} offset:{URB+4096}")
    A("s_mov_b64 exec, -1")

def b2_main(A, s_grp, sb, resolved):
    make_srd(A, 48, P_WS, 4096, WS_UR, add_s=35)
    make_srd(A, 52, P_WS, 4096, WS_QT, add_s=35)
    make_srd(A, 56, P_OUT, 2048 * 2304)
    A("v_and_b32 v3, 15, v1")
    A("v_lshrrev_b32 v4, 4, v1")
    A("v_lshlrev_b32 v5, 4, v1")
    A("s_lshl_b32 s40, s33, 11")
    A("v_add_u32 v5, s40, v5")
    A("v_add_u32 v10, s36, v5")
    A("v_lshlrev_b32 v9, 5, v3")
    A("v_lshl_add_u32 v9, v4, 3, v9")
    A("v_add_u32 v8, s40, v9")
    A("v_add_u32 v12, 1, v3")
    A("v_and_b32 v13, 3, v12")
    A("v_lshrrev_b32 v12, 2, v12")
    A(f"v_mul_u32_u24 v13, {HC}, v13")
    A("v_lshl_add_u32 v13, v4, 4, v13")
    A("v_lshl_add_u32 v13, v12, 3, v13")
    A("s_lshl_b32 s41, s33, 8")
    A("s_add_u32 s41, s41, s36")
    A("v_add_u32 v13, s41, v13")
    A("v_lshlrev_b32 v14, 4, v4")
    A("v_lshlrev_b32 v15, 5, v3")
    A("v_sub_u32 v14, v14, v15")
    A(f"v_add_u32 v14, {URB+480}, v14")
    A("v_add_u32 v14, s41, v14")
    stamp(A, sb + 0)
    lab = A.newlabel("b2w")
    A(f"s_cmp_lg_u32 s{S_WAVE}, 0")
    A(f"s_cbranch_scc1 {lab}")
    if not resolved:
        A("s_waitcnt vmcnt(0)")
        nonce_resolve(A, "B")
    A(f"s_lshr_b32 s41, s{s_grp}, 4")
    A("s_lshl_b32 s41, s41, 8")
    flag_poll(A, "B", 41)
    A.label(lab)
    A("s_barrier")
    stamp(A, sb + 1)
    U = 68
    for it in range(2):
        A(f"buffer_load_dwordx4 {v(U+4*it,4)}, v5, s[48:51], 0 offen offset:{1024*it} sc1")
    Q = 84
    for c in range(4):
        A(f"buffer_load_dwordx2 {v(Q+2*c,2)}, v8, s[52:55], 0 offen offset:{512*c} sc1")
    A(f"s_lshl_b32 s41, s{S_WAVE}, 12")
    A("v_lshlrev_b32 v6, 4, v1")
    A(f"v_add_u32 v6, {XCH}, v6")
    A("v_add_u32 v7, s41, v6")
    A(f"s_xor_b32 s42, s{S_WAVE}, 4")
    A("s_lshl_b32 s42, s42, 12")
    A("v_add_u32 v6, s42, v6")
    A(f"v_sub_u32 v11, {URB+504}, v9")
    A("s_lshl_b32 s41, s33, 11")
    A("s_sub_u32 s42, s36, s41")
    A("v_add_u32 v11, s42, v11")
    A(f"s_mul_i32 s42, s32, {ZS}")
    A("s_add_u32 s42, s42, s41")
    A("v_add_u32 v9, s42, v9")
    A("s_waitcnt vmcnt(4)")
    for it in range(2):
        A(f"ds_write_b128 v10, {v(U+4*it,4)} offset:{URB+1024*it}")
    A("s_waitcnt lgkmcnt(0)")
    A("s_barrier")
    stamp(A, sb + 2)
    ACC = 208
    FA = [104, 16]
    def frag_reads(rho, base):
        lst = []
        for b in range(8):
            lst.append(f"ds_read_b128 {v(base+32+4*b,4)}, v14 offset:{64*rho+512*(7-b)}")
        aa_l = []
        for aa in range(8):
            aa_l.append(f"ds_read_b64 {v(base+4*aa,2)}, v13 offset:{512*aa+64*rho}")
            aa_l.append(f"ds_read_b64 {v(base+4*aa+2,2)}, v13 offset:{512*aa+64*rho+8}")
        return aa_l[:2] + lst + aa_l[2:]
    for r_ in frag_reads(0, FA[0]): A(r_)
    UU = 88
    UU = 92
    for rho in range(4):
        base = FA[rho & 1]
        A("s_waitcnt lgkmcnt(0)")
        rd = frag_reads(rho + 1, FA[(rho + 1) & 1]) if rho < 3 else [f"ds_read_b64 {v(UU+2*c,2)}, v11 offset:{512*(7-c)}" for c in range(4)]
        i = 0
        for aa in range(8):
            for b in range(8 - aa):
                c = aa + b
                src = "0" if (rho == 0 and aa == 0) else v(ACC+4*c, 4)
                A(f"v_mfma_f32_16x16x32_bf16 {v(ACC+4*c,4)}, {v(base+4*aa,4)}, {v(base+32+4*b,4)}, {src}")
                if i < len(rd): A(rd[i]); i += 1
    stamp(A, sb + 3)
    l1 = A.newlabel("b2h1"); l2 = A.newlabel("b2x")
    KP = 192
    A("s_cmp_eq_u32 s33, 1")
    A(f"s_cbranch_scc1 {l1}")
    for c in range(4): A(f"ds_write_b128 v7, {v(ACC+16+4*c,4)} offset:{1024*c}")
    for c in range(8): A(f"v_mov_b64 {v(KP+2*c,2)}, {v(ACC+2*c,2)}")
    A(f"s_branch {l2}")
    A.label(l1)
    for c in range(4): A(f"ds_write_b128 v7, {v(ACC+4*c,4)} offset:{1024*c}")
    for c in range(8): A(f"v_mov_b64 {v(KP+2*c,2)}, {v(ACC+16+2*c,2)}")
    A.label(l2)
    A("s_and_b32 s37, s37, 2")
    A("s_lshl_b32 s37, s37, 3")
    A("s_waitcnt lgkmcnt(0)")
    A("s_lshr_b32 s39, s39, s37")
    A("s_lshl_b32 s39, s39, 16")
    TT = 16
    A("s_waitcnt vmcnt(0)")
    for c in range(4):
        A(f"v_and_b32 v{TT+4*c+0}, 0xffff0000, v{UU+2*c+1}")
        A(f"v_lshlrev_b32 v{TT+4*c+1}, 16, v{UU+2*c+1}")
        A(f"v_and_b32 v{TT+4*c+2}, 0xffff0000, v{UU+2*c}")
        A(f"v_lshlrev_b32 v{TT+4*c+3}, 16, v{UU+2*c}")
        A(f"v_lshlrev_b32 v{TT+16+4*c+0}, 16, v{Q+2*c}")
        A(f"v_and_b32 v{TT+16+4*c+1}, 0xffff0000, v{Q+2*c}")
        A(f"v_lshlrev_b32 v{TT+16+4*c+2}, 16, v{Q+2*c+1}")
        A(f"v_and_b32 v{TT+16+4*c+3}, 0xffff0000, v{Q+2*c+1}")
    for e in range(16): A(f"v_fma_f32 v{KP+e}, v{TT+e}, s39, v{KP+e}")
    A("s_barrier")
    for c in range(4): A(f"ds_read_b128 {v(48+4*c,4)}, v6 offset:{1024*c}")
    for c in range(4):
        A(f"s_waitcnt lgkmcnt({3-c})")
        A(f"v_pk_add_f32 {v(KP+4*c,2)}, {v(KP+4*c,2)}, {v(48+4*c,2)}")
        A(f"v_pk_add_f32 {v(KP+4*c+2,2)}, {v(KP+4*c+2,2)}, {v(48+4*c+2,2)}")
        A(f"v_pk_mul_f32 {v(KP+4*c,2)}, {v(KP+4*c,2)}, {v(TT+16+4*c,2)}")
        A(f"v_pk_mul_f32 {v(KP+4*c+2,2)}, {v(KP+4*c+2,2)}, {v(TT+16+4*c+2,2)}")
        A(f"v_cvt_pk_bf16_f32 v{64+2*c}, v{KP+4*c}, v{KP+4*c+1}")
        A(f"v_cvt_pk_bf16_f32 v{65+2*c}, v{KP+4*c+2}, v{KP+4*c+3}")
        A(f"ds_write_b64 v9, {v(64+2*c,2)} offset:{512*c}")
    A("v_lshrrev_b32 v12, 2, v3")
    A(f"v_mul_u32_u24 v12, {ZS}, v12")
    A("v_and_b32 v13, 3, v3")
    A("v_lshl_add_u32 v12, v13, 3, v12")
    A("v_lshl_add_u32 v12, v4, 5, v12")
    A(f"s_lshl_b32 s41, s{S_WAVE}, 9")
    A("v_add_u32 v12, s41, v12")
    A(f"s_lshl_b32 s41, s{S_WAVE}, 8")
    A("v_add_u32 v13, s41, v1")
    A("s_movk_i32 s42, 2304")
    A(f"s_lshl_b32 s43, s{s_grp}, 3")
    A("s_add_u32 s43, s43, 1152")
    A("v_mul_lo_u32 v13, v13, s42")
    A("v_add_u32 v13, s43, v13")
    for it in range(4): A(f"s_mov_b32 s{60+it}, {64*2304*it}")
    A("s_waitcnt lgkmcnt(0)")
    A("s_barrier")
    for it in range(4):
        A(f"ds_read_b64_tr_b16 {v(16+2*it,2)}, v12 offset:{128*it}")
    for it in range(4):
        A(f"s_waitcnt lgkmcnt({3-it})")
        A(f"buffer_store_dwordx2 {v(16+2*it,2)}, v13, s[56:59], s{60+it} offen" + (" sc1" if OPT.get("b2sc1") else ""))
    stamp(A, sb + 4)

def b1_addr(A, s_tile, vt):
    A(f"s_mul_hi_u32 s66, s{s_tile}, 0x1c71c71d")
    A("s_mul_i32 s67, s66, 9")
    A(f"s_sub_u32 s67, s{s_tile}, s67")
    A(f"v_and_b32 v2, 7, v{vt}")
    A(f"v_lshrrev_b32 v3, 3, v{vt}")
    A("s_lshl_b32 s40, s66, 8")
    A("v_lshl_add_u32 v4, v3, 3, s40")
    A("s_lshl_b32 s41, s67, 7")
    A("v_lshl_add_u32 v5, v2, 4, s41")
    A("s_movk_i32 s42, 1152")
    A("v_mad_u32_u24 v6, v4, s42, v5")
    A("v_add_u32 v7, 4608, v6")

def gen_b1_kv(A, s_tile):
    A.comment("===== B1 kv (waves 0-3) =====")
    b1_addr(A, s_tile, 0)
    A("v_subrev_u32 v8, 3456, v6")
    A("v_subrev_u32 v9, 2304, v6")
    A("v_subrev_u32 v10, 1152, v6")
    make_srd(A, 48, P_K, SZ_T)
    make_srd(A, 52, P_V, SZ_T)
    make_srd(A, 56, P_SH, 576 * 8)
    KR, VR, SH, W = 16, 60, 92, 108
    KF, VF, ACC, OUT = 140, 162, 178, 194
    for j, vo in enumerate((8, 9, 10)):
        A(f"buffer_load_dwordx4 {v(KR+4*j,4)}, v{vo}, s[48:51], 0 offen")
    for i in range(8):
        A(f"buffer_load_dwordx4 {v(KR+4*(3+i),4)}, v{6 if i < 4 else 7}, s[48:51], 0 offen offset:{1152*(i%4)}")
    for i in range(8):
        A(f"buffer_load_dwordx4 {v(VR+4*i,4)}, v{6 if i < 4 else 7}, s[52:55], 0 offen offset:{1152*(i%4)}")
    A("s_lshl_b32 s43, s67, 9")
    A("v_lshl_add_u32 v11, v2, 6, s43")
    for i in range(4):
        A(f"buffer_load_dwordx4 {v(SH+4*i,4)}, v11, s[56:59], 0 offen offset:{16*i}")
    stamp(A, 2)
    make_srd(A, 52+8, P_WS, SZ_T, WS_UR)
    A("s_lshl_b32 s43, s67, 18")
    A("v_lshl_add_u32 v12, v2, 15, s43")
    A("v_lshlrev_b32 v14, 1, v4")
    A("v_sub_u32 v12, v12, v14")
    A("v_add_u32 v12, 4080, v12")
    for ch in range(8): A(f"s_mov_b32 s{68+ch}, {ch*4096}")
    A("s_waitcnt vmcnt(0)")
    A("s_barrier")
    stamp(A, 3)
    for ch in range(8):
        A(f"v_lshlrev_b32 v{W+0*8+ch}, 16, v{SH+2*ch}")
        A(f"v_and_b32 v{W+1*8+ch}, 0xffff0000, v{SH+2*ch}")
        A(f"v_lshlrev_b32 v{W+2*8+ch}, 16, v{SH+2*ch+1}")
        A(f"v_and_b32 v{W+3*8+ch}, 0xffff0000, v{SH+2*ch+1}")
    for m in range(4):
        for j in range(11):
            A(f"v_lshlrev_b32 v{KF+2*j}, 16, v{KR+4*j+m}")
            A(f"v_and_b32 v{KF+2*j+1}, 0xffff0000, v{KR+4*j+m}")
        for i in range(8):
            A(f"v_lshlrev_b32 v{VF+2*i}, 16, v{VR+4*i+m}")
            A(f"v_and_b32 v{VF+2*i+1}, 0xffff0000, v{VR+4*i+m}")
        for i in range(8):
            A(f"v_pk_mul_f32 {v(ACC+2*i,2)}, {v(W+3*8+2*m,2)}, {v(KF+2*i,2)}")
        for t in (2, 1, 0):
            for i in range(8):
                A(f"v_pk_fma_f32 {v(ACC+2*i,2)}, {v(W+t*8+2*m,2)}, {v(KF+2*(i+3-t),2)}, {v(ACC+2*i,2)}")
        for i in range(8):
            A(f"v_pk_mul_f32 {v(ACC+2*i,2)}, {v(ACC+2*i,2)}, {v(VF+2*i,2)}")
        o = OUT + 8 * (m & 1)
        for h in range(2):
            for q in range(4):
                A(f"v_cvt_pk_bf16_f32 v{o+4*h+q}, v{ACC+2*(7-2*q)+h}, v{ACC+2*(6-2*q)+h}")
        for h in range(2):
            A(f"buffer_store_dwordx4 {v(o+4*h,4)}, v12, s[60:63], s{68+2*m+h} offen sc1")
    stamp(A, 4)

def tlb_warm(A):
    items = []
    for p, size in ((P_K, SZ_T), (P_V, SZ_T), (P_Q, SZ_T), (P_H, SZ_T), (P_WO, 576*1152), (P_OUT, 2048*2304), (P_SH, 64), (P_D, 64)):
        offs = list(range(0, size, 2 << 20))
        offs.append(size - 128 if size > 128 else 0)
        for o in sorted(set(offs)): items.append((p, o))
    for o in (0, (2 << 20) + (1 << 20), (4 << 20), (6 << 20) + (1 << 20), (8 << 20), (10 << 20) + (1 << 20), (12 << 20)):
        items.append((P_WS, o))
    assert len(items) <= 64
    A(f"v_mov_b32 v20, s{P_WS}")
    A(f"v_mov_b32 v21, s{P_WS+1}")
    for i, (p, o) in enumerate(items):
        A(f"s_add_u32 s96, s{p}, {o}")
        A(f"s_addc_u32 s97, s{p+1}, 0")
        A(f"v_writelane_b32 v20, s96, {i}")
        A(f"v_writelane_b32 v21, s97, {i}")
    A("global_load_dword v245, v[20:21], off")

def b_prefetch(A):
    lab = A.newlabel("bpf")
    A(f"s_cmp_ge_u32 s{S_WAVE}, {OPT.get('nb', 5)}")
    A(f"s_cbranch_scc1 {lab}")
    make_srd(A, 48, P_X, SZ_T)
    make_srd(A, 52, P_W, 576 * 3456)
    A("s_lshr_b32 s40, s91, 3")
    a_prefetch_setup(A, 10, 12, 4, 40, 10)
    A(f"s_add_u32 s40, s{S_WAVE}, 1")
    a_prefetch_issue(A, 10, 12, 40, 48, 52, 240, two=True)
    A.label(lab)
    if OPT.get("tlb"):
        lab2 = A.newlabel("tlb")
        A(f"s_cmp_lg_u32 s{S_WAVE}, 7")
        A(f"s_cbranch_scc1 {lab2}")
        tlb_warm(A)
        A.label(lab2)
    get_nonce_issue(A, "B")

def gen_b1_aux(A, s_tile, has_tile):
    A.comment("===== B1 aux (waves 4-7) =====")
    HL = 130
    QR = 16
    if has_tile:
        A("v_subrev_u32 v13, 256, v0")
        b1_addr(A, s_tile, 13)
        make_srd(A, 48, P_Q, SZ_T)
        make_srd(A, 56, P_WS, SZ_T, WS_QT)
        A("s_lshl_b32 s43, s67, 18")
        A("v_lshl_add_u32 v12, v2, 15, s43")
        A("v_lshl_add_u32 v12, v4, 1, v12")
        for ch in range(8): A(f"s_mov_b32 s{68+ch}, {ch*4096}")
        A("s_mov_b32 s76, 0x05040100")
        A("s_mov_b32 s77, 0x07060302")
        A("s_barrier")
        for i in range(8):
            A(f"buffer_load_dwordx4 {v(QR+4*i,4)}, v{6 if i < 4 else 7}, s[48:51], 0 offen offset:{1152*(i%4)}")
    b2_h_loads(A, HL, 4)
    stamp(A, 2)
    if has_tile:
        A("s_waitcnt vmcnt(13)")
        stamp(A, 3)
        for m in range(4):
            o = 48 + 8 * m
            for q in range(4):
                A(f"v_perm_b32 v{o+q}, v{QR+4*(2*q+1)+m}, v{QR+4*(2*q)+m}, s76")
                A(f"v_perm_b32 v{o+4+q}, v{QR+4*(2*q+1)+m}, v{QR+4*(2*q)+m}, s77")
            for h in range(2):
                A(f"buffer_store_dwordx4 {v(o+4*h,4)}, v12, s[56:59], s{68+2*m+h} offen sc1")
        A("s_waitcnt vmcnt(8)")
    else:
        A("s_waitcnt vmcnt(0)")
    stamp(A, 4)
    b2_h_stage(A, HL, 100, 4)

WO_B = 72 * 1024

def gen_a2(A, s_x, s_a, sb):
    A.comment("===== A2 =====")
    A(f"s_sub_u32 s34, s{s_a}, 4")
    A("s_lshr_b32 s33, s34, 1")
    A("s_add_u32 s33, s33, 4")
    A("s_and_b32 s34, s34, 1")
    A(f"s_cmp_lt_u32 s{s_a}, 4")
    A(f"s_cselect_b32 s33, s{s_a}, s33")
    A("s_cselect_b32 s34, 0, s34")
    A("s_cselect_b32 s42, 2, 1")
    A(f"s_lshl_b32 s32, s{s_x}, 1")
    A("s_add_u32 s32, s32, s34")
    make_srd(A, 44, P_WO, 576 * 1152)
    A("v_lshrrev_b32 v2, 3, v1")
    A("v_and_b32 v3, 7, v1")
    A("v_bfe_u32 v4, v1, 4, 1")
    A("v_lshlrev_b32 v4, 1, v4")
    A("v_xor_b32 v4, v4, v3")
    A("v_mul_u32_u24 v5, 1152, v2")
    A("v_lshl_add_u32 v5, v4, 4, v5")
    A("s_lshl_b32 s34, s33, 7")
    A("v_add_u32 v10, s34, v5")
    A("v_xor_b32 v11, 64, v10")
    A(f"s_mul_i32 s35, s{S_WAVE}, 9")
    A("s_and_b32 s36, s35, 1")
    A("s_cmp_eq_u32 s36, 1")
    A("s_cselect_b64 s[56:57], -1, 0")
    A("v_cndmask_b32 v12, v10, v11, s[56:57]")
    A("v_cndmask_b32 v13, v11, v10, s[56:57]")
    A("s_lshl_b32 s36, s33, 3")
    A("s_add_u32 s36, s36, s35")
    A("s_lshl_b32 s37, s35, 10")
    for j in range(9):
        A(f"s_add_u32 s38, s36, {j}")
        A("s_sub_u32 s39, s38, 72")
        A("s_cmp_ge_u32 s38, 72")
        A("s_cselect_b32 s38, s39, s38")
        A("s_mul_i32 s38, s38, 9216")
        A(f"s_add_u32 m0, s37, {1024*j}")
        A(f"buffer_load_dwordx4 v{12+(j&1)}, s[44:47], s38 offen lds")
    make_srd(A, 48, P_WS, SZ_T, WS_OF)
    make_srd(A, 52, P_OUT, 2048 * 2304)
    A("s_lshl_b32 s38, s32, 3")
    A(f"s_add_u32 s38, s38, s{S_WAVE}")
    A("s_mul_i32 s39, s38, 18432")
    A("v_lshlrev_b32 v2, 4, v1")
    A("v_add_u32 v2, s39, v2")
    A("v_add_u32 v3, 4096, v2"); A("v_add_u32 v4, 8192, v2"); A("v_add_u32 v5, 12288, v2"); A("v_add_u32 v6, 16384, v2")
    A("v_and_b32 v7, 15, v1")
    A("v_lshrrev_b32 v8, 4, v1")
    A("v_lshrrev_b32 v9, 2, v7")
    A("v_lshl_add_u32 v9, v8, 3, v9")
    A("v_lshlrev_b32 v9, 7, v9")
    A("v_and_b32 v10, 1, v7")
    A("v_lshl_add_u32 v9, v10, 3, v9")
    A("v_bfe_u32 v10, v7, 3, 1")
    A("v_and_b32 v11, 1, v8")
    A("v_lshl_add_u32 v10, v11, 1, v10")
    A("v_lshlrev_b32 v10, 1, v10")
    A("v_bfe_u32 v11, v7, 1, 1")
    for nt in range(4):
        A(f"v_add_u32 v14, {2*nt}, v11")
        A("v_xor_b32 v14, v14, v10")
        A(f"v_lshl_add_u32 v{16+nt}, v14, 4, v9")
        A(f"v_add_u32 v{20+nt}, 36864, v{16+nt}")
    A(f"s_mul_i32 s40, s{S_WAVE}, 2304")
    A(f"s_add_u32 s40, s40, {WO_B}")
    A("v_mul_u32_u24 v9, 144, v7")
    A("v_lshl_add_u32 v9, v8, 3, v9")
    A("v_add_u32 v9, s40, v9")
    A("v_lshrrev_b32 v10, 3, v1")
    A("v_and_b32 v11, 7, v1")
    A("v_mul_u32_u24 v12, 144, v10")
    A("v_lshl_add_u32 v12, v11, 4, v12")
    A("v_add_u32 v12, s40, v12")
    A("s_mul_i32 s39, s38, 36864")
    A("s_lshl_b32 s41, s33, 7")
    A("s_add_u32 s39, s39, s41")
    A("v_mul_u32_u24 v13, 2304, v10")
    A("v_lshl_add_u32 v13, v11, 4, v13")
    A("v_add_u32 v13, s39, v13")
    A("v_add_u32 v14, 18432, v13")
    stamp(A, sb + 0)
    lab = A.newlabel("a2w")
    A(f"s_cmp_lg_u32 s{S_WAVE}, 0")
    A(f"s_cbranch_scc1 {lab}")
    A("s_lshl_b32 s39, s32, 7")
    A("s_mul_hi_u32 s40, s39, 0x2aaaaab")
    A("s_lshl_b32 s41, s42, 7")
    A("s_add_u32 s39, s39, s41")
    A("s_sub_u32 s39, s39, 1")
    A("s_mul_hi_u32 s41, s39, 0x2aaaaab")
    make_srd(A, 92, P_WS, 65536, WS_FA)
    A("v_lshrrev_b32 v250, 3, v1")
    A("v_add_u32 v250, s40, v250")
    A("v_min_u32 v250, s41, v250")
    A("v_lshlrev_b32 v250, 8, v250")
    A("v_and_b32 v249, 7, v1")
    A("v_lshl_add_u32 v250, v249, 2, v250")
    A("s_mov_b64 exec, 0xffffffff")
    lp = A.newlabel("poll"); done = A.newlabel("polld")
    A("s_mov_b32 s88, 100000")
    A.label(lp)
    A("buffer_load_dword v251, v250, s[92:95], 0 offen sc1")
    A("s_waitcnt vmcnt(0)")
    A(f"v_cmp_ne_u32 vcc, s{S_NA}, v251")
    A("s_nop 4")
    A(f"s_cbranch_vccz {done}")
    A("s_sleep 2")
    A("s_sub_u32 s88, s88, 1")
    A("s_cmp_lg_u32 s88, 0")
    A(f"s_cbranch_scc1 {lp}")
    A.label(done)
    A("s_mov_b64 exec, -1")
    A.label(lab)
    A("s_waitcnt vmcnt(0)")
    A("s_barrier")
    stamp(A, sb + 1)
    BF = [24, 136]
    ACC = 96
    AF = [112, 120]
    AF = [112, 208, 224]
    def oloads(base, extra):
        A("s_lshl_b32 s44, s33, 1")
        for j in range(18):
            A("s_lshl_b32 s45, s44, 10")
            if extra: A("s_add_u32 s45, s45, s43")
            A(f"buffer_load_dwordx4 {v(base+4*j,4)}, v2, s[48:51], s45 offen sc1")
            A("s_add_u32 s44, s44, 1")
            A("s_cmp_eq_u32 s44, 18")
            A("s_cselect_b32 s44, 0, s44")
    def reads(ks, base):
        lst = []
        for nt in range(4):
            va = (16 if ks < 9 else 20) + nt
            for h in range(2):
                lst.append(f"ds_read_b64_tr_b16 {v(base+4*nt+2*h,2)}, v{va} offset:{(ks%9)*4096 + h*512}")
        return lst
    def tile(bf, pending_after, soff):
        for r_ in reads(0, AF[0]): A(r_)
        for r_ in reads(1, AF[1]): A(r_)
        for ks in range(18):
            rd = reads(ks + 2, AF[(ks+2) % 3]) if ks < 16 else []
            A(f"s_waitcnt vmcnt({min(63, 17-ks+pending_after)}) lgkmcnt({8 if ks < 17 else 0})")
            i = 0
            for nt in range(4):
                c = "0" if ks == 0 else v(ACC+4*nt, 4)
                A(f"v_mfma_f32_16x16x32_bf16 {v(ACC+4*nt,4)}, {v(AF[ks%3]+4*nt,4)}, {v(bf+4*ks,4)}, {c}")
                for _ in range(2):
                    if i < len(rd): A(rd[i]); i += 1
        for nt in range(4):
            A(f"v_cvt_pk_bf16_f32 v{128+2*nt}, v{ACC+4*nt}, v{ACC+4*nt+1}")
            A(f"v_cvt_pk_bf16_f32 v{129+2*nt}, v{ACC+4*nt+2}, v{ACC+4*nt+3}")
            A(f"ds_write_b64 v9, {v(128+2*nt,2)} offset:{32*nt}")
        A("s_waitcnt lgkmcnt(0)")
        A("ds_read_b128 v[128:131], v12")
        A("ds_read_b128 v[132:135], v12 offset:1152")
        A("s_waitcnt lgkmcnt(1)")
        A(f"buffer_store_dwordx4 v[128:131], v13, s[52:55], {soff} offen" + (" sc1" if OPT.get("a2sc1") else ""))
        A("s_waitcnt lgkmcnt(0)")
        A(f"buffer_store_dwordx4 v[132:135], v14, s[52:55], {soff} offen" + (" sc1" if OPT.get("a2sc1") else ""))
    oloads(BF[0], False)
    l2 = A.newlabel("a2two"); lend = A.newlabel("a2end")
    A("s_cmp_eq_u32 s42, 2")
    A(f"s_cbranch_scc1 {l2}")
    tile(BF[0], 0, "0")
    A(f"s_branch {lend}")
    A.label(l2)
    A(f"s_mov_b32 s43, {8*18432}")
    oloads(BF[1], True)
    tile(BF[0], 18, "0")
    stamp(A, sb + 2)
    A(f"s_mov_b32 s43, {128*2304}")
    tile(BF[1], 2, "s43")
    A.label(lend)
    stamp(A, sb + 3)

def build(path, stamps=False):
    global STAMPS
    STAMPS = stamps
    A = Asm()
    A.raw(f".globl {NAME}\n.p2align 8\n.type {NAME},@function\n{NAME}:")
    A("s_cmp_ge_u32 s2, 256")
    A("s_cbranch_scc1 L_end")
    A("s_load_dwordx16 s[4:19], s[0:1], 0")
    A("s_load_dwordx8 s[20:27], s[0:1], 64")
    A("s_memrealtime s[30:31]")
    if OPT.get("codepf", 1):
        A("s_getpc_b64 s[32:33]")
        A.label("L_pc")
        A("s_lshr_b32 s34, s2, 3")
        A("s_mul_i32 s34, s34, CODE_LPW*128")
        A("v_and_b32 v3, 63, v0")
        A("v_lshlrev_b32 v3, 7, v3")
        A("v_add_u32 v3, s34, v3")
        A("v_cmp_gt_u32 vcc, (L_end-L_pc), v3")
        A("v_cmp_gt_u32 s[36:37], CODE_LPW, v0")
        A("s_and_b64 vcc, vcc, s[36:37]")
        A("s_and_saveexec_b64 s[36:37], vcc")
        labc = A.newlabel("cpf")
        A(f"s_cbranch_execz {labc}")
        A("global_load_dword v247, v3, s[32:33]")
        A.label(labc)
        A("s_mov_b64 exec, s[36:37]")
    A("v_lshrrev_b32 v2, 6, v0")
    A("v_and_b32 v1, 63, v0")
    A(f"v_readfirstlane_b32 s{S_WAVE}, v2")
    A("s_waitcnt lgkmcnt(0)")
    A(f"s_or_b32 s{S_MY}, s30, 1")
    if STAMPS: A("v_mov_b32 v246, -1")
    stamp(A, 0)
    if STAMPS:
        A("s_memtime s[100:101]")
        A("s_waitcnt lgkmcnt(0)")
        A("v_writelane_b32 v246, s100, 16")
    A("s_cmp_ge_u32 s2, 176")
    A("s_cbranch_scc1 L_bset")
    gen_a1(A)
    A("s_cmp_lt_u32 s2, 64")
    A("s_cbranch_scc1 L_a_b2")
    A("s_and_b32 s90, s2, 7")
    A("s_sub_u32 s91, s2, 64")
    A("s_lshr_b32 s91, s91, 3")
    gen_a2(A, 90, 91, 8)
    A("s_branch L_fin")
    A.label("L_a_b2")
    A("s_and_b32 s90, s2, 7")
    A("s_mul_i32 s90, s90, 18")
    A("s_lshr_b32 s91, s2, 3")
    A("s_add_u32 s90, s90, s91")
    A("s_add_u32 s90, s90, 10")
    get_nonce_issue(A, "B")
    b2_common(A, 90)
    b2_h_loads(A, 170, 2)
    A("s_waitcnt vmcnt(0)")
    b2_h_stage(A, 170, 112, 2)
    b2_main(A, 90, 8, resolved=False)
    A("s_branch L_fin")
    A.label("L_bset")
    A("s_sub_u32 s91, s2, 176")
    A("s_and_b32 s90, s91, 7")
    A("s_mul_i32 s90, s90, 18")
    A("s_lshr_b32 s89, s91, 3")
    A("s_add_u32 s90, s90, s89")
    b_prefetch(A)
    b2_common(A, 90)
    if OPT.get("bwait", 1):
        A("s_waitcnt vmcnt(0)")
        A("s_barrier")
    stamp(A, 1)
    A("s_cmp_ge_u32 s91, 72")
    A("s_cbranch_scc1 L_b_nob1")
    A(f"s_cmp_ge_u32 s{S_WAVE}, 4")
    A("s_cbranch_scc1 L_b_aux")
    gen_b1_kv(A, 91)
    A("s_branch L_b_join")
    A.label("L_b_aux")
    gen_b1_aux(A, 91, True)
    A.label("L_b_join")
    A("s_waitcnt vmcnt(0) lgkmcnt(0)")
    A("s_barrier")
    lab = A.newlabel("b1f")
    A(f"s_cmp_lg_u32 s{S_WAVE}, 0")
    A(f"s_cbranch_scc1 {lab}")
    nonce_resolve(A, "B")
    A("s_lshl_b32 s40, s67, 8")
    A("s_lshl_b32 s41, s66, 2")
    A("s_add_u32 s40, s40, s41")
    flag_store(A, "B", 40)
    A.label(lab)
    A("s_branch L_b_b2")
    A.label("L_b_nob1")
    lab = A.newlabel("bnx")
    A(f"s_cmp_lt_u32 s{S_WAVE}, 4")
    A(f"s_cbranch_scc1 {lab}")
    gen_b1_aux(A, 91, False)
    A.label(lab)
    A("s_waitcnt vmcnt(0)")
    lab = A.newlabel("bz")
    A(f"s_cmp_lg_u32 s{S_WAVE}, 0")
    A(f"s_cbranch_scc1 {lab}")
    nonce_resolve(A, "B")
    A.label(lab)
    A.label("L_b_b2")
    b2_main(A, 90, 5, resolved=True)
    A.label("L_fin")
    stamp_flush(A)
    A.label("L_end")
    A("s_endpgm")
    body = A.finalize()
    lds = max(3 * ST1, XCH + 8 * 4096, WO_B + 8 * 2304)
    out = HEADER + f"; @launch grid=(256,1,1) block=(512,1,1) lds={lds}\n"
    out += '.amdgcn_target "amdgcn-amd-amdhsa--gfx950"\n.text\n.set CODE_LPW, 16\n' + body
    out += '.section .rodata,"a"\n.p2align 6\n' + kd(NAME, 256)
    open(path, "w").write(out)

if __name__ == "__main__":
    for a in sys.argv[3:]:
        k, x = a.split("="); OPT[k] = int(x)
    build(sys.argv[1], stamps=(len(sys.argv) > 2 and sys.argv[2] == "stamps"))
```

```python
import sys, struct, math
from asmlib import *
from gen_common import HEADER, kd

NAME = "concat_heads__sliding_local_dilated__ssm_conv_h3__prompt_kernel"
SZ_T = 576 * 2048 * 2
WS_UR = 4096
WS_QT = (4 << 20) + 4096
WS_OF = (8 << 20) + 4096
WS_FA = (12 << 20) + 4096
WS_FB = WS_FA + 65536
STAMP_OFF = 16 << 20
BIGOFF = 0x7FFF0000

P_X, P_W, P_WO, P_Q, P_K, P_V, P_SH, P_H, P_D, P_OUT, P_DBG, P_WS = 4, 6, 8, 10, 12, 14, 16, 18, 20, 22, 24, 26
S_MY, S_WAVE, S_NA, S_NB = 28, 29, 30, 31
V_NA, V_NB = 252, 254
STAMPS = False
OPT = {}

def make_srd(A, dst, ptr, nbytes, add=0, add_s=None):
    if add_s is not None:
        A(f"s_add_u32 s{dst}, s{ptr}, s{add_s}")
        A(f"s_addc_u32 s{dst+1}, s{ptr+1}, 0")
        if add:
            A(f"s_add_u32 s{dst}, s{dst}, {add}")
            A(f"s_addc_u32 s{dst+1}, s{dst+1}, 0")
        A(f"s_and_b32 s{dst+1}, s{dst+1}, 0xffff")
    elif add:
        A(f"s_add_u32 s{dst}, s{ptr}, {add}")
        A(f"s_addc_u32 s{dst+1}, s{ptr+1}, 0")
        A(f"s_and_b32 s{dst+1}, s{dst+1}, 0xffff")
    else:
        A(f"s_mov_b32 s{dst}, s{ptr}")
        A(f"s_and_b32 s{dst+1}, s{ptr+1}, 0xffff")
    A(f"s_mov_b32 s{dst+2}, {nbytes}")
    A(f"s_mov_b32 s{dst+3}, 0x00020000")

def stamp(A, idx):
    if not STAMPS: return
    A("s_memrealtime s[100:101]")
    A("s_waitcnt lgkmcnt(0)")
    A(f"v_writelane_b32 v246, s100, {idx}")

def stamp_flush(A):
    if not STAMPS: return
    A("s_memtime s[100:101]")
    A("s_waitcnt lgkmcnt(0)")
    A("v_writelane_b32 v246, s100, 17")
    A("s_memrealtime s[100:101]")
    A("s_waitcnt lgkmcnt(0)")
    A("v_writelane_b32 v246, s100, 18")
    lab = A.newlabel("stf")
    A(f"s_and_b32 s96, s{S_WAVE}, 3")
    A("s_cmp_lg_u32 s96, 0")
    A(f"s_cbranch_scc1 {lab}")
    A(f"s_lshr_b32 s100, s{S_WAVE}, 2")
    A("s_lshl_b32 s100, s100, 8")
    A("s_add_u32 s100, s100, s2")
    A("s_lshl_b32 s100, s100, 7")
    A(f"s_add_u32 s96, s{P_WS}, {STAMP_OFF}")
    A(f"s_addc_u32 s97, s{P_WS+1}, 0")
    A("s_and_b32 s97, s97, 0xffff")
    A("s_mov_b32 s98, 0x100000")
    A("s_mov_b32 s99, 0x00020000")
    A("v_lshlrev_b32 v250, 2, v1")
    A("v_add_u32 v250, s100, v250")
    A("s_mov_b64 exec, 0xffffffff")
    A("buffer_store_dword v246, v250, s[96:99], 0 offen")
    A("s_mov_b64 exec, -1")
    A.label(lab)

def get_nonce_issue(A, which):
    vn = V_NA if which == "A" else V_NB
    lab = A.newlabel("nz")
    A(f"s_cmp_lg_u32 s{S_WAVE}, 0")
    A(f"s_cbranch_scc1 {lab}")
    make_srd(A, 92, P_DBG, 256)
    A(f"v_mov_b32 v{vn}, s{S_MY}")
    A(f"v_mov_b32 v{vn+1}, 0")
    A(f"v_mov_b32 v251, {0 if which == 'A' else 128}")
    A("s_mov_b64 exec, 1")
    A(f"buffer_atomic_cmpswap v[{vn}:{vn+1}], v251, s[92:95], 0 offen sc0 sc1")
    A("s_mov_b64 exec, -1")
    A.label(lab)

def nonce_resolve(A, which):
    vn = V_NA if which == "A" else V_NB
    sn = S_NA if which == "A" else S_NB
    A(f"v_readfirstlane_b32 s{sn}, v{vn}")
    A(f"s_cmp_eq_u32 s{sn}, 0")
    A(f"s_cselect_b32 s{sn}, s{S_MY}, s{sn}")

def flag_store(A, which, s_off):
    sn = S_NA if which == "A" else S_NB
    make_srd(A, 92, P_WS, 65536, WS_FA if which == "A" else WS_FB)
    A(f"v_mov_b32 v250, s{s_off}")
    A(f"v_mov_b32 v251, s{sn}")
    A("s_mov_b64 exec, 1")
    A("buffer_store_dword v251, v250, s[92:95], 0 offen sc1")
    A("s_mov_b64 exec, -1")

def flag_poll(A, which, s_off0, s_off1=None):
    sn = S_NA if which == "A" else S_NB
    make_srd(A, 92, P_WS, 65536, WS_FA if which == "A" else WS_FB)
    A("v_and_b32 v250, 7, v1")
    A("v_lshlrev_b32 v250, 2, v250")
    if s_off1 is not None:
        A(f"v_mov_b32 v249, s{s_off0}")
        A(f"v_mov_b32 v248, s{s_off1}")
        A("v_cmp_gt_u32 vcc, 8, v1")
        A("v_cndmask_b32 v249, v248, v249, vcc")
        A("v_add_u32 v250, v250, v249")
        A("s_mov_b64 exec, 0xffff")
    else:
        A(f"v_add_u32 v250, s{s_off0}, v250")
        A("s_mov_b64 exec, 0xff")
    lp = A.newlabel("poll"); done = A.newlabel("polld")
    A("s_mov_b32 s88, 100000")
    A.label(lp)
    A("buffer_load_dword v251, v250, s[92:95], 0 offen sc1")
    A("s_waitcnt vmcnt(0)")
    A(f"v_cmp_ne_u32 vcc, s{sn}, v251")
    A("s_nop 4")
    A(f"s_cbranch_vccz {done}")
    A("s_sleep 2")
    A("s_sub_u32 s88, s88, 1")
    A("s_cmp_lg_u32 s88, 0")
    A(f"s_cbranch_scc1 {lp}")
    A.label(done)
    A("s_mov_b64 exec, -1")

def a_prefetch_setup(A, vx, vw, t0, s_idx, nshare):
    px = -(-1072 // nshare); pw = -(-576 // nshare)
    A("s_and_b32 s96, s2, 7")
    A("s_lshr_b32 s98, s96, 2")
    A("s_and_b32 s96, s96, 3")
    A("s_mul_i32 s98, s98, 1056")
    A(f"s_mul_i32 s99, s{s_idx}, {px}")
    A("s_add_u32 s98, s98, s99")
    A("s_sub_u32 s98, s98, 16")
    A(f"v_mov_b32 v{t0+1}, 0x{BIGOFF:x}")
    A("s_movk_i32 s99, 1152")
    for e in range(2 if px > 64 else 1):
        A(f"v_add_u32 v{t0}, s98, v1")
        if e: A(f"v_add_u32 v{t0}, 64, v{t0}")
        A(f"v_mul_lo_u32 v{vx+e}, v{t0}, s99")
        A(f"v_cmp_gt_i32 vcc, 0, v{t0}")
        A(f"v_cndmask_b32 v{vx+e}, v{vx+e}, v{t0+1}, vcc")
        lim = min(px - 64*e, 64)
        if lim < 64:
            A(f"v_cmp_le_u32 vcc, {lim}, v1")
            A(f"v_cndmask_b32 v{vx+e}, v{vx+e}, v{t0+1}, vcc")
    A(f"s_mul_i32 s99, s{s_idx}, {pw}")
    A(f"v_add_u32 v{t0}, s99, v1")
    A(f"v_mul_u32_u24 v{t0+2}, 7282, v{t0}")
    A(f"v_lshrrev_b32 v{t0+2}, 16, v{t0+2}")
    A(f"v_mul_u32_u24 v{t0+3}, 9, v{t0+2}")
    A(f"v_sub_u32 v{t0+3}, v{t0}, v{t0+3}")
    A(f"v_mul_u32_u24 v{t0+4}, 21846, v{t0+3}")
    A(f"v_lshrrev_b32 v{t0+4}, 16, v{t0+4}")
    A(f"v_mul_u32_u24 v{vw}, 3456, v{t0+2}")
    A(f"v_mul_u32_u24 v{t0+2}, 1152, v{t0+4}")
    A(f"v_add_u32 v{vw}, v{vw}, v{t0+2}")
    A(f"v_mul_u32_u24 v{t0+4}, 3, v{t0+4}")
    A(f"v_sub_u32 v{t0+3}, v{t0+3}, v{t0+4}")
    A(f"v_lshl_add_u32 v{vw}, v{t0+3}, 7, v{vw}")
    A("s_lshl_b32 s96, s96, 8")
    A(f"v_add_u32 v{vw}, s96, v{vw}")
    A(f"v_cmp_le_u32 vcc, {pw}, v1")
    A(f"v_cndmask_b32 v{vw}, v{vw}, v{t0+1}, vcc")
    A(f"v_cmp_le_u32 vcc, 576, v{t0}")
    A(f"v_cndmask_b32 v{vw}, v{vw}, v{t0+1}, vcc")

def a_prefetch_issue(A, vx, vw, s_kc, srd_x, srd_w, vd, two=False):
    A(f"s_lshl_b32 s96, s{s_kc}, 7")
    A(f"s_mul_i32 s97, s{s_kc}, 221184")
    A(f"buffer_load_dword v{vd}, v{vw}, s[{srd_w}:{srd_w+3}], s97 offen")
    A(f"buffer_load_dword v{vd+1}, v{vx}, s[{srd_x}:{srd_x+3}], s96 offen")
    if two:
        A(f"buffer_load_dword v{vd+2}, v{vx+1}, s[{srd_x}:{srd_x+3}], s96 offen")

XS = 14 * 1024
W1 = 32 * 1024
ST1 = XS + W1
HHS = 112 * 48
OB = 13 * HHS
V_KQ, V_VT, V_OW, V_NINF, V_OG, V_OL = 220, 221, 222, 225, 226, 228

def attn_setup(A, t0=4):
    a, b, c, d = t0, t0+1, t0+2, t0+3
    A(f"s_and_b32 s56, s{S_WAVE}, 3")
    A(f"s_lshr_b32 s57, s{S_WAVE}, 2")
    A("s_mul_i32 s57, s57, 3")
    A(f"v_lshlrev_b32 v{a}, 2, v3")
    A(f"v_sub_u32 v{a}, v2, v{a}")
    for tl in range(2):
        for r in range(4):
            dd = (16 if tl == 0 else 0) - r
            A(f"v_add_u32 v{b}, {dd}, v{a}" if dd >= 0 else f"v_subrev_u32 v{b}, {-dd}, v{a}")
            A(f"v_and_b32 v{b}, 0xfffffff1, v{b}")
            A(f"v_cmp_eq_u32 s[{64+2*(4*tl+r)}:{65+2*(4*tl+r)}], 0, v{b}")
    A("v_cmp_gt_u32 s[80:81], 2, v3")
    A("v_cmp_gt_u32 s[82:83], 3, v3")
    A("s_or_b32 s58, s32, s57")
    for r in range(4):
        A(f"s_cmp_eq_u32 s58, 0")
        A(f"s_cselect_b64 s[{84+2*r}:{85+2*r}], 0, s[{64+2*r}:{65+2*r}]")
    A(f"v_min_u32 v{b}, 2, v3")
    A(f"v_mul_u32_u24 v{c}, 48, v2")
    A(f"v_lshl_add_u32 v{c}, v{b}, 4, v{c}")
    A(f"s_mul_i32 s58, s56, {HHS}")
    A("s_mul_i32 s59, s57, 768")
    A("s_add_u32 s58, s58, s59")
    A(f"v_add_u32 v{V_KQ}, s58, v{c}")
    A(f"v_lshrrev_b32 v{b}, 2, v2")
    A(f"v_lshl_add_u32 v{b}, v3, 2, v{b}")
    A(f"v_mul_u32_u24 v{b}, 48, v{b}")
    A(f"v_and_b32 v{c}, 3, v2")
    A(f"v_lshl_add_u32 v{b}, v{c}, 3, v{b}")
    A(f"v_add_u32 v{V_VT}, s58, v{b}")
    A(f"v_mul_u32_u24 v{b}, 144, v2")
    A(f"v_lshl_add_u32 v{b}, v3, 3, v{b}")
    A("s_mul_i32 s58, s56, 36")
    A("s_mul_i32 s59, s57, 2304")
    A("s_add_u32 s58, s58, s59")
    A(f"s_add_u32 s58, s58, {OB}")
    A(f"v_add_u32 v{V_OW}, s58, v{b}")
    A(f"v_add_u32 v{V_OW+1}, 2304, v{V_OW}")
    A(f"v_add_u32 v{V_OW+2}, 4608, v{V_OW}")
    A(f"v_mov_b32 v{V_NINF}, 0xff800000")
    A("s_mul_i32 s58, s32, 110592")
    A("s_mul_i32 s59, s33, 2304")
    A("s_add_u32 s58, s58, s59")
    for rnd in range(2):
        A(f"v_add_u32 v{a}, {512*rnd}, v0")
        A(f"v_and_b32 v{b}, 15, v{a}")
        A(f"v_lshrrev_b32 v{c}, 4, v{a}")
        A(f"v_mul_u32_u24 v{d}, 7282, v{c}")
        A(f"v_lshrrev_b32 v{d}, 16, v{d}")
        A(f"v_mul_u32_u24 v{d+1}, 9, v{d}")
        A(f"v_sub_u32 v{c}, v{c}, v{d+1}")
        A(f"v_lshl_add_u32 v{d+1}, v{d}, 4, v{b}")
        A(f"v_mul_u32_u24 v{d+1}, 144, v{d+1}")
        A(f"v_lshl_add_u32 v{d+1}, v{c}, 4, v{d+1}")
        A(f"v_add_u32 v{V_OL+rnd}, {OB}, v{d+1}")
        A(f"v_mul_u32_u24 v{d}, 18432, v{d}")
        A(f"v_lshl_add_u32 v{d}, v{c}, 8, v{d}")
        A(f"v_lshl_add_u32 v{d}, v{b}, 4, v{d}")
        A(f"v_add_u32 v{V_OG+rnd}, s58, v{d}")
        if rnd == 1:
            A(f"v_mov_b32 v{b}, 0x{BIGOFF:x}")
            A(f"v_cmp_gt_u32 vcc, 864, v{a}")
            A(f"v_cndmask_b32 v{V_OG+rnd}, v{b}, v{V_OG+rnd}, vcc")

def gen_a1(A):
    n = "a1"
    A("s_and_b32 s36, s2, 7")
    A("s_lshr_b32 s37, s2, 3")
    A("s_lshr_b32 s38, s36, 2")
    A("s_and_b32 s39, s36, 3")
    A("s_mul_i32 s32, s38, 11")
    A("s_lshr_b32 s40, s37, 1")
    A("s_add_u32 s32, s32, s40")
    A("s_and_b32 s40, s37, 1")
    A("s_lshl_b32 s33, s39, 1")
    A("s_add_u32 s33, s33, s40")
    A("s_mul_i32 s34, s32, 96")
    make_srd(A, 44, P_X, SZ_T)
    make_srd(A, 48, P_W, 576 * 3456)
    if OPT.get("r1", 1):
        labr = A.newlabel("r1")
        A(f"s_cmp_ge_u32 s{S_WAVE}, 5")
        A(f"s_cbranch_scc1 {labr}")
        a_prefetch_setup(A, 232, 233, 4, 37, 32)
        a_prefetch_issue(A, 232, 233, S_WAVE, 44, 48, 240)
        A.label(labr)
    A(f"s_cmp_ge_u32 s{S_WAVE}, 4")
    A(f"s_cbranch_scc1 {n}_loader")
    a_prefetch_setup(A, 230, 231, 4, 37, 22)
    get_nonce_issue(A, "A")
    A("v_and_b32 v2, 15, v1")
    A("v_lshrrev_b32 v3, 4, v1")
    attn_setup(A)
    A("v_lshrrev_b32 v6, 2, v2")
    A("v_lshl_add_u32 v7, v3, 3, v6")
    A("v_lshlrev_b32 v7, 9, v7")
    A("v_and_b32 v8, 3, v2")
    A("v_lshl_add_u32 v7, v8, 3, v7")
    A(f"v_add_u32 v7, {XS}, v7")
    A("v_and_b32 v8, 1, v3")
    A("v_lshl_add_u32 v8, v8, 2, v6")
    A("v_lshrrev_b32 v9, 1, v2")
    A("v_xor_b32 v9, v9, v3")
    A("v_lshlrev_b32 v9, 4, v9")
    XA = 14
    A(f"v_lshl_add_u32 v{XA}, v2, 7, v9")
    A(f"v_xor_b32 v{XA+1}, 64, v{XA}")
    for w in range(3):
        A(f"s_cmp_eq_u32 s{S_WAVE}, {w}")
        A(f"s_cbranch_scc1 {n}_c{w}")
    for w in [3, 0, 1, 2]:
        A.label(f"{n}_c{w}")
        if w < 3:
            nts = [3*w, 3*w+1, 3*w+2]
            units = [(t, st) for t in nts for st in range(7)] + [(13, 2*w+1), (13, 2*w+2)]
            ants = nts + [13]
            sts = list(range(7))
        else:
            nts = [9, 10, 11, 12]
            units = [(t, st) for t in nts for st in range(1, 7)]
            ants = nts
            sts = list(range(1, 7))
        WA = 10
        for ai, t in enumerate(ants):
            A(f"v_xor_b32 v9, {t}, v8")
            A(f"v_lshl_add_u32 v{WA+ai}, v9, 5, v7")
        A("v_mul_u32_u24 v4, 48, v2")
        for ai, t in enumerate(ants):
            for p in range(2):
                va = 212 + 2*ai + p
                A("v_lshlrev_b32 v5, 2, v3")
                A(f"v_add_u32 v5, {16*t + 2*p}, v5")
                A("v_mul_u32_u24 v6, 3641, v5")
                A("v_lshrrev_b32 v6, 16, v6")
                A("v_mul_u32_u24 v6, 5340, v6")
                A(f"v_lshl_add_u32 v{va}, v5, 1, v6")
                A(f"v_add_u32 v{va}, v{va}, v4")
        ACC = 28
        acc = {u: ACC + 4*i for i, u in enumerate(units)}
        FR = [124, 168]
        def reads(ks, base):
            lst = []
            for ai, t in enumerate(ants):
                for h in range(2):
                    lst.append(f"ds_read_b64_tr_b16 {v(base+4*ai+2*h,2)}, v{WA+ai} offset:{ks*16384 + h*2048}")
            for bi, st in enumerate(sts):
                lst.append(f"ds_read_b128 {v(base+16+4*bi,4)}, v{XA+ks} offset:{st*2048}")
            return lst
        def mfmas(base, first):
            lst = []
            for (t, st) in units:
                ai = ants.index(t); bi = sts.index(st)
                c = "0" if first else v(acc[(t, st)], 4)
                lst.append(f"v_mfma_f32_16x16x32_bf16 {v(acc[(t,st)],4)}, {v(base+4*ai,4)}, {v(base+16+4*bi,4)}, {c}")
            return lst
        def interleave(mf, rd):
            i = 0
            for m in mf:
                A(m)
                if i < len(rd): A(rd[i]); i += 1
            while i < len(rd): A(rd[i]); i += 1
        for u in units:
            for r in range(0, 4, 2): A(f"v_mov_b64 {v(acc[u]+r,2)}, 0")
        A("s_mov_b32 s60, 0")
        A("s_mov_b32 s61, 0")
        A(f"s_mov_b32 s52, {ST1}")
        A(f"s_mov_b32 s53, {(-2*ST1) & 0xffffffff}")
        if OPT.get("r1", 1):
            A("s_waitcnt vmcnt(0)")
            A("s_barrier")
        A("s_barrier")
        stamp(A, 1)
        for r_ in reads(0, FR[0]): A(r_)
        A("s_waitcnt lgkmcnt(0)")
        A(f"s_branch {n}_q{w}")
        A.label(f"{n}_l{w}")
        A("s_barrier")
        interleave(mfmas(FR[1], False), reads(0, FR[0]))
        A("s_waitcnt lgkmcnt(0)")
        A.label(f"{n}_q{w}")
        labp = A.newlabel("lpf")
        A(f"s_cmp_lg_u32 s60, {w}")
        A(f"s_cbranch_scc1 {labp}")
        A(f"s_add_u32 s63, s60, {OPT.get('af', 7)}")
        A("s_cmp_gt_u32 s63, 8")
        A(f"s_cbranch_scc1 {labp}")
        a_prefetch_issue(A, 230, 231, 63, 44, 48, 240)
        A.label(labp)
        if w == 3 and OPT.get("hpf", 1):
            labh = A.newlabel("hpf")
            A("s_cmp_lg_u32 s60, 3")
            A(f"s_cbranch_scc1 {labh}")
            A("s_cmp_ge_u32 s2, 64")
            A(f"s_cbranch_scc1 {labh}")
            A("s_and_b32 s96, s2, 7")
            A("s_mul_i32 s96, s96, 18")
            A("s_lshr_b32 s97, s2, 3")
            A("s_add_u32 s96, s96, s97")
            A("s_add_u32 s96, s96, 10")
            A("s_lshl_b32 s96, s96, 14")
            A(f"s_add_u32 s92, s{P_H}, s96")
            A(f"s_addc_u32 s93, s{P_H+1}, 0")
            A("s_and_b32 s93, s93, 0xffff")
            A("s_mov_b32 s94, 16384")
            A("s_mov_b32 s95, 0x00020000")
            A("v_lshlrev_b32 v234, 7, v1")
            A("buffer_load_dword v242, v234, s[92:95], 0 offen")
            A("v_add_u32 v234, 8192, v234")
            A("buffer_load_dword v243, v234, s[92:95], 0 offen")
            A.label(labh)
        A("s_add_u32 s61, s61, 1")
        A("s_cmp_eq_u32 s61, 3")
        A("s_cselect_b32 s62, s53, s52")
        A("s_cselect_b32 s61, 0, s61")
        interleave(mfmas(FR[0], False), reads(1, FR[1]))
        for r in range(6): A(f"v_add_u32 v{10+r}, s62, v{10+r}")
        A("s_add_u32 s60, s60, 1")
        A("s_cmp_lt_u32 s60, 9")
        A("s_waitcnt lgkmcnt(0)")
        A(f"s_cbranch_scc1 {n}_l{w}")
        A("s_barrier")
        last = mfmas(FR[1], False)
        pend = []
        k = 0
        def flush_one(u):
            nonlocal k
            (t, st) = u
            ai = ants.index(t); a0 = acc[(t, st)]
            tmp = 124 + 2*(k % 8); k += 1
            A(f"v_cvt_pk_bf16_f32 v{tmp}, v{a0}, v{a0+1}")
            A(f"v_cvt_pk_bf16_f32 v{tmp+1}, v{a0+2}, v{a0+3}")
            A(f"ds_write_b32 v{212+2*ai}, v{tmp} offset:{768*st}")
            A(f"ds_write_b32 v{212+2*ai+1}, v{tmp+1} offset:{768*st}")
        for m, u in zip(last, units):
            A(m)
            pend.append(u)
            if len(pend) > 3: flush_one(pend.pop(0))
        for u in pend: flush_one(u)
        stamp(A, 4)
        A(f"s_branch {n}_attn")
    A.label(f"{n}_loader")
    A(f"s_sub_u32 s35, s{S_WAVE}, 4")
    A("v_lshrrev_b32 v2, 3, v1")
    A("v_and_b32 v3, 7, v1")
    A("v_lshrrev_b32 v4, 4, v1")
    A("v_mul_u32_u24 v5, 1152, v2")
    A("v_xor_b32 v6, v3, v4")
    A("v_lshl_add_u32 v10, v6, 4, v5")
    A("v_xor_b32 v11, 64, v10")
    A("s_lshl_b32 s36, s35, 2")
    A("s_cmp_eq_u32 s35, 3")
    A("s_cselect_b32 s36, 11, s36")
    A("s_cselect_b64 s[54:55], -1, 0")
    A("v_cndmask_b32 v16, v10, v11, s[54:55]")
    A("v_cndmask_b32 v17, v11, v10, s[54:55]")
    A("s_sub_u32 s37, s34, 16")
    A("s_mul_i32 s37, s37, 1152")
    A("s_mul_i32 s38, s36, 9216")
    A("s_add_u32 s37, s37, s38")
    A("s_lshl_b32 s38, s36, 10")
    WV = 12
    A("v_lshrrev_b32 v2, 5, v1")
    A("v_and_b32 v3, 31, v1")
    A("v_mul_u32_u24 v4, 3456, v2")
    A("s_mul_i32 s40, s33, 144")
    A("v_add_u32 v4, s40, v4")
    A(f"v_mov_b32 v9, 0x{BIGOFF:x}")
    for var in range(4):
        j1, j4 = var & 1, var >> 1
        A(f"v_add_u32 v5, {2*j1+4*j4}, v2")
        A("v_lshlrev_b32 v5, 1, v5")
        A("v_xor_b32 v5, v5, v3")
        A("v_mov_b32 v6, 1152")
        A("v_mov_b32 v7, 2160")
        A("v_cmp_le_u32 vcc, 9, v5")
        A("v_cndmask_b32 v6, v6, v7, vcc")
        A("v_mov_b32 v7, -288")
        A("v_cmp_le_u32 vcc, 18, v5")
        A("v_cndmask_b32 v6, v6, v7, vcc")
        A("v_lshl_add_u32 v6, v5, 4, v6")
        A(f"v_add_u32 v{WV+var}, v4, v6")
        A("v_cmp_le_u32 vcc, 27, v5")
        A(f"v_cndmask_b32 v{WV+var}, v{WV+var}, v9, vcc")
    A("s_mul_i32 s40, s35, 55296")
    A("s_lshl_b32 s41, s35, 13")
    A(f"s_add_u32 s41, s41, {XS}")
    def issue_block():
        A(f"s_mul_i32 s62, s61, {ST1}")
        A("s_add_u32 s63, s38, s62")
        A("s_add_u32 s62, s41, s62")
        for j in range(4):
            lab = None
            if j == 3:
                lab = A.newlabel(f"{n}_sk")
                A("s_cmp_ge_u32 s35, 2")
                A(f"s_cbranch_scc1 {lab}")
            A(f"s_add_u32 m0, s63, {1024*j}")
            A(f"s_add_u32 s52, s37, {9216*j}")
            if j < 2:
                A("s_cmp_lt_i32 s52, 0")
                A(f"s_cselect_b32 s52, 0x{BIGOFF:x}, s52")
            A(f"buffer_load_dwordx4 v{16+(j&1)}, s[44:47], s52 offen lds")
            if lab: A.label(lab)
        for j in range(8):
            var = (j & 1) + 2 * (j >> 2)
            A(f"s_add_u32 m0, s62, {1024*j}")
            A(f"s_add_u32 s52, s40, {6912*j}")
            A(f"buffer_load_dwordx4 v{WV+var}, s[48:51], s52 offen lds")
        A("s_add_u32 s37, s37, 128")
        A("s_add_u32 s40, s40, 221184")
        A("s_add_u32 s61, s61, 1")
        A("s_cmp_eq_u32 s61, 3")
        A("s_cselect_b32 s61, 0, s61")
    A("s_mov_b32 s61, 0")
    if OPT.get("r1", 1):
        A("v_and_b32 v2, 15, v1")
        A("v_lshrrev_b32 v3, 4, v1")
        attn_setup(A)
        A("s_waitcnt vmcnt(0)")
        A("s_barrier")
        stamp(A, 1)
        A("s_mov_b32 s60, 0")
        A.label(f"{n}_lp")
        issue_block()
        A("s_add_u32 s60, s60, 1")
        A("s_cmp_lt_u32 s60, 2")
        A(f"s_cbranch_scc1 {n}_lp")
        A("s_waitcnt vmcnt(11)")
        stamp(A, 2)
        A("s_barrier")
        issue_block()
    else:
        issue_block()
        stamp(A, 1)
        A("v_and_b32 v2, 15, v1")
        A("v_lshrrev_b32 v3, 4, v1")
        attn_setup(A)
        A("s_waitcnt vmcnt(0)")
        stamp(A, 2)
        A("s_barrier")
        A("s_mov_b32 s60, 0")
        A.label(f"{n}_lp")
        issue_block()
        A("s_add_u32 s60, s60, 1")
        A("s_cmp_lt_u32 s60, 2")
        A(f"s_cbranch_scc1 {n}_lp")
    stamp(A, 3)
    A("s_mov_b32 s60, 0")
    A.label(f"{n}_ll")
    A("s_waitcnt vmcnt(11)")
    A("s_barrier")
    issue_block()
    A("s_add_u32 s60, s60, 1")
    A("s_cmp_lt_u32 s60, 6")
    A(f"s_cbranch_scc1 {n}_ll")
    A("s_waitcnt vmcnt(11)")
    A("s_barrier")
    A("s_waitcnt vmcnt(0)")
    A("s_barrier")
    A("s_barrier")
    A.label(f"{n}_attn")
    A("s_waitcnt lgkmcnt(0)")
    A("s_barrier")
    stamp(A, 5)
    cst = struct.unpack("<I", struct.pack("<f", (18 ** -0.5) * math.log2(math.e)))[0]
    A(f"s_mov_b32 s42, 0x{cst:08x}")
    B = 24
    def regs(b): return B + 40 * b
    for b in range(3):
        R = regs(b)
        A(f"ds_read_b128 {v(R,4)}, v{V_KQ} offset:{8*HHS + 768*(b+1)}")
        A(f"ds_read_b128 {v(R+4,4)}, v{V_KQ} offset:{768*b}")
        A(f"ds_read_b128 {v(R+8,4)}, v{V_KQ} offset:{768*(b+1)}")
    for b in range(3):
        R = regs(b)
        A(f"ds_read_b64_tr_b16 {v(R+12,2)}, v{V_VT} offset:{4*HHS + 768*b}")
        A(f"ds_read_b64_tr_b16 {v(R+14,2)}, v{V_VT} offset:{4*HHS + 768*(b+1)}")
        A(f"ds_read_b64_tr_b16 {v(R+16,2)}, v{V_VT} offset:{4*HHS + 768*b + 32}")
        A(f"ds_read_b64_tr_b16 {v(R+18,2)}, v{V_VT} offset:{4*HHS + 768*(b+1) + 32}")
    for b in range(3):
        R = regs(b)
        A(f"s_waitcnt lgkmcnt({12 + 3*(2-b)})" if 12 + 3*(2-b) <= 15 else "s_waitcnt lgkmcnt(15)")
        A(f"v_cndmask_b32 v{R}, 0, v{R}, s[82:83]")
        for r in range(1, 4):
            A(f"v_cndmask_b32 v{R+r}, 0, v{R+r}, s[80:81]")
        A(f"v_mfma_f32_16x16x32_bf16 {v(R+20,4)}, {v(R+4,4)}, {v(R,4)}, 0")
        A(f"v_mfma_f32_16x16x32_bf16 {v(R+24,4)}, {v(R+8,4)}, {v(R,4)}, 0")
    for b in range(3):
        R = regs(b); S = R + 20
        for e in range(8):
            m = (84 + 2*e) if (b == 0 and e < 4) else (64 + 2*e)
            A(f"v_cndmask_b32 v{S+e}, v{V_NINF}, v{S+e}, s[{m}:{m+1}]")
        M = R + 28
        A(f"v_max3_f32 v{M}, v{S}, v{S+1}, v{S+2}")
        A(f"v_max3_f32 v{M}, v{M}, v{S+3}, v{S+4}")
        A(f"v_max3_f32 v{M}, v{M}, v{S+5}, v{S+6}")
        A(f"v_max_f32 v{M}, v{M}, v{S+7}")
    def xlane(op, b_regs):
        for kind in ("16", "32"):
            for (M, T) in b_regs: A(f"v_mov_b32 v{T}, v{M}")
            for (M, T) in b_regs: A(f"v_permlane{kind}_swap_b32 v{M}, v{T}")
            for (M, T) in b_regs: A(f"{op} v{M}, v{M}, v{T}")
    xlane("v_max_f32", [(regs(b)+28, regs(b)+29) for b in range(3)])
    for b in range(3):
        R = regs(b); M = R + 28
        A(f"v_mul_f32 v{M}, s42, v{M}")
    for b in range(3):
        R = regs(b); S = R + 20; M = R + 28
        for e in range(8): A(f"v_fma_f32 v{S+e}, v{S+e}, s42, -v{M}")
        for e in range(8): A(f"v_exp_f32 v{S+e}, v{S+e}")
    for b in range(3):
        R = regs(b); S = R + 20; M = R + 30
        A(f"v_add_f32 v{M}, v{S}, v{S+1}")
        A(f"v_add_f32 v{M+1}, v{S+2}, v{S+3}")
        A(f"v_add_f32 v{M}, v{M}, v{S+4}")
        A(f"v_add_f32 v{M+1}, v{M+1}, v{S+5}")
        A(f"v_add_f32 v{M}, v{M}, v{S+6}")
        A(f"v_add_f32 v{M+1}, v{M+1}, v{S+7}")
        A(f"v_add_f32 v{M}, v{M}, v{M+1}")
    xlane("v_add_f32", [(regs(b)+30, regs(b)+31) for b in range(3)])
    for b in range(3):
        A(f"v_rcp_f32 v{regs(b)+30}, v{regs(b)+30}")
    A("s_waitcnt lgkmcnt(0)")
    for b in range(3):
        R = regs(b); S = R + 20; M = R + 30
        for e in range(8): A(f"v_mul_f32 v{S+e}, v{S+e}, v{M}")
        for q in range(4): A(f"v_cvt_pk_bf16_f32 v{R+q}, v{S+2*q}, v{S+2*q+1}")
        A(f"v_mfma_f32_16x16x32_bf16 {v(R+32,4)}, {v(R+12,4)}, {v(R,4)}, 0")
        A(f"v_mfma_f32_16x16x32_bf16 {v(R+36,4)}, {v(R+16,4)}, {v(R,4)}, 0")
    for b in range(3):
        R = regs(b)
        A(f"v_cvt_pk_bf16_f32 v{R+4}, v{R+32}, v{R+33}")
        A(f"v_cvt_pk_bf16_f32 v{R+5}, v{R+34}, v{R+35}")
        A(f"v_cvt_pk_bf16_f32 v{R+6}, v{R+36}, v{R+37}")
        A(f"ds_write2_b32 v{V_OW+b}, v{R+4}, v{R+5} offset0:0 offset1:1")
    A("s_mov_b64 exec, 0xffff")
    for b in range(3):
        A(f"ds_write_b32 v{V_OW+b}, v{regs(b)+6} offset:32")
    A("s_mov_b64 exec, -1")
    make_srd(A, 44, P_WS, SZ_T, WS_OF)
    A("s_waitcnt lgkmcnt(0)")
    A("s_barrier")
    stamp(A, 6)
    for rnd in range(2):
        A(f"ds_read_b128 {v(20+4*rnd,4)}, v{V_OL+rnd}")
    for rnd in range(2):
        A(f"s_waitcnt lgkmcnt({1-rnd})")
        A(f"buffer_store_dwordx4 {v(20+4*rnd,4)}, v{V_OG+rnd}, s[44:47], 0 offen sc1")
    A("s_waitcnt vmcnt(0)")
    A("s_barrier")
    lab = A.newlabel("a1f")
    A(f"s_cmp_lg_u32 s{S_WAVE}, 0")
    A(f"s_cbranch_scc1 {lab}")
    nonce_resolve(A, "A")
    A("s_lshl_b32 s36, s32, 8")
    A("s_lshl_b32 s37, s33, 2")
    A("s_add_u32 s36, s36, s37")
    flag_store(A, "A", 36)
    A.label(lab)
    stamp(A, 7)

HC = 4160
URB = 4 * HC
WB = URB + 4608
XCH = 4 * WB
ZS = 4160

def b2_common(A, s_grp):
    A(f"s_and_b32 s32, s{S_WAVE}, 3")
    A(f"s_lshr_b32 s33, s{S_WAVE}, 2")
    A(f"s_lshl_b32 s34, s{s_grp}, 2")
    A("s_add_u32 s34, s34, s32")
    A("s_lshl_b32 s35, s34, 12")
    A(f"s_mul_i32 s36, s32, {WB}")
    make_srd(A, 44, P_H, 4096, add_s=35)
    A("s_lshl_b32 s37, s34, 1")
    A("s_and_b32 s38, s37, 0xfffffffc")
    A(f"s_load_dword s39, s[{P_D}:{P_D+1}], s38")

def b2_h_loads(A, HL, nits=2):
    a = HL + 12 * nits + 2
    A(f"v_lshlrev_b32 v{a}, 4, v1")
    if nits == 2:
        A("s_lshl_b32 s40, s33, 11")
        A(f"v_add_u32 v{a}, s40, v{a}")
    A(f"v_add_u32 v{a+1}, 4, v{a}")
    A(f"v_add_u32 v{a+2}, 8, v{a}")
    for it in range(nits):
        A(f"buffer_load_dwordx4 {v(HL+12*it,4)}, v{a}, s[44:47], 0 offen offset:{1024*it}")
        A(f"buffer_load_dwordx4 {v(HL+12*it+4,4)}, v{a+1}, s[44:47], 0 offen offset:{1024*it}")
        A(f"buffer_load_dwordx4 {v(HL+12*it+8,4)}, v{a+2}, s[44:47], 0 offen offset:{1024*it}")
    A(f"v_mov_b32 v{a+3}, 0")
    A(f"buffer_load_dwordx2 {v(HL+12*nits,2)}, v{a+3}, s[44:47], 0 offen")

def b2_h_stage(A, HL, T, nits=2):
    a = HL + 12 * nits + 2
    A(f"v_add_u32 v{a+1}, s36, v{a}")
    for it in range(nits):
        b = HL + 12 * it
        for i in range(4): A(f"v_alignbit_b32 v{T+i}, v{b+4+i}, v{b+i}, 16")
        for i in range(4): A(f"v_alignbit_b32 v{T+4+i}, v{b+8+i}, v{b+4+i}, 16")
        off = 32 + 1024 * it
        A(f"ds_write_b128 v{a+1}, {v(b,4)} offset:{off}")
        A(f"ds_write_b128 v{a+1}, {v(T,4)} offset:{off+HC}")
        A(f"ds_write_b128 v{a+1}, {v(b+4,4)} offset:{off+2*HC}")
        A(f"ds_write_b128 v{a+1}, {v(T+4,4)} offset:{off+3*HC}")
    d0, d1 = HL + 12*nits, HL + 12*nits + 1
    A(f"v_lshlrev_b32 v{T+8}, 16, v{d0}")
    A(f"v_alignbit_b32 v{T+9}, v{d1}, v{d0}, 16")
    Z = T + 10
    for r in range(0, 8, 2): A(f"v_mov_b64 {v(Z+r,2)}, 0")
    A("v_cmp_eq_u32 s[60:61], 1, v1")
    A("v_cmp_eq_u32 s[62:63], 2, v1")
    A("v_cmp_eq_u32 s[64:65], 3, v1")
    A(f"v_cndmask_b32 v{Z+7}, v{Z+7}, v{T+8}, s[60:61]")
    A(f"v_cndmask_b32 v{Z+7}, v{Z+7}, v{d0}, s[62:63]")
    A(f"v_cndmask_b32 v{Z+7}, v{Z+7}, v{T+9}, s[64:65]")
    A(f"v_cndmask_b32 v{Z+6}, v{Z+6}, v{T+8}, s[64:65]")
    A(f"v_mul_u32_u24 v{a+2}, {HC}, v1")
    A(f"v_add_u32 v{a+2}, s36, v{a+2}")
    A("s_mov_b64 exec, 0xf")
    A(f"ds_write_b128 v{a+2}, {v(Z,4)}")
    A(f"ds_write_b128 v{a+2}, {v(Z+4,4)} offset:16")
    A("s_mov_b64 exec, 0xffffffff")
    A(f"v_lshlrev_b32 v{a+2}, 4, v1")
    A(f"v_add_u32 v{a+2}, s36, v{a+2}")
    A(f"ds_write_b128 v{a+2}, {v(Z,4)} offset:{URB+4096}")
    A("s_mov_b64 exec, -1")

def b2_main(A, s_grp, sb, resolved):
    make_srd(A, 48, P_WS, 4096, WS_UR, add_s=35)
    make_srd(A, 52, P_Q, SZ_T)
    make_srd(A, 56, P_OUT, 2048 * 2304)
    A("v_and_b32 v3, 15, v1")
    A("v_lshrrev_b32 v4, 4, v1")
    A("v_lshlrev_b32 v5, 4, v1")
    A("s_lshl_b32 s40, s33, 11")
    A("v_add_u32 v5, s40, v5")
    A("v_add_u32 v10, s36, v5")
    A("v_lshlrev_b32 v9, 5, v3")
    A("v_lshl_add_u32 v9, v4, 3, v9")
    A(f"s_lshl_b32 s41, s{S_WAVE}, 8")
    A("v_add_u32 v8, s41, v1")
    A("s_movk_i32 s42, 1152")
    A("v_mul_lo_u32 v8, v8, s42")
    A(f"s_lshl_b32 s43, s{s_grp}, 3")
    A("v_add_u32 v8, s43, v8")
    A("v_add_u32 v12, 1, v3")
    A("v_and_b32 v13, 3, v12")
    A("v_lshrrev_b32 v12, 2, v12")
    A(f"v_mul_u32_u24 v13, {HC}, v13")
    A("v_lshl_add_u32 v13, v4, 4, v13")
    A("v_lshl_add_u32 v13, v12, 3, v13")
    A("s_lshl_b32 s41, s33, 8")
    A("s_add_u32 s41, s41, s36")
    A("v_add_u32 v13, s41, v13")
    A("v_lshlrev_b32 v14, 4, v4")
    A("v_lshlrev_b32 v15, 5, v3")
    A("v_sub_u32 v14, v14, v15")
    A(f"v_add_u32 v14, {URB+480}, v14")
    A("v_add_u32 v14, s41, v14")
    stamp(A, sb + 0)
    lab = A.newlabel("b2w")
    A(f"s_cmp_lg_u32 s{S_WAVE}, 0")
    A(f"s_cbranch_scc1 {lab}")
    if not resolved:
        A("s_waitcnt vmcnt(0)")
        nonce_resolve(A, "B")
    A(f"s_lshr_b32 s41, s{s_grp}, 4")
    A("s_lshl_b32 s41, s41, 8")
    flag_poll(A, "B", 41)
    A.label(lab)
    A("s_barrier")
    stamp(A, sb + 1)
    U = 68
    for it in range(2):
        A(f"buffer_load_dwordx4 {v(U+4*it,4)}, v5, s[48:51], 0 offen offset:{1024*it} sc1")
    Q = 84
    A(f"s_lshl_b32 s41, s{S_WAVE}, 12")
    A("v_lshlrev_b32 v6, 4, v1")
    A(f"v_add_u32 v6, {XCH}, v6")
    A("v_add_u32 v7, s41, v6")
    A(f"s_xor_b32 s42, s{S_WAVE}, 4")
    A("s_lshl_b32 s42, s42, 12")
    A("v_add_u32 v6, s42, v6")
    A(f"v_sub_u32 v11, {URB+504}, v9")
    A("s_lshl_b32 s41, s33, 11")
    A("s_sub_u32 s42, s36, s41")
    A("v_add_u32 v11, s42, v11")
    A(f"s_mul_i32 s42, s32, {ZS}")
    A("s_add_u32 s42, s42, s41")
    A("v_add_u32 v9, s42, v9")
    A("s_waitcnt vmcnt(0)")
    for it in range(2):
        A(f"ds_write_b128 v10, {v(U+4*it,4)} offset:{URB+1024*it}")
    for it in range(4): A(f"s_mov_b32 s{60+it}, {64*1152*it}")
    A("s_waitcnt lgkmcnt(0)")
    A("s_barrier")
    stamp(A, sb + 2)
    ACC = 208
    FA = [104, 16]
    def frag_reads(rho, base):
        lst = []
        for b in range(8):
            lst.append(f"ds_read_b128 {v(base+32+4*b,4)}, v14 offset:{64*rho+512*(7-b)}")
        aa_l = []
        for aa in range(8):
            aa_l.append(f"ds_read_b64 {v(base+4*aa,2)}, v13 offset:{512*aa+64*rho}")
            aa_l.append(f"ds_read_b64 {v(base+4*aa+2,2)}, v13 offset:{512*aa+64*rho+8}")
        return aa_l[:2] + lst + aa_l[2:]
    for r_ in frag_reads(0, FA[0]): A(r_)
    UU = 88
    UU = 92
    for rho in range(4):
        base = FA[rho & 1]
        A("s_waitcnt lgkmcnt(0)")
        rd = frag_reads(rho + 1, FA[(rho + 1) & 1]) if rho < 3 else [f"ds_read_b64 {v(UU+2*c,2)}, v11 offset:{512*(7-c)}" for c in range(4)]
        i = 0
        A(f"buffer_load_dwordx2 {v(Q+2*rho,2)}, v8, s[52:55], s{60+rho} offen")
        for aa in range(8):
            for b in range(8 - aa):
                c = aa + b
                src = "0" if (rho == 0 and aa == 0) else v(ACC+4*c, 4)
                A(f"v_mfma_f32_16x16x32_bf16 {v(ACC+4*c,4)}, {v(base+4*aa,4)}, {v(base+32+4*b,4)}, {src}")
                if i < len(rd): A(rd[i]); i += 1
    stamp(A, sb + 3)
    l1 = A.newlabel("b2h1"); l2 = A.newlabel("b2x")
    KP = 192
    A("s_cmp_eq_u32 s33, 1")
    A(f"s_cbranch_scc1 {l1}")
    for c in range(4): A(f"ds_write_b128 v7, {v(ACC+16+4*c,4)} offset:{1024*c}")
    for c in range(8): A(f"v_mov_b64 {v(KP+2*c,2)}, {v(ACC+2*c,2)}")
    A(f"s_branch {l2}")
    A.label(l1)
    for c in range(4): A(f"ds_write_b128 v7, {v(ACC+4*c,4)} offset:{1024*c}")
    for c in range(8): A(f"v_mov_b64 {v(KP+2*c,2)}, {v(ACC+16+2*c,2)}")
    A.label(l2)
    A("s_and_b32 s37, s37, 2")
    A("s_lshl_b32 s37, s37, 3")
    A("s_waitcnt lgkmcnt(0)")
    A("s_lshr_b32 s39, s39, s37")
    A("s_lshl_b32 s39, s39, 16")
    TT = 16
    for c in range(4):
        A(f"v_and_b32 v{TT+4*c+0}, 0xffff0000, v{UU+2*c+1}")
        A(f"v_lshlrev_b32 v{TT+4*c+1}, 16, v{UU+2*c+1}")
        A(f"v_and_b32 v{TT+4*c+2}, 0xffff0000, v{UU+2*c}")
        A(f"v_lshlrev_b32 v{TT+4*c+3}, 16, v{UU+2*c}")
    for e in range(16): A(f"v_fma_f32 v{KP+e}, v{TT+e}, s39, v{KP+e}")
    A("s_barrier")
    for c in range(4): A(f"ds_read_b128 {v(48+4*c,4)}, v6 offset:{1024*c}")
    for c in range(4):
        A(f"s_waitcnt lgkmcnt({3-c})")
        for r in range(4): A(f"v_add_f32 v{KP+4*c+r}, v{KP+4*c+r}, v{48+4*c+r}")
        A(f"v_cvt_pk_bf16_f32 v{64+2*c}, v{KP+4*c}, v{KP+4*c+1}")
        A(f"v_cvt_pk_bf16_f32 v{65+2*c}, v{KP+4*c+2}, v{KP+4*c+3}")
        A(f"ds_write_b64 v9, {v(64+2*c,2)} offset:{512*c}")
    A("s_waitcnt vmcnt(0)")
    QF = 32
    for it in range(4):
        A(f"v_lshlrev_b32 v{QF+4*it+0}, 16, v{Q+2*it}")
        A(f"v_and_b32 v{QF+4*it+1}, 0xffff0000, v{Q+2*it}")
        A(f"v_lshlrev_b32 v{QF+4*it+2}, 16, v{Q+2*it+1}")
        A(f"v_and_b32 v{QF+4*it+3}, 0xffff0000, v{Q+2*it+1}")
    A("v_lshrrev_b32 v12, 2, v3")
    A(f"v_mul_u32_u24 v12, {ZS}, v12")
    A("v_and_b32 v13, 3, v3")
    A("v_lshl_add_u32 v12, v13, 3, v12")
    A("v_lshl_add_u32 v12, v4, 5, v12")
    A(f"s_lshl_b32 s41, s{S_WAVE}, 9")
    A("v_add_u32 v12, s41, v12")
    A(f"s_lshl_b32 s41, s{S_WAVE}, 8")
    A("v_add_u32 v13, s41, v1")
    A("s_movk_i32 s42, 2304")
    A(f"s_lshl_b32 s43, s{s_grp}, 3")
    A("s_add_u32 s43, s43, 1152")
    A("v_mul_lo_u32 v13, v13, s42")
    A("v_add_u32 v13, s43, v13")
    for it in range(4): A(f"s_mov_b32 s{60+it}, {64*2304*it}")
    A("s_waitcnt lgkmcnt(0)")
    A("s_barrier")
    for it in range(4):
        A(f"ds_read_b64_tr_b16 {v(16+2*it,2)}, v12 offset:{128*it}")
    for it in range(4):
        A(f"s_waitcnt lgkmcnt({3-it})")
        t = 48 + 4 * it
        A(f"v_lshlrev_b32 v{t+0}, 16, v{16+2*it}")
        A(f"v_and_b32 v{t+1}, 0xffff0000, v{16+2*it}")
        A(f"v_lshlrev_b32 v{t+2}, 16, v{16+2*it+1}")
        A(f"v_and_b32 v{t+3}, 0xffff0000, v{16+2*it+1}")
        for r in range(4): A(f"v_mul_f32 v{t+r}, v{t+r}, v{QF+4*it+r}")
        A(f"v_cvt_pk_bf16_f32 v{64+2*it}, v{t}, v{t+1}")
        A(f"v_cvt_pk_bf16_f32 v{65+2*it}, v{t+2}, v{t+3}")
        A(f"buffer_store_dwordx2 {v(64+2*it,2)}, v13, s[56:59], s{60+it} offen" + (" sc1" if OPT.get("b2sc1") else ""))
    stamp(A, sb + 4)

def b1_addr(A, s_tile, vt):
    A(f"s_mul_hi_u32 s66, s{s_tile}, 0x1c71c71d")
    A("s_mul_i32 s67, s66, 9")
    A(f"s_sub_u32 s67, s{s_tile}, s67")
    A(f"v_and_b32 v2, 7, v{vt}")
    A(f"v_lshrrev_b32 v3, 3, v{vt}")
    A("s_lshl_b32 s40, s66, 8")
    A("v_lshl_add_u32 v4, v3, 3, s40")
    A("s_lshl_b32 s41, s67, 7")
    A("v_lshl_add_u32 v5, v2, 4, s41")
    A("s_movk_i32 s42, 1152")
    A("v_mad_u32_u24 v6, v4, s42, v5")
    A("v_add_u32 v7, 4608, v6")

def gen_b1_kv(A, s_tile):
    A.comment("===== B1 kv (waves 0-3) =====")
    b1_addr(A, s_tile, 0)
    A("v_subrev_u32 v8, 3456, v6")
    A("v_subrev_u32 v9, 2304, v6")
    A("v_subrev_u32 v10, 1152, v6")
    make_srd(A, 48, P_K, SZ_T)
    make_srd(A, 52, P_V, SZ_T)
    make_srd(A, 56, P_SH, 576 * 8)
    KR, VR, SH, W = 16, 60, 92, 108
    KF, VF, ACC, OUT = 140, 162, 178, 194
    for j, vo in enumerate((8, 9, 10)):
        A(f"buffer_load_dwordx4 {v(KR+4*j,4)}, v{vo}, s[48:51], 0 offen")
    for i in range(8):
        A(f"buffer_load_dwordx4 {v(KR+4*(3+i),4)}, v{6 if i < 4 else 7}, s[48:51], 0 offen offset:{1152*(i%4)}")
    for i in range(8):
        A(f"buffer_load_dwordx4 {v(VR+4*i,4)}, v{6 if i < 4 else 7}, s[52:55], 0 offen offset:{1152*(i%4)}")
    A("s_lshl_b32 s43, s67, 9")
    A("v_lshl_add_u32 v11, v2, 6, s43")
    for i in range(4):
        A(f"buffer_load_dwordx4 {v(SH+4*i,4)}, v11, s[56:59], 0 offen offset:{16*i}")
    stamp(A, 2)
    make_srd(A, 52+8, P_WS, SZ_T, WS_UR)
    A("s_lshl_b32 s43, s67, 18")
    A("v_lshl_add_u32 v12, v2, 15, s43")
    A("v_lshlrev_b32 v14, 1, v4")
    A("v_sub_u32 v12, v12, v14")
    A("v_add_u32 v12, 4080, v12")
    for ch in range(8): A(f"s_mov_b32 s{68+ch}, {ch*4096}")
    A("s_waitcnt vmcnt(0)")
    A("s_barrier")
    stamp(A, 3)
    for ch in range(8):
        A(f"v_lshlrev_b32 v{W+0*8+ch}, 16, v{SH+2*ch}")
        A(f"v_and_b32 v{W+1*8+ch}, 0xffff0000, v{SH+2*ch}")
        A(f"v_lshlrev_b32 v{W+2*8+ch}, 16, v{SH+2*ch+1}")
        A(f"v_and_b32 v{W+3*8+ch}, 0xffff0000, v{SH+2*ch+1}")
    for m in range(4):
        for j in range(11):
            A(f"v_lshlrev_b32 v{KF+2*j}, 16, v{KR+4*j+m}")
            A(f"v_and_b32 v{KF+2*j+1}, 0xffff0000, v{KR+4*j+m}")
        for i in range(8):
            A(f"v_lshlrev_b32 v{VF+2*i}, 16, v{VR+4*i+m}")
            A(f"v_and_b32 v{VF+2*i+1}, 0xffff0000, v{VR+4*i+m}")
        for i in range(8):
            A(f"v_pk_mul_f32 {v(ACC+2*i,2)}, {v(W+3*8+2*m,2)}, {v(KF+2*i,2)}")
        for t in (2, 1, 0):
            for i in range(8):
                A(f"v_pk_fma_f32 {v(ACC+2*i,2)}, {v(W+t*8+2*m,2)}, {v(KF+2*(i+3-t),2)}, {v(ACC+2*i,2)}")
        for i in range(8):
            A(f"v_pk_mul_f32 {v(ACC+2*i,2)}, {v(ACC+2*i,2)}, {v(VF+2*i,2)}")
        o = OUT + 8 * (m & 1)
        for h in range(2):
            for q in range(4):
                A(f"v_cvt_pk_bf16_f32 v{o+4*h+q}, v{ACC+2*(7-2*q)+h}, v{ACC+2*(6-2*q)+h}")
        for h in range(2):
            A(f"buffer_store_dwordx4 {v(o+4*h,4)}, v12, s[60:63], s{68+2*m+h} offen sc1")
    stamp(A, 4)

def tlb_warm(A):
    items = []
    for p, size in ((P_K, SZ_T), (P_V, SZ_T), (P_Q, SZ_T), (P_H, SZ_T), (P_WO, 576*1152), (P_OUT, 2048*2304), (P_SH, 64), (P_D, 64)):
        offs = list(range(0, size, 2 << 20))
        offs.append(size - 128 if size > 128 else 0)
        for o in sorted(set(offs)): items.append((p, o))
    for o in (0, (2 << 20) + (1 << 20), (4 << 20), (6 << 20) + (1 << 20), (8 << 20), (10 << 20) + (1 << 20), (12 << 20)):
        items.append((P_WS, o))
    assert len(items) <= 64
    A(f"v_mov_b32 v20, s{P_WS}")
    A(f"v_mov_b32 v21, s{P_WS+1}")
    for i, (p, o) in enumerate(items):
        A(f"s_add_u32 s96, s{p}, {o}")
        A(f"s_addc_u32 s97, s{p+1}, 0")
        A(f"v_writelane_b32 v20, s96, {i}")
        A(f"v_writelane_b32 v21, s97, {i}")
    A("global_load_dword v245, v[20:21], off")

def b_prefetch(A):
    make_srd(A, 48, P_X, SZ_T)
    make_srd(A, 52, P_W, 576 * 3456)
    lab = A.newlabel("bpf"); lab1 = A.newlabel("bpf1")
    if OPT.get("r1", 1):
        A(f"s_cmp_ge_u32 s{S_WAVE}, 5")
        A(f"s_cbranch_scc1 {lab1}")
        A("s_lshr_b32 s40, s2, 3")
        a_prefetch_setup(A, 10, 12, 4, 40, 32)
        a_prefetch_issue(A, 10, 12, S_WAVE, 48, 52, 240)
        A(f"s_branch {lab}")
        A.label(lab1)
        A(f"s_cmp_ge_u32 s{S_WAVE}, {OPT.get('af', 7)}")
        A(f"s_cbranch_scc1 {lab}")
        A("s_lshr_b32 s40, s91, 3")
        a_prefetch_setup(A, 10, 12, 4, 40, 10)
        a_prefetch_issue(A, 10, 12, S_WAVE, 48, 52, 240, two=True)
    else:
        A(f"s_cmp_ge_u32 s{S_WAVE}, {OPT.get('af', 7) - 1}")
        A(f"s_cbranch_scc1 {lab}")
        A("s_lshr_b32 s40, s91, 3")
        a_prefetch_setup(A, 10, 12, 4, 40, 10)
        A(f"s_add_u32 s40, s{S_WAVE}, 1")
        a_prefetch_issue(A, 10, 12, 40, 48, 52, 240, two=True)
    A.label(lab)
    if OPT.get("tlb"):
        lab2 = A.newlabel("tlb")
        A(f"s_cmp_lg_u32 s{S_WAVE}, 7")
        A(f"s_cbranch_scc1 {lab2}")
        tlb_warm(A)
        A.label(lab2)
    get_nonce_issue(A, "B")

def gen_b1_aux(A, s_tile, has_tile):
    A.comment("===== B1 aux (waves 4-7) =====")
    HL = 130
    if has_tile:
        A("s_barrier")
    b2_h_loads(A, HL, 4)
    make_srd(A, 48, P_Q, SZ_T)
    A("s_lshr_b32 s40, s91, 3")
    A("s_lshl_b32 s40, s40, 2")
    A("s_add_u32 s40, s40, s32")
    A("s_mul_i32 s40, s40, 52")
    A("v_add_u32 v10, s40, v1")
    A("s_and_b32 s41, s2, 7")
    A("s_mul_i32 s41, s41, 144")
    A("s_and_b32 s41, s41, 0xffffff80")
    A("s_movk_i32 s42, 1152")
    A("v_mul_lo_u32 v11, v10, s42")
    A("v_add_u32 v11, s41, v11")
    A(f"v_mov_b32 v12, 0x{BIGOFF:x}")
    A("v_cmp_le_u32 vcc, 52, v1")
    A("v_cndmask_b32 v11, v11, v12, vcc")
    A("buffer_load_dword v243, v11, s[48:51], 0 offen")
    A("buffer_load_dword v244, v11, s[48:51], 0 offen offset:128")
    stamp(A, 2)
    A("s_waitcnt vmcnt(2)")
    stamp(A, 4)
    b2_h_stage(A, HL, 100, 4)

WO_B = 72 * 1024

def gen_a2(A, s_x, s_a, sb):
    A.comment("===== A2 =====")
    A(f"s_sub_u32 s34, s{s_a}, 4")
    A("s_lshr_b32 s33, s34, 1")
    A("s_add_u32 s33, s33, 4")
    A("s_and_b32 s34, s34, 1")
    A(f"s_cmp_lt_u32 s{s_a}, 4")
    A(f"s_cselect_b32 s33, s{s_a}, s33")
    A("s_cselect_b32 s34, 0, s34")
    A("s_cselect_b32 s42, 2, 1")
    A(f"s_lshl_b32 s32, s{s_x}, 1")
    A("s_add_u32 s32, s32, s34")
    make_srd(A, 44, P_WO, 576 * 1152)
    A("v_lshrrev_b32 v2, 3, v1")
    A("v_and_b32 v3, 7, v1")
    A("v_bfe_u32 v4, v1, 4, 1")
    A("v_lshlrev_b32 v4, 1, v4")
    A("v_xor_b32 v4, v4, v3")
    A("v_mul_u32_u24 v5, 1152, v2")
    A("v_lshl_add_u32 v5, v4, 4, v5")
    A("s_lshl_b32 s34, s33, 7")
    A("v_add_u32 v10, s34, v5")
    A("v_xor_b32 v11, 64, v10")
    A(f"s_mul_i32 s35, s{S_WAVE}, 9")
    A("s_and_b32 s36, s35, 1")
    A("s_cmp_eq_u32 s36, 1")
    A("s_cselect_b64 s[56:57], -1, 0")
    A("v_cndmask_b32 v12, v10, v11, s[56:57]")
    A("v_cndmask_b32 v13, v11, v10, s[56:57]")
    A("s_lshl_b32 s36, s33, 3")
    A("s_add_u32 s36, s36, s35")
    A("s_lshl_b32 s37, s35, 10")
    for j in range(9):
        A(f"s_add_u32 s38, s36, {j}")
        A("s_sub_u32 s39, s38, 72")
        A("s_cmp_ge_u32 s38, 72")
        A("s_cselect_b32 s38, s39, s38")
        A("s_mul_i32 s38, s38, 9216")
        A(f"s_add_u32 m0, s37, {1024*j}")
        A(f"buffer_load_dwordx4 v{12+(j&1)}, s[44:47], s38 offen lds")
    make_srd(A, 48, P_WS, SZ_T, WS_OF)
    make_srd(A, 52, P_OUT, 2048 * 2304)
    A("s_lshl_b32 s38, s32, 3")
    A(f"s_add_u32 s38, s38, s{S_WAVE}")
    A("s_mul_i32 s39, s38, 18432")
    A("v_lshlrev_b32 v2, 4, v1")
    A("v_add_u32 v2, s39, v2")
    A("v_add_u32 v3, 4096, v2"); A("v_add_u32 v4, 8192, v2"); A("v_add_u32 v5, 12288, v2"); A("v_add_u32 v6, 16384, v2")
    A("v_and_b32 v7, 15, v1")
    A("v_lshrrev_b32 v8, 4, v1")
    A("v_lshrrev_b32 v9, 2, v7")
    A("v_lshl_add_u32 v9, v8, 3, v9")
    A("v_lshlrev_b32 v9, 7, v9")
    A("v_and_b32 v10, 1, v7")
    A("v_lshl_add_u32 v9, v10, 3, v9")
    A("v_bfe_u32 v10, v7, 3, 1")
    A("v_and_b32 v11, 1, v8")
    A("v_lshl_add_u32 v10, v11, 1, v10")
    A("v_lshlrev_b32 v10, 1, v10")
    A("v_bfe_u32 v11, v7, 1, 1")
    for nt in range(4):
        A(f"v_add_u32 v14, {2*nt}, v11")
        A("v_xor_b32 v14, v14, v10")
        A(f"v_lshl_add_u32 v{16+nt}, v14, 4, v9")
        A(f"v_add_u32 v{20+nt}, 36864, v{16+nt}")
    A(f"s_mul_i32 s40, s{S_WAVE}, 2304")
    A(f"s_add_u32 s40, s40, {WO_B}")
    A("v_mul_u32_u24 v9, 144, v7")
    A("v_lshl_add_u32 v9, v8, 3, v9")
    A("v_add_u32 v9, s40, v9")
    A("v_lshrrev_b32 v10, 3, v1")
    A("v_and_b32 v11, 7, v1")
    A("v_mul_u32_u24 v12, 144, v10")
    A("v_lshl_add_u32 v12, v11, 4, v12")
    A("v_add_u32 v12, s40, v12")
    A("s_mul_i32 s39, s38, 36864")
    A("s_lshl_b32 s41, s33, 7")
    A("s_add_u32 s39, s39, s41")
    A("v_mul_u32_u24 v13, 2304, v10")
    A("v_lshl_add_u32 v13, v11, 4, v13")
    A("v_add_u32 v13, s39, v13")
    A("v_add_u32 v14, 18432, v13")
    stamp(A, sb + 0)
    lab = A.newlabel("a2w")
    A(f"s_cmp_lg_u32 s{S_WAVE}, 0")
    A(f"s_cbranch_scc1 {lab}")
    A("s_lshl_b32 s39, s32, 7")
    A("s_mul_hi_u32 s40, s39, 0x2aaaaab")
    A("s_lshl_b32 s41, s42, 7")
    A("s_add_u32 s39, s39, s41")
    A("s_sub_u32 s39, s39, 1")
    A("s_mul_hi_u32 s41, s39, 0x2aaaaab")
    make_srd(A, 92, P_WS, 65536, WS_FA)
    A("v_lshrrev_b32 v250, 3, v1")
    A("v_add_u32 v250, s40, v250")
    A("v_min_u32 v250, s41, v250")
    A("v_lshlrev_b32 v250, 8, v250")
    A("v_and_b32 v249, 7, v1")
    A("v_lshl_add_u32 v250, v249, 2, v250")
    A("s_mov_b64 exec, 0xffffffff")
    lp = A.newlabel("poll"); done = A.newlabel("polld")
    A("s_mov_b32 s88, 100000")
    A.label(lp)
    A("buffer_load_dword v251, v250, s[92:95], 0 offen sc1")
    A("s_waitcnt vmcnt(0)")
    A(f"v_cmp_ne_u32 vcc, s{S_NA}, v251")
    A("s_nop 4")
    A(f"s_cbranch_vccz {done}")
    A("s_sleep 2")
    A("s_sub_u32 s88, s88, 1")
    A("s_cmp_lg_u32 s88, 0")
    A(f"s_cbranch_scc1 {lp}")
    A.label(done)
    A("s_mov_b64 exec, -1")
    A.label(lab)
    A("s_waitcnt vmcnt(0)")
    A("s_barrier")
    stamp(A, sb + 1)
    BF = [24, 136]
    ACC = 96
    AF = [112, 120]
    AF = [112, 208, 224]
    def oloads(base, extra):
        A("s_lshl_b32 s44, s33, 1")
        for j in range(18):
            A("s_lshl_b32 s45, s44, 10")
            if extra: A("s_add_u32 s45, s45, s43")
            A(f"buffer_load_dwordx4 {v(base+4*j,4)}, v2, s[48:51], s45 offen sc1")
            A("s_add_u32 s44, s44, 1")
            A("s_cmp_eq_u32 s44, 18")
            A("s_cselect_b32 s44, 0, s44")
    def reads(ks, base):
        lst = []
        for nt in range(4):
            va = (16 if ks < 9 else 20) + nt
            for h in range(2):
                lst.append(f"ds_read_b64_tr_b16 {v(base+4*nt+2*h,2)}, v{va} offset:{(ks%9)*4096 + h*512}")
        return lst
    def tile(bf, pending_after, soff):
        for r_ in reads(0, AF[0]): A(r_)
        for r_ in reads(1, AF[1]): A(r_)
        for ks in range(18):
            rd = reads(ks + 2, AF[(ks+2) % 3]) if ks < 16 else []
            A(f"s_waitcnt vmcnt({min(63, 17-ks+pending_after)}) lgkmcnt({8 if ks < 17 else 0})")
            i = 0
            for nt in range(4):
                c = "0" if ks == 0 else v(ACC+4*nt, 4)
                A(f"v_mfma_f32_16x16x32_bf16 {v(ACC+4*nt,4)}, {v(AF[ks%3]+4*nt,4)}, {v(bf+4*ks,4)}, {c}")
                for _ in range(2):
                    if i < len(rd): A(rd[i]); i += 1
        for nt in range(4):
            A(f"v_cvt_pk_bf16_f32 v{128+2*nt}, v{ACC+4*nt}, v{ACC+4*nt+1}")
            A(f"v_cvt_pk_bf16_f32 v{129+2*nt}, v{ACC+4*nt+2}, v{ACC+4*nt+3}")
            A(f"ds_write_b64 v9, {v(128+2*nt,2)} offset:{32*nt}")
        A("s_waitcnt lgkmcnt(0)")
        A("ds_read_b128 v[128:131], v12")
        A("ds_read_b128 v[132:135], v12 offset:1152")
        A("s_waitcnt lgkmcnt(1)")
        A(f"buffer_store_dwordx4 v[128:131], v13, s[52:55], {soff} offen" + (" sc1" if OPT.get("a2sc1") else ""))
        A("s_waitcnt lgkmcnt(0)")
        A(f"buffer_store_dwordx4 v[132:135], v14, s[52:55], {soff} offen" + (" sc1" if OPT.get("a2sc1") else ""))
    oloads(BF[0], False)
    l2 = A.newlabel("a2two"); lend = A.newlabel("a2end")
    A("s_cmp_eq_u32 s42, 2")
    A(f"s_cbranch_scc1 {l2}")
    tile(BF[0], 0, "0")
    A(f"s_branch {lend}")
    A.label(l2)
    A(f"s_mov_b32 s43, {8*18432}")
    oloads(BF[1], True)
    tile(BF[0], 18, "0")
    stamp(A, sb + 2)
    A(f"s_mov_b32 s43, {128*2304}")
    tile(BF[1], 2, "s43")
    A.label(lend)
    stamp(A, sb + 3)

def build(path, stamps=False):
    global STAMPS
    STAMPS = stamps
    A = Asm()
    A.raw(f".globl {NAME}\n.p2align 8\n.type {NAME},@function\n{NAME}:")
    A("s_cmp_ge_u32 s2, 256")
    A("s_cbranch_scc1 L_end")
    A("s_load_dwordx16 s[4:19], s[0:1], 0")
    A("s_load_dwordx8 s[20:27], s[0:1], 64")
    A("s_memrealtime s[30:31]")
    if OPT.get("codepf", 1):
        A("s_getpc_b64 s[32:33]")
        A.label("L_pc")
        A("s_lshr_b32 s34, s2, 3")
        A("s_mul_i32 s34, s34, CODE_LPW*128")
        A("v_and_b32 v3, 63, v0")
        A("v_lshlrev_b32 v3, 7, v3")
        A("v_add_u32 v3, s34, v3")
        A("v_cmp_gt_u32 vcc, (L_end-L_pc), v3")
        A("v_cmp_gt_u32 s[36:37], CODE_LPW, v0")
        A("s_and_b64 vcc, vcc, s[36:37]")
        A("s_and_saveexec_b64 s[36:37], vcc")
        labc = A.newlabel("cpf")
        A(f"s_cbranch_execz {labc}")
        A("global_load_dword v247, v3, s[32:33]")
        A.label(labc)
        A("s_mov_b64 exec, s[36:37]")
    A("v_lshrrev_b32 v2, 6, v0")
    A("v_and_b32 v1, 63, v0")
    A(f"v_readfirstlane_b32 s{S_WAVE}, v2")
    A("s_waitcnt lgkmcnt(0)")
    A(f"s_or_b32 s{S_MY}, s30, 1")
    if STAMPS: A("v_mov_b32 v246, -1")
    stamp(A, 0)
    if STAMPS:
        A("s_memtime s[100:101]")
        A("s_waitcnt lgkmcnt(0)")
        A("v_writelane_b32 v246, s100, 16")
    A("s_cmp_ge_u32 s2, 176")
    A("s_cbranch_scc1 L_bset")
    gen_a1(A)
    A("s_cmp_lt_u32 s2, 64")
    A("s_cbranch_scc1 L_a_b2")
    A("s_and_b32 s90, s2, 7")
    A("s_sub_u32 s91, s2, 64")
    A("s_lshr_b32 s91, s91, 3")
    gen_a2(A, 90, 91, 8)
    A("s_branch L_fin")
    A.label("L_a_b2")
    A("s_and_b32 s90, s2, 7")
    A("s_mul_i32 s90, s90, 18")
    A("s_lshr_b32 s91, s2, 3")
    A("s_add_u32 s90, s90, s91")
    A("s_add_u32 s90, s90, 10")
    get_nonce_issue(A, "B")
    b2_common(A, 90)
    b2_h_loads(A, 170, 2)
    A("s_waitcnt vmcnt(0)")
    b2_h_stage(A, 170, 112, 2)
    b2_main(A, 90, 8, resolved=False)
    A("s_branch L_fin")
    A.label("L_bset")
    A("s_sub_u32 s91, s2, 176")
    A("s_and_b32 s90, s91, 7")
    A("s_mul_i32 s90, s90, 18")
    A("s_lshr_b32 s89, s91, 3")
    A("s_add_u32 s90, s90, s89")
    b_prefetch(A)
    b2_common(A, 90)
    if OPT.get("bwait", 1):
        A("s_waitcnt vmcnt(0)")
        A("s_barrier")
    stamp(A, 1)
    A("s_cmp_ge_u32 s91, 72")
    A("s_cbranch_scc1 L_b_nob1")
    A(f"s_cmp_ge_u32 s{S_WAVE}, 4")
    A("s_cbranch_scc1 L_b_aux")
    gen_b1_kv(A, 91)
    A("s_branch L_b_join")
    A.label("L_b_aux")
    gen_b1_aux(A, 91, True)
    A.label("L_b_join")
    A("s_waitcnt vmcnt(0) lgkmcnt(0)")
    A("s_barrier")
    lab = A.newlabel("b1f")
    A(f"s_cmp_lg_u32 s{S_WAVE}, 0")
    A(f"s_cbranch_scc1 {lab}")
    nonce_resolve(A, "B")
    A("s_lshl_b32 s40, s67, 8")
    A("s_lshl_b32 s41, s66, 2")
    A("s_add_u32 s40, s40, s41")
    flag_store(A, "B", 40)
    A.label(lab)
    A("s_branch L_b_b2")
    A.label("L_b_nob1")
    lab = A.newlabel("bnx")
    A(f"s_cmp_lt_u32 s{S_WAVE}, 4")
    A(f"s_cbranch_scc1 {lab}")
    gen_b1_aux(A, 91, False)
    A.label(lab)
    A("s_waitcnt vmcnt(0)")
    lab = A.newlabel("bz")
    A(f"s_cmp_lg_u32 s{S_WAVE}, 0")
    A(f"s_cbranch_scc1 {lab}")
    nonce_resolve(A, "B")
    A.label(lab)
    A.label("L_b_b2")
    b2_main(A, 90, 5, resolved=True)
    A.label("L_fin")
    stamp_flush(A)
    A.label("L_end")
    A("s_endpgm")
    body = A.finalize()
    lds = max(3 * ST1, XCH + 8 * 4096, WO_B + 8 * 2304)
    out = HEADER + f"; @launch grid=(256,1,1) block=(512,1,1) lds={lds}\n"
    out += '.amdgcn_target "amdgcn-amd-amdhsa--gfx950"\n.text\n.set CODE_LPW, 16\n' + body
    out += '.section .rodata,"a"\n.p2align 6\n' + kd(NAME, 256)
    open(path, "w").write(out)

if __name__ == "__main__":
    for a in sys.argv[3:]:
        k, x = a.split("="); OPT[k] = int(x)
    build(sys.argv[1], stamps=(len(sys.argv) > 2 and sys.argv[2] == "stamps"))
```

```python
import sys, struct, math
from asmlib import *
from gen_common import HEADER, kd

NAME = "concat_heads__sliding_local_dilated__ssm_conv_h3__prompt_kernel"
SZ_T = 576 * 2048 * 2
WS_UR = 4096
WS_QT = (4 << 20) + 4096
WS_OF = (8 << 20) + 4096
WS_FA = (12 << 20) + 4096
WS_FB = WS_FA + 65536
STAMP_OFF = 16 << 20
BIGOFF = 0x7FFF0000

P_X, P_W, P_WO, P_Q, P_K, P_V, P_SH, P_H, P_D, P_OUT, P_DBG, P_WS = 4, 6, 8, 10, 12, 14, 16, 18, 20, 22, 24, 26
S_MY, S_WAVE, S_NA, S_NB = 28, 29, 30, 31
V_NA, V_NB = 252, 254
STAMPS = False
OPT = {}

def make_srd(A, dst, ptr, nbytes, add=0, add_s=None):
    if add_s is not None:
        A(f"s_add_u32 s{dst}, s{ptr}, s{add_s}")
        A(f"s_addc_u32 s{dst+1}, s{ptr+1}, 0")
        if add:
            A(f"s_add_u32 s{dst}, s{dst}, {add}")
            A(f"s_addc_u32 s{dst+1}, s{dst+1}, 0")
        A(f"s_and_b32 s{dst+1}, s{dst+1}, 0xffff")
    elif add:
        A(f"s_add_u32 s{dst}, s{ptr}, {add}")
        A(f"s_addc_u32 s{dst+1}, s{ptr+1}, 0")
        A(f"s_and_b32 s{dst+1}, s{dst+1}, 0xffff")
    else:
        A(f"s_mov_b32 s{dst}, s{ptr}")
        A(f"s_and_b32 s{dst+1}, s{ptr+1}, 0xffff")
    A(f"s_mov_b32 s{dst+2}, {nbytes}")
    A(f"s_mov_b32 s{dst+3}, 0x00020000")

def stamp(A, idx):
    if not STAMPS: return
    A("s_memrealtime s[100:101]")
    A("s_waitcnt lgkmcnt(0)")
    A(f"v_writelane_b32 v246, s100, {idx}")

def stamp_flush(A):
    if not STAMPS: return
    A("s_memtime s[100:101]")
    A("s_waitcnt lgkmcnt(0)")
    A("v_writelane_b32 v246, s100, 17")
    A("s_memrealtime s[100:101]")
    A("s_waitcnt lgkmcnt(0)")
    A("v_writelane_b32 v246, s100, 18")
    lab = A.newlabel("stf")
    A(f"s_and_b32 s96, s{S_WAVE}, 3")
    A("s_cmp_lg_u32 s96, 0")
    A(f"s_cbranch_scc1 {lab}")
    A(f"s_lshr_b32 s100, s{S_WAVE}, 2")
    A("s_lshl_b32 s100, s100, 8")
    A("s_add_u32 s100, s100, s2")
    A("s_lshl_b32 s100, s100, 7")
    A(f"s_add_u32 s96, s{P_WS}, {STAMP_OFF}")
    A(f"s_addc_u32 s97, s{P_WS+1}, 0")
    A("s_and_b32 s97, s97, 0xffff")
    A("s_mov_b32 s98, 0x100000")
    A("s_mov_b32 s99, 0x00020000")
    A("v_lshlrev_b32 v250, 2, v1")
    A("v_add_u32 v250, s100, v250")
    A("s_mov_b64 exec, 0xffffffff")
    A("buffer_store_dword v246, v250, s[96:99], 0 offen")
    A("s_mov_b64 exec, -1")
    A.label(lab)

def get_nonce_issue(A, which):
    vn = V_NA if which == "A" else V_NB
    lab = A.newlabel("nz")
    A(f"s_cmp_lg_u32 s{S_WAVE}, 0")
    A(f"s_cbranch_scc1 {lab}")
    make_srd(A, 92, P_DBG, 256)
    A(f"v_mov_b32 v{vn}, s{S_MY}")
    A(f"v_mov_b32 v{vn+1}, 0")
    A(f"v_mov_b32 v251, {0 if which == 'A' else 128}")
    A("s_mov_b64 exec, 1")
    A(f"buffer_atomic_cmpswap v[{vn}:{vn+1}], v251, s[92:95], 0 offen sc0 sc1")
    A("s_mov_b64 exec, -1")
    A.label(lab)

def nonce_resolve(A, which):
    vn = V_NA if which == "A" else V_NB
    sn = S_NA if which == "A" else S_NB
    A(f"v_readfirstlane_b32 s{sn}, v{vn}")
    A(f"s_cmp_eq_u32 s{sn}, 0")
    A(f"s_cselect_b32 s{sn}, s{S_MY}, s{sn}")

def flag_store(A, which, s_off):
    sn = S_NA if which == "A" else S_NB
    make_srd(A, 92, P_WS, 65536, WS_FA if which == "A" else WS_FB)
    A(f"v_mov_b32 v250, s{s_off}")
    A(f"v_mov_b32 v251, s{sn}")
    A("s_mov_b64 exec, 1")
    A("buffer_store_dword v251, v250, s[92:95], 0 offen sc1")
    A("s_mov_b64 exec, -1")

def flag_poll(A, which, s_off0, s_off1=None):
    sn = S_NA if which == "A" else S_NB
    make_srd(A, 92, P_WS, 65536, WS_FA if which == "A" else WS_FB)
    A("v_and_b32 v250, 7, v1")
    A("v_lshlrev_b32 v250, 2, v250")
    if s_off1 is not None:
        A(f"v_mov_b32 v249, s{s_off0}")
        A(f"v_mov_b32 v248, s{s_off1}")
        A("v_cmp_gt_u32 vcc, 8, v1")
        A("v_cndmask_b32 v249, v248, v249, vcc")
        A("v_add_u32 v250, v250, v249")
        A("s_mov_b64 exec, 0xffff")
    else:
        A(f"v_add_u32 v250, s{s_off0}, v250")
        A("s_mov_b64 exec, 0xff")
    lp = A.newlabel("poll"); done = A.newlabel("polld")
    A("s_mov_b32 s88, 100000")
    A.label(lp)
    A("buffer_load_dword v251, v250, s[92:95], 0 offen sc1")
    A("s_waitcnt vmcnt(0)")
    A(f"v_cmp_ne_u32 vcc, s{sn}, v251")
    A("s_nop 4")
    A(f"s_cbranch_vccz {done}")
    A("s_sleep 2")
    A("s_sub_u32 s88, s88, 1")
    A("s_cmp_lg_u32 s88, 0")
    A(f"s_cbranch_scc1 {lp}")
    A.label(done)
    A("s_mov_b64 exec, -1")

def a_prefetch_setup(A, vx, vw, t0, s_idx, nshare):
    px = -(-1072 // nshare); pw = -(-576 // nshare)
    A("s_and_b32 s96, s2, 7")
    A("s_lshr_b32 s98, s96, 2")
    A("s_and_b32 s96, s96, 3")
    A("s_mul_i32 s98, s98, 1056")
    A(f"s_mul_i32 s99, s{s_idx}, {px}")
    A("s_add_u32 s98, s98, s99")
    A("s_sub_u32 s98, s98, 16")
    A(f"v_mov_b32 v{t0+1}, 0x{BIGOFF:x}")
    A("s_movk_i32 s99, 1152")
    for e in range(2 if px > 64 else 1):
        A(f"v_add_u32 v{t0}, s98, v1")
        if e: A(f"v_add_u32 v{t0}, 64, v{t0}")
        A(f"v_mul_lo_u32 v{vx+e}, v{t0}, s99")
        A(f"v_cmp_gt_i32 vcc, 0, v{t0}")
        A(f"v_cndmask_b32 v{vx+e}, v{vx+e}, v{t0+1}, vcc")
        lim = min(px - 64*e, 64)
        if lim < 64:
            A(f"v_cmp_le_u32 vcc, {lim}, v1")
            A(f"v_cndmask_b32 v{vx+e}, v{vx+e}, v{t0+1}, vcc")
    A(f"s_mul_i32 s99, s{s_idx}, {pw}")
    A(f"v_add_u32 v{t0}, s99, v1")
    A(f"v_mul_u32_u24 v{t0+2}, 7282, v{t0}")
    A(f"v_lshrrev_b32 v{t0+2}, 16, v{t0+2}")
    A(f"v_mul_u32_u24 v{t0+3}, 9, v{t0+2}")
    A(f"v_sub_u32 v{t0+3}, v{t0}, v{t0+3}")
    A(f"v_mul_u32_u24 v{t0+4}, 21846, v{t0+3}")
    A(f"v_lshrrev_b32 v{t0+4}, 16, v{t0+4}")
    A(f"v_mul_u32_u24 v{vw}, 3456, v{t0+2}")
    A(f"v_mul_u32_u24 v{t0+2}, 1152, v{t0+4}")
    A(f"v_add_u32 v{vw}, v{vw}, v{t0+2}")
    A(f"v_mul_u32_u24 v{t0+4}, 3, v{t0+4}")
    A(f"v_sub_u32 v{t0+3}, v{t0+3}, v{t0+4}")
    A(f"v_lshl_add_u32 v{vw}, v{t0+3}, 7, v{vw}")
    A("s_lshl_b32 s96, s96, 8")
    A(f"v_add_u32 v{vw}, s96, v{vw}")
    A(f"v_cmp_le_u32 vcc, {pw}, v1")
    A(f"v_cndmask_b32 v{vw}, v{vw}, v{t0+1}, vcc")
    A(f"v_cmp_le_u32 vcc, 576, v{t0}")
    A(f"v_cndmask_b32 v{vw}, v{vw}, v{t0+1}, vcc")

def a_prefetch_issue(A, vx, vw, s_kc, srd_x, srd_w, vd, two=False):
    A(f"s_lshl_b32 s96, s{s_kc}, 7")
    A(f"s_mul_i32 s97, s{s_kc}, 221184")
    A(f"buffer_load_dword v{vd}, v{vw}, s[{srd_w}:{srd_w+3}], s97 offen")
    A(f"buffer_load_dword v{vd+1}, v{vx}, s[{srd_x}:{srd_x+3}], s96 offen")
    if two:
        A(f"buffer_load_dword v{vd+2}, v{vx+1}, s[{srd_x}:{srd_x+3}], s96 offen")

XS = 14 * 1024
W1 = 32 * 1024
ST1 = XS + W1
HHS = 112 * 48
OB = 13 * HHS
V_KQ, V_VT, V_OW, V_NINF, V_OG, V_OL = 220, 221, 222, 225, 226, 228

def attn_setup(A, t0=4):
    a, b, c, d = t0, t0+1, t0+2, t0+3
    A(f"s_and_b32 s56, s{S_WAVE}, 3")
    A(f"s_lshr_b32 s57, s{S_WAVE}, 2")
    A("s_mul_i32 s57, s57, 3")
    A(f"v_lshlrev_b32 v{a}, 2, v3")
    A(f"v_sub_u32 v{a}, v2, v{a}")
    for tl in range(2):
        for r in range(4):
            dd = (16 if tl == 0 else 0) - r
            A(f"v_add_u32 v{b}, {dd}, v{a}" if dd >= 0 else f"v_subrev_u32 v{b}, {-dd}, v{a}")
            A(f"v_and_b32 v{b}, 0xfffffff1, v{b}")
            A(f"v_cmp_eq_u32 s[{64+2*(4*tl+r)}:{65+2*(4*tl+r)}], 0, v{b}")
    A("v_cmp_gt_u32 s[80:81], 2, v3")
    A("v_cmp_gt_u32 s[82:83], 3, v3")
    A("s_or_b32 s58, s32, s57")
    for r in range(4):
        A(f"s_cmp_eq_u32 s58, 0")
        A(f"s_cselect_b64 s[{84+2*r}:{85+2*r}], 0, s[{64+2*r}:{65+2*r}]")
    A(f"v_min_u32 v{b}, 2, v3")
    A(f"v_mul_u32_u24 v{c}, 48, v2")
    A(f"v_lshl_add_u32 v{c}, v{b}, 4, v{c}")
    A(f"s_mul_i32 s58, s56, {HHS}")
    A("s_mul_i32 s59, s57, 768")
    A("s_add_u32 s58, s58, s59")
    A(f"v_add_u32 v{V_KQ}, s58, v{c}")
    A(f"v_lshrrev_b32 v{b}, 2, v2")
    A(f"v_lshl_add_u32 v{b}, v3, 2, v{b}")
    A(f"v_mul_u32_u24 v{b}, 48, v{b}")
    A(f"v_and_b32 v{c}, 3, v2")
    A(f"v_lshl_add_u32 v{b}, v{c}, 3, v{b}")
    A(f"v_add_u32 v{V_VT}, s58, v{b}")
    A(f"v_mul_u32_u24 v{b}, 144, v2")
    A(f"v_lshl_add_u32 v{b}, v3, 3, v{b}")
    A("s_mul_i32 s58, s56, 36")
    A("s_mul_i32 s59, s57, 2304")
    A("s_add_u32 s58, s58, s59")
    A(f"s_add_u32 s58, s58, {OB}")
    A(f"v_add_u32 v{V_OW}, s58, v{b}")
    A(f"v_add_u32 v{V_OW+1}, 2304, v{V_OW}")
    A(f"v_add_u32 v{V_OW+2}, 4608, v{V_OW}")
    A(f"v_mov_b32 v{V_NINF}, 0xff800000")
    A("s_mul_i32 s58, s32, 110592")
    A("s_mul_i32 s59, s33, 2304")
    A("s_add_u32 s58, s58, s59")
    for rnd in range(2):
        A(f"v_add_u32 v{a}, {512*rnd}, v0")
        A(f"v_and_b32 v{b}, 15, v{a}")
        A(f"v_lshrrev_b32 v{c}, 4, v{a}")
        A(f"v_mul_u32_u24 v{d}, 7282, v{c}")
        A(f"v_lshrrev_b32 v{d}, 16, v{d}")
        A(f"v_mul_u32_u24 v{d+1}, 9, v{d}")
        A(f"v_sub_u32 v{c}, v{c}, v{d+1}")
        A(f"v_lshl_add_u32 v{d+1}, v{d}, 4, v{b}")
        A(f"v_mul_u32_u24 v{d+1}, 144, v{d+1}")
        A(f"v_lshl_add_u32 v{d+1}, v{c}, 4, v{d+1}")
        A(f"v_add_u32 v{V_OL+rnd}, {OB}, v{d+1}")
        A(f"v_mul_u32_u24 v{d}, 18432, v{d}")
        A(f"v_lshl_add_u32 v{d}, v{c}, 8, v{d}")
        A(f"v_lshl_add_u32 v{d}, v{b}, 4, v{d}")
        A(f"v_add_u32 v{V_OG+rnd}, s58, v{d}")
        if rnd == 1:
            A(f"v_mov_b32 v{b}, 0x{BIGOFF:x}")
            A(f"v_cmp_gt_u32 vcc, 864, v{a}")
            A(f"v_cndmask_b32 v{V_OG+rnd}, v{b}, v{V_OG+rnd}, vcc")

def gen_a1(A):
    n = "a1"
    A("s_and_b32 s36, s2, 7")
    A("s_lshr_b32 s37, s2, 3")
    A("s_lshr_b32 s38, s36, 2")
    A("s_and_b32 s39, s36, 3")
    A("s_mul_i32 s32, s38, 11")
    A("s_lshr_b32 s40, s37, 1")
    A("s_add_u32 s32, s32, s40")
    A("s_and_b32 s40, s37, 1")
    A("s_lshl_b32 s33, s39, 1")
    A("s_add_u32 s33, s33, s40")
    A("s_mul_i32 s34, s32, 96")
    make_srd(A, 44, P_X, SZ_T)
    make_srd(A, 48, P_W, 576 * 3456)
    if OPT.get("r1", 1):
        labr = A.newlabel("r1")
        A(f"s_cmp_ge_u32 s{S_WAVE}, 5")
        A(f"s_cbranch_scc1 {labr}")
        a_prefetch_setup(A, 232, 233, 4, 37, 32)
        a_prefetch_issue(A, 232, 233, S_WAVE, 44, 48, 240)
        A.label(labr)
    A(f"s_cmp_ge_u32 s{S_WAVE}, 4")
    A(f"s_cbranch_scc1 {n}_loader")
    a_prefetch_setup(A, 230, 231, 4, 37, 22)
    get_nonce_issue(A, "A")
    A("v_and_b32 v2, 15, v1")
    A("v_lshrrev_b32 v3, 4, v1")
    attn_setup(A)
    A("v_lshrrev_b32 v6, 2, v2")
    A("v_lshl_add_u32 v7, v3, 3, v6")
    A("v_lshlrev_b32 v7, 9, v7")
    A("v_and_b32 v8, 3, v2")
    A("v_lshl_add_u32 v7, v8, 3, v7")
    A(f"v_add_u32 v7, {XS}, v7")
    A("v_and_b32 v8, 1, v3")
    A("v_lshl_add_u32 v8, v8, 2, v6")
    A("v_lshrrev_b32 v9, 1, v2")
    A("v_xor_b32 v9, v9, v3")
    A("v_lshlrev_b32 v9, 4, v9")
    XA = 14
    A(f"v_lshl_add_u32 v{XA}, v2, 7, v9")
    A(f"v_xor_b32 v{XA+1}, 64, v{XA}")
    for w in range(3):
        A(f"s_cmp_eq_u32 s{S_WAVE}, {w}")
        A(f"s_cbranch_scc1 {n}_c{w}")
    for w in [3, 0, 1, 2]:
        A.label(f"{n}_c{w}")
        if w < 3:
            nts = [3*w, 3*w+1, 3*w+2]
            units = [(t, st) for t in nts for st in range(7)] + [(13, 2*w+1), (13, 2*w+2)]
            ants = nts + [13]
            sts = list(range(7))
        else:
            nts = [9, 10, 11, 12]
            units = [(t, st) for t in nts for st in range(1, 7)]
            ants = nts
            sts = list(range(1, 7))
        WA = 10
        for ai, t in enumerate(ants):
            A(f"v_xor_b32 v9, {t}, v8")
            A(f"v_lshl_add_u32 v{WA+ai}, v9, 5, v7")
        A("v_mul_u32_u24 v4, 48, v2")
        for ai, t in enumerate(ants):
            for p in range(2):
                va = 212 + 2*ai + p
                A("v_lshlrev_b32 v5, 2, v3")
                A(f"v_add_u32 v5, {16*t + 2*p}, v5")
                A("v_mul_u32_u24 v6, 3641, v5")
                A("v_lshrrev_b32 v6, 16, v6")
                A("v_mul_u32_u24 v6, 5340, v6")
                A(f"v_lshl_add_u32 v{va}, v5, 1, v6")
                A(f"v_add_u32 v{va}, v{va}, v4")
        ACC = 28
        acc = {u: ACC + 4*i for i, u in enumerate(units)}
        FR = [124, 168]
        def reads(ks, base):
            lst = []
            for ai, t in enumerate(ants):
                for h in range(2):
                    lst.append(f"ds_read_b64_tr_b16 {v(base+4*ai+2*h,2)}, v{WA+ai} offset:{ks*16384 + h*2048}")
            for bi, st in enumerate(sts):
                lst.append(f"ds_read_b128 {v(base+16+4*bi,4)}, v{XA+ks} offset:{st*2048}")
            return lst
        def mfmas(base, first):
            lst = []
            for (t, st) in units:
                ai = ants.index(t); bi = sts.index(st)
                c = "0" if first else v(acc[(t, st)], 4)
                lst.append(f"v_mfma_f32_16x16x32_bf16 {v(acc[(t,st)],4)}, {v(base+4*ai,4)}, {v(base+16+4*bi,4)}, {c}")
            return lst
        def interleave(mf, rd):
            i = 0
            for m in mf:
                A(m)
                if i < len(rd): A(rd[i]); i += 1
            while i < len(rd): A(rd[i]); i += 1
        for u in units:
            for r in range(0, 4, 2): A(f"v_mov_b64 {v(acc[u]+r,2)}, 0")
        A("s_mov_b32 s60, 0")
        A("s_mov_b32 s61, 0")
        A(f"s_mov_b32 s52, {ST1}")
        A(f"s_mov_b32 s53, {(-2*ST1) & 0xffffffff}")
        if OPT.get("r1", 1):
            A("s_waitcnt vmcnt(0)")
            A("s_barrier")
        A("s_barrier")
        stamp(A, 1)
        for r_ in reads(0, FR[0]): A(r_)
        A("s_waitcnt lgkmcnt(0)")
        A(f"s_branch {n}_q{w}")
        A.label(f"{n}_l{w}")
        A("s_barrier")
        interleave(mfmas(FR[1], False), reads(0, FR[0]))
        A("s_waitcnt lgkmcnt(0)")
        A.label(f"{n}_q{w}")
        labp = A.newlabel("lpf")
        A(f"s_cmp_lg_u32 s60, {w}")
        A(f"s_cbranch_scc1 {labp}")
        A(f"s_add_u32 s63, s60, {OPT.get('af', 7)}")
        A("s_cmp_gt_u32 s63, 8")
        A(f"s_cbranch_scc1 {labp}")
        a_prefetch_issue(A, 230, 231, 63, 44, 48, 240)
        A.label(labp)
        if w == 3 and OPT.get("hpf", 1):
            labh = A.newlabel("hpf")
            A("s_cmp_lg_u32 s60, 3")
            A(f"s_cbranch_scc1 {labh}")
            A("s_cmp_ge_u32 s2, 64")
            A(f"s_cbranch_scc1 {labh}")
            A("s_and_b32 s96, s2, 7")
            A("s_mul_i32 s96, s96, 18")
            A("s_lshr_b32 s97, s2, 3")
            A("s_add_u32 s96, s96, s97")
            A("s_add_u32 s96, s96, 10")
            A("s_lshl_b32 s96, s96, 14")
            A(f"s_add_u32 s92, s{P_H}, s96")
            A(f"s_addc_u32 s93, s{P_H+1}, 0")
            A("s_and_b32 s93, s93, 0xffff")
            A("s_mov_b32 s94, 16384")
            A("s_mov_b32 s95, 0x00020000")
            A("v_lshlrev_b32 v234, 7, v1")
            A("buffer_load_dword v242, v234, s[92:95], 0 offen")
            A("v_add_u32 v234, 8192, v234")
            A("buffer_load_dword v243, v234, s[92:95], 0 offen")
            A.label(labh)
        A("s_add_u32 s61, s61, 1")
        A("s_cmp_eq_u32 s61, 3")
        A("s_cselect_b32 s62, s53, s52")
        A("s_cselect_b32 s61, 0, s61")
        interleave(mfmas(FR[0], False), reads(1, FR[1]))
        for r in range(6): A(f"v_add_u32 v{10+r}, s62, v{10+r}")
        A("s_add_u32 s60, s60, 1")
        A("s_cmp_lt_u32 s60, 9")
        A("s_waitcnt lgkmcnt(0)")
        A(f"s_cbranch_scc1 {n}_l{w}")
        A("s_barrier")
        last = mfmas(FR[1], False)
        pend = []
        k = 0
        def flush_one(u):
            nonlocal k
            (t, st) = u
            ai = ants.index(t); a0 = acc[(t, st)]
            tmp = 124 + 2*(k % 8); k += 1
            A(f"v_cvt_pk_bf16_f32 v{tmp}, v{a0}, v{a0+1}")
            A(f"v_cvt_pk_bf16_f32 v{tmp+1}, v{a0+2}, v{a0+3}")
            A(f"ds_write_b32 v{212+2*ai}, v{tmp} offset:{768*st}")
            A(f"ds_write_b32 v{212+2*ai+1}, v{tmp+1} offset:{768*st}")
        for m, u in zip(last, units):
            A(m)
            pend.append(u)
            if len(pend) > 3: flush_one(pend.pop(0))
        for u in pend: flush_one(u)
        stamp(A, 4)
        A(f"s_branch {n}_attn")
    A.label(f"{n}_loader")
    A(f"s_sub_u32 s35, s{S_WAVE}, 4")
    A("v_lshrrev_b32 v2, 3, v1")
    A("v_and_b32 v3, 7, v1")
    A("v_lshrrev_b32 v4, 4, v1")
    A("v_mul_u32_u24 v5, 1152, v2")
    A("v_xor_b32 v6, v3, v4")
    A("v_lshl_add_u32 v10, v6, 4, v5")
    A("v_xor_b32 v11, 64, v10")
    A("s_lshl_b32 s36, s35, 2")
    A("s_cmp_eq_u32 s35, 3")
    A("s_cselect_b32 s36, 11, s36")
    A("s_cselect_b64 s[54:55], -1, 0")
    A("v_cndmask_b32 v16, v10, v11, s[54:55]")
    A("v_cndmask_b32 v17, v11, v10, s[54:55]")
    A("s_sub_u32 s37, s34, 16")
    A("s_mul_i32 s37, s37, 1152")
    A("s_mul_i32 s38, s36, 9216")
    A("s_add_u32 s37, s37, s38")
    A("s_lshl_b32 s38, s36, 10")
    WV = 12
    A("v_lshrrev_b32 v2, 5, v1")
    A("v_and_b32 v3, 31, v1")
    A("v_mul_u32_u24 v4, 3456, v2")
    A("s_mul_i32 s40, s33, 144")
    A("v_add_u32 v4, s40, v4")
    A(f"v_mov_b32 v9, 0x{BIGOFF:x}")
    for var in range(4):
        j1, j4 = var & 1, var >> 1
        A(f"v_add_u32 v5, {2*j1+4*j4}, v2")
        A("v_lshlrev_b32 v5, 1, v5")
        A("v_xor_b32 v5, v5, v3")
        A("v_mov_b32 v6, 1152")
        A("v_mov_b32 v7, 2160")
        A("v_cmp_le_u32 vcc, 9, v5")
        A("v_cndmask_b32 v6, v6, v7, vcc")
        A("v_mov_b32 v7, -288")
        A("v_cmp_le_u32 vcc, 18, v5")
        A("v_cndmask_b32 v6, v6, v7, vcc")
        A("v_lshl_add_u32 v6, v5, 4, v6")
        A(f"v_add_u32 v{WV+var}, v4, v6")
        A("v_cmp_le_u32 vcc, 27, v5")
        A(f"v_cndmask_b32 v{WV+var}, v{WV+var}, v9, vcc")
    A("s_mul_i32 s40, s35, 55296")
    A("s_lshl_b32 s41, s35, 13")
    A(f"s_add_u32 s41, s41, {XS}")
    def issue_block():
        A(f"s_mul_i32 s62, s61, {ST1}")
        A("s_add_u32 s63, s38, s62")
        A("s_add_u32 s62, s41, s62")
        for j in range(4):
            lab = None
            if j == 3:
                lab = A.newlabel(f"{n}_sk")
                A("s_cmp_ge_u32 s35, 2")
                A(f"s_cbranch_scc1 {lab}")
            A(f"s_add_u32 m0, s63, {1024*j}")
            A(f"s_add_u32 s52, s37, {9216*j}")
            if j < 2:
                A("s_cmp_lt_i32 s52, 0")
                A(f"s_cselect_b32 s52, 0x{BIGOFF:x}, s52")
            A(f"buffer_load_dwordx4 v{16+(j&1)}, s[44:47], s52 offen lds")
            if lab: A.label(lab)
        for j in range(8):
            var = (j & 1) + 2 * (j >> 2)
            A(f"s_add_u32 m0, s62, {1024*j}")
            A(f"s_add_u32 s52, s40, {6912*j}")
            A(f"buffer_load_dwordx4 v{WV+var}, s[48:51], s52 offen lds")
        A("s_add_u32 s37, s37, 128")
        A("s_add_u32 s40, s40, 221184")
        A("s_add_u32 s61, s61, 1")
        A("s_cmp_eq_u32 s61, 3")
        A("s_cselect_b32 s61, 0, s61")
    A("s_mov_b32 s61, 0")
    if OPT.get("r1", 1):
        A("v_and_b32 v2, 15, v1")
        A("v_lshrrev_b32 v3, 4, v1")
        attn_setup(A)
        A("s_waitcnt vmcnt(0)")
        A("s_barrier")
        stamp(A, 1)
        A("s_mov_b32 s60, 0")
        A.label(f"{n}_lp")
        issue_block()
        A("s_add_u32 s60, s60, 1")
        A("s_cmp_lt_u32 s60, 2")
        A(f"s_cbranch_scc1 {n}_lp")
        A("s_waitcnt vmcnt(11)")
        stamp(A, 2)
        A("s_barrier")
        issue_block()
    else:
        issue_block()
        stamp(A, 1)
        A("v_and_b32 v2, 15, v1")
        A("v_lshrrev_b32 v3, 4, v1")
        attn_setup(A)
        A("s_waitcnt vmcnt(0)")
        stamp(A, 2)
        A("s_barrier")
        A("s_mov_b32 s60, 0")
        A.label(f"{n}_lp")
        issue_block()
        A("s_add_u32 s60, s60, 1")
        A("s_cmp_lt_u32 s60, 2")
        A(f"s_cbranch_scc1 {n}_lp")
    stamp(A, 3)
    A("s_mov_b32 s60, 0")
    A.label(f"{n}_ll")
    A("s_waitcnt vmcnt(11)")
    A("s_barrier")
    issue_block()
    A("s_add_u32 s60, s60, 1")
    A("s_cmp_lt_u32 s60, 6")
    A(f"s_cbranch_scc1 {n}_ll")
    A("s_waitcnt vmcnt(11)")
    A("s_barrier")
    A("s_waitcnt vmcnt(0)")
    A("s_barrier")
    A("s_barrier")
    A.label(f"{n}_attn")
    A("s_waitcnt lgkmcnt(0)")
    A("s_barrier")
    stamp(A, 5)
    if OPT.get("hearly", 1):
        labh = A.newlabel("hea")
        A("s_cmp_ge_u32 s2, 64")
        A(f"s_cbranch_scc1 {labh}")
        A("s_and_b32 s36, s2, 7")
        A("s_mul_i32 s36, s36, 18")
        A("s_lshr_b32 s37, s2, 3")
        A("s_add_u32 s36, s36, s37")
        A("s_add_u32 s36, s36, 10")
        A(f"s_and_b32 s37, s{S_WAVE}, 3")
        A("s_lshl_b32 s36, s36, 2")
        A("s_add_u32 s36, s36, s37")
        A("s_lshl_b32 s36, s36, 12")
        make_srd(A, 48, P_H, 4096, add_s=36)
        HL = 170; a = HL + 26
        A(f"v_lshlrev_b32 v{a}, 4, v1")
        A(f"s_lshr_b32 s37, s{S_WAVE}, 2")
        A("s_lshl_b32 s37, s37, 11")
        A(f"v_add_u32 v{a}, s37, v{a}")
        A(f"v_add_u32 v{a+1}, 4, v{a}")
        A(f"v_add_u32 v{a+2}, 8, v{a}")
        for it in range(2):
            A(f"buffer_load_dwordx4 {v(HL+12*it,4)}, v{a}, s[48:51], 0 offen offset:{1024*it}")
            A(f"buffer_load_dwordx4 {v(HL+12*it+4,4)}, v{a+1}, s[48:51], 0 offen offset:{1024*it}")
            A(f"buffer_load_dwordx4 {v(HL+12*it+8,4)}, v{a+2}, s[48:51], 0 offen offset:{1024*it}")
        A(f"v_mov_b32 v{a+3}, 0")
        A(f"buffer_load_dwordx2 {v(HL+24,2)}, v{a+3}, s[48:51], 0 offen")
        A.label(labh)
    cst = struct.unpack("<I", struct.pack("<f", (18 ** -0.5) * math.log2(math.e)))[0]
    A(f"s_mov_b32 s42, 0x{cst:08x}")
    B = 24
    def regs(b): return B + 40 * b
    for b in range(3):
        R = regs(b)
        A(f"ds_read_b128 {v(R,4)}, v{V_KQ} offset:{8*HHS + 768*(b+1)}")
        A(f"ds_read_b128 {v(R+4,4)}, v{V_KQ} offset:{768*b}")
        A(f"ds_read_b128 {v(R+8,4)}, v{V_KQ} offset:{768*(b+1)}")
    for b in range(3):
        R = regs(b)
        A(f"ds_read_b64_tr_b16 {v(R+12,2)}, v{V_VT} offset:{4*HHS + 768*b}")
        A(f"ds_read_b64_tr_b16 {v(R+14,2)}, v{V_VT} offset:{4*HHS + 768*(b+1)}")
        A(f"ds_read_b64_tr_b16 {v(R+16,2)}, v{V_VT} offset:{4*HHS + 768*b + 32}")
        A(f"ds_read_b64_tr_b16 {v(R+18,2)}, v{V_VT} offset:{4*HHS + 768*(b+1) + 32}")
    for b in range(3):
        R = regs(b)
        A(f"s_waitcnt lgkmcnt({12 + 3*(2-b)})" if 12 + 3*(2-b) <= 15 else "s_waitcnt lgkmcnt(15)")
        A(f"v_cndmask_b32 v{R}, 0, v{R}, s[82:83]")
        for r in range(1, 4):
            A(f"v_cndmask_b32 v{R+r}, 0, v{R+r}, s[80:81]")
        A(f"v_mfma_f32_16x16x32_bf16 {v(R+20,4)}, {v(R+4,4)}, {v(R,4)}, 0")
        A(f"v_mfma_f32_16x16x32_bf16 {v(R+24,4)}, {v(R+8,4)}, {v(R,4)}, 0")
    for b in range(3):
        R = regs(b); S = R + 20
        for e in range(8):
            m = (84 + 2*e) if (b == 0 and e < 4) else (64 + 2*e)
            A(f"v_cndmask_b32 v{S+e}, v{V_NINF}, v{S+e}, s[{m}:{m+1}]")
        M = R + 28
        A(f"v_max3_f32 v{M}, v{S}, v{S+1}, v{S+2}")
        A(f"v_max3_f32 v{M}, v{M}, v{S+3}, v{S+4}")
        A(f"v_max3_f32 v{M}, v{M}, v{S+5}, v{S+6}")
        A(f"v_max_f32 v{M}, v{M}, v{S+7}")
    def xlane(op, b_regs):
        for kind in ("16", "32"):
            for (M, T) in b_regs: A(f"v_mov_b32 v{T}, v{M}")
            for (M, T) in b_regs: A(f"v_permlane{kind}_swap_b32 v{M}, v{T}")
            for (M, T) in b_regs: A(f"{op} v{M}, v{M}, v{T}")
    xlane("v_max_f32", [(regs(b)+28, regs(b)+29) for b in range(3)])
    for b in range(3):
        R = regs(b); M = R + 28
        A(f"v_mul_f32 v{M}, s42, v{M}")
    for b in range(3):
        R = regs(b); S = R + 20; M = R + 28
        for e in range(8): A(f"v_fma_f32 v{S+e}, v{S+e}, s42, -v{M}")
        for e in range(8): A(f"v_exp_f32 v{S+e}, v{S+e}")
    for b in range(3):
        R = regs(b); S = R + 20; M = R + 30
        A(f"v_add_f32 v{M}, v{S}, v{S+1}")
        A(f"v_add_f32 v{M+1}, v{S+2}, v{S+3}")
        A(f"v_add_f32 v{M}, v{M}, v{S+4}")
        A(f"v_add_f32 v{M+1}, v{M+1}, v{S+5}")
        A(f"v_add_f32 v{M}, v{M}, v{S+6}")
        A(f"v_add_f32 v{M+1}, v{M+1}, v{S+7}")
        A(f"v_add_f32 v{M}, v{M}, v{M+1}")
    xlane("v_add_f32", [(regs(b)+30, regs(b)+31) for b in range(3)])
    for b in range(3):
        A(f"v_rcp_f32 v{regs(b)+30}, v{regs(b)+30}")
    A("s_waitcnt lgkmcnt(0)")
    for b in range(3):
        R = regs(b); S = R + 20; M = R + 30
        for e in range(8): A(f"v_mul_f32 v{S+e}, v{S+e}, v{M}")
        for q in range(4): A(f"v_cvt_pk_bf16_f32 v{R+q}, v{S+2*q}, v{S+2*q+1}")
        A(f"v_mfma_f32_16x16x32_bf16 {v(R+32,4)}, {v(R+12,4)}, {v(R,4)}, 0")
        A(f"v_mfma_f32_16x16x32_bf16 {v(R+36,4)}, {v(R+16,4)}, {v(R,4)}, 0")
    for b in range(3):
        R = regs(b)
        A(f"v_cvt_pk_bf16_f32 v{R+4}, v{R+32}, v{R+33}")
        A(f"v_cvt_pk_bf16_f32 v{R+5}, v{R+34}, v{R+35}")
        A(f"v_cvt_pk_bf16_f32 v{R+6}, v{R+36}, v{R+37}")
        A(f"ds_write2_b32 v{V_OW+b}, v{R+4}, v{R+5} offset0:0 offset1:1")
    A("s_mov_b64 exec, 0xffff")
    for b in range(3):
        A(f"ds_write_b32 v{V_OW+b}, v{regs(b)+6} offset:32")
    A("s_mov_b64 exec, -1")
    make_srd(A, 44, P_WS, SZ_T, WS_OF)
    A("s_waitcnt lgkmcnt(0)")
    A("s_barrier")
    stamp(A, 6)
    for rnd in range(2):
        A(f"ds_read_b128 {v(20+4*rnd,4)}, v{V_OL+rnd}")
    for rnd in range(2):
        A(f"s_waitcnt lgkmcnt({1-rnd})")
        A(f"buffer_store_dwordx4 {v(20+4*rnd,4)}, v{V_OG+rnd}, s[44:47], 0 offen sc1")
    A("s_waitcnt vmcnt(0)")
    A("s_barrier")
    lab = A.newlabel("a1f")
    A(f"s_cmp_lg_u32 s{S_WAVE}, 0")
    A(f"s_cbranch_scc1 {lab}")
    nonce_resolve(A, "A")
    A("s_lshl_b32 s36, s32, 8")
    A("s_lshl_b32 s37, s33, 2")
    A("s_add_u32 s36, s36, s37")
    flag_store(A, "A", 36)
    A.label(lab)
    stamp(A, 7)

HC = 4160
URB = 4 * HC
WB = URB + 4608
XCH = 4 * WB
ZS = 4160

def b2_common(A, s_grp):
    A(f"s_and_b32 s32, s{S_WAVE}, 3")
    A(f"s_lshr_b32 s33, s{S_WAVE}, 2")
    A(f"s_lshl_b32 s34, s{s_grp}, 2")
    A("s_add_u32 s34, s34, s32")
    A("s_lshl_b32 s35, s34, 12")
    A(f"s_mul_i32 s36, s32, {WB}")
    make_srd(A, 44, P_H, 4096, add_s=35)
    A("s_lshl_b32 s37, s34, 1")
    A("s_and_b32 s38, s37, 0xfffffffc")
    A(f"s_load_dword s39, s[{P_D}:{P_D+1}], s38")

def b2_h_loads(A, HL, nits=2):
    a = HL + 12 * nits + 2
    A(f"v_lshlrev_b32 v{a}, 4, v1")
    if nits == 2:
        A("s_lshl_b32 s40, s33, 11")
        A(f"v_add_u32 v{a}, s40, v{a}")
    A(f"v_add_u32 v{a+1}, 4, v{a}")
    A(f"v_add_u32 v{a+2}, 8, v{a}")
    for it in range(nits):
        A(f"buffer_load_dwordx4 {v(HL+12*it,4)}, v{a}, s[44:47], 0 offen offset:{1024*it}")
        A(f"buffer_load_dwordx4 {v(HL+12*it+4,4)}, v{a+1}, s[44:47], 0 offen offset:{1024*it}")
        A(f"buffer_load_dwordx4 {v(HL+12*it+8,4)}, v{a+2}, s[44:47], 0 offen offset:{1024*it}")
    A(f"v_mov_b32 v{a+3}, 0")
    A(f"buffer_load_dwordx2 {v(HL+12*nits,2)}, v{a+3}, s[44:47], 0 offen")

def b2_h_stage(A, HL, T, nits=2):
    a = HL + 12 * nits + 2
    A(f"v_add_u32 v{a+1}, s36, v{a}")
    for it in range(nits):
        b = HL + 12 * it
        for i in range(4): A(f"v_alignbit_b32 v{T+i}, v{b+4+i}, v{b+i}, 16")
        for i in range(4): A(f"v_alignbit_b32 v{T+4+i}, v{b+8+i}, v{b+4+i}, 16")
        off = 32 + 1024 * it
        A(f"ds_write_b128 v{a+1}, {v(b,4)} offset:{off}")
        A(f"ds_write_b128 v{a+1}, {v(T,4)} offset:{off+HC}")
        A(f"ds_write_b128 v{a+1}, {v(b+4,4)} offset:{off+2*HC}")
        A(f"ds_write_b128 v{a+1}, {v(T+4,4)} offset:{off+3*HC}")
    d0, d1 = HL + 12*nits, HL + 12*nits + 1
    A(f"v_lshlrev_b32 v{T+8}, 16, v{d0}")
    A(f"v_alignbit_b32 v{T+9}, v{d1}, v{d0}, 16")
    Z = T + 10
    for r in range(0, 8, 2): A(f"v_mov_b64 {v(Z+r,2)}, 0")
    A("v_cmp_eq_u32 s[60:61], 1, v1")
    A("v_cmp_eq_u32 s[62:63], 2, v1")
    A("v_cmp_eq_u32 s[64:65], 3, v1")
    A(f"v_cndmask_b32 v{Z+7}, v{Z+7}, v{T+8}, s[60:61]")
    A(f"v_cndmask_b32 v{Z+7}, v{Z+7}, v{d0}, s[62:63]")
    A(f"v_cndmask_b32 v{Z+7}, v{Z+7}, v{T+9}, s[64:65]")
    A(f"v_cndmask_b32 v{Z+6}, v{Z+6}, v{T+8}, s[64:65]")
    A(f"v_mul_u32_u24 v{a+2}, {HC}, v1")
    A(f"v_add_u32 v{a+2}, s36, v{a+2}")
    A("s_mov_b64 exec, 0xf")
    A(f"ds_write_b128 v{a+2}, {v(Z,4)}")
    A(f"ds_write_b128 v{a+2}, {v(Z+4,4)} offset:16")
    A("s_mov_b64 exec, 0xffffffff")
    A(f"v_lshlrev_b32 v{a+2}, 4, v1")
    A(f"v_add_u32 v{a+2}, s36, v{a+2}")
    A(f"ds_write_b128 v{a+2}, {v(Z,4)} offset:{URB+4096}")
    A("s_mov_b64 exec, -1")

def b2_main(A, s_grp, sb, resolved):
    make_srd(A, 48, P_WS, 4096, WS_UR, add_s=35)
    make_srd(A, 52, P_Q, SZ_T)
    make_srd(A, 56, P_OUT, 2048 * 2304)
    A("v_and_b32 v3, 15, v1")
    A("v_lshrrev_b32 v4, 4, v1")
    A("v_lshlrev_b32 v5, 4, v1")
    A("s_lshl_b32 s40, s33, 11")
    A("v_add_u32 v5, s40, v5")
    A("v_add_u32 v10, s36, v5")
    A("v_lshlrev_b32 v9, 5, v3")
    A("v_lshl_add_u32 v9, v4, 3, v9")
    A(f"s_lshl_b32 s41, s{S_WAVE}, 8")
    A("v_add_u32 v8, s41, v1")
    A("s_movk_i32 s42, 1152")
    A("v_mul_lo_u32 v8, v8, s42")
    A(f"s_lshl_b32 s43, s{s_grp}, 3")
    A("v_add_u32 v8, s43, v8")
    A("v_add_u32 v12, 1, v3")
    A("v_and_b32 v13, 3, v12")
    A("v_lshrrev_b32 v12, 2, v12")
    A(f"v_mul_u32_u24 v13, {HC}, v13")
    A("v_lshl_add_u32 v13, v4, 4, v13")
    A("v_lshl_add_u32 v13, v12, 3, v13")
    A("s_lshl_b32 s41, s33, 8")
    A("s_add_u32 s41, s41, s36")
    A("v_add_u32 v13, s41, v13")
    A("v_lshlrev_b32 v14, 4, v4")
    A("v_lshlrev_b32 v15, 5, v3")
    A("v_sub_u32 v14, v14, v15")
    A(f"v_add_u32 v14, {URB+480}, v14")
    A("v_add_u32 v14, s41, v14")
    stamp(A, sb + 0)
    lab = A.newlabel("b2w")
    A(f"s_cmp_lg_u32 s{S_WAVE}, 0")
    A(f"s_cbranch_scc1 {lab}")
    if not resolved:
        A("s_waitcnt vmcnt(0)")
        nonce_resolve(A, "B")
    A(f"s_lshr_b32 s41, s{s_grp}, 4")
    A("s_lshl_b32 s41, s41, 8")
    flag_poll(A, "B", 41)
    A.label(lab)
    A("s_barrier")
    stamp(A, sb + 1)
    U = 68
    for it in range(2):
        A(f"buffer_load_dwordx4 {v(U+4*it,4)}, v5, s[48:51], 0 offen offset:{1024*it} sc1")
    Q = 84
    A(f"s_lshl_b32 s41, s{S_WAVE}, 12")
    A("v_lshlrev_b32 v6, 4, v1")
    A(f"v_add_u32 v6, {XCH}, v6")
    A("v_add_u32 v7, s41, v6")
    A(f"s_xor_b32 s42, s{S_WAVE}, 4")
    A("s_lshl_b32 s42, s42, 12")
    A("v_add_u32 v6, s42, v6")
    A(f"v_sub_u32 v11, {URB+504}, v9")
    A("s_lshl_b32 s41, s33, 11")
    A("s_sub_u32 s42, s36, s41")
    A("v_add_u32 v11, s42, v11")
    A(f"s_mul_i32 s42, s32, {ZS}")
    A("s_add_u32 s42, s42, s41")
    A("v_add_u32 v9, s42, v9")
    A("s_waitcnt vmcnt(0)")
    for it in range(2):
        A(f"ds_write_b128 v10, {v(U+4*it,4)} offset:{URB+1024*it}")
    for it in range(4): A(f"s_mov_b32 s{60+it}, {64*1152*it}")
    A("s_waitcnt lgkmcnt(0)")
    A("s_barrier")
    stamp(A, sb + 2)
    ACC = 208
    FA = [104, 16]
    def frag_reads(rho, base):
        lst = []
        for b in range(8):
            lst.append(f"ds_read_b128 {v(base+32+4*b,4)}, v14 offset:{64*rho+512*(7-b)}")
        aa_l = []
        for aa in range(8):
            aa_l.append(f"ds_read_b64 {v(base+4*aa,2)}, v13 offset:{512*aa+64*rho}")
            aa_l.append(f"ds_read_b64 {v(base+4*aa+2,2)}, v13 offset:{512*aa+64*rho+8}")
        return aa_l[:2] + lst + aa_l[2:]
    for r_ in frag_reads(0, FA[0]): A(r_)
    UU = 88
    UU = 92
    for rho in range(4):
        base = FA[rho & 1]
        A("s_waitcnt lgkmcnt(0)")
        rd = frag_reads(rho + 1, FA[(rho + 1) & 1]) if rho < 3 else [f"ds_read_b64 {v(UU+2*c,2)}, v11 offset:{512*(7-c)}" for c in range(4)]
        i = 0
        A(f"buffer_load_dwordx2 {v(Q+2*rho,2)}, v8, s[52:55], s{60+rho} offen")
        for aa in range(8):
            for b in range(8 - aa):
                c = aa + b
                src = "0" if (rho == 0 and aa == 0) else v(ACC+4*c, 4)
                A(f"v_mfma_f32_16x16x32_bf16 {v(ACC+4*c,4)}, {v(base+4*aa,4)}, {v(base+32+4*b,4)}, {src}")
                if i < len(rd): A(rd[i]); i += 1
    stamp(A, sb + 3)
    l1 = A.newlabel("b2h1"); l2 = A.newlabel("b2x")
    KP = 192
    A("s_cmp_eq_u32 s33, 1")
    A(f"s_cbranch_scc1 {l1}")
    for c in range(4): A(f"ds_write_b128 v7, {v(ACC+16+4*c,4)} offset:{1024*c}")
    for c in range(8): A(f"v_mov_b64 {v(KP+2*c,2)}, {v(ACC+2*c,2)}")
    A(f"s_branch {l2}")
    A.label(l1)
    for c in range(4): A(f"ds_write_b128 v7, {v(ACC+4*c,4)} offset:{1024*c}")
    for c in range(8): A(f"v_mov_b64 {v(KP+2*c,2)}, {v(ACC+16+2*c,2)}")
    A.label(l2)
    A("s_and_b32 s37, s37, 2")
    A("s_lshl_b32 s37, s37, 3")
    A("s_waitcnt lgkmcnt(0)")
    A("s_lshr_b32 s39, s39, s37")
    A("s_lshl_b32 s39, s39, 16")
    TT = 16
    for c in range(4):
        A(f"v_and_b32 v{TT+4*c+0}, 0xffff0000, v{UU+2*c+1}")
        A(f"v_lshlrev_b32 v{TT+4*c+1}, 16, v{UU+2*c+1}")
        A(f"v_and_b32 v{TT+4*c+2}, 0xffff0000, v{UU+2*c}")
        A(f"v_lshlrev_b32 v{TT+4*c+3}, 16, v{UU+2*c}")
    for e in range(16): A(f"v_fma_f32 v{KP+e}, v{TT+e}, s39, v{KP+e}")
    A("s_barrier")
    for c in range(4): A(f"ds_read_b128 {v(48+4*c,4)}, v6 offset:{1024*c}")
    for c in range(4):
        A(f"s_waitcnt lgkmcnt({3-c})")
        for r in range(4): A(f"v_add_f32 v{KP+4*c+r}, v{KP+4*c+r}, v{48+4*c+r}")
        A(f"v_cvt_pk_bf16_f32 v{64+2*c}, v{KP+4*c}, v{KP+4*c+1}")
        A(f"v_cvt_pk_bf16_f32 v{65+2*c}, v{KP+4*c+2}, v{KP+4*c+3}")
        A(f"ds_write_b64 v9, {v(64+2*c,2)} offset:{512*c}")
    A("s_waitcnt vmcnt(0)")
    QF = 32
    for it in range(4):
        A(f"v_lshlrev_b32 v{QF+4*it+0}, 16, v{Q+2*it}")
        A(f"v_and_b32 v{QF+4*it+1}, 0xffff0000, v{Q+2*it}")
        A(f"v_lshlrev_b32 v{QF+4*it+2}, 16, v{Q+2*it+1}")
        A(f"v_and_b32 v{QF+4*it+3}, 0xffff0000, v{Q+2*it+1}")
    A("v_lshrrev_b32 v12, 2, v3")
    A(f"v_mul_u32_u24 v12, {ZS}, v12")
    A("v_and_b32 v13, 3, v3")
    A("v_lshl_add_u32 v12, v13, 3, v12")
    A("v_lshl_add_u32 v12, v4, 5, v12")
    A(f"s_lshl_b32 s41, s{S_WAVE}, 9")
    A("v_add_u32 v12, s41, v12")
    A(f"s_lshl_b32 s41, s{S_WAVE}, 8")
    A("v_add_u32 v13, s41, v1")
    A("s_movk_i32 s42, 2304")
    A(f"s_lshl_b32 s43, s{s_grp}, 3")
    A("s_add_u32 s43, s43, 1152")
    A("v_mul_lo_u32 v13, v13, s42")
    A("v_add_u32 v13, s43, v13")
    for it in range(4): A(f"s_mov_b32 s{60+it}, {64*2304*it}")
    A("s_waitcnt lgkmcnt(0)")
    A("s_barrier")
    for it in range(4):
        A(f"ds_read_b64_tr_b16 {v(16+2*it,2)}, v12 offset:{128*it}")
    for it in range(4):
        A(f"s_waitcnt lgkmcnt({3-it})")
        t = 48 + 4 * it
        A(f"v_lshlrev_b32 v{t+0}, 16, v{16+2*it}")
        A(f"v_and_b32 v{t+1}, 0xffff0000, v{16+2*it}")
        A(f"v_lshlrev_b32 v{t+2}, 16, v{16+2*it+1}")
        A(f"v_and_b32 v{t+3}, 0xffff0000, v{16+2*it+1}")
        for r in range(4): A(f"v_mul_f32 v{t+r}, v{t+r}, v{QF+4*it+r}")
        A(f"v_cvt_pk_bf16_f32 v{64+2*it}, v{t}, v{t+1}")
        A(f"v_cvt_pk_bf16_f32 v{65+2*it}, v{t+2}, v{t+3}")
        A(f"buffer_store_dwordx2 {v(64+2*it,2)}, v13, s[56:59], s{60+it} offen" + (" sc1" if OPT.get("b2sc1") else ""))
    stamp(A, sb + 4)

def b1_addr(A, s_tile, vt):
    A(f"s_mul_hi_u32 s66, s{s_tile}, 0x1c71c71d")
    A("s_mul_i32 s67, s66, 9")
    A(f"s_sub_u32 s67, s{s_tile}, s67")
    A(f"v_and_b32 v2, 7, v{vt}")
    A(f"v_lshrrev_b32 v3, 3, v{vt}")
    A("s_lshl_b32 s40, s66, 8")
    A("v_lshl_add_u32 v4, v3, 3, s40")
    A("s_lshl_b32 s41, s67, 7")
    A("v_lshl_add_u32 v5, v2, 4, s41")
    A("s_movk_i32 s42, 1152")
    A("v_mad_u32_u24 v6, v4, s42, v5")
    A("v_add_u32 v7, 4608, v6")

def gen_b1_kv(A, s_tile):
    A.comment("===== B1 kv (waves 0-3) =====")
    b1_addr(A, s_tile, 0)
    A("v_subrev_u32 v8, 3456, v6")
    A("v_subrev_u32 v9, 2304, v6")
    A("v_subrev_u32 v10, 1152, v6")
    make_srd(A, 48, P_K, SZ_T)
    make_srd(A, 52, P_V, SZ_T)
    make_srd(A, 56, P_SH, 576 * 8)
    KR, VR, SH, W = 16, 60, 92, 108
    KF, VF, ACC, OUT = 140, 162, 178, 194
    for j, vo in enumerate((8, 9, 10)):
        A(f"buffer_load_dwordx4 {v(KR+4*j,4)}, v{vo}, s[48:51], 0 offen")
    for i in range(8):
        A(f"buffer_load_dwordx4 {v(KR+4*(3+i),4)}, v{6 if i < 4 else 7}, s[48:51], 0 offen offset:{1152*(i%4)}")
    for i in range(8):
        A(f"buffer_load_dwordx4 {v(VR+4*i,4)}, v{6 if i < 4 else 7}, s[52:55], 0 offen offset:{1152*(i%4)}")
    A("s_lshl_b32 s43, s67, 9")
    A("v_lshl_add_u32 v11, v2, 6, s43")
    for i in range(4):
        A(f"buffer_load_dwordx4 {v(SH+4*i,4)}, v11, s[56:59], 0 offen offset:{16*i}")
    stamp(A, 2)
    make_srd(A, 52+8, P_WS, SZ_T, WS_UR)
    A("s_lshl_b32 s43, s67, 18")
    A("v_lshl_add_u32 v12, v2, 15, s43")
    A("v_lshlrev_b32 v14, 1, v4")
    A("v_sub_u32 v12, v12, v14")
    A("v_add_u32 v12, 4080, v12")
    for ch in range(8): A(f"s_mov_b32 s{68+ch}, {ch*4096}")
    A("s_waitcnt vmcnt(0)")
    A("s_barrier")
    stamp(A, 3)
    for ch in range(8):
        A(f"v_lshlrev_b32 v{W+0*8+ch}, 16, v{SH+2*ch}")
        A(f"v_and_b32 v{W+1*8+ch}, 0xffff0000, v{SH+2*ch}")
        A(f"v_lshlrev_b32 v{W+2*8+ch}, 16, v{SH+2*ch+1}")
        A(f"v_and_b32 v{W+3*8+ch}, 0xffff0000, v{SH+2*ch+1}")
    for m in range(4):
        for j in range(11):
            A(f"v_lshlrev_b32 v{KF+2*j}, 16, v{KR+4*j+m}")
            A(f"v_and_b32 v{KF+2*j+1}, 0xffff0000, v{KR+4*j+m}")
        for i in range(8):
            A(f"v_lshlrev_b32 v{VF+2*i}, 16, v{VR+4*i+m}")
            A(f"v_and_b32 v{VF+2*i+1}, 0xffff0000, v{VR+4*i+m}")
        for i in range(8):
            A(f"v_pk_mul_f32 {v(ACC+2*i,2)}, {v(W+3*8+2*m,2)}, {v(KF+2*i,2)}")
        for t in (2, 1, 0):
            for i in range(8):
                A(f"v_pk_fma_f32 {v(ACC+2*i,2)}, {v(W+t*8+2*m,2)}, {v(KF+2*(i+3-t),2)}, {v(ACC+2*i,2)}")
        for i in range(8):
            A(f"v_pk_mul_f32 {v(ACC+2*i,2)}, {v(ACC+2*i,2)}, {v(VF+2*i,2)}")
        o = OUT + 8 * (m & 1)
        for h in range(2):
            for q in range(4):
                A(f"v_cvt_pk_bf16_f32 v{o+4*h+q}, v{ACC+2*(7-2*q)+h}, v{ACC+2*(6-2*q)+h}")
        for h in range(2):
            A(f"buffer_store_dwordx4 {v(o+4*h,4)}, v12, s[60:63], s{68+2*m+h} offen sc1")
    stamp(A, 4)

def tlb_warm(A):
    items = []
    for p, size in ((P_K, SZ_T), (P_V, SZ_T), (P_Q, SZ_T), (P_H, SZ_T), (P_WO, 576*1152), (P_OUT, 2048*2304), (P_SH, 64), (P_D, 64)):
        offs = list(range(0, size, 2 << 20))
        offs.append(size - 128 if size > 128 else 0)
        for o in sorted(set(offs)): items.append((p, o))
    for o in (0, (2 << 20) + (1 << 20), (4 << 20), (6 << 20) + (1 << 20), (8 << 20), (10 << 20) + (1 << 20), (12 << 20)):
        items.append((P_WS, o))
    assert len(items) <= 64
    A(f"v_mov_b32 v20, s{P_WS}")
    A(f"v_mov_b32 v21, s{P_WS+1}")
    for i, (p, o) in enumerate(items):
        A(f"s_add_u32 s96, s{p}, {o}")
        A(f"s_addc_u32 s97, s{p+1}, 0")
        A(f"v_writelane_b32 v20, s96, {i}")
        A(f"v_writelane_b32 v21, s97, {i}")
    A("global_load_dword v245, v[20:21], off")

def b_prefetch(A):
    make_srd(A, 48, P_X, SZ_T)
    make_srd(A, 52, P_W, 576 * 3456)
    lab = A.newlabel("bpf"); lab1 = A.newlabel("bpf1")
    if OPT.get("r1", 1):
        A(f"s_cmp_ge_u32 s{S_WAVE}, 5")
        A(f"s_cbranch_scc1 {lab1}")
        A("s_lshr_b32 s40, s2, 3")
        a_prefetch_setup(A, 10, 12, 4, 40, 32)
        a_prefetch_issue(A, 10, 12, S_WAVE, 48, 52, 240)
        A(f"s_branch {lab}")
        A.label(lab1)
        A(f"s_cmp_ge_u32 s{S_WAVE}, {OPT.get('af', 7)}")
        A(f"s_cbranch_scc1 {lab}")
        A("s_lshr_b32 s40, s91, 3")
        a_prefetch_setup(A, 10, 12, 4, 40, 10)
        a_prefetch_issue(A, 10, 12, S_WAVE, 48, 52, 240, two=True)
    else:
        A(f"s_cmp_ge_u32 s{S_WAVE}, {OPT.get('af', 7) - 1}")
        A(f"s_cbranch_scc1 {lab}")
        A("s_lshr_b32 s40, s91, 3")
        a_prefetch_setup(A, 10, 12, 4, 40, 10)
        A(f"s_add_u32 s40, s{S_WAVE}, 1")
        a_prefetch_issue(A, 10, 12, 40, 48, 52, 240, two=True)
    A.label(lab)
    if OPT.get("tlb"):
        lab2 = A.newlabel("tlb")
        A(f"s_cmp_lg_u32 s{S_WAVE}, 7")
        A(f"s_cbranch_scc1 {lab2}")
        tlb_warm(A)
        A.label(lab2)
    get_nonce_issue(A, "B")

def gen_b1_aux(A, s_tile, has_tile):
    A.comment("===== B1 aux (waves 4-7) =====")
    HL = 130
    if has_tile:
        A("s_barrier")
    b2_h_loads(A, HL, 4)
    make_srd(A, 48, P_Q, SZ_T)
    A("s_lshr_b32 s40, s91, 3")
    A("s_lshl_b32 s40, s40, 2")
    A("s_add_u32 s40, s40, s32")
    A("s_mul_i32 s40, s40, 52")
    A("v_add_u32 v10, s40, v1")
    A("s_and_b32 s41, s2, 7")
    A("s_mul_i32 s41, s41, 144")
    A("s_and_b32 s41, s41, 0xffffff80")
    A("s_movk_i32 s42, 1152")
    A("v_mul_lo_u32 v11, v10, s42")
    A("v_add_u32 v11, s41, v11")
    A(f"v_mov_b32 v12, 0x{BIGOFF:x}")
    A("v_cmp_le_u32 vcc, 52, v1")
    A("v_cndmask_b32 v11, v11, v12, vcc")
    A("buffer_load_dword v243, v11, s[48:51], 0 offen")
    A("buffer_load_dword v244, v11, s[48:51], 0 offen offset:128")
    stamp(A, 2)
    A("s_waitcnt vmcnt(2)")
    stamp(A, 4)
    b2_h_stage(A, HL, 100, 4)

WO_B = 72 * 1024

def gen_a2(A, s_x, s_a, sb):
    A.comment("===== A2 =====")
    A(f"s_sub_u32 s34, s{s_a}, 4")
    A("s_lshr_b32 s33, s34, 1")
    A("s_add_u32 s33, s33, 4")
    A("s_and_b32 s34, s34, 1")
    A(f"s_cmp_lt_u32 s{s_a}, 4")
    A(f"s_cselect_b32 s33, s{s_a}, s33")
    A("s_cselect_b32 s34, 0, s34")
    A("s_cselect_b32 s42, 2, 1")
    A(f"s_lshl_b32 s32, s{s_x}, 1")
    A("s_add_u32 s32, s32, s34")
    make_srd(A, 44, P_WO, 576 * 1152)
    A("v_lshrrev_b32 v2, 3, v1")
    A("v_and_b32 v3, 7, v1")
    A("v_bfe_u32 v4, v1, 4, 1")
    A("v_lshlrev_b32 v4, 1, v4")
    A("v_xor_b32 v4, v4, v3")
    A("v_mul_u32_u24 v5, 1152, v2")
    A("v_lshl_add_u32 v5, v4, 4, v5")
    A("s_lshl_b32 s34, s33, 7")
    A("v_add_u32 v10, s34, v5")
    A("v_xor_b32 v11, 64, v10")
    A(f"s_mul_i32 s35, s{S_WAVE}, 9")
    A("s_and_b32 s36, s35, 1")
    A("s_cmp_eq_u32 s36, 1")
    A("s_cselect_b64 s[56:57], -1, 0")
    A("v_cndmask_b32 v12, v10, v11, s[56:57]")
    A("v_cndmask_b32 v13, v11, v10, s[56:57]")
    A("s_lshl_b32 s36, s33, 3")
    A("s_add_u32 s36, s36, s35")
    A("s_lshl_b32 s37, s35, 10")
    for j in range(9):
        A(f"s_add_u32 s38, s36, {j}")
        A("s_sub_u32 s39, s38, 72")
        A("s_cmp_ge_u32 s38, 72")
        A("s_cselect_b32 s38, s39, s38")
        A("s_mul_i32 s38, s38, 9216")
        A(f"s_add_u32 m0, s37, {1024*j}")
        A(f"buffer_load_dwordx4 v{12+(j&1)}, s[44:47], s38 offen lds")
    make_srd(A, 48, P_WS, SZ_T, WS_OF)
    make_srd(A, 52, P_OUT, 2048 * 2304)
    A("s_lshl_b32 s38, s32, 3")
    A(f"s_add_u32 s38, s38, s{S_WAVE}")
    A("s_mul_i32 s39, s38, 18432")
    A("v_lshlrev_b32 v2, 4, v1")
    A("v_add_u32 v2, s39, v2")
    A("v_add_u32 v3, 4096, v2"); A("v_add_u32 v4, 8192, v2"); A("v_add_u32 v5, 12288, v2"); A("v_add_u32 v6, 16384, v2")
    A("v_and_b32 v7, 15, v1")
    A("v_lshrrev_b32 v8, 4, v1")
    A("v_lshrrev_b32 v9, 2, v7")
    A("v_lshl_add_u32 v9, v8, 3, v9")
    A("v_lshlrev_b32 v9, 7, v9")
    A("v_and_b32 v10, 1, v7")
    A("v_lshl_add_u32 v9, v10, 3, v9")
    A("v_bfe_u32 v10, v7, 3, 1")
    A("v_and_b32 v11, 1, v8")
    A("v_lshl_add_u32 v10, v11, 1, v10")
    A("v_lshlrev_b32 v10, 1, v10")
    A("v_bfe_u32 v11, v7, 1, 1")
    for nt in range(4):
        A(f"v_add_u32 v14, {2*nt}, v11")
        A("v_xor_b32 v14, v14, v10")
        A(f"v_lshl_add_u32 v{16+nt}, v14, 4, v9")
        A(f"v_add_u32 v{20+nt}, 36864, v{16+nt}")
    A(f"s_mul_i32 s40, s{S_WAVE}, 2304")
    A(f"s_add_u32 s40, s40, {WO_B}")
    A("v_mul_u32_u24 v9, 144, v7")
    A("v_lshl_add_u32 v9, v8, 3, v9")
    A("v_add_u32 v9, s40, v9")
    A("v_lshrrev_b32 v10, 3, v1")
    A("v_and_b32 v11, 7, v1")
    A("v_mul_u32_u24 v12, 144, v10")
    A("v_lshl_add_u32 v12, v11, 4, v12")
    A("v_add_u32 v12, s40, v12")
    A("s_mul_i32 s39, s38, 36864")
    A("s_lshl_b32 s41, s33, 7")
    A("s_add_u32 s39, s39, s41")
    A("v_mul_u32_u24 v13, 2304, v10")
    A("v_lshl_add_u32 v13, v11, 4, v13")
    A("v_add_u32 v13, s39, v13")
    A("v_add_u32 v14, 18432, v13")
    stamp(A, sb + 0)
    lab = A.newlabel("a2w")
    A(f"s_cmp_lg_u32 s{S_WAVE}, 0")
    A(f"s_cbranch_scc1 {lab}")
    A("s_lshl_b32 s39, s32, 7")
    A("s_mul_hi_u32 s40, s39, 0x2aaaaab")
    A("s_lshl_b32 s41, s42, 7")
    A("s_add_u32 s39, s39, s41")
    A("s_sub_u32 s39, s39, 1")
    A("s_mul_hi_u32 s41, s39, 0x2aaaaab")
    make_srd(A, 92, P_WS, 65536, WS_FA)
    A("v_lshrrev_b32 v250, 3, v1")
    A("v_add_u32 v250, s40, v250")
    A("v_min_u32 v250, s41, v250")
    A("v_lshlrev_b32 v250, 8, v250")
    A("v_and_b32 v249, 7, v1")
    A("v_lshl_add_u32 v250, v249, 2, v250")
    A("s_mov_b64 exec, 0xffffffff")
    lp = A.newlabel("poll"); done = A.newlabel("polld")
    A("s_mov_b32 s88, 100000")
    A.label(lp)
    A("buffer_load_dword v251, v250, s[92:95], 0 offen sc1")
    A("s_waitcnt vmcnt(0)")
    A(f"v_cmp_ne_u32 vcc, s{S_NA}, v251")
    A("s_nop 4")
    A(f"s_cbranch_vccz {done}")
    A("s_sleep 2")
    A("s_sub_u32 s88, s88, 1")
    A("s_cmp_lg_u32 s88, 0")
    A(f"s_cbranch_scc1 {lp}")
    A.label(done)
    A("s_mov_b64 exec, -1")
    A.label(lab)
    A("s_waitcnt vmcnt(0)")
    A("s_barrier")
    stamp(A, sb + 1)
    BF = [24, 136]
    ACC = 96
    AF = [112, 120]
    AF = [112, 208, 224]
    def oloads(base, extra):
        A("s_lshl_b32 s44, s33, 1")
        for j in range(18):
            A("s_lshl_b32 s45, s44, 10")
            if extra: A("s_add_u32 s45, s45, s43")
            A(f"buffer_load_dwordx4 {v(base+4*j,4)}, v2, s[48:51], s45 offen sc1")
            A("s_add_u32 s44, s44, 1")
            A("s_cmp_eq_u32 s44, 18")
            A("s_cselect_b32 s44, 0, s44")
    def reads(ks, base):
        lst = []
        for nt in range(4):
            va = (16 if ks < 9 else 20) + nt
            for h in range(2):
                lst.append(f"ds_read_b64_tr_b16 {v(base+4*nt+2*h,2)}, v{va} offset:{(ks%9)*4096 + h*512}")
        return lst
    def tile(bf, mode, soff):
        for r_ in reads(0, AF[0]): A(r_)
        for r_ in reads(1, AF[1]): A(r_)
        if mode == 1: A("s_lshl_b32 s44, s33, 1")
        for ks in range(18):
            rd = reads(ks + 2, AF[(ks+2) % 3]) if ks < 16 else []
            cnt = {0: 17 - ks, 1: 17, 2: 17 - ks + 2}[mode]
            A(f"s_waitcnt vmcnt({cnt}) lgkmcnt({8 if ks < 17 else 0})")
            i = 0
            for nt in range(4):
                c = "0" if ks == 0 else v(ACC+4*nt, 4)
                A(f"v_mfma_f32_16x16x32_bf16 {v(ACC+4*nt,4)}, {v(AF[ks%3]+4*nt,4)}, {v(bf+4*ks,4)}, {c}")
                for _ in range(2):
                    if i < len(rd): A(rd[i]); i += 1
            if mode == 1:
                A("s_lshl_b32 s45, s44, 10")
                A("s_add_u32 s45, s45, s43")
                A(f"buffer_load_dwordx4 {v(BF[1]+4*ks,4)}, v2, s[48:51], s45 offen sc1")
                A("s_add_u32 s44, s44, 1")
                A("s_cmp_eq_u32 s44, 18")
                A("s_cselect_b32 s44, 0, s44")
        for nt in range(4):
            A(f"v_cvt_pk_bf16_f32 v{128+2*nt}, v{ACC+4*nt}, v{ACC+4*nt+1}")
            A(f"v_cvt_pk_bf16_f32 v{129+2*nt}, v{ACC+4*nt+2}, v{ACC+4*nt+3}")
            A(f"ds_write_b64 v9, {v(128+2*nt,2)} offset:{32*nt}")
        A("s_waitcnt lgkmcnt(0)")
        A("ds_read_b128 v[128:131], v12")
        A("ds_read_b128 v[132:135], v12 offset:1152")
        A("s_waitcnt lgkmcnt(1)")
        A(f"buffer_store_dwordx4 v[128:131], v13, s[52:55], {soff} offen" + (" sc1" if OPT.get("a2sc1") else ""))
        A("s_waitcnt lgkmcnt(0)")
        A(f"buffer_store_dwordx4 v[132:135], v14, s[52:55], {soff} offen" + (" sc1" if OPT.get("a2sc1") else ""))
    oloads(BF[0], False)
    l2 = A.newlabel("a2two"); lend = A.newlabel("a2end")
    A("s_cmp_eq_u32 s42, 2")
    A(f"s_cbranch_scc1 {l2}")
    tile(BF[0], 0, "0")
    A(f"s_branch {lend}")
    A.label(l2)
    A(f"s_mov_b32 s43, {8*18432}")
    tile(BF[0], 1, "0")
    stamp(A, sb + 2)
    A(f"s_mov_b32 s43, {128*2304}")
    tile(BF[1], 2, "s43")
    A.label(lend)
    stamp(A, sb + 3)

def build(path, stamps=False):
    global STAMPS
    STAMPS = stamps
    A = Asm()
    A.raw(f".globl {NAME}\n.p2align 8\n.type {NAME},@function\n{NAME}:")
    A("s_cmp_ge_u32 s2, 256")
    A("s_cbranch_scc1 L_end")
    A("s_load_dwordx16 s[4:19], s[0:1], 0")
    A("s_load_dwordx8 s[20:27], s[0:1], 64")
    A("s_memrealtime s[30:31]")
    if OPT.get("codepf", 1):
        A("s_getpc_b64 s[32:33]")
        A.label("L_pc")
        A("s_lshr_b32 s34, s2, 3")
        A("s_mul_i32 s34, s34, CODE_LPW*128")
        A("v_and_b32 v3, 63, v0")
        A("v_lshlrev_b32 v3, 7, v3")
        A("v_add_u32 v3, s34, v3")
        A("v_cmp_gt_u32 vcc, (L_end-L_pc), v3")
        A("v_cmp_gt_u32 s[36:37], CODE_LPW, v0")
        A("s_and_b64 vcc, vcc, s[36:37]")
        A("s_and_saveexec_b64 s[36:37], vcc")
        labc = A.newlabel("cpf")
        A(f"s_cbranch_execz {labc}")
        A("global_load_dword v247, v3, s[32:33]")
        A.label(labc)
        A("s_mov_b64 exec, s[36:37]")
    A("v_lshrrev_b32 v2, 6, v0")
    A("v_and_b32 v1, 63, v0")
    A(f"v_readfirstlane_b32 s{S_WAVE}, v2")
    A("s_waitcnt lgkmcnt(0)")
    A(f"s_or_b32 s{S_MY}, s30, 1")
    if STAMPS: A("v_mov_b32 v246, -1")
    stamp(A, 0)
    if STAMPS:
        A("s_memtime s[100:101]")
        A("s_waitcnt lgkmcnt(0)")
        A("v_writelane_b32 v246, s100, 16")
    A("s_cmp_ge_u32 s2, 176")
    A("s_cbranch_scc1 L_bset")
    gen_a1(A)
    A("s_cmp_lt_u32 s2, 64")
    A("s_cbranch_scc1 L_a_b2")
    A("s_and_b32 s90, s2, 7")
    A("s_sub_u32 s91, s2, 64")
    A("s_lshr_b32 s91, s91, 3")
    gen_a2(A, 90, 91, 8)
    A("s_branch L_fin")
    A.label("L_a_b2")
    A("s_and_b32 s90, s2, 7")
    A("s_mul_i32 s90, s90, 18")
    A("s_lshr_b32 s91, s2, 3")
    A("s_add_u32 s90, s90, s91")
    A("s_add_u32 s90, s90, 10")
    get_nonce_issue(A, "B")
    b2_common(A, 90)
    if not OPT.get("hearly", 1):
        b2_h_loads(A, 170, 2)
    A("s_waitcnt vmcnt(0)")
    b2_h_stage(A, 170, 112, 2)
    b2_main(A, 90, 8, resolved=False)
    A("s_branch L_fin")
    A.label("L_bset")
    A("s_sub_u32 s91, s2, 176")
    A("s_and_b32 s90, s91, 7")
    A("s_mul_i32 s90, s90, 18")
    A("s_lshr_b32 s89, s91, 3")
    A("s_add_u32 s90, s90, s89")
    b_prefetch(A)
    b2_common(A, 90)
    if OPT.get("bwait", 1):
        A("s_waitcnt vmcnt(0)")
        A("s_barrier")
    stamp(A, 1)
    A("s_cmp_ge_u32 s91, 72")
    A("s_cbranch_scc1 L_b_nob1")
    A(f"s_cmp_ge_u32 s{S_WAVE}, 4")
    A("s_cbranch_scc1 L_b_aux")
    gen_b1_kv(A, 91)
    A("s_branch L_b_join")
    A.label("L_b_aux")
    gen_b1_aux(A, 91, True)
    A.label("L_b_join")
    A("s_waitcnt vmcnt(0) lgkmcnt(0)")
    A("s_barrier")
    lab = A.newlabel("b1f")
    A(f"s_cmp_lg_u32 s{S_WAVE}, 0")
    A(f"s_cbranch_scc1 {lab}")
    nonce_resolve(A, "B")
    A("s_lshl_b32 s40, s67, 8")
    A("s_lshl_b32 s41, s66, 2")
    A("s_add_u32 s40, s40, s41")
    flag_store(A, "B", 40)
    A.label(lab)
    A("s_branch L_b_b2")
    A.label("L_b_nob1")
    lab = A.newlabel("bnx")
    A(f"s_cmp_lt_u32 s{S_WAVE}, 4")
    A(f"s_cbranch_scc1 {lab}")
    gen_b1_aux(A, 91, False)
    A.label(lab)
    A("s_waitcnt vmcnt(0)")
    lab = A.newlabel("bz")
    A(f"s_cmp_lg_u32 s{S_WAVE}, 0")
    A(f"s_cbranch_scc1 {lab}")
    nonce_resolve(A, "B")
    A.label(lab)
    A.label("L_b_b2")
    b2_main(A, 90, 5, resolved=True)
    A.label("L_fin")
    stamp_flush(A)
    A.label("L_end")
    A("s_endpgm")
    body = A.finalize()
    lds = max(3 * ST1, XCH + 8 * 4096, WO_B + 8 * 2304)
    out = HEADER + f"; @launch grid=(256,1,1) block=(512,1,1) lds={lds}\n"
    out += '.amdgcn_target "amdgcn-amd-amdhsa--gfx950"\n.text\n.set CODE_LPW, 16\n' + body
    out += '.section .rodata,"a"\n.p2align 6\n' + kd(NAME, 256)
    open(path, "w").write(out)

if __name__ == "__main__":
    for a in sys.argv[3:]:
        k, x = a.split("="); OPT[k] = int(x)
    build(sys.argv[1], stamps=(len(sys.argv) > 2 and sys.argv[2] == "stamps"))
```

```python
import sys, struct, math
from asmlib import *
from gen_common import HEADER, kd

NAME = "concat_heads__sliding_local_dilated__ssm_conv_h3__prompt_kernel"
SZ_T = 576 * 2048 * 2
WS_UR = 4096
WS_QT = (4 << 20) + 4096
WS_OF = (8 << 20) + 4096
WS_FA = (12 << 20) + 4096
WS_FB = WS_FA + 65536
STAMP_OFF = 16 << 20
BIGOFF = 0x7FFF0000
PL = 141312
PC = 141328

P_X, P_W, P_WO, P_Q, P_K, P_V, P_SH, P_H, P_D, P_OUT, P_DBG, P_WS = 4, 6, 8, 10, 12, 14, 16, 18, 20, 22, 24, 26
S_MY, S_WAVE, S_NA, S_NB = 28, 29, 30, 31
V_NA, V_NB = 252, 254
STAMPS = False
OPT = {}

def make_srd(A, dst, ptr, nbytes, add=0, add_s=None):
    if add_s is not None:
        A(f"s_add_u32 s{dst}, s{ptr}, s{add_s}")
        A(f"s_addc_u32 s{dst+1}, s{ptr+1}, 0")
        if add:
            A(f"s_add_u32 s{dst}, s{dst}, {add}")
            A(f"s_addc_u32 s{dst+1}, s{dst+1}, 0")
        A(f"s_and_b32 s{dst+1}, s{dst+1}, 0xffff")
    elif add:
        A(f"s_add_u32 s{dst}, s{ptr}, {add}")
        A(f"s_addc_u32 s{dst+1}, s{ptr+1}, 0")
        A(f"s_and_b32 s{dst+1}, s{dst+1}, 0xffff")
    else:
        A(f"s_mov_b32 s{dst}, s{ptr}")
        A(f"s_and_b32 s{dst+1}, s{ptr+1}, 0xffff")
    A(f"s_mov_b32 s{dst+2}, {nbytes}")
    A(f"s_mov_b32 s{dst+3}, 0x00020000")

def stamp(A, idx):
    if not STAMPS: return
    if OPT.get("dbgl") and idx >= 5: return
    A("s_memrealtime s[100:101]")
    A("s_waitcnt lgkmcnt(0)")
    A(f"v_writelane_b32 v246, s100, {idx}")

def stamp_flush(A):
    if not STAMPS: return
    A("s_memtime s[100:101]")
    A("s_waitcnt lgkmcnt(0)")
    A("v_writelane_b32 v246, s100, 17")
    A("s_memrealtime s[100:101]")
    A("s_waitcnt lgkmcnt(0)")
    A("v_writelane_b32 v246, s100, 18")
    lab = A.newlabel("stf")
    A(f"s_and_b32 s96, s{S_WAVE}, 3")
    A("s_cmp_lg_u32 s96, 0")
    A(f"s_cbranch_scc1 {lab}")
    A(f"s_lshr_b32 s100, s{S_WAVE}, 2")
    A("s_lshl_b32 s100, s100, 8")
    A("s_add_u32 s100, s100, s2")
    A("s_lshl_b32 s100, s100, 7")
    A(f"s_add_u32 s96, s{P_WS}, {STAMP_OFF}")
    A(f"s_addc_u32 s97, s{P_WS+1}, 0")
    A("s_and_b32 s97, s97, 0xffff")
    A("s_mov_b32 s98, 0x100000")
    A("s_mov_b32 s99, 0x00020000")
    A("v_lshlrev_b32 v250, 2, v1")
    A("v_add_u32 v250, s100, v250")
    A("s_mov_b64 exec, 0xffffffff")
    A("buffer_store_dword v246, v250, s[96:99], 0 offen")
    A("s_mov_b64 exec, -1")
    A.label(lab)

def get_nonce_issue(A, which):
    vn = V_NA if which == "A" else V_NB
    lab = A.newlabel("nz")
    A(f"s_cmp_lg_u32 s{S_WAVE}, 0")
    A(f"s_cbranch_scc1 {lab}")
    make_srd(A, 92, P_DBG, 256)
    A(f"v_mov_b32 v{vn}, s{S_MY}")
    A(f"v_mov_b32 v{vn+1}, 0")
    A(f"v_mov_b32 v251, {0 if which == 'A' else 128}")
    A("s_mov_b64 exec, 1")
    A(f"buffer_atomic_cmpswap v[{vn}:{vn+1}], v251, s[92:95], 0 offen sc0 sc1")
    A("s_mov_b64 exec, -1")
    A.label(lab)

def nonce_resolve(A, which):
    vn = V_NA if which == "A" else V_NB
    sn = S_NA if which == "A" else S_NB
    A(f"v_readfirstlane_b32 s{sn}, v{vn}")
    A(f"s_cmp_eq_u32 s{sn}, 0")
    A(f"s_cselect_b32 s{sn}, s{S_MY}, s{sn}")

def flag_store(A, which, s_off):
    sn = S_NA if which == "A" else S_NB
    make_srd(A, 92, P_WS, 65536, WS_FA if which == "A" else WS_FB)
    A(f"v_mov_b32 v250, s{s_off}")
    A(f"v_mov_b32 v251, s{sn}")
    A("s_mov_b64 exec, 1")
    A("buffer_store_dword v251, v250, s[92:95], 0 offen sc1")
    A("s_mov_b64 exec, -1")

def flag_poll(A, which, s_off0, s_off1=None):
    sn = S_NA if which == "A" else S_NB
    make_srd(A, 92, P_WS, 65536, WS_FA if which == "A" else WS_FB)
    A("v_and_b32 v250, 7, v1")
    A("v_lshlrev_b32 v250, 2, v250")
    if s_off1 is not None:
        A(f"v_mov_b32 v249, s{s_off0}")
        A(f"v_mov_b32 v248, s{s_off1}")
        A("v_cmp_gt_u32 vcc, 8, v1")
        A("v_cndmask_b32 v249, v248, v249, vcc")
        A("v_add_u32 v250, v250, v249")
        A("s_mov_b64 exec, 0xffff")
    else:
        A(f"v_add_u32 v250, s{s_off0}, v250")
        A("s_mov_b64 exec, 0xff")
    lp = A.newlabel("poll"); done = A.newlabel("polld")
    A("s_mov_b32 s88, 100000")
    A.label(lp)
    A("buffer_load_dword v251, v250, s[92:95], 0 offen sc1")
    A("s_waitcnt vmcnt(0)")
    A(f"v_cmp_ne_u32 vcc, s{sn}, v251")
    A("s_nop 4")
    A(f"s_cbranch_vccz {done}")
    A("s_sleep 2")
    A("s_sub_u32 s88, s88, 1")
    A("s_cmp_lg_u32 s88, 0")
    A(f"s_cbranch_scc1 {lp}")
    A.label(done)
    A("s_mov_b64 exec, -1")

def lds_poll(A, vaddr, vd, s_tmp, target, s_cnt, pre_read=False):
    lp = A.newlabel("lpl"); chk = A.newlabel("lpc"); done = A.newlabel("lpd")
    A(f"s_mov_b32 s{s_cnt}, 2000000")
    if pre_read: A(f"s_branch {chk}")
    A.label(lp)
    A(f"ds_read_b128 {v(vd,4)}, v{vaddr}")
    A("s_waitcnt lgkmcnt(0)")
    A.label(chk)
    A(f"v_min_u32 v{vd}, v{vd}, v{vd+1}")
    A(f"v_min3_u32 v{vd}, v{vd}, v{vd+2}, v{vd+3}")
    A(f"v_readfirstlane_b32 s{s_tmp}, v{vd}")
    A(f"s_cmp_ge_u32 s{s_tmp}, {target}")
    A(f"s_cbranch_scc1 {done}")
    A(f"s_sub_u32 s{s_cnt}, s{s_cnt}, 1")
    A(f"s_cmp_lg_u32 s{s_cnt}, 0")
    A(f"s_cbranch_scc1 {lp}")
    A.label(done)

def grp_of(A, sd, sx, si, st):
    if OPT.get("gmap", 1):
        A(f"s_lshl_b32 s{sd}, s{sx}, 4")
        A(f"s_add_u32 s{sd}, s{sd}, s{si}")
        A(f"s_lshl_b32 s{st}, s{sx}, 1")
        A(f"s_add_u32 s{st}, s{st}, s{si}")
        A(f"s_add_u32 s{st}, s{st}, 112")
        A(f"s_cmp_lt_u32 s{si}, 16")
        A(f"s_cselect_b32 s{sd}, s{sd}, s{st}")
    else:
        A(f"s_mul_i32 s{sd}, s{sx}, 18")
        A(f"s_add_u32 s{sd}, s{sd}, s{si}")

def a_prefetch_setup(A, vx, vw, t0, s_idx, nshare):
    px = -(-1072 // nshare); pw = -(-576 // nshare)
    A("s_and_b32 s96, s2, 7")
    A("s_lshr_b32 s98, s96, 2")
    A("s_and_b32 s96, s96, 3")
    A("s_mul_i32 s98, s98, 1056")
    A(f"s_mul_i32 s99, s{s_idx}, {px}")
    A("s_add_u32 s98, s98, s99")
    A("s_sub_u32 s98, s98, 16")
    A(f"v_mov_b32 v{t0+1}, 0x{BIGOFF:x}")
    A("s_movk_i32 s99, 1152")
    for e in range(2 if px > 64 else 1):
        A(f"v_add_u32 v{t0}, s98, v1")
        if e: A(f"v_add_u32 v{t0}, 64, v{t0}")
        A(f"v_mul_lo_u32 v{vx+e}, v{t0}, s99")
        A(f"v_cmp_gt_i32 vcc, 0, v{t0}")
        A(f"v_cndmask_b32 v{vx+e}, v{vx+e}, v{t0+1}, vcc")
        lim = min(px - 64*e, 64)
        if lim < 64:
            A(f"v_cmp_le_u32 vcc, {lim}, v1")
            A(f"v_cndmask_b32 v{vx+e}, v{vx+e}, v{t0+1}, vcc")
    A(f"s_mul_i32 s99, s{s_idx}, {pw}")
    A(f"v_add_u32 v{t0}, s99, v1")
    A(f"v_mul_u32_u24 v{t0+2}, 7282, v{t0}")
    A(f"v_lshrrev_b32 v{t0+2}, 16, v{t0+2}")
    A(f"v_mul_u32_u24 v{t0+3}, 9, v{t0+2}")
    A(f"v_sub_u32 v{t0+3}, v{t0}, v{t0+3}")
    A(f"v_mul_u32_u24 v{t0+4}, 21846, v{t0+3}")
    A(f"v_lshrrev_b32 v{t0+4}, 16, v{t0+4}")
    A(f"v_mul_u32_u24 v{vw}, 3456, v{t0+2}")
    A(f"v_mul_u32_u24 v{t0+2}, 1152, v{t0+4}")
    A(f"v_add_u32 v{vw}, v{vw}, v{t0+2}")
    A(f"v_mul_u32_u24 v{t0+4}, 3, v{t0+4}")
    A(f"v_sub_u32 v{t0+3}, v{t0+3}, v{t0+4}")
    A(f"v_lshl_add_u32 v{vw}, v{t0+3}, 7, v{vw}")
    A("s_lshl_b32 s96, s96, 8")
    A(f"v_add_u32 v{vw}, s96, v{vw}")
    A(f"v_cmp_le_u32 vcc, {pw}, v1")
    A(f"v_cndmask_b32 v{vw}, v{vw}, v{t0+1}, vcc")
    A(f"v_cmp_le_u32 vcc, 576, v{t0}")
    A(f"v_cndmask_b32 v{vw}, v{vw}, v{t0+1}, vcc")

def a_prefetch_issue(A, vx, vw, s_kc, srd_x, srd_w, vd, two=False):
    A(f"s_lshl_b32 s96, s{s_kc}, 7")
    A(f"s_mul_i32 s97, s{s_kc}, 221184")
    A(f"buffer_load_dword v{vd}, v{vw}, s[{srd_w}:{srd_w+3}], s97 offen")
    A(f"buffer_load_dword v{vd+1}, v{vx}, s[{srd_x}:{srd_x+3}], s96 offen")
    if two:
        A(f"buffer_load_dword v{vd+2}, v{vx+1}, s[{srd_x}:{srd_x+3}], s96 offen")

XS = 14 * 1024
W1 = 32 * 1024
ST1 = XS + W1
HHS = 112 * 48
OB = 13 * HHS
V_KQ, V_VT, V_OW, V_NINF, V_OG, V_OL = 220, 221, 222, 225, 226, 228

def attn_setup(A, t0=4):
    a, b, c, d = t0, t0+1, t0+2, t0+3
    A(f"s_and_b32 s56, s{S_WAVE}, 3")
    A(f"s_lshr_b32 s57, s{S_WAVE}, 2")
    A("s_mul_i32 s57, s57, 3")
    A(f"v_lshlrev_b32 v{a}, 2, v3")
    A(f"v_sub_u32 v{a}, v2, v{a}")
    for tl in range(2):
        for r in range(4):
            dd = (16 if tl == 0 else 0) - r
            A(f"v_add_u32 v{b}, {dd}, v{a}" if dd >= 0 else f"v_subrev_u32 v{b}, {-dd}, v{a}")
            A(f"v_and_b32 v{b}, 0xfffffff1, v{b}")
            A(f"v_cmp_eq_u32 s[{64+2*(4*tl+r)}:{65+2*(4*tl+r)}], 0, v{b}")
    A("v_cmp_gt_u32 s[80:81], 2, v3")
    A("v_cmp_gt_u32 s[82:83], 3, v3")
    A("s_or_b32 s58, s32, s57")
    for r in range(4):
        A(f"s_cmp_eq_u32 s58, 0")
        A(f"s_cselect_b64 s[{84+2*r}:{85+2*r}], 0, s[{64+2*r}:{65+2*r}]")
    A(f"v_min_u32 v{b}, 2, v3")
    A(f"v_mul_u32_u24 v{c}, 48, v2")
    A(f"v_lshl_add_u32 v{c}, v{b}, 4, v{c}")
    A(f"s_mul_i32 s58, s56, {HHS}")
    A("s_mul_i32 s59, s57, 768")
    A("s_add_u32 s58, s58, s59")
    A(f"v_add_u32 v{V_KQ}, s58, v{c}")
    A(f"v_lshrrev_b32 v{b}, 2, v2")
    A(f"v_lshl_add_u32 v{b}, v3, 2, v{b}")
    A(f"v_mul_u32_u24 v{b}, 48, v{b}")
    A(f"v_and_b32 v{c}, 3, v2")
    A(f"v_lshl_add_u32 v{b}, v{c}, 3, v{b}")
    A(f"v_add_u32 v{V_VT}, s58, v{b}")
    A(f"v_mul_u32_u24 v{b}, 144, v2")
    A(f"v_lshl_add_u32 v{b}, v3, 3, v{b}")
    A("s_mul_i32 s58, s56, 36")
    A("s_mul_i32 s59, s57, 2304")
    A("s_add_u32 s58, s58, s59")
    A(f"s_add_u32 s58, s58, {OB}")
    A(f"v_add_u32 v{V_OW}, s58, v{b}")
    A(f"v_add_u32 v{V_OW+1}, 2304, v{V_OW}")
    A(f"v_add_u32 v{V_OW+2}, 4608, v{V_OW}")
    A(f"v_mov_b32 v{V_NINF}, 0xff800000")
    A("s_mul_i32 s58, s32, 110592")
    A("s_mul_i32 s59, s33, 2304")
    A("s_add_u32 s58, s58, s59")
    for rnd in range(2):
        A(f"v_add_u32 v{a}, {512*rnd}, v0")
        A(f"v_and_b32 v{b}, 15, v{a}")
        A(f"v_lshrrev_b32 v{c}, 4, v{a}")
        A(f"v_mul_u32_u24 v{d}, 7282, v{c}")
        A(f"v_lshrrev_b32 v{d}, 16, v{d}")
        A(f"v_mul_u32_u24 v{d+1}, 9, v{d}")
        A(f"v_sub_u32 v{c}, v{c}, v{d+1}")
        A(f"v_lshl_add_u32 v{d+1}, v{d}, 4, v{b}")
        A(f"v_mul_u32_u24 v{d+1}, 144, v{d+1}")
        A(f"v_lshl_add_u32 v{d+1}, v{c}, 4, v{d+1}")
        A(f"v_add_u32 v{V_OL+rnd}, {OB}, v{d+1}")
        A(f"v_mul_u32_u24 v{d}, 18432, v{d}")
        A(f"v_lshl_add_u32 v{d}, v{c}, 8, v{d}")
        A(f"v_lshl_add_u32 v{d}, v{b}, 4, v{d}")
        A(f"v_add_u32 v{V_OG+rnd}, s58, v{d}")
        if rnd == 1:
            A(f"v_mov_b32 v{b}, 0x{BIGOFF:x}")
            A(f"v_cmp_gt_u32 vcc, 864, v{a}")
            A(f"v_cndmask_b32 v{V_OG+rnd}, v{b}, v{V_OG+rnd}, vcc")

def gen_a1(A):
    n = "a1"
    A("s_and_b32 s36, s2, 7")
    A("s_lshr_b32 s37, s2, 3")
    A("s_lshr_b32 s38, s36, 2")
    A("s_and_b32 s39, s36, 3")
    A("s_mul_i32 s32, s38, 11")
    A("s_lshr_b32 s40, s37, 1")
    A("s_add_u32 s32, s32, s40")
    A("s_and_b32 s40, s37, 1")
    A("s_lshl_b32 s33, s39, 1")
    A("s_add_u32 s33, s33, s40")
    A("s_mul_i32 s34, s32, 96")
    make_srd(A, 44, P_X, SZ_T)
    make_srd(A, 48, P_W, 576 * 3456)
    if OPT.get("r1", 1):
        labr = A.newlabel("r1")
        A(f"s_cmp_ge_u32 s{S_WAVE}, 5")
        A(f"s_cbranch_scc1 {labr}")
        a_prefetch_setup(A, 232, 233, 4, 37, 32)
        a_prefetch_issue(A, 232, 233, S_WAVE, 44, 48, 240)
        A.label(labr)
    A(f"s_cmp_ge_u32 s{S_WAVE}, 4")
    A(f"s_cbranch_scc1 {n}_loader")
    a_prefetch_setup(A, 230, 231, 4, 37, 22)
    get_nonce_issue(A, "A")
    A("v_and_b32 v2, 15, v1")
    A("v_lshrrev_b32 v3, 4, v1")
    attn_setup(A)
    A("v_lshrrev_b32 v6, 2, v2")
    A("v_lshl_add_u32 v7, v3, 3, v6")
    A("v_lshlrev_b32 v7, 9, v7")
    A("v_and_b32 v8, 3, v2")
    A("v_lshl_add_u32 v7, v8, 3, v7")
    A(f"v_add_u32 v7, {XS}, v7")
    A("v_and_b32 v8, 1, v3")
    A("v_lshl_add_u32 v8, v8, 2, v6")
    A("v_lshrrev_b32 v9, 1, v2")
    A("v_xor_b32 v9, v9, v3")
    A("v_lshlrev_b32 v9, 4, v9")
    XA = 14
    A(f"v_lshl_add_u32 v{XA}, v2, 7, v9")
    A(f"v_xor_b32 v{XA+1}, 64, v{XA}")
    for w in range(3):
        A(f"s_cmp_eq_u32 s{S_WAVE}, {w}")
        A(f"s_cbranch_scc1 {n}_c{w}")
    for w in [3, 0, 1, 2]:
        A.label(f"{n}_c{w}")
        if w < 3:
            nts = [3*w, 3*w+1, 3*w+2]
            units = [(t, st) for t in nts for st in range(7)] + [(13, 2*w+1), (13, 2*w+2)]
            ants = nts + [13]
            sts = list(range(7))
        else:
            nts = [9, 10, 11, 12]
            units = [(t, st) for t in nts for st in range(1, 7)]
            ants = nts
            sts = list(range(1, 7))
        WA = 10
        for ai, t in enumerate(ants):
            A(f"v_xor_b32 v9, {t}, v8")
            A(f"v_lshl_add_u32 v{WA+ai}, v9, 5, v7")
        A("v_mul_u32_u24 v4, 48, v2")
        for ai, t in enumerate(ants):
            for p in range(2):
                va = 212 + 2*ai + p
                A("v_lshlrev_b32 v5, 2, v3")
                A(f"v_add_u32 v5, {16*t + 2*p}, v5")
                A("v_mul_u32_u24 v6, 3641, v5")
                A("v_lshrrev_b32 v6, 16, v6")
                A("v_mul_u32_u24 v6, 5340, v6")
                A(f"v_lshl_add_u32 v{va}, v5, 1, v6")
                A(f"v_add_u32 v{va}, v{va}, v4")
        ACC = 28
        acc = {u: ACC + 4*i for i, u in enumerate(units)}
        FR = [124, 168]
        def reads(ks, base):
            lst = []
            for ai, t in enumerate(ants):
                for h in range(2):
                    lst.append(f"ds_read_b64_tr_b16 {v(base+4*ai+2*h,2)}, v{WA+ai} offset:{ks*16384 + h*2048}")
            for bi, st in enumerate(sts):
                lst.append(f"ds_read_b128 {v(base+16+4*bi,4)}, v{XA+ks} offset:{st*2048}")
            return lst
        def mfmas(base, first):
            lst = []
            for (t, st) in units:
                ai = ants.index(t); bi = sts.index(st)
                c = "0" if first else v(acc[(t, st)], 4)
                lst.append(f"v_mfma_f32_16x16x32_bf16 {v(acc[(t,st)],4)}, {v(base+4*ai,4)}, {v(base+16+4*bi,4)}, {c}")
            return lst
        def interleave(mf, rd):
            i = 0
            for m in mf:
                A(m)
                if i < len(rd): A(rd[i]); i += 1
            while i < len(rd): A(rd[i]); i += 1
        for u in units:
            for r in range(0, 4, 2): A(f"v_mov_b64 {v(acc[u]+r,2)}, 0")
        A("s_mov_b32 s60, 0")
        A("s_mov_b32 s61, 0")
        A(f"s_mov_b32 s52, {ST1}")
        A(f"s_mov_b32 s53, {(-2*ST1) & 0xffffffff}")
        LF = OPT.get("lf", 0)
        if LF:
            A(f"v_mov_b32 v235, {PL}")
            A(f"v_mov_b32 v234, {PC + 4*w}")
            if w == 0:
                A("v_mov_b64 v[236:237], 0"); A("v_mov_b64 v[238:239], 0")
                A("ds_write_b128 v235, v[236:239]")
                A("ds_write_b128 v235, v[236:239] offset:16")
                A("s_waitcnt lgkmcnt(0)")
            A("s_barrier")
            lds_poll(A, 235, 236, 63, "1", 55)
        else:
            if OPT.get("r1", 1):
                A("s_waitcnt vmcnt(0)")
                A("s_barrier")
            A("s_barrier")
        stamp(A, 1)
        for r_ in reads(0, FR[0]): A(r_)
        A("s_waitcnt lgkmcnt(0)")
        A(f"s_branch {n}_q{w}")
        A.label(f"{n}_l{w}")
        if LF:
            A("s_add_u32 s54, s60, 1")
            lds_poll(A, 235, 236, 63, "s54", 55, pre_read=True)
        else:
            A("s_barrier")
        interleave(mfmas(FR[1], False), reads(0, FR[0]))
        A("s_waitcnt lgkmcnt(0)")
        A.label(f"{n}_q{w}")
        labp = A.newlabel("lpf")
        A(f"s_cmp_lg_u32 s60, {w}")
        A(f"s_cbranch_scc1 {labp}")
        A(f"s_add_u32 s63, s60, {OPT.get('af', 7)}")
        A("s_cmp_gt_u32 s63, 8")
        A(f"s_cbranch_scc1 {labp}")
        a_prefetch_issue(A, 230, 231, 63, 44, 48, 240)
        A.label(labp)
        if w == 3 and OPT.get("hpf", 1):
            labh = A.newlabel("hpf")
            A("s_cmp_lg_u32 s60, 3")
            A(f"s_cbranch_scc1 {labh}")
            A("s_cmp_ge_u32 s2, 64")
            A(f"s_cbranch_scc1 {labh}")
            A("s_and_b32 s98, s2, 7")
            A("s_lshr_b32 s97, s2, 3")
            A("s_add_u32 s97, s97, 10")
            grp_of(A, 96, 98, 97, 99)
            A("s_lshl_b32 s96, s96, 14")
            A(f"s_add_u32 s92, s{P_H}, s96")
            A(f"s_addc_u32 s93, s{P_H+1}, 0")
            A("s_and_b32 s93, s93, 0xffff")
            A("s_mov_b32 s94, 16384")
            A("s_mov_b32 s95, 0x00020000")
            A("v_lshlrev_b32 v232, 7, v1")
            A("buffer_load_dword v242, v232, s[92:95], 0 offen")
            A("v_add_u32 v232, 8192, v232")
            A("buffer_load_dword v243, v232, s[92:95], 0 offen")
            A.label(labh)
        A("s_add_u32 s61, s61, 1")
        A("s_cmp_eq_u32 s61, 3")
        A("s_cselect_b32 s62, s53, s52")
        A("s_cselect_b32 s61, 0, s61")
        if LF:
            mf = mfmas(FR[0], False); rd = reads(1, FR[1])
            i = 0
            for idx, m in enumerate(mf):
                A(m)
                if i < len(rd): A(rd[i]); i += 1
                if idx == len(mf) - 5:
                    A("s_add_u32 s54, s60, 1")
                    A("v_mov_b32 v242, s54") if False else None
                    A("s_waitcnt lgkmcnt(0)")
                    A("v_mov_b32 v233, s54")
                    A("ds_write_b32 v234, v233")
                    A("ds_read_b128 v[236:239], v235")
            for r in range(6): A(f"v_add_u32 v{10+r}, s62, v{10+r}")
            A("s_add_u32 s60, s60, 1")
            A("s_cmp_lt_u32 s60, 9")
            A("s_waitcnt lgkmcnt(0)")
            A(f"s_cbranch_scc1 {n}_l{w}")
        else:
            interleave(mfmas(FR[0], False), reads(1, FR[1]))
            for r in range(6): A(f"v_add_u32 v{10+r}, s62, v{10+r}")
            A("s_add_u32 s60, s60, 1")
            A("s_cmp_lt_u32 s60, 9")
            A("s_waitcnt lgkmcnt(0)")
            A(f"s_cbranch_scc1 {n}_l{w}")
        A("s_barrier")
        last = mfmas(FR[1], False)
        pend = []
        k = 0
        def flush_one(u):
            nonlocal k
            (t, st) = u
            ai = ants.index(t); a0 = acc[(t, st)]
            tmp = 124 + 2*(k % 8); k += 1
            A(f"v_cvt_pk_bf16_f32 v{tmp}, v{a0}, v{a0+1}")
            A(f"v_cvt_pk_bf16_f32 v{tmp+1}, v{a0+2}, v{a0+3}")
            A(f"ds_write_b32 v{212+2*ai}, v{tmp} offset:{768*st}")
            A(f"ds_write_b32 v{212+2*ai+1}, v{tmp+1} offset:{768*st}")
        for m, u in zip(last, units):
            A(m)
            pend.append(u)
            if len(pend) > 3: flush_one(pend.pop(0))
        for u in pend: flush_one(u)
        stamp(A, 4)
        A(f"s_branch {n}_attn")
    A.label(f"{n}_loader")
    if OPT.get("prio"): A(f"s_setprio {OPT['prio']}")
    A(f"s_sub_u32 s35, s{S_WAVE}, 4")
    A("v_lshrrev_b32 v2, 3, v1")
    A("v_and_b32 v3, 7, v1")
    A("v_lshrrev_b32 v4, 4, v1")
    A("v_mul_u32_u24 v5, 1152, v2")
    A("v_xor_b32 v6, v3, v4")
    A("v_lshl_add_u32 v10, v6, 4, v5")
    A("v_xor_b32 v11, 64, v10")
    A("s_lshl_b32 s36, s35, 2")
    A("s_cmp_eq_u32 s35, 3")
    A("s_cselect_b32 s36, 11, s36")
    A("s_cselect_b64 s[54:55], -1, 0")
    A("v_cndmask_b32 v16, v10, v11, s[54:55]")
    A("v_cndmask_b32 v17, v11, v10, s[54:55]")
    A("s_sub_u32 s37, s34, 16")
    A("s_mul_i32 s37, s37, 1152")
    A("s_mul_i32 s38, s36, 9216")
    A("s_add_u32 s37, s37, s38")
    A("s_lshl_b32 s38, s36, 10")
    WV = 12
    A("v_lshrrev_b32 v2, 5, v1")
    A("v_and_b32 v3, 31, v1")
    A("v_mul_u32_u24 v4, 3456, v2")
    A("s_mul_i32 s40, s33, 144")
    A("v_add_u32 v4, s40, v4")
    A(f"v_mov_b32 v9, 0x{BIGOFF:x}")
    for var in range(4):
        j1, j4 = var & 1, var >> 1
        A(f"v_add_u32 v5, {2*j1+4*j4}, v2")
        A("v_lshlrev_b32 v5, 1, v5")
        A("v_xor_b32 v5, v5, v3")
        A("v_mov_b32 v6, 1152")
        A("v_mov_b32 v7, 2160")
        A("v_cmp_le_u32 vcc, 9, v5")
        A("v_cndmask_b32 v6, v6, v7, vcc")
        A("v_mov_b32 v7, -288")
        A("v_cmp_le_u32 vcc, 18, v5")
        A("v_cndmask_b32 v6, v6, v7, vcc")
        A("v_lshl_add_u32 v6, v5, 4, v6")
        A(f"v_add_u32 v{WV+var}, v4, v6")
        A("v_cmp_le_u32 vcc, 27, v5")
        A(f"v_cndmask_b32 v{WV+var}, v{WV+var}, v9, vcc")
    A("s_mul_i32 s40, s35, 55296")
    A("s_lshl_b32 s41, s35, 13")
    A(f"s_add_u32 s41, s41, {XS}")
    def issue_block():
        A(f"s_mul_i32 s62, s61, {ST1}")
        A("s_add_u32 s63, s38, s62")
        A("s_add_u32 s62, s41, s62")
        for j in range(4):
            lab = None
            if j == 3:
                lab = A.newlabel(f"{n}_sk")
                A("s_cmp_ge_u32 s35, 2")
                A(f"s_cbranch_scc1 {lab}")
            A(f"s_add_u32 m0, s63, {1024*j}")
            A(f"s_add_u32 s52, s37, {9216*j}")
            if j < 2:
                A("s_cmp_lt_i32 s52, 0")
                A(f"s_cselect_b32 s52, 0x{BIGOFF:x}, s52")
            A(f"buffer_load_dwordx4 v{16+(j&1)}, s[44:47], s52 offen lds")
            if lab: A.label(lab)
        for j in range(8):
            var = (j & 1) + 2 * (j >> 2)
            A(f"s_add_u32 m0, s62, {1024*j}")
            A(f"s_add_u32 s52, s40, {6912*j}")
            A(f"buffer_load_dwordx4 v{WV+var}, s[48:51], s52 offen lds")
        A("s_add_u32 s37, s37, 128")
        A("s_add_u32 s40, s40, 221184")
        A("s_add_u32 s61, s61, 1")
        A("s_cmp_eq_u32 s61, 3")
        A("s_cselect_b32 s61, 0, s61")
    if OPT.get("lf", 0):
        A("s_mov_b32 s61, 0")
        issue_block()
        stamp(A, 1)
        A("v_and_b32 v2, 15, v1")
        A("v_lshrrev_b32 v3, 4, v1")
        attn_setup(A)
        A(f"v_mov_b32 v24, {PC}")
        A("s_lshl_b32 s53, s35, 2")
        A(f"s_add_u32 s53, s53, {PL}")
        A("v_mov_b32 v25, s53")
        A("s_barrier")
        A("s_waitcnt vmcnt(0)")
        A("v_mov_b32 v26, 1")
        A("ds_write_b32 v25, v26")
        stamp(A, 2)
        A("s_mov_b32 s60, 1")
        A.label(f"{n}_ll")
        labn = A.newlabel("nw")
        A("s_cmp_lt_u32 s60, 3")
        A(f"s_cbranch_scc1 {labn}")
        A("s_sub_u32 s54, s60, 2")
        lds_poll(A, 24, 28, 53, "s54", 55)
        A.label(labn)
        issue_block()
        if STAMPS and OPT.get("dbgl"):
            A("s_memrealtime s[100:101]")
            A("s_waitcnt lgkmcnt(0)")
            A("s_add_u32 s99, s60, 5")
            A("s_mov_b32 m0, s99")
            A("s_nop 4")
            A("v_writelane_b32 v246, s100, m0")
        A("s_waitcnt vmcnt(11)")
        A("v_mov_b32 v26, s60")
        A("ds_write_b32 v25, v26")
        A("s_add_u32 s60, s60, 1")
        A("s_cmp_lt_u32 s60, 9")
        A(f"s_cbranch_scc1 {n}_ll")
        A("s_waitcnt vmcnt(0)")
        A("v_mov_b32 v26, 9")
        A("ds_write_b32 v25, v26")
        A("s_waitcnt lgkmcnt(0)")
    else:
        A("s_mov_b32 s61, 0")
        if OPT.get("r1", 1):
            A("v_and_b32 v2, 15, v1")
            A("v_lshrrev_b32 v3, 4, v1")
            attn_setup(A)
            A("s_waitcnt vmcnt(0)")
            A("s_barrier")
            stamp(A, 1)
            A("s_mov_b32 s60, 0")
            A.label(f"{n}_lp")
            issue_block()
            A("s_add_u32 s60, s60, 1")
            A("s_cmp_lt_u32 s60, 2")
            A(f"s_cbranch_scc1 {n}_lp")
            A("s_waitcnt vmcnt(11)")
            stamp(A, 2)
            A("s_barrier")
            issue_block()
        else:
            issue_block()
            stamp(A, 1)
            A("v_and_b32 v2, 15, v1")
            A("v_lshrrev_b32 v3, 4, v1")
            attn_setup(A)
            A("s_waitcnt vmcnt(0)")
            stamp(A, 2)
            A("s_barrier")
            A("s_mov_b32 s60, 0")
            A.label(f"{n}_lp")
            issue_block()
            A("s_add_u32 s60, s60, 1")
            A("s_cmp_lt_u32 s60, 2")
            A(f"s_cbranch_scc1 {n}_lp")
        stamp(A, 3)
        A("s_mov_b32 s60, 0")
        A.label(f"{n}_ll")
        A("s_waitcnt vmcnt(11)")
        A("s_barrier")
        issue_block()
        A("s_add_u32 s60, s60, 1")
        A("s_cmp_lt_u32 s60, 6")
        A(f"s_cbranch_scc1 {n}_ll")
        A("s_waitcnt vmcnt(11)")
        A("s_barrier")
        A("s_waitcnt vmcnt(0)")
        A("s_barrier")
    A("s_barrier")
    A.label(f"{n}_attn")
    if OPT.get("prio"): A("s_setprio 0")
    A("s_waitcnt lgkmcnt(0)")
    A("s_barrier")
    stamp(A, 5)
    if OPT.get("hearly", 1):
        labh = A.newlabel("hea")
        A("s_cmp_ge_u32 s2, 64")
        A(f"s_cbranch_scc1 {labh}")
        A("s_and_b32 s38, s2, 7")
        A("s_lshr_b32 s37, s2, 3")
        A("s_add_u32 s37, s37, 10")
        grp_of(A, 36, 38, 37, 39)
        A(f"s_and_b32 s37, s{S_WAVE}, 3")
        A("s_lshl_b32 s36, s36, 2")
        A("s_add_u32 s36, s36, s37")
        A("s_lshl_b32 s36, s36, 12")
        make_srd(A, 48, P_H, 4096, add_s=36)
        HL = 170; a = HL + 26
        A(f"v_lshlrev_b32 v{a}, 4, v1")
        A(f"s_lshr_b32 s37, s{S_WAVE}, 2")
        A("s_lshl_b32 s37, s37, 11")
        A(f"v_add_u32 v{a}, s37, v{a}")
        A(f"v_add_u32 v{a+1}, 4, v{a}")
        A(f"v_add_u32 v{a+2}, 8, v{a}")
        for it in range(2):
            A(f"buffer_load_dwordx4 {v(HL+12*it,4)}, v{a}, s[48:51], 0 offen offset:{1024*it}")
            A(f"buffer_load_dwordx4 {v(HL+12*it+4,4)}, v{a+1}, s[48:51], 0 offen offset:{1024*it}")
            A(f"buffer_load_dwordx4 {v(HL+12*it+8,4)}, v{a+2}, s[48:51], 0 offen offset:{1024*it}")
        A(f"v_mov_b32 v{a+3}, 0")
        A(f"buffer_load_dwordx2 {v(HL+24,2)}, v{a+3}, s[48:51], 0 offen")
        A.label(labh)
    cst = struct.unpack("<I", struct.pack("<f", (18 ** -0.5) * math.log2(math.e)))[0]
    A(f"s_mov_b32 s42, 0x{cst:08x}")
    B = 24
    def regs(b): return B + 40 * b
    for b in range(3):
        R = regs(b)
        A(f"ds_read_b128 {v(R,4)}, v{V_KQ} offset:{8*HHS + 768*(b+1)}")
        A(f"ds_read_b128 {v(R+4,4)}, v{V_KQ} offset:{768*b}")
        A(f"ds_read_b128 {v(R+8,4)}, v{V_KQ} offset:{768*(b+1)}")
    for b in range(3):
        R = regs(b)
        A(f"ds_read_b64_tr_b16 {v(R+12,2)}, v{V_VT} offset:{4*HHS + 768*b}")
        A(f"ds_read_b64_tr_b16 {v(R+14,2)}, v{V_VT} offset:{4*HHS + 768*(b+1)}")
        A(f"ds_read_b64_tr_b16 {v(R+16,2)}, v{V_VT} offset:{4*HHS + 768*b + 32}")
        A(f"ds_read_b64_tr_b16 {v(R+18,2)}, v{V_VT} offset:{4*HHS + 768*(b+1) + 32}")
    for b in range(3):
        R = regs(b)
        A(f"s_waitcnt lgkmcnt({12 + 3*(2-b)})" if 12 + 3*(2-b) <= 15 else "s_waitcnt lgkmcnt(15)")
        A(f"v_cndmask_b32 v{R}, 0, v{R}, s[82:83]")
        for r in range(1, 4):
            A(f"v_cndmask_b32 v{R+r}, 0, v{R+r}, s[80:81]")
        A(f"v_mfma_f32_16x16x32_bf16 {v(R+20,4)}, {v(R+4,4)}, {v(R,4)}, 0")
        A(f"v_mfma_f32_16x16x32_bf16 {v(R+24,4)}, {v(R+8,4)}, {v(R,4)}, 0")
    for b in range(3):
        R = regs(b); S = R + 20
        for e in range(8):
            m = (84 + 2*e) if (b == 0 and e < 4) else (64 + 2*e)
            A(f"v_cndmask_b32 v{S+e}, v{V_NINF}, v{S+e}, s[{m}:{m+1}]")
        M = R + 28
        A(f"v_max3_f32 v{M}, v{S}, v{S+1}, v{S+2}")
        A(f"v_max3_f32 v{M}, v{M}, v{S+3}, v{S+4}")
        A(f"v_max3_f32 v{M}, v{M}, v{S+5}, v{S+6}")
        A(f"v_max_f32 v{M}, v{M}, v{S+7}")
    def xlane(op, b_regs):
        for kind in ("16", "32"):
            for (M, T) in b_regs: A(f"v_mov_b32 v{T}, v{M}")
            for (M, T) in b_regs: A(f"v_permlane{kind}_swap_b32 v{M}, v{T}")
            for (M, T) in b_regs: A(f"{op} v{M}, v{M}, v{T}")
    xlane("v_max_f32", [(regs(b)+28, regs(b)+29) for b in range(3)])
    for b in range(3):
        R = regs(b); M = R + 28
        A(f"v_mul_f32 v{M}, s42, v{M}")
    for b in range(3):
        R = regs(b); S = R + 20; M = R + 28
        for e in range(8): A(f"v_fma_f32 v{S+e}, v{S+e}, s42, -v{M}")
        for e in range(8): A(f"v_exp_f32 v{S+e}, v{S+e}")
    for b in range(3):
        R = regs(b); S = R + 20; M = R + 30
        A(f"v_add_f32 v{M}, v{S}, v{S+1}")
        A(f"v_add_f32 v{M+1}, v{S+2}, v{S+3}")
        A(f"v_add_f32 v{M}, v{M}, v{S+4}")
        A(f"v_add_f32 v{M+1}, v{M+1}, v{S+5}")
        A(f"v_add_f32 v{M}, v{M}, v{S+6}")
        A(f"v_add_f32 v{M+1}, v{M+1}, v{S+7}")
        A(f"v_add_f32 v{M}, v{M}, v{M+1}")
    xlane("v_add_f32", [(regs(b)+30, regs(b)+31) for b in range(3)])
    for b in range(3):
        A(f"v_rcp_f32 v{regs(b)+30}, v{regs(b)+30}")
    A("s_waitcnt lgkmcnt(0)")
    for b in range(3):
        R = regs(b); S = R + 20; M = R + 30
        for e in range(8): A(f"v_mul_f32 v{S+e}, v{S+e}, v{M}")
        for q in range(4): A(f"v_cvt_pk_bf16_f32 v{R+q}, v{S+2*q}, v{S+2*q+1}")
        A(f"v_mfma_f32_16x16x32_bf16 {v(R+32,4)}, {v(R+12,4)}, {v(R,4)}, 0")
        A(f"v_mfma_f32_16x16x32_bf16 {v(R+36,4)}, {v(R+16,4)}, {v(R,4)}, 0")
    for b in range(3):
        R = regs(b)
        A(f"v_cvt_pk_bf16_f32 v{R+4}, v{R+32}, v{R+33}")
        A(f"v_cvt_pk_bf16_f32 v{R+5}, v{R+34}, v{R+35}")
        A(f"v_cvt_pk_bf16_f32 v{R+6}, v{R+36}, v{R+37}")
        A(f"ds_write2_b32 v{V_OW+b}, v{R+4}, v{R+5} offset0:0 offset1:1")
    A("s_mov_b64 exec, 0xffff")
    for b in range(3):
        A(f"ds_write_b32 v{V_OW+b}, v{regs(b)+6} offset:32")
    A("s_mov_b64 exec, -1")
    make_srd(A, 44, P_WS, SZ_T, WS_OF)
    A("s_waitcnt lgkmcnt(0)")
    A("s_barrier")
    stamp(A, 6)
    for rnd in range(2):
        A(f"ds_read_b128 {v(20+4*rnd,4)}, v{V_OL+rnd}")
    for rnd in range(2):
        A(f"s_waitcnt lgkmcnt({1-rnd})")
        A(f"buffer_store_dwordx4 {v(20+4*rnd,4)}, v{V_OG+rnd}, s[44:47], 0 offen sc1")
    A("s_waitcnt vmcnt(0)")
    A("s_barrier")
    lab = A.newlabel("a1f")
    A(f"s_cmp_lg_u32 s{S_WAVE}, 0")
    A(f"s_cbranch_scc1 {lab}")
    nonce_resolve(A, "A")
    A("s_lshl_b32 s36, s32, 8")
    A("s_lshl_b32 s37, s33, 2")
    A("s_add_u32 s36, s36, s37")
    flag_store(A, "A", 36)
    A.label(lab)
    stamp(A, 7)

HC = 4160
URB = 4 * HC
WB = URB + 4608
XCH = 4 * WB
ZS = 4160

def b2_common(A, s_grp):
    A(f"s_and_b32 s32, s{S_WAVE}, 3")
    A(f"s_lshr_b32 s33, s{S_WAVE}, 2")
    A(f"s_lshl_b32 s34, s{s_grp}, 2")
    A("s_add_u32 s34, s34, s32")
    A("s_lshl_b32 s35, s34, 12")
    A(f"s_mul_i32 s36, s32, {WB}")
    make_srd(A, 44, P_H, 4096, add_s=35)
    A("s_lshl_b32 s37, s34, 1")
    A("s_and_b32 s38, s37, 0xfffffffc")
    A(f"s_load_dword s39, s[{P_D}:{P_D+1}], s38")

def b2_h_loads(A, HL, nits=2):
    a = HL + 12 * nits + 2
    A(f"v_lshlrev_b32 v{a}, 4, v1")
    if nits == 2:
        A("s_lshl_b32 s40, s33, 11")
        A(f"v_add_u32 v{a}, s40, v{a}")
    A(f"v_add_u32 v{a+1}, 4, v{a}")
    A(f"v_add_u32 v{a+2}, 8, v{a}")
    for it in range(nits):
        A(f"buffer_load_dwordx4 {v(HL+12*it,4)}, v{a}, s[44:47], 0 offen offset:{1024*it}")
        A(f"buffer_load_dwordx4 {v(HL+12*it+4,4)}, v{a+1}, s[44:47], 0 offen offset:{1024*it}")
        A(f"buffer_load_dwordx4 {v(HL+12*it+8,4)}, v{a+2}, s[44:47], 0 offen offset:{1024*it}")
    A(f"v_mov_b32 v{a+3}, 0")
    A(f"buffer_load_dwordx2 {v(HL+12*nits,2)}, v{a+3}, s[44:47], 0 offen")

def b2_h_stage(A, HL, T, nits=2):
    a = HL + 12 * nits + 2
    A(f"v_add_u32 v{a+1}, s36, v{a}")
    for it in range(nits):
        b = HL + 12 * it
        for i in range(4): A(f"v_alignbit_b32 v{T+i}, v{b+4+i}, v{b+i}, 16")
        for i in range(4): A(f"v_alignbit_b32 v{T+4+i}, v{b+8+i}, v{b+4+i}, 16")
        off = 32 + 1024 * it
        A(f"ds_write_b128 v{a+1}, {v(b,4)} offset:{off}")
        A(f"ds_write_b128 v{a+1}, {v(T,4)} offset:{off+HC}")
        A(f"ds_write_b128 v{a+1}, {v(b+4,4)} offset:{off+2*HC}")
        A(f"ds_write_b128 v{a+1}, {v(T+4,4)} offset:{off+3*HC}")
    d0, d1 = HL + 12*nits, HL + 12*nits + 1
    A(f"v_lshlrev_b32 v{T+8}, 16, v{d0}")
    A(f"v_alignbit_b32 v{T+9}, v{d1}, v{d0}, 16")
    Z = T + 10
    for r in range(0, 8, 2): A(f"v_mov_b64 {v(Z+r,2)}, 0")
    A("v_cmp_eq_u32 s[60:61], 1, v1")
    A("v_cmp_eq_u32 s[62:63], 2, v1")
    A("v_cmp_eq_u32 s[64:65], 3, v1")
    A(f"v_cndmask_b32 v{Z+7}, v{Z+7}, v{T+8}, s[60:61]")
    A(f"v_cndmask_b32 v{Z+7}, v{Z+7}, v{d0}, s[62:63]")
    A(f"v_cndmask_b32 v{Z+7}, v{Z+7}, v{T+9}, s[64:65]")
    A(f"v_cndmask_b32 v{Z+6}, v{Z+6}, v{T+8}, s[64:65]")
    A(f"v_mul_u32_u24 v{a+2}, {HC}, v1")
    A(f"v_add_u32 v{a+2}, s36, v{a+2}")
    A("s_mov_b64 exec, 0xf")
    A(f"ds_write_b128 v{a+2}, {v(Z,4)}")
    A(f"ds_write_b128 v{a+2}, {v(Z+4,4)} offset:16")
    A("s_mov_b64 exec, 0xffffffff")
    A(f"v_lshlrev_b32 v{a+2}, 4, v1")
    A(f"v_add_u32 v{a+2}, s36, v{a+2}")
    A(f"ds_write_b128 v{a+2}, {v(Z,4)} offset:{URB+4096}")
    A("s_mov_b64 exec, -1")

def b2_main(A, s_grp, sb, resolved):
    make_srd(A, 48, P_WS, 4096, WS_UR, add_s=35)
    make_srd(A, 52, P_Q, SZ_T)
    make_srd(A, 56, P_OUT, 2048 * 2304)
    A("v_and_b32 v3, 15, v1")
    A("v_lshrrev_b32 v4, 4, v1")
    A("v_lshlrev_b32 v5, 4, v1")
    A("s_lshl_b32 s40, s33, 11")
    A("v_add_u32 v5, s40, v5")
    A("v_add_u32 v10, s36, v5")
    A("v_lshlrev_b32 v9, 5, v3")
    A("v_lshl_add_u32 v9, v4, 3, v9")
    A(f"s_lshl_b32 s41, s{S_WAVE}, 8")
    A("v_add_u32 v8, s41, v1")
    A("s_movk_i32 s42, 1152")
    A("v_mul_lo_u32 v8, v8, s42")
    A(f"s_lshl_b32 s43, s{s_grp}, 3")
    A("v_add_u32 v8, s43, v8")
    A("v_add_u32 v12, 1, v3")
    A("v_and_b32 v13, 3, v12")
    A("v_lshrrev_b32 v12, 2, v12")
    A(f"v_mul_u32_u24 v13, {HC}, v13")
    A("v_lshl_add_u32 v13, v4, 4, v13")
    A("v_lshl_add_u32 v13, v12, 3, v13")
    A("s_lshl_b32 s41, s33, 8")
    A("s_add_u32 s41, s41, s36")
    A("v_add_u32 v13, s41, v13")
    A("v_lshlrev_b32 v14, 4, v4")
    A("v_lshlrev_b32 v15, 5, v3")
    A("v_sub_u32 v14, v14, v15")
    A(f"v_add_u32 v14, {URB+480}, v14")
    A("v_add_u32 v14, s41, v14")
    stamp(A, sb + 0)
    lab = A.newlabel("b2w")
    A(f"s_cmp_lg_u32 s{S_WAVE}, 0")
    A(f"s_cbranch_scc1 {lab}")
    if not resolved:
        A("s_waitcnt vmcnt(0)")
        nonce_resolve(A, "B")
    A(f"s_lshr_b32 s41, s{s_grp}, 4")
    A("s_lshl_b32 s41, s41, 8")
    flag_poll(A, "B", 41)
    A.label(lab)
    A("s_barrier")
    stamp(A, sb + 1)
    U = 68
    for it in range(2):
        A(f"buffer_load_dwordx4 {v(U+4*it,4)}, v5, s[48:51], 0 offen offset:{1024*it} sc1")
    Q = 84
    A(f"s_lshl_b32 s41, s{S_WAVE}, 12")
    A("v_lshlrev_b32 v6, 4, v1")
    A(f"v_add_u32 v6, {XCH}, v6")
    A("v_add_u32 v7, s41, v6")
    A(f"s_xor_b32 s42, s{S_WAVE}, 4")
    A("s_lshl_b32 s42, s42, 12")
    A("v_add_u32 v6, s42, v6")
    A(f"v_sub_u32 v11, {URB+504}, v9")
    A("s_lshl_b32 s41, s33, 11")
    A("s_sub_u32 s42, s36, s41")
    A("v_add_u32 v11, s42, v11")
    A(f"s_mul_i32 s42, s32, {ZS}")
    A("s_add_u32 s42, s42, s41")
    A("v_add_u32 v9, s42, v9")
    A("s_waitcnt vmcnt(0)")
    for it in range(2):
        A(f"ds_write_b128 v10, {v(U+4*it,4)} offset:{URB+1024*it}")
    for it in range(4): A(f"s_mov_b32 s{60+it}, {64*1152*it}")
    A("s_waitcnt lgkmcnt(0)")
    A("s_barrier")
    stamp(A, sb + 2)
    ACC = 208
    FA = [104, 16]
    def frag_reads(rho, base):
        lst = []
        for b in range(8):
            lst.append(f"ds_read_b128 {v(base+32+4*b,4)}, v14 offset:{64*rho+512*(7-b)}")
        aa_l = []
        for aa in range(8):
            aa_l.append(f"ds_read_b64 {v(base+4*aa,2)}, v13 offset:{512*aa+64*rho}")
            aa_l.append(f"ds_read_b64 {v(base+4*aa+2,2)}, v13 offset:{512*aa+64*rho+8}")
        return aa_l[:2] + lst + aa_l[2:]
    for r_ in frag_reads(0, FA[0]): A(r_)
    UU = 88
    UU = 92
    for rho in range(4):
        base = FA[rho & 1]
        A("s_waitcnt lgkmcnt(0)")
        rd = frag_reads(rho + 1, FA[(rho + 1) & 1]) if rho < 3 else [f"ds_read_b64 {v(UU+2*c,2)}, v11 offset:{512*(7-c)}" for c in range(4)]
        i = 0
        A(f"buffer_load_dwordx2 {v(Q+2*rho,2)}, v8, s[52:55], s{60+rho} offen")
        for aa in range(8):
            for b in range(8 - aa):
                c = aa + b
                src = "0" if (rho == 0 and aa == 0) else v(ACC+4*c, 4)
                A(f"v_mfma_f32_16x16x32_bf16 {v(ACC+4*c,4)}, {v(base+4*aa,4)}, {v(base+32+4*b,4)}, {src}")
                if i < len(rd): A(rd[i]); i += 1
    stamp(A, sb + 3)
    l1 = A.newlabel("b2h1"); l2 = A.newlabel("b2x")
    KP = 192
    A("s_cmp_eq_u32 s33, 1")
    A(f"s_cbranch_scc1 {l1}")
    for c in range(4): A(f"ds_write_b128 v7, {v(ACC+16+4*c,4)} offset:{1024*c}")
    for c in range(8): A(f"v_mov_b64 {v(KP+2*c,2)}, {v(ACC+2*c,2)}")
    A(f"s_branch {l2}")
    A.label(l1)
    for c in range(4): A(f"ds_write_b128 v7, {v(ACC+4*c,4)} offset:{1024*c}")
    for c in range(8): A(f"v_mov_b64 {v(KP+2*c,2)}, {v(ACC+16+2*c,2)}")
    A.label(l2)
    A("s_and_b32 s37, s37, 2")
    A("s_lshl_b32 s37, s37, 3")
    A("s_waitcnt lgkmcnt(0)")
    A("s_lshr_b32 s39, s39, s37")
    A("s_lshl_b32 s39, s39, 16")
    TT = 16
    for c in range(4):
        A(f"v_and_b32 v{TT+4*c+0}, 0xffff0000, v{UU+2*c+1}")
        A(f"v_lshlrev_b32 v{TT+4*c+1}, 16, v{UU+2*c+1}")
        A(f"v_and_b32 v{TT+4*c+2}, 0xffff0000, v{UU+2*c}")
        A(f"v_lshlrev_b32 v{TT+4*c+3}, 16, v{UU+2*c}")
    for e in range(16): A(f"v_fma_f32 v{KP+e}, v{TT+e}, s39, v{KP+e}")
    A("s_barrier")
    for c in range(4): A(f"ds_read_b128 {v(48+4*c,4)}, v6 offset:{1024*c}")
    for c in range(4):
        A(f"s_waitcnt lgkmcnt({3-c})")
        for r in range(4): A(f"v_add_f32 v{KP+4*c+r}, v{KP+4*c+r}, v{48+4*c+r}")
        A(f"v_cvt_pk_bf16_f32 v{64+2*c}, v{KP+4*c}, v{KP+4*c+1}")
        A(f"v_cvt_pk_bf16_f32 v{65+2*c}, v{KP+4*c+2}, v{KP+4*c+3}")
        A(f"ds_write_b64 v9, {v(64+2*c,2)} offset:{512*c}")
    A("s_waitcnt vmcnt(0)")
    QF = 32
    for it in range(4):
        A(f"v_lshlrev_b32 v{QF+4*it+0}, 16, v{Q+2*it}")
        A(f"v_and_b32 v{QF+4*it+1}, 0xffff0000, v{Q+2*it}")
        A(f"v_lshlrev_b32 v{QF+4*it+2}, 16, v{Q+2*it+1}")
        A(f"v_and_b32 v{QF+4*it+3}, 0xffff0000, v{Q+2*it+1}")
    A("v_lshrrev_b32 v12, 2, v3")
    A(f"v_mul_u32_u24 v12, {ZS}, v12")
    A("v_and_b32 v13, 3, v3")
    A("v_lshl_add_u32 v12, v13, 3, v12")
    A("v_lshl_add_u32 v12, v4, 5, v12")
    A(f"s_lshl_b32 s41, s{S_WAVE}, 9")
    A("v_add_u32 v12, s41, v12")
    A(f"s_lshl_b32 s41, s{S_WAVE}, 8")
    A("v_add_u32 v13, s41, v1")
    A("s_movk_i32 s42, 2304")
    A(f"s_lshl_b32 s43, s{s_grp}, 3")
    A("s_add_u32 s43, s43, 1152")
    A("v_mul_lo_u32 v13, v13, s42")
    A("v_add_u32 v13, s43, v13")
    for it in range(4): A(f"s_mov_b32 s{60+it}, {64*2304*it}")
    A("s_waitcnt lgkmcnt(0)")
    A("s_barrier")
    for it in range(4):
        A(f"ds_read_b64_tr_b16 {v(16+2*it,2)}, v12 offset:{128*it}")
    for it in range(4):
        A(f"s_waitcnt lgkmcnt({3-it})")
        t = 48 + 4 * it
        A(f"v_lshlrev_b32 v{t+0}, 16, v{16+2*it}")
        A(f"v_and_b32 v{t+1}, 0xffff0000, v{16+2*it}")
        A(f"v_lshlrev_b32 v{t+2}, 16, v{16+2*it+1}")
        A(f"v_and_b32 v{t+3}, 0xffff0000, v{16+2*it+1}")
        for r in range(4): A(f"v_mul_f32 v{t+r}, v{t+r}, v{QF+4*it+r}")
        A(f"v_cvt_pk_bf16_f32 v{64+2*it}, v{t}, v{t+1}")
        A(f"v_cvt_pk_bf16_f32 v{65+2*it}, v{t+2}, v{t+3}")
        A(f"buffer_store_dwordx2 {v(64+2*it,2)}, v13, s[56:59], s{60+it} offen" + (" sc1" if OPT.get("b2sc1") else ""))
    stamp(A, sb + 4)

def b1_addr(A, s_tile, vt):
    A(f"s_mul_hi_u32 s66, s{s_tile}, 0x1c71c71d")
    A("s_mul_i32 s67, s66, 9")
    A(f"s_sub_u32 s67, s{s_tile}, s67")
    A(f"v_and_b32 v2, 7, v{vt}")
    A(f"v_lshrrev_b32 v3, 3, v{vt}")
    A("s_lshl_b32 s40, s66, 8")
    A("v_lshl_add_u32 v4, v3, 3, s40")
    A("s_lshl_b32 s41, s67, 7")
    A("v_lshl_add_u32 v5, v2, 4, s41")
    A("s_movk_i32 s42, 1152")
    A("v_mad_u32_u24 v6, v4, s42, v5")
    A("v_add_u32 v7, 4608, v6")

def gen_b1_kv(A, s_tile):
    A.comment("===== B1 kv (waves 0-3) =====")
    b1_addr(A, s_tile, 0)
    A("v_subrev_u32 v8, 3456, v6")
    A("v_subrev_u32 v9, 2304, v6")
    A("v_subrev_u32 v10, 1152, v6")
    make_srd(A, 48, P_K, SZ_T)
    make_srd(A, 52, P_V, SZ_T)
    make_srd(A, 56, P_SH, 576 * 8)
    KR, VR, SH, W = 16, 60, 92, 108
    KF, VF, ACC, OUT = 140, 162, 178, 194
    for j, vo in enumerate((8, 9, 10)):
        A(f"buffer_load_dwordx4 {v(KR+4*j,4)}, v{vo}, s[48:51], 0 offen")
    for i in range(8):
        A(f"buffer_load_dwordx4 {v(KR+4*(3+i),4)}, v{6 if i < 4 else 7}, s[48:51], 0 offen offset:{1152*(i%4)}")
    for i in range(8):
        A(f"buffer_load_dwordx4 {v(VR+4*i,4)}, v{6 if i < 4 else 7}, s[52:55], 0 offen offset:{1152*(i%4)}")
    A("s_lshl_b32 s43, s67, 9")
    A("v_lshl_add_u32 v11, v2, 6, s43")
    for i in range(4):
        A(f"buffer_load_dwordx4 {v(SH+4*i,4)}, v11, s[56:59], 0 offen offset:{16*i}")
    stamp(A, 2)
    make_srd(A, 52+8, P_WS, SZ_T, WS_UR)
    A("s_lshl_b32 s43, s67, 18")
    A("v_lshl_add_u32 v12, v2, 15, s43")
    A("v_lshlrev_b32 v14, 1, v4")
    A("v_sub_u32 v12, v12, v14")
    A("v_add_u32 v12, 4080, v12")
    for ch in range(8): A(f"s_mov_b32 s{68+ch}, {ch*4096}")
    A("s_waitcnt vmcnt(0)")
    A("s_barrier")
    stamp(A, 3)
    for ch in range(8):
        A(f"v_lshlrev_b32 v{W+0*8+ch}, 16, v{SH+2*ch}")
        A(f"v_and_b32 v{W+1*8+ch}, 0xffff0000, v{SH+2*ch}")
        A(f"v_lshlrev_b32 v{W+2*8+ch}, 16, v{SH+2*ch+1}")
        A(f"v_and_b32 v{W+3*8+ch}, 0xffff0000, v{SH+2*ch+1}")
    for m in range(4):
        for j in range(11):
            A(f"v_lshlrev_b32 v{KF+2*j}, 16, v{KR+4*j+m}")
            A(f"v_and_b32 v{KF+2*j+1}, 0xffff0000, v{KR+4*j+m}")
        for i in range(8):
            A(f"v_lshlrev_b32 v{VF+2*i}, 16, v{VR+4*i+m}")
            A(f"v_and_b32 v{VF+2*i+1}, 0xffff0000, v{VR+4*i+m}")
        for i in range(8):
            A(f"v_pk_mul_f32 {v(ACC+2*i,2)}, {v(W+3*8+2*m,2)}, {v(KF+2*i,2)}")
        for t in (2, 1, 0):
            for i in range(8):
                A(f"v_pk_fma_f32 {v(ACC+2*i,2)}, {v(W+t*8+2*m,2)}, {v(KF+2*(i+3-t),2)}, {v(ACC+2*i,2)}")
        for i in range(8):
            A(f"v_pk_mul_f32 {v(ACC+2*i,2)}, {v(ACC+2*i,2)}, {v(VF+2*i,2)}")
        o = OUT + 8 * (m & 1)
        for h in range(2):
            for q in range(4):
                A(f"v_cvt_pk_bf16_f32 v{o+4*h+q}, v{ACC+2*(7-2*q)+h}, v{ACC+2*(6-2*q)+h}")
        for h in range(2):
            A(f"buffer_store_dwordx4 {v(o+4*h,4)}, v12, s[60:63], s{68+2*m+h} offen sc1")
    stamp(A, 4)

def tlb_warm(A):
    items = []
    for p, size in ((P_K, SZ_T), (P_V, SZ_T), (P_Q, SZ_T), (P_H, SZ_T), (P_WO, 576*1152), (P_OUT, 2048*2304), (P_SH, 64), (P_D, 64)):
        offs = list(range(0, size, 2 << 20))
        offs.append(size - 128 if size > 128 else 0)
        for o in sorted(set(offs)): items.append((p, o))
    for o in (0, (2 << 20) + (1 << 20), (4 << 20), (6 << 20) + (1 << 20), (8 << 20), (10 << 20) + (1 << 20), (12 << 20)):
        items.append((P_WS, o))
    assert len(items) <= 64
    A(f"v_mov_b32 v20, s{P_WS}")
    A(f"v_mov_b32 v21, s{P_WS+1}")
    for i, (p, o) in enumerate(items):
        A(f"s_add_u32 s96, s{p}, {o}")
        A(f"s_addc_u32 s97, s{p+1}, 0")
        A(f"v_writelane_b32 v20, s96, {i}")
        A(f"v_writelane_b32 v21, s97, {i}")
    A("global_load_dword v245, v[20:21], off")

def b_prefetch(A):
    make_srd(A, 48, P_X, SZ_T)
    make_srd(A, 52, P_W, 576 * 3456)
    lab = A.newlabel("bpf"); lab1 = A.newlabel("bpf1")
    if OPT.get("r1", 1):
        A(f"s_cmp_ge_u32 s{S_WAVE}, 5")
        A(f"s_cbranch_scc1 {lab1}")
        A("s_lshr_b32 s40, s2, 3")
        a_prefetch_setup(A, 10, 12, 4, 40, 32)
        a_prefetch_issue(A, 10, 12, S_WAVE, 48, 52, 240)
        A(f"s_branch {lab}")
        A.label(lab1)
        A(f"s_cmp_ge_u32 s{S_WAVE}, {OPT.get('af', 7)}")
        A(f"s_cbranch_scc1 {lab}")
        A("s_lshr_b32 s40, s91, 3")
        a_prefetch_setup(A, 10, 12, 4, 40, 10)
        a_prefetch_issue(A, 10, 12, S_WAVE, 48, 52, 240, two=True)
    else:
        A(f"s_cmp_ge_u32 s{S_WAVE}, {OPT.get('af', 7) - 1}")
        A(f"s_cbranch_scc1 {lab}")
        A("s_lshr_b32 s40, s91, 3")
        a_prefetch_setup(A, 10, 12, 4, 40, 10)
        A(f"s_add_u32 s40, s{S_WAVE}, 1")
        a_prefetch_issue(A, 10, 12, 40, 48, 52, 240, two=True)
    A.label(lab)
    if OPT.get("tlb"):
        lab2 = A.newlabel("tlb")
        A(f"s_cmp_lg_u32 s{S_WAVE}, 7")
        A(f"s_cbranch_scc1 {lab2}")
        tlb_warm(A)
        A.label(lab2)
    get_nonce_issue(A, "B")

def gen_b1_aux(A, s_tile, has_tile):
    A.comment("===== B1 aux (waves 4-7) =====")
    HL = 130
    if has_tile:
        A("s_barrier")
    b2_h_loads(A, HL, 4)
    make_srd(A, 48, P_Q, SZ_T)
    A("s_lshr_b32 s40, s91, 3")
    A("s_lshl_b32 s40, s40, 2")
    A("s_add_u32 s40, s40, s32")
    A("s_mul_i32 s40, s40, 52")
    A("v_add_u32 v10, s40, v1")
    A("s_and_b32 s41, s2, 7")
    if OPT.get("gmap", 1):
        A("s_lshl_b32 s41, s41, 7")
    else:
        A("s_mul_i32 s41, s41, 144")
        A("s_and_b32 s41, s41, 0xffffff80")
    A("s_movk_i32 s42, 1152")
    A("v_mul_lo_u32 v11, v10, s42")
    A("v_add_u32 v11, s41, v11")
    A(f"v_mov_b32 v12, 0x{BIGOFF:x}")
    A("v_cmp_le_u32 vcc, 52, v1")
    A("v_cndmask_b32 v11, v11, v12, vcc")
    A("buffer_load_dword v243, v11, s[48:51], 0 offen")
    if OPT.get("gmap", 1):
        A("v_subrev_u32 v12, s41, v11")
        A("v_add_u32 v12, 1024, v12")
        A("buffer_load_dword v244, v12, s[48:51], 0 offen")
    else:
        A("buffer_load_dword v244, v11, s[48:51], 0 offen offset:128")
    stamp(A, 2)
    A("s_waitcnt vmcnt(2)")
    stamp(A, 4)
    b2_h_stage(A, HL, 100, 4)

WO_B = 72 * 1024

def gen_a2(A, s_x, s_a, sb):
    A.comment("===== A2 =====")
    A(f"s_sub_u32 s34, s{s_a}, 4")
    A("s_lshr_b32 s33, s34, 1")
    A("s_add_u32 s33, s33, 4")
    A("s_and_b32 s34, s34, 1")
    A(f"s_cmp_lt_u32 s{s_a}, 4")
    A(f"s_cselect_b32 s33, s{s_a}, s33")
    A("s_cselect_b32 s34, 0, s34")
    A("s_cselect_b32 s42, 2, 1")
    A(f"s_lshl_b32 s32, s{s_x}, 1")
    A("s_add_u32 s32, s32, s34")
    make_srd(A, 44, P_WO, 576 * 1152)
    A("v_lshrrev_b32 v2, 3, v1")
    A("v_and_b32 v3, 7, v1")
    A("v_bfe_u32 v4, v1, 4, 1")
    A("v_lshlrev_b32 v4, 1, v4")
    A("v_xor_b32 v4, v4, v3")
    A("v_mul_u32_u24 v5, 1152, v2")
    A("v_lshl_add_u32 v5, v4, 4, v5")
    A("s_lshl_b32 s34, s33, 7")
    A("v_add_u32 v10, s34, v5")
    A("v_xor_b32 v11, 64, v10")
    A(f"s_mul_i32 s35, s{S_WAVE}, 9")
    A("s_and_b32 s36, s35, 1")
    A("s_cmp_eq_u32 s36, 1")
    A("s_cselect_b64 s[56:57], -1, 0")
    A("v_cndmask_b32 v12, v10, v11, s[56:57]")
    A("v_cndmask_b32 v13, v11, v10, s[56:57]")
    A("s_lshl_b32 s36, s33, 3")
    A("s_add_u32 s36, s36, s35")
    A("s_lshl_b32 s37, s35, 10")
    for j in range(9):
        A(f"s_add_u32 s38, s36, {j}")
        A("s_sub_u32 s39, s38, 72")
        A("s_cmp_ge_u32 s38, 72")
        A("s_cselect_b32 s38, s39, s38")
        A("s_mul_i32 s38, s38, 9216")
        A(f"s_add_u32 m0, s37, {1024*j}")
        A(f"buffer_load_dwordx4 v{12+(j&1)}, s[44:47], s38 offen lds")
    make_srd(A, 48, P_WS, SZ_T, WS_OF)
    make_srd(A, 52, P_OUT, 2048 * 2304)
    A("s_lshl_b32 s38, s32, 3")
    A(f"s_add_u32 s38, s38, s{S_WAVE}")
    A("s_mul_i32 s39, s38, 18432")
    A("v_lshlrev_b32 v2, 4, v1")
    A("v_add_u32 v2, s39, v2")
    A("v_add_u32 v3, 4096, v2"); A("v_add_u32 v4, 8192, v2"); A("v_add_u32 v5, 12288, v2"); A("v_add_u32 v6, 16384, v2")
    A("v_and_b32 v7, 15, v1")
    A("v_lshrrev_b32 v8, 4, v1")
    A("v_lshrrev_b32 v9, 2, v7")
    A("v_lshl_add_u32 v9, v8, 3, v9")
    A("v_lshlrev_b32 v9, 7, v9")
    A("v_and_b32 v10, 1, v7")
    A("v_lshl_add_u32 v9, v10, 3, v9")
    A("v_bfe_u32 v10, v7, 3, 1")
    A("v_and_b32 v11, 1, v8")
    A("v_lshl_add_u32 v10, v11, 1, v10")
    A("v_lshlrev_b32 v10, 1, v10")
    A("v_bfe_u32 v11, v7, 1, 1")
    for nt in range(4):
        A(f"v_add_u32 v14, {2*nt}, v11")
        A("v_xor_b32 v14, v14, v10")
        A(f"v_lshl_add_u32 v{16+nt}, v14, 4, v9")
        A(f"v_add_u32 v{20+nt}, 36864, v{16+nt}")
    A(f"s_mul_i32 s40, s{S_WAVE}, 2304")
    A(f"s_add_u32 s40, s40, {WO_B}")
    A("v_mul_u32_u24 v9, 144, v7")
    A("v_lshl_add_u32 v9, v8, 3, v9")
    A("v_add_u32 v9, s40, v9")
    A("v_lshrrev_b32 v10, 3, v1")
    A("v_and_b32 v11, 7, v1")
    A("v_mul_u32_u24 v12, 144, v10")
    A("v_lshl_add_u32 v12, v11, 4, v12")
    A("v_add_u32 v12, s40, v12")
    A("s_mul_i32 s39, s38, 36864")
    A("s_lshl_b32 s41, s33, 7")
    A("s_add_u32 s39, s39, s41")
    A("v_mul_u32_u24 v13, 2304, v10")
    A("v_lshl_add_u32 v13, v11, 4, v13")
    A("v_add_u32 v13, s39, v13")
    A("v_add_u32 v14, 18432, v13")
    stamp(A, sb + 0)
    lab = A.newlabel("a2w")
    A(f"s_cmp_lg_u32 s{S_WAVE}, 0")
    A(f"s_cbranch_scc1 {lab}")
    A("s_lshl_b32 s39, s32, 7")
    A("s_mul_hi_u32 s40, s39, 0x2aaaaab")
    A("s_lshl_b32 s41, s42, 7")
    A("s_add_u32 s39, s39, s41")
    A("s_sub_u32 s39, s39, 1")
    A("s_mul_hi_u32 s41, s39, 0x2aaaaab")
    make_srd(A, 92, P_WS, 65536, WS_FA)
    A("v_lshrrev_b32 v250, 3, v1")
    A("v_add_u32 v250, s40, v250")
    A("v_min_u32 v250, s41, v250")
    A("v_lshlrev_b32 v250, 8, v250")
    A("v_and_b32 v249, 7, v1")
    A("v_lshl_add_u32 v250, v249, 2, v250")
    A("s_mov_b64 exec, 0xffffffff")
    lp = A.newlabel("poll"); done = A.newlabel("polld")
    A("s_mov_b32 s88, 100000")
    A.label(lp)
    A("buffer_load_dword v251, v250, s[92:95], 0 offen sc1")
    A("s_waitcnt vmcnt(0)")
    A(f"v_cmp_ne_u32 vcc, s{S_NA}, v251")
    A("s_nop 4")
    A(f"s_cbranch_vccz {done}")
    A("s_sleep 2")
    A("s_sub_u32 s88, s88, 1")
    A("s_cmp_lg_u32 s88, 0")
    A(f"s_cbranch_scc1 {lp}")
    A.label(done)
    A("s_mov_b64 exec, -1")
    A.label(lab)
    A("s_waitcnt vmcnt(0)")
    A("s_barrier")
    stamp(A, sb + 1)
    BF = [24, 136]
    ACC = 96
    AF = [112, 120]
    AF = [112, 208, 224]
    def oloads(base, extra):
        A("s_lshl_b32 s44, s33, 1")
        for j in range(18):
            A("s_lshl_b32 s45, s44, 10")
            if extra: A("s_add_u32 s45, s45, s43")
            A(f"buffer_load_dwordx4 {v(base+4*j,4)}, v2, s[48:51], s45 offen sc1")
            A("s_add_u32 s44, s44, 1")
            A("s_cmp_eq_u32 s44, 18")
            A("s_cselect_b32 s44, 0, s44")
    def reads(ks, base):
        lst = []
        for nt in range(4):
            va = (16 if ks < 9 else 20) + nt
            for h in range(2):
                lst.append(f"ds_read_b64_tr_b16 {v(base+4*nt+2*h,2)}, v{va} offset:{(ks%9)*4096 + h*512}")
        return lst
    def tile(bf, mode, soff):
        for r_ in reads(0, AF[0]): A(r_)
        for r_ in reads(1, AF[1]): A(r_)
        if mode == 1: A("s_lshl_b32 s44, s33, 1")
        for ks in range(18):
            rd = reads(ks + 2, AF[(ks+2) % 3]) if ks < 16 else []
            cnt = {0: 17 - ks, 1: 17, 2: 17 - ks + 2}[mode]
            A(f"s_waitcnt vmcnt({cnt}) lgkmcnt({8 if ks < 17 else 0})")
            i = 0
            for nt in range(4):
                c = "0" if ks == 0 else v(ACC+4*nt, 4)
                A(f"v_mfma_f32_16x16x32_bf16 {v(ACC+4*nt,4)}, {v(AF[ks%3]+4*nt,4)}, {v(bf+4*ks,4)}, {c}")
                for _ in range(2):
                    if i < len(rd): A(rd[i]); i += 1
            if mode == 1:
                A("s_lshl_b32 s45, s44, 10")
                A("s_add_u32 s45, s45, s43")
                A(f"buffer_load_dwordx4 {v(BF[1]+4*ks,4)}, v2, s[48:51], s45 offen sc1")
                A("s_add_u32 s44, s44, 1")
                A("s_cmp_eq_u32 s44, 18")
                A("s_cselect_b32 s44, 0, s44")
        for nt in range(4):
            A(f"v_cvt_pk_bf16_f32 v{128+2*nt}, v{ACC+4*nt}, v{ACC+4*nt+1}")
            A(f"v_cvt_pk_bf16_f32 v{129+2*nt}, v{ACC+4*nt+2}, v{ACC+4*nt+3}")
            A(f"ds_write_b64 v9, {v(128+2*nt,2)} offset:{32*nt}")
        A("s_waitcnt lgkmcnt(0)")
        A("ds_read_b128 v[128:131], v12")
        A("ds_read_b128 v[132:135], v12 offset:1152")
        A("s_waitcnt lgkmcnt(1)")
        A(f"buffer_store_dwordx4 v[128:131], v13, s[52:55], {soff} offen" + (" sc1" if OPT.get("a2sc1") else ""))
        A("s_waitcnt lgkmcnt(0)")
        A(f"buffer_store_dwordx4 v[132:135], v14, s[52:55], {soff} offen" + (" sc1" if OPT.get("a2sc1") else ""))
    oloads(BF[0], False)
    l2 = A.newlabel("a2two"); lend = A.newlabel("a2end")
    A("s_cmp_eq_u32 s42, 2")
    A(f"s_cbranch_scc1 {l2}")
    tile(BF[0], 0, "0")
    A(f"s_branch {lend}")
    A.label(l2)
    A(f"s_mov_b32 s43, {8*18432}")
    tile(BF[0], 1, "0")
    stamp(A, sb + 2)
    A(f"s_mov_b32 s43, {128*2304}")
    tile(BF[1], 2, "s43")
    A.label(lend)
    stamp(A, sb + 3)

def build(path, stamps=False):
    global STAMPS
    STAMPS = stamps
    A = Asm()
    A.raw(f".globl {NAME}\n.p2align 8\n.type {NAME},@function\n{NAME}:")
    A("s_cmp_ge_u32 s2, 256")
    A("s_cbranch_scc1 L_end")
    A("s_load_dwordx16 s[4:19], s[0:1], 0")
    A("s_load_dwordx8 s[20:27], s[0:1], 64")
    A("s_memrealtime s[30:31]")
    if OPT.get("codepf", 1):
        A("s_getpc_b64 s[32:33]")
        A.label("L_pc")
        A("s_lshr_b32 s34, s2, 3")
        A("s_mul_i32 s34, s34, CODE_LPW*128")
        A("v_and_b32 v3, 63, v0")
        A("v_lshlrev_b32 v3, 7, v3")
        A("v_add_u32 v3, s34, v3")
        A("v_cmp_gt_u32 vcc, (L_end-L_pc), v3")
        A("v_cmp_gt_u32 s[36:37], CODE_LPW, v0")
        A("s_and_b64 vcc, vcc, s[36:37]")
        A("s_and_saveexec_b64 s[36:37], vcc")
        labc = A.newlabel("cpf")
        A(f"s_cbranch_execz {labc}")
        A("global_load_dword v247, v3, s[32:33]")
        A.label(labc)
        A("s_mov_b64 exec, s[36:37]")
    A("v_lshrrev_b32 v2, 6, v0")
    A("v_and_b32 v1, 63, v0")
    A(f"v_readfirstlane_b32 s{S_WAVE}, v2")
    A("s_waitcnt lgkmcnt(0)")
    A(f"s_or_b32 s{S_MY}, s30, 1")
    if STAMPS: A("v_mov_b32 v246, -1")
    stamp(A, 0)
    if STAMPS:
        A("s_memtime s[100:101]")
        A("s_waitcnt lgkmcnt(0)")
        A("v_writelane_b32 v246, s100, 16")
    A("s_cmp_ge_u32 s2, 176")
    A("s_cbranch_scc1 L_bset")
    gen_a1(A)
    A("s_cmp_lt_u32 s2, 64")
    A("s_cbranch_scc1 L_a_b2")
    A("s_and_b32 s90, s2, 7")
    A("s_sub_u32 s91, s2, 64")
    A("s_lshr_b32 s91, s91, 3")
    gen_a2(A, 90, 91, 8)
    A("s_branch L_fin")
    A.label("L_a_b2")
    A("s_and_b32 s89, s2, 7")
    A("s_lshr_b32 s91, s2, 3")
    A("s_add_u32 s91, s91, 10")
    grp_of(A, 90, 89, 91, 40)
    get_nonce_issue(A, "B")
    b2_common(A, 90)
    if not OPT.get("hearly", 1):
        b2_h_loads(A, 170, 2)
    A("s_waitcnt vmcnt(0)")
    b2_h_stage(A, 170, 112, 2)
    b2_main(A, 90, 8, resolved=False)
    A("s_branch L_fin")
    A.label("L_bset")
    A("s_sub_u32 s91, s2, 176")
    A("s_and_b32 s40, s91, 7")
    A("s_lshr_b32 s89, s91, 3")
    grp_of(A, 90, 40, 89, 41)
    b_prefetch(A)
    b2_common(A, 90)
    if OPT.get("bwait", 1):
        A("s_waitcnt vmcnt(0)")
        A("s_barrier")
    stamp(A, 1)
    A("s_cmp_ge_u32 s91, 72")
    A("s_cbranch_scc1 L_b_nob1")
    A(f"s_cmp_ge_u32 s{S_WAVE}, 4")
    A("s_cbranch_scc1 L_b_aux")
    gen_b1_kv(A, 91)
    A("s_branch L_b_join")
    A.label("L_b_aux")
    gen_b1_aux(A, 91, True)
    A.label("L_b_join")
    A("s_waitcnt vmcnt(0) lgkmcnt(0)")
    A("s_barrier")
    lab = A.newlabel("b1f")
    A(f"s_cmp_lg_u32 s{S_WAVE}, 0")
    A(f"s_cbranch_scc1 {lab}")
    nonce_resolve(A, "B")
    A("s_lshl_b32 s40, s67, 8")
    A("s_lshl_b32 s41, s66, 2")
    A("s_add_u32 s40, s40, s41")
    flag_store(A, "B", 40)
    A.label(lab)
    A("s_branch L_b_b2")
    A.label("L_b_nob1")
    lab = A.newlabel("bnx")
    A(f"s_cmp_lt_u32 s{S_WAVE}, 4")
    A(f"s_cbranch_scc1 {lab}")
    gen_b1_aux(A, 91, False)
    A.label(lab)
    A("s_waitcnt vmcnt(0)")
    lab = A.newlabel("bz")
    A(f"s_cmp_lg_u32 s{S_WAVE}, 0")
    A(f"s_cbranch_scc1 {lab}")
    nonce_resolve(A, "B")
    A.label(lab)
    A.label("L_b_b2")
    b2_main(A, 90, 5, resolved=True)
    A.label("L_fin")
    stamp_flush(A)
    A.label("L_end")
    A("s_endpgm")
    body = A.finalize()
    lds = 3 * ST1 + 64
    out = HEADER + f"; @launch grid=(256,1,1) block=(512,1,1) lds={lds}\n"
    out += '.amdgcn_target "amdgcn-amd-amdhsa--gfx950"\n.text\n.set CODE_LPW, 16\n' + body
    out += '.section .rodata,"a"\n.p2align 6\n' + kd(NAME, 256)
    open(path, "w").write(out)

if __name__ == "__main__":
    for a in sys.argv[3:]:
        k, x = a.split("="); OPT[k] = int(x)
    build(sys.argv[1], stamps=(len(sys.argv) > 2 and sys.argv[2] == "stamps"))
```

```python
import sys, struct, math
from asmlib import *
from gen_common import HEADER, kd

NAME = "concat_heads__sliding_local_dilated__ssm_conv_h3__prompt_kernel"
SZ_T = 576 * 2048 * 2
WS_UR = 4096
WS_QT = (4 << 20) + 4096
WS_OF = (8 << 20) + 4096
WS_FA = (12 << 20) + 4096
WS_FB = WS_FA + 65536
STAMP_OFF = 16 << 20
BIGOFF = 0x7FFF0000
PL = 141312
PC = 141328

P_X, P_W, P_WO, P_Q, P_K, P_V, P_SH, P_H, P_D, P_OUT, P_DBG, P_WS = 4, 6, 8, 10, 12, 14, 16, 18, 20, 22, 24, 26
S_MY, S_WAVE, S_NA, S_NB = 28, 29, 30, 31
V_NA, V_NB = 252, 254
STAMPS = False
OPT = {}

def make_srd(A, dst, ptr, nbytes, add=0, add_s=None):
    if add_s is not None:
        A(f"s_add_u32 s{dst}, s{ptr}, s{add_s}")
        A(f"s_addc_u32 s{dst+1}, s{ptr+1}, 0")
        if add:
            A(f"s_add_u32 s{dst}, s{dst}, {add}")
            A(f"s_addc_u32 s{dst+1}, s{dst+1}, 0")
        A(f"s_and_b32 s{dst+1}, s{dst+1}, 0xffff")
    elif add:
        A(f"s_add_u32 s{dst}, s{ptr}, {add}")
        A(f"s_addc_u32 s{dst+1}, s{ptr+1}, 0")
        A(f"s_and_b32 s{dst+1}, s{dst+1}, 0xffff")
    else:
        A(f"s_mov_b32 s{dst}, s{ptr}")
        A(f"s_and_b32 s{dst+1}, s{ptr+1}, 0xffff")
    A(f"s_mov_b32 s{dst+2}, {nbytes}")
    A(f"s_mov_b32 s{dst+3}, 0x00020000")

def stamp(A, idx):
    if not STAMPS: return
    if OPT.get("dbgl") and idx >= 5: return
    A("s_memrealtime s[100:101]")
    A("s_waitcnt lgkmcnt(0)")
    A(f"v_writelane_b32 v246, s100, {idx}")

def stamp_flush(A):
    if not STAMPS: return
    A("s_memtime s[100:101]")
    A("s_waitcnt lgkmcnt(0)")
    A("v_writelane_b32 v246, s100, 17")
    A("s_memrealtime s[100:101]")
    A("s_waitcnt lgkmcnt(0)")
    A("v_writelane_b32 v246, s100, 18")
    lab = A.newlabel("stf")
    A(f"s_and_b32 s96, s{S_WAVE}, 3")
    A("s_cmp_lg_u32 s96, 0")
    A(f"s_cbranch_scc1 {lab}")
    A(f"s_lshr_b32 s100, s{S_WAVE}, 2")
    A("s_lshl_b32 s100, s100, 8")
    A("s_add_u32 s100, s100, s2")
    A("s_lshl_b32 s100, s100, 7")
    A(f"s_add_u32 s96, s{P_WS}, {STAMP_OFF}")
    A(f"s_addc_u32 s97, s{P_WS+1}, 0")
    A("s_and_b32 s97, s97, 0xffff")
    A("s_mov_b32 s98, 0x100000")
    A("s_mov_b32 s99, 0x00020000")
    A("v_lshlrev_b32 v250, 2, v1")
    A("v_add_u32 v250, s100, v250")
    A("s_mov_b64 exec, 0xffffffff")
    A("buffer_store_dword v246, v250, s[96:99], 0 offen")
    A("s_mov_b64 exec, -1")
    A.label(lab)

def get_nonce_issue(A, which):
    vn = V_NA if which == "A" else V_NB
    lab = A.newlabel("nz")
    A(f"s_cmp_lg_u32 s{S_WAVE}, 0")
    A(f"s_cbranch_scc1 {lab}")
    make_srd(A, 92, P_DBG, 256)
    A(f"v_mov_b32 v{vn}, s{S_MY}")
    A(f"v_mov_b32 v{vn+1}, 0")
    A(f"v_mov_b32 v251, {0 if which == 'A' else 128}")
    A("s_mov_b64 exec, 1")
    A(f"buffer_atomic_cmpswap v[{vn}:{vn+1}], v251, s[92:95], 0 offen sc0 sc1")
    A("s_mov_b64 exec, -1")
    A.label(lab)

def nonce_resolve(A, which):
    vn = V_NA if which == "A" else V_NB
    sn = S_NA if which == "A" else S_NB
    A(f"v_readfirstlane_b32 s{sn}, v{vn}")
    A(f"s_cmp_eq_u32 s{sn}, 0")
    A(f"s_cselect_b32 s{sn}, s{S_MY}, s{sn}")

def flag_store(A, which, s_off):
    sn = S_NA if which == "A" else S_NB
    make_srd(A, 92, P_WS, 65536, WS_FA if which == "A" else WS_FB)
    A(f"v_mov_b32 v250, s{s_off}")
    A(f"v_mov_b32 v251, s{sn}")
    A("s_mov_b64 exec, 1")
    A("buffer_store_dword v251, v250, s[92:95], 0 offen sc1")
    A("s_mov_b64 exec, -1")

def flag_poll(A, which, s_off0, s_off1=None):
    sn = S_NA if which == "A" else S_NB
    make_srd(A, 92, P_WS, 65536, WS_FA if which == "A" else WS_FB)
    A("v_and_b32 v250, 7, v1")
    A("v_lshlrev_b32 v250, 2, v250")
    if s_off1 is not None:
        A(f"v_mov_b32 v249, s{s_off0}")
        A(f"v_mov_b32 v248, s{s_off1}")
        A("v_cmp_gt_u32 vcc, 8, v1")
        A("v_cndmask_b32 v249, v248, v249, vcc")
        A("v_add_u32 v250, v250, v249")
        A("s_mov_b64 exec, 0xffff")
    else:
        A(f"v_add_u32 v250, s{s_off0}, v250")
        A("s_mov_b64 exec, 0xff")
    lp = A.newlabel("poll"); done = A.newlabel("polld")
    A("s_mov_b32 s88, 100000")
    A.label(lp)
    A("buffer_load_dword v251, v250, s[92:95], 0 offen sc1")
    A("s_waitcnt vmcnt(0)")
    A(f"v_cmp_ne_u32 vcc, s{sn}, v251")
    A("s_nop 4")
    A(f"s_cbranch_vccz {done}")
    A(f"s_sleep {OPT.get('slp', 2)}")
    A("s_sub_u32 s88, s88, 1")
    A("s_cmp_lg_u32 s88, 0")
    A(f"s_cbranch_scc1 {lp}")
    A.label(done)
    A("s_mov_b64 exec, -1")

def lds_poll(A, vaddr, vd, s_tmp, target, s_cnt, pre_read=False):
    lp = A.newlabel("lpl"); chk = A.newlabel("lpc"); done = A.newlabel("lpd")
    A(f"s_mov_b32 s{s_cnt}, 2000000")
    if pre_read: A(f"s_branch {chk}")
    A.label(lp)
    A(f"ds_read_b128 {v(vd,4)}, v{vaddr}")
    A("s_waitcnt lgkmcnt(0)")
    A.label(chk)
    A(f"v_min_u32 v{vd}, v{vd}, v{vd+1}")
    A(f"v_min3_u32 v{vd}, v{vd}, v{vd+2}, v{vd+3}")
    A(f"v_readfirstlane_b32 s{s_tmp}, v{vd}")
    A(f"s_cmp_ge_u32 s{s_tmp}, {target}")
    A(f"s_cbranch_scc1 {done}")
    A(f"s_sub_u32 s{s_cnt}, s{s_cnt}, 1")
    A(f"s_cmp_lg_u32 s{s_cnt}, 0")
    A(f"s_cbranch_scc1 {lp}")
    A.label(done)

def grp_of(A, sd, sx, si, st):
    if OPT.get("gmap", 1):
        A(f"s_lshl_b32 s{sd}, s{sx}, 4")
        A(f"s_add_u32 s{sd}, s{sd}, s{si}")
        A(f"s_lshl_b32 s{st}, s{sx}, 1")
        A(f"s_add_u32 s{st}, s{st}, s{si}")
        A(f"s_add_u32 s{st}, s{st}, 112")
        A(f"s_cmp_lt_u32 s{si}, 16")
        A(f"s_cselect_b32 s{sd}, s{sd}, s{st}")
    else:
        A(f"s_mul_i32 s{sd}, s{sx}, 18")
        A(f"s_add_u32 s{sd}, s{sd}, s{si}")

def a_prefetch_setup(A, vx, vw, t0, s_idx, nshare):
    px = -(-1072 // nshare); pw = -(-576 // nshare)
    A("s_and_b32 s96, s2, 7")
    A("s_lshr_b32 s98, s96, 2")
    A("s_and_b32 s96, s96, 3")
    A("s_mul_i32 s98, s98, 1056")
    A(f"s_mul_i32 s99, s{s_idx}, {px}")
    A("s_add_u32 s98, s98, s99")
    A("s_sub_u32 s98, s98, 16")
    A(f"v_mov_b32 v{t0+1}, 0x{BIGOFF:x}")
    A("s_movk_i32 s99, 1152")
    for e in range(2 if px > 64 else 1):
        A(f"v_add_u32 v{t0}, s98, v1")
        if e: A(f"v_add_u32 v{t0}, 64, v{t0}")
        A(f"v_mul_lo_u32 v{vx+e}, v{t0}, s99")
        A(f"v_cmp_gt_i32 vcc, 0, v{t0}")
        A(f"v_cndmask_b32 v{vx+e}, v{vx+e}, v{t0+1}, vcc")
        lim = min(px - 64*e, 64)
        if lim < 64:
            A(f"v_cmp_le_u32 vcc, {lim}, v1")
            A(f"v_cndmask_b32 v{vx+e}, v{vx+e}, v{t0+1}, vcc")
    A(f"s_mul_i32 s99, s{s_idx}, {pw}")
    A(f"v_add_u32 v{t0}, s99, v1")
    A(f"v_mul_u32_u24 v{t0+2}, 7282, v{t0}")
    A(f"v_lshrrev_b32 v{t0+2}, 16, v{t0+2}")
    A(f"v_mul_u32_u24 v{t0+3}, 9, v{t0+2}")
    A(f"v_sub_u32 v{t0+3}, v{t0}, v{t0+3}")
    A(f"v_mul_u32_u24 v{t0+4}, 21846, v{t0+3}")
    A(f"v_lshrrev_b32 v{t0+4}, 16, v{t0+4}")
    A(f"v_mul_u32_u24 v{vw}, 3456, v{t0+2}")
    A(f"v_mul_u32_u24 v{t0+2}, 1152, v{t0+4}")
    A(f"v_add_u32 v{vw}, v{vw}, v{t0+2}")
    A(f"v_mul_u32_u24 v{t0+4}, 3, v{t0+4}")
    A(f"v_sub_u32 v{t0+3}, v{t0+3}, v{t0+4}")
    A(f"v_lshl_add_u32 v{vw}, v{t0+3}, 7, v{vw}")
    A("s_lshl_b32 s96, s96, 8")
    A(f"v_add_u32 v{vw}, s96, v{vw}")
    A(f"v_cmp_le_u32 vcc, {pw}, v1")
    A(f"v_cndmask_b32 v{vw}, v{vw}, v{t0+1}, vcc")
    A(f"v_cmp_le_u32 vcc, 576, v{t0}")
    A(f"v_cndmask_b32 v{vw}, v{vw}, v{t0+1}, vcc")

def a_prefetch_issue(A, vx, vw, s_kc, srd_x, srd_w, vd, two=False):
    A(f"s_lshl_b32 s96, s{s_kc}, 7")
    A(f"s_mul_i32 s97, s{s_kc}, 221184")
    A(f"buffer_load_dword v{vd}, v{vw}, s[{srd_w}:{srd_w+3}], s97 offen")
    A(f"buffer_load_dword v{vd+1}, v{vx}, s[{srd_x}:{srd_x+3}], s96 offen")
    if two:
        A(f"buffer_load_dword v{vd+2}, v{vx+1}, s[{srd_x}:{srd_x+3}], s96 offen")

XS = 14 * 1024
W1 = 32 * 1024
ST1 = XS + W1
HHS = 112 * 48
OB = 13 * HHS
V_KQ, V_VT, V_OW, V_NINF, V_OG, V_OL = 220, 221, 222, 225, 226, 228

def attn_setup(A, t0=4):
    a, b, c, d = t0, t0+1, t0+2, t0+3
    A(f"s_and_b32 s56, s{S_WAVE}, 3")
    A(f"s_lshr_b32 s57, s{S_WAVE}, 2")
    A("s_mul_i32 s57, s57, 3")
    A(f"v_lshlrev_b32 v{a}, 2, v3")
    A(f"v_sub_u32 v{a}, v2, v{a}")
    for tl in range(2):
        for r in range(4):
            dd = (16 if tl == 0 else 0) - r
            A(f"v_add_u32 v{b}, {dd}, v{a}" if dd >= 0 else f"v_subrev_u32 v{b}, {-dd}, v{a}")
            A(f"v_and_b32 v{b}, 0xfffffff1, v{b}")
            A(f"v_cmp_eq_u32 s[{64+2*(4*tl+r)}:{65+2*(4*tl+r)}], 0, v{b}")
    A("v_cmp_gt_u32 s[80:81], 2, v3")
    A("v_cmp_gt_u32 s[82:83], 3, v3")
    A("s_or_b32 s58, s32, s57")
    for r in range(4):
        A(f"s_cmp_eq_u32 s58, 0")
        A(f"s_cselect_b64 s[{84+2*r}:{85+2*r}], 0, s[{64+2*r}:{65+2*r}]")
    A(f"v_min_u32 v{b}, 2, v3")
    A(f"v_mul_u32_u24 v{c}, 48, v2")
    A(f"v_lshl_add_u32 v{c}, v{b}, 4, v{c}")
    A(f"s_mul_i32 s58, s56, {HHS}")
    A("s_mul_i32 s59, s57, 768")
    A("s_add_u32 s58, s58, s59")
    A(f"v_add_u32 v{V_KQ}, s58, v{c}")
    A(f"v_lshrrev_b32 v{b}, 2, v2")
    A(f"v_lshl_add_u32 v{b}, v3, 2, v{b}")
    A(f"v_mul_u32_u24 v{b}, 48, v{b}")
    A(f"v_and_b32 v{c}, 3, v2")
    A(f"v_lshl_add_u32 v{b}, v{c}, 3, v{b}")
    A(f"v_add_u32 v{V_VT}, s58, v{b}")
    A(f"v_mul_u32_u24 v{b}, 144, v2")
    A(f"v_lshl_add_u32 v{b}, v3, 3, v{b}")
    A("s_mul_i32 s58, s56, 36")
    A("s_mul_i32 s59, s57, 2304")
    A("s_add_u32 s58, s58, s59")
    A(f"s_add_u32 s58, s58, {OB}")
    A(f"v_add_u32 v{V_OW}, s58, v{b}")
    A(f"v_add_u32 v{V_OW+1}, 2304, v{V_OW}")
    A(f"v_add_u32 v{V_OW+2}, 4608, v{V_OW}")
    A(f"v_mov_b32 v{V_NINF}, 0xff800000")
    A("s_mul_i32 s58, s32, 110592")
    A("s_mul_i32 s59, s33, 2304")
    A("s_add_u32 s58, s58, s59")
    for rnd in range(2):
        A(f"v_add_u32 v{a}, {512*rnd}, v0")
        A(f"v_and_b32 v{b}, 15, v{a}")
        A(f"v_lshrrev_b32 v{c}, 4, v{a}")
        A(f"v_mul_u32_u24 v{d}, 7282, v{c}")
        A(f"v_lshrrev_b32 v{d}, 16, v{d}")
        A(f"v_mul_u32_u24 v{d+1}, 9, v{d}")
        A(f"v_sub_u32 v{c}, v{c}, v{d+1}")
        A(f"v_lshl_add_u32 v{d+1}, v{d}, 4, v{b}")
        A(f"v_mul_u32_u24 v{d+1}, 144, v{d+1}")
        A(f"v_lshl_add_u32 v{d+1}, v{c}, 4, v{d+1}")
        A(f"v_add_u32 v{V_OL+rnd}, {OB}, v{d+1}")
        A(f"v_mul_u32_u24 v{d}, 18432, v{d}")
        A(f"v_lshl_add_u32 v{d}, v{c}, 8, v{d}")
        A(f"v_lshl_add_u32 v{d}, v{b}, 4, v{d}")
        A(f"v_add_u32 v{V_OG+rnd}, s58, v{d}")
        if rnd == 1:
            A(f"v_mov_b32 v{b}, 0x{BIGOFF:x}")
            A(f"v_cmp_gt_u32 vcc, 864, v{a}")
            A(f"v_cndmask_b32 v{V_OG+rnd}, v{b}, v{V_OG+rnd}, vcc")

def gen_a1(A):
    n = "a1"
    A("s_and_b32 s36, s2, 7")
    A("s_lshr_b32 s37, s2, 3")
    A("s_lshr_b32 s38, s36, 2")
    A("s_and_b32 s39, s36, 3")
    A("s_mul_i32 s32, s38, 11")
    A("s_lshr_b32 s40, s37, 1")
    A("s_add_u32 s32, s32, s40")
    A("s_and_b32 s40, s37, 1")
    A("s_lshl_b32 s33, s39, 1")
    A("s_add_u32 s33, s33, s40")
    A("s_mul_i32 s34, s32, 96")
    make_srd(A, 44, P_X, SZ_T)
    make_srd(A, 48, P_W, 576 * 3456)
    if OPT.get("r1", 1):
        labr = A.newlabel("r1")
        A(f"s_cmp_ge_u32 s{S_WAVE}, 5")
        A(f"s_cbranch_scc1 {labr}")
        a_prefetch_setup(A, 232, 233, 4, 37, 32)
        a_prefetch_issue(A, 232, 233, S_WAVE, 44, 48, 240)
        A.label(labr)
    A(f"s_cmp_ge_u32 s{S_WAVE}, 4")
    A(f"s_cbranch_scc1 {n}_loader")
    a_prefetch_setup(A, 230, 231, 4, 37, 22)
    if OPT.get("tlba"):
        labt = A.newlabel("tlba")
        A(f"s_cmp_lg_u32 s{S_WAVE}, 3")
        A(f"s_cbranch_scc1 {labt}")
        tlb_warm(A)
        A.label(labt)
    get_nonce_issue(A, "A")
    A("v_and_b32 v2, 15, v1")
    A("v_lshrrev_b32 v3, 4, v1")
    attn_setup(A)
    A("v_lshrrev_b32 v6, 2, v2")
    A("v_lshl_add_u32 v7, v3, 3, v6")
    A("v_lshlrev_b32 v7, 9, v7")
    A("v_and_b32 v8, 3, v2")
    A("v_lshl_add_u32 v7, v8, 3, v7")
    A(f"v_add_u32 v7, {XS}, v7")
    A("v_and_b32 v8, 1, v3")
    A("v_lshl_add_u32 v8, v8, 2, v6")
    A("v_lshrrev_b32 v9, 1, v2")
    A("v_xor_b32 v9, v9, v3")
    A("v_lshlrev_b32 v9, 4, v9")
    XA = 14
    A(f"v_lshl_add_u32 v{XA}, v2, 7, v9")
    A(f"v_xor_b32 v{XA+1}, 64, v{XA}")
    for w in range(3):
        A(f"s_cmp_eq_u32 s{S_WAVE}, {w}")
        A(f"s_cbranch_scc1 {n}_c{w}")
    for w in [3, 0, 1, 2]:
        A.label(f"{n}_c{w}")
        if w < 3:
            nts = [3*w, 3*w+1, 3*w+2]
            units = [(t, st) for t in nts for st in range(7)] + [(13, 2*w+1), (13, 2*w+2)]
            ants = nts + [13]
            sts = list(range(7))
        else:
            nts = [9, 10, 11, 12]
            units = [(t, st) for t in nts for st in range(1, 7)]
            ants = nts
            sts = list(range(1, 7))
        WA = 10
        for ai, t in enumerate(ants):
            A(f"v_xor_b32 v9, {t}, v8")
            A(f"v_lshl_add_u32 v{WA+ai}, v9, 5, v7")
        A("v_mul_u32_u24 v4, 48, v2")
        for ai, t in enumerate(ants):
            for p in range(2):
                va = 212 + 2*ai + p
                A("v_lshlrev_b32 v5, 2, v3")
                A(f"v_add_u32 v5, {16*t + 2*p}, v5")
                A("v_mul_u32_u24 v6, 3641, v5")
                A("v_lshrrev_b32 v6, 16, v6")
                A("v_mul_u32_u24 v6, 5340, v6")
                A(f"v_lshl_add_u32 v{va}, v5, 1, v6")
                A(f"v_add_u32 v{va}, v{va}, v4")
        ACC = 28
        acc = {u: ACC + 4*i for i, u in enumerate(units)}
        FR = [124, 168]
        def reads(ks, base):
            lst = []
            for ai, t in enumerate(ants):
                for h in range(2):
                    lst.append(f"ds_read_b64_tr_b16 {v(base+4*ai+2*h,2)}, v{WA+ai} offset:{ks*16384 + h*2048}")
            for bi, st in enumerate(sts):
                lst.append(f"ds_read_b128 {v(base+16+4*bi,4)}, v{XA+ks} offset:{st*2048}")
            return lst
        def mfmas(base, first):
            lst = []
            for (t, st) in units:
                ai = ants.index(t); bi = sts.index(st)
                c = "0" if first else v(acc[(t, st)], 4)
                lst.append(f"v_mfma_f32_16x16x32_bf16 {v(acc[(t,st)],4)}, {v(base+4*ai,4)}, {v(base+16+4*bi,4)}, {c}")
            return lst
        def interleave(mf, rd):
            i = 0
            for m in mf:
                A(m)
                if i < len(rd): A(rd[i]); i += 1
            while i < len(rd): A(rd[i]); i += 1
        for u in units:
            for r in range(0, 4, 2): A(f"v_mov_b64 {v(acc[u]+r,2)}, 0")
        A("s_mov_b32 s60, 0")
        A("s_mov_b32 s61, 0")
        A(f"s_mov_b32 s52, {ST1}")
        A(f"s_mov_b32 s53, {(-2*ST1) & 0xffffffff}")
        LF = OPT.get("lf", 0)
        if LF:
            A(f"v_mov_b32 v235, {PL}")
            A(f"v_mov_b32 v234, {PC + 4*w}")
            if w == 0:
                A("v_mov_b64 v[236:237], 0"); A("v_mov_b64 v[238:239], 0")
                A("ds_write_b128 v235, v[236:239]")
                A("ds_write_b128 v235, v[236:239] offset:16")
                A("s_waitcnt lgkmcnt(0)")
            A("s_barrier")
            lds_poll(A, 235, 236, 63, "1", 55)
        else:
            if OPT.get("r1", 1):
                A("s_waitcnt vmcnt(0)")
                A("s_barrier")
            A("s_barrier")
        stamp(A, 1)
        for r_ in reads(0, FR[0]): A(r_)
        A("s_waitcnt lgkmcnt(0)")
        A(f"s_branch {n}_q{w}")
        A.label(f"{n}_l{w}")
        if LF:
            A("s_add_u32 s54, s60, 1")
            lds_poll(A, 235, 236, 63, "s54", 55, pre_read=True)
        else:
            A("s_barrier")
        interleave(mfmas(FR[1], False), reads(0, FR[0]))
        A("s_waitcnt lgkmcnt(0)")
        A.label(f"{n}_q{w}")
        labp = A.newlabel("lpf")
        A(f"s_cmp_lg_u32 s60, {w}")
        A(f"s_cbranch_scc1 {labp}")
        A(f"s_add_u32 s63, s60, {OPT.get('af', 7)}")
        A("s_cmp_gt_u32 s63, 8")
        A(f"s_cbranch_scc1 {labp}")
        a_prefetch_issue(A, 230, 231, 63, 44, 48, 240)
        A.label(labp)
        if w == 3 and OPT.get("hpf", 1):
            labh = A.newlabel("hpf")
            A("s_cmp_lg_u32 s60, 3")
            A(f"s_cbranch_scc1 {labh}")
            A("s_cmp_ge_u32 s2, 64")
            A(f"s_cbranch_scc1 {labh}")
            A("s_and_b32 s98, s2, 7")
            A("s_lshr_b32 s97, s2, 3")
            A("s_add_u32 s97, s97, 10")
            grp_of(A, 96, 98, 97, 99)
            A("s_lshl_b32 s96, s96, 14")
            A(f"s_add_u32 s92, s{P_H}, s96")
            A(f"s_addc_u32 s93, s{P_H+1}, 0")
            A("s_and_b32 s93, s93, 0xffff")
            A("s_mov_b32 s94, 16384")
            A("s_mov_b32 s95, 0x00020000")
            A("v_lshlrev_b32 v232, 7, v1")
            A("buffer_load_dword v242, v232, s[92:95], 0 offen")
            A("v_add_u32 v232, 8192, v232")
            A("buffer_load_dword v243, v232, s[92:95], 0 offen")
            A.label(labh)
        A("s_add_u32 s61, s61, 1")
        A("s_cmp_eq_u32 s61, 3")
        A("s_cselect_b32 s62, s53, s52")
        A("s_cselect_b32 s61, 0, s61")
        if LF:
            mf = mfmas(FR[0], False); rd = reads(1, FR[1])
            i = 0
            for idx, m in enumerate(mf):
                A(m)
                if i < len(rd): A(rd[i]); i += 1
                if idx == len(mf) - 5:
                    A("s_add_u32 s54, s60, 1")
                    A("v_mov_b32 v242, s54") if False else None
                    A("s_waitcnt lgkmcnt(0)")
                    A("v_mov_b32 v233, s54")
                    A("ds_write_b32 v234, v233")
                    A("ds_read_b128 v[236:239], v235")
            for r in range(6): A(f"v_add_u32 v{10+r}, s62, v{10+r}")
            A("s_add_u32 s60, s60, 1")
            A("s_cmp_lt_u32 s60, 9")
            A("s_waitcnt lgkmcnt(0)")
            A(f"s_cbranch_scc1 {n}_l{w}")
        else:
            interleave(mfmas(FR[0], False), reads(1, FR[1]))
            for r in range(6): A(f"v_add_u32 v{10+r}, s62, v{10+r}")
            A("s_add_u32 s60, s60, 1")
            A("s_cmp_lt_u32 s60, 9")
            A("s_waitcnt lgkmcnt(0)")
            A(f"s_cbranch_scc1 {n}_l{w}")
        A("s_barrier")
        last = mfmas(FR[1], False)
        pend = []
        k = 0
        def flush_one(u):
            nonlocal k
            (t, st) = u
            ai = ants.index(t); a0 = acc[(t, st)]
            tmp = 124 + 2*(k % 8); k += 1
            A(f"v_cvt_pk_bf16_f32 v{tmp}, v{a0}, v{a0+1}")
            A(f"v_cvt_pk_bf16_f32 v{tmp+1}, v{a0+2}, v{a0+3}")
            A(f"ds_write_b32 v{212+2*ai}, v{tmp} offset:{768*st}")
            A(f"ds_write_b32 v{212+2*ai+1}, v{tmp+1} offset:{768*st}")
        for m, u in zip(last, units):
            A(m)
            pend.append(u)
            if len(pend) > 3: flush_one(pend.pop(0))
        for u in pend: flush_one(u)
        stamp(A, 4)
        A(f"s_branch {n}_attn")
    A.label(f"{n}_loader")
    if OPT.get("prio"): A(f"s_setprio {OPT['prio']}")
    A(f"s_sub_u32 s35, s{S_WAVE}, 4")
    A("v_lshrrev_b32 v2, 3, v1")
    A("v_and_b32 v3, 7, v1")
    A("v_lshrrev_b32 v4, 4, v1")
    A("v_mul_u32_u24 v5, 1152, v2")
    A("v_xor_b32 v6, v3, v4")
    A("v_lshl_add_u32 v10, v6, 4, v5")
    A("v_xor_b32 v11, 64, v10")
    A("s_lshl_b32 s36, s35, 2")
    A("s_cmp_eq_u32 s35, 3")
    A("s_cselect_b32 s36, 11, s36")
    A("s_cselect_b64 s[54:55], -1, 0")
    A("v_cndmask_b32 v16, v10, v11, s[54:55]")
    A("v_cndmask_b32 v17, v11, v10, s[54:55]")
    A("s_sub_u32 s37, s34, 16")
    A("s_mul_i32 s37, s37, 1152")
    A("s_mul_i32 s38, s36, 9216")
    A("s_add_u32 s37, s37, s38")
    A("s_lshl_b32 s38, s36, 10")
    WV = 12
    A("v_lshrrev_b32 v2, 5, v1")
    A("v_and_b32 v3, 31, v1")
    A("v_mul_u32_u24 v4, 3456, v2")
    A("s_mul_i32 s40, s33, 144")
    A("v_add_u32 v4, s40, v4")
    A(f"v_mov_b32 v9, 0x{BIGOFF:x}")
    for var in range(4):
        j1, j4 = var & 1, var >> 1
        A(f"v_add_u32 v5, {2*j1+4*j4}, v2")
        A("v_lshlrev_b32 v5, 1, v5")
        A("v_xor_b32 v5, v5, v3")
        A("v_mov_b32 v6, 1152")
        A("v_mov_b32 v7, 2160")
        A("v_cmp_le_u32 vcc, 9, v5")
        A("v_cndmask_b32 v6, v6, v7, vcc")
        A("v_mov_b32 v7, -288")
        A("v_cmp_le_u32 vcc, 18, v5")
        A("v_cndmask_b32 v6, v6, v7, vcc")
        A("v_lshl_add_u32 v6, v5, 4, v6")
        A(f"v_add_u32 v{WV+var}, v4, v6")
        A("v_cmp_le_u32 vcc, 27, v5")
        A(f"v_cndmask_b32 v{WV+var}, v{WV+var}, v9, vcc")
    A("s_mul_i32 s40, s35, 55296")
    A("s_lshl_b32 s41, s35, 13")
    A(f"s_add_u32 s41, s41, {XS}")
    def issue_block():
        A(f"s_mul_i32 s62, s61, {ST1}")
        A("s_add_u32 s63, s38, s62")
        A("s_add_u32 s62, s41, s62")
        for j in range(4):
            lab = None
            if j == 3:
                lab = A.newlabel(f"{n}_sk")
                A("s_cmp_ge_u32 s35, 2")
                A(f"s_cbranch_scc1 {lab}")
            A(f"s_add_u32 m0, s63, {1024*j}")
            A(f"s_add_u32 s52, s37, {9216*j}")
            if j < 2:
                A("s_cmp_lt_i32 s52, 0")
                A(f"s_cselect_b32 s52, 0x{BIGOFF:x}, s52")
            A(f"buffer_load_dwordx4 v{16+(j&1)}, s[44:47], s52 offen lds")
            if lab: A.label(lab)
        for j in range(8):
            var = (j & 1) + 2 * (j >> 2)
            A(f"s_add_u32 m0, s62, {1024*j}")
            A(f"s_add_u32 s52, s40, {6912*j}")
            A(f"buffer_load_dwordx4 v{WV+var}, s[48:51], s52 offen lds")
        A("s_add_u32 s37, s37, 128")
        A("s_add_u32 s40, s40, 221184")
        A("s_add_u32 s61, s61, 1")
        A("s_cmp_eq_u32 s61, 3")
        A("s_cselect_b32 s61, 0, s61")
    if OPT.get("lf", 0):
        A("s_mov_b32 s61, 0")
        issue_block()
        stamp(A, 1)
        A("v_and_b32 v2, 15, v1")
        A("v_lshrrev_b32 v3, 4, v1")
        attn_setup(A)
        A(f"v_mov_b32 v24, {PC}")
        A("s_lshl_b32 s53, s35, 2")
        A(f"s_add_u32 s53, s53, {PL}")
        A("v_mov_b32 v25, s53")
        A("s_barrier")
        A("s_waitcnt vmcnt(0)")
        A("v_mov_b32 v26, 1")
        A("ds_write_b32 v25, v26")
        stamp(A, 2)
        A("s_mov_b32 s60, 1")
        A.label(f"{n}_ll")
        labn = A.newlabel("nw")
        A("s_cmp_lt_u32 s60, 3")
        A(f"s_cbranch_scc1 {labn}")
        A("s_sub_u32 s54, s60, 2")
        lds_poll(A, 24, 28, 53, "s54", 55)
        A.label(labn)
        issue_block()
        if STAMPS and OPT.get("dbgl"):
            A("s_memrealtime s[100:101]")
            A("s_waitcnt lgkmcnt(0)")
            A("s_add_u32 s99, s60, 5")
            A("s_mov_b32 m0, s99")
            A("s_nop 4")
            A("v_writelane_b32 v246, s100, m0")
        A("s_waitcnt vmcnt(11)")
        A("v_mov_b32 v26, s60")
        A("ds_write_b32 v25, v26")
        A("s_add_u32 s60, s60, 1")
        A("s_cmp_lt_u32 s60, 9")
        A(f"s_cbranch_scc1 {n}_ll")
        A("s_waitcnt vmcnt(0)")
        A("v_mov_b32 v26, 9")
        A("ds_write_b32 v25, v26")
        A("s_waitcnt lgkmcnt(0)")
    else:
        A("s_mov_b32 s61, 0")
        if OPT.get("r1", 1):
            A("v_and_b32 v2, 15, v1")
            A("v_lshrrev_b32 v3, 4, v1")
            attn_setup(A)
            A("s_waitcnt vmcnt(0)")
            A("s_barrier")
            stamp(A, 1)
            A("s_mov_b32 s60, 0")
            A.label(f"{n}_lp")
            issue_block()
            A("s_add_u32 s60, s60, 1")
            A("s_cmp_lt_u32 s60, 2")
            A(f"s_cbranch_scc1 {n}_lp")
            A("s_waitcnt vmcnt(11)")
            stamp(A, 2)
            A("s_barrier")
            issue_block()
        else:
            issue_block()
            stamp(A, 1)
            A("v_and_b32 v2, 15, v1")
            A("v_lshrrev_b32 v3, 4, v1")
            attn_setup(A)
            A("s_waitcnt vmcnt(0)")
            stamp(A, 2)
            A("s_barrier")
            A("s_mov_b32 s60, 0")
            A.label(f"{n}_lp")
            issue_block()
            A("s_add_u32 s60, s60, 1")
            A("s_cmp_lt_u32 s60, 2")
            A(f"s_cbranch_scc1 {n}_lp")
        stamp(A, 3)
        A("s_mov_b32 s60, 0")
        A.label(f"{n}_ll")
        A("s_waitcnt vmcnt(11)")
        A("s_barrier")
        issue_block()
        A("s_add_u32 s60, s60, 1")
        A("s_cmp_lt_u32 s60, 6")
        A(f"s_cbranch_scc1 {n}_ll")
        A("s_waitcnt vmcnt(11)")
        A("s_barrier")
        A("s_waitcnt vmcnt(0)")
        A("s_barrier")
    A("s_barrier")
    A.label(f"{n}_attn")
    if OPT.get("prio"): A("s_setprio 0")
    A("s_waitcnt lgkmcnt(0)")
    A("s_barrier")
    stamp(A, 5)
    if OPT.get("hearly", 1):
        labh = A.newlabel("hea")
        A("s_cmp_ge_u32 s2, 64")
        A(f"s_cbranch_scc1 {labh}")
        A("s_and_b32 s38, s2, 7")
        A("s_lshr_b32 s37, s2, 3")
        A("s_add_u32 s37, s37, 10")
        grp_of(A, 36, 38, 37, 39)
        A(f"s_and_b32 s37, s{S_WAVE}, 3")
        A("s_lshl_b32 s36, s36, 2")
        A("s_add_u32 s36, s36, s37")
        A("s_lshl_b32 s36, s36, 12")
        make_srd(A, 48, P_H, 4096, add_s=36)
        HL = 170; a = HL + 26
        A(f"v_lshlrev_b32 v{a}, 4, v1")
        A(f"s_lshr_b32 s37, s{S_WAVE}, 2")
        A("s_lshl_b32 s37, s37, 11")
        A(f"v_add_u32 v{a}, s37, v{a}")
        A(f"v_add_u32 v{a+1}, 4, v{a}")
        A(f"v_add_u32 v{a+2}, 8, v{a}")
        for it in range(2):
            A(f"buffer_load_dwordx4 {v(HL+12*it,4)}, v{a}, s[48:51], 0 offen offset:{1024*it}")
            A(f"buffer_load_dwordx4 {v(HL+12*it+4,4)}, v{a+1}, s[48:51], 0 offen offset:{1024*it}")
            A(f"buffer_load_dwordx4 {v(HL+12*it+8,4)}, v{a+2}, s[48:51], 0 offen offset:{1024*it}")
        A(f"v_mov_b32 v{a+3}, 0")
        A(f"buffer_load_dwordx2 {v(HL+24,2)}, v{a+3}, s[48:51], 0 offen")
        A.label(labh)
    cst = struct.unpack("<I", struct.pack("<f", (18 ** -0.5) * math.log2(math.e)))[0]
    A(f"s_mov_b32 s42, 0x{cst:08x}")
    B = 24
    def regs(b): return B + 40 * b
    for b in range(3):
        R = regs(b)
        A(f"ds_read_b128 {v(R,4)}, v{V_KQ} offset:{8*HHS + 768*(b+1)}")
        A(f"ds_read_b128 {v(R+4,4)}, v{V_KQ} offset:{768*b}")
        A(f"ds_read_b128 {v(R+8,4)}, v{V_KQ} offset:{768*(b+1)}")
    for b in range(3):
        R = regs(b)
        A(f"ds_read_b64_tr_b16 {v(R+12,2)}, v{V_VT} offset:{4*HHS + 768*b}")
        A(f"ds_read_b64_tr_b16 {v(R+14,2)}, v{V_VT} offset:{4*HHS + 768*(b+1)}")
        A(f"ds_read_b64_tr_b16 {v(R+16,2)}, v{V_VT} offset:{4*HHS + 768*b + 32}")
        A(f"ds_read_b64_tr_b16 {v(R+18,2)}, v{V_VT} offset:{4*HHS + 768*(b+1) + 32}")
    for b in range(3):
        R = regs(b)
        A(f"s_waitcnt lgkmcnt({12 + 3*(2-b)})" if 12 + 3*(2-b) <= 15 else "s_waitcnt lgkmcnt(15)")
        A(f"v_cndmask_b32 v{R}, 0, v{R}, s[82:83]")
        for r in range(1, 4):
            A(f"v_cndmask_b32 v{R+r}, 0, v{R+r}, s[80:81]")
        A(f"v_mfma_f32_16x16x32_bf16 {v(R+20,4)}, {v(R+4,4)}, {v(R,4)}, 0")
        A(f"v_mfma_f32_16x16x32_bf16 {v(R+24,4)}, {v(R+8,4)}, {v(R,4)}, 0")
    for b in range(3):
        R = regs(b); S = R + 20
        for e in range(8):
            m = (84 + 2*e) if (b == 0 and e < 4) else (64 + 2*e)
            A(f"v_cndmask_b32 v{S+e}, v{V_NINF}, v{S+e}, s[{m}:{m+1}]")
        M = R + 28
        A(f"v_max3_f32 v{M}, v{S}, v{S+1}, v{S+2}")
        A(f"v_max3_f32 v{M}, v{M}, v{S+3}, v{S+4}")
        A(f"v_max3_f32 v{M}, v{M}, v{S+5}, v{S+6}")
        A(f"v_max_f32 v{M}, v{M}, v{S+7}")
    def xlane(op, b_regs):
        for kind in ("16", "32"):
            for (M, T) in b_regs: A(f"v_mov_b32 v{T}, v{M}")
            for (M, T) in b_regs: A(f"v_permlane{kind}_swap_b32 v{M}, v{T}")
            for (M, T) in b_regs: A(f"{op} v{M}, v{M}, v{T}")
    xlane("v_max_f32", [(regs(b)+28, regs(b)+29) for b in range(3)])
    for b in range(3):
        R = regs(b); M = R + 28
        A(f"v_mul_f32 v{M}, s42, v{M}")
    for b in range(3):
        R = regs(b); S = R + 20; M = R + 28
        for e in range(8): A(f"v_fma_f32 v{S+e}, v{S+e}, s42, -v{M}")
        for e in range(8): A(f"v_exp_f32 v{S+e}, v{S+e}")
    for b in range(3):
        R = regs(b); S = R + 20; M = R + 30
        A(f"v_add_f32 v{M}, v{S}, v{S+1}")
        A(f"v_add_f32 v{M+1}, v{S+2}, v{S+3}")
        A(f"v_add_f32 v{M}, v{M}, v{S+4}")
        A(f"v_add_f32 v{M+1}, v{M+1}, v{S+5}")
        A(f"v_add_f32 v{M}, v{M}, v{S+6}")
        A(f"v_add_f32 v{M+1}, v{M+1}, v{S+7}")
        A(f"v_add_f32 v{M}, v{M}, v{M+1}")
    xlane("v_add_f32", [(regs(b)+30, regs(b)+31) for b in range(3)])
    for b in range(3):
        A(f"v_rcp_f32 v{regs(b)+30}, v{regs(b)+30}")
    A("s_waitcnt lgkmcnt(0)")
    for b in range(3):
        R = regs(b); S = R + 20; M = R + 30
        for e in range(8): A(f"v_mul_f32 v{S+e}, v{S+e}, v{M}")
        for q in range(4): A(f"v_cvt_pk_bf16_f32 v{R+q}, v{S+2*q}, v{S+2*q+1}")
        A(f"v_mfma_f32_16x16x32_bf16 {v(R+32,4)}, {v(R+12,4)}, {v(R,4)}, 0")
        A(f"v_mfma_f32_16x16x32_bf16 {v(R+36,4)}, {v(R+16,4)}, {v(R,4)}, 0")
    for b in range(3):
        R = regs(b)
        A(f"v_cvt_pk_bf16_f32 v{R+4}, v{R+32}, v{R+33}")
        A(f"v_cvt_pk_bf16_f32 v{R+5}, v{R+34}, v{R+35}")
        A(f"v_cvt_pk_bf16_f32 v{R+6}, v{R+36}, v{R+37}")
        A(f"ds_write2_b32 v{V_OW+b}, v{R+4}, v{R+5} offset0:0 offset1:1")
    A("s_mov_b64 exec, 0xffff")
    for b in range(3):
        A(f"ds_write_b32 v{V_OW+b}, v{regs(b)+6} offset:32")
    A("s_mov_b64 exec, -1")
    make_srd(A, 44, P_WS, SZ_T, WS_OF)
    A("s_waitcnt lgkmcnt(0)")
    A("s_barrier")
    stamp(A, 6)
    for rnd in range(2):
        A(f"ds_read_b128 {v(20+4*rnd,4)}, v{V_OL+rnd}")
    for rnd in range(2):
        A(f"s_waitcnt lgkmcnt({1-rnd})")
        A(f"buffer_store_dwordx4 {v(20+4*rnd,4)}, v{V_OG+rnd}, s[44:47], 0 offen sc1")
    A("s_waitcnt vmcnt(0)")
    A("s_barrier")
    lab = A.newlabel("a1f")
    A(f"s_cmp_lg_u32 s{S_WAVE}, 0")
    A(f"s_cbranch_scc1 {lab}")
    nonce_resolve(A, "A")
    A("s_lshl_b32 s36, s32, 8")
    A("s_lshl_b32 s37, s33, 2")
    A("s_add_u32 s36, s36, s37")
    flag_store(A, "A", 36)
    A.label(lab)
    stamp(A, 7)

HC = 4160
URB = 4 * HC
WB = URB + 4608
XCH = 4 * WB
ZS = 4160

def b2_common(A, s_grp):
    A(f"s_and_b32 s32, s{S_WAVE}, 3")
    A(f"s_lshr_b32 s33, s{S_WAVE}, 2")
    A(f"s_lshl_b32 s34, s{s_grp}, 2")
    A("s_add_u32 s34, s34, s32")
    A("s_lshl_b32 s35, s34, 12")
    A(f"s_mul_i32 s36, s32, {WB}")
    make_srd(A, 44, P_H, 4096, add_s=35)
    A("s_lshl_b32 s37, s34, 1")
    A("s_and_b32 s38, s37, 0xfffffffc")
    A(f"s_load_dword s39, s[{P_D}:{P_D+1}], s38")

def b2_h_loads(A, HL, nits=2):
    a = HL + 12 * nits + 2
    A(f"v_lshlrev_b32 v{a}, 4, v1")
    if nits == 2:
        A("s_lshl_b32 s40, s33, 11")
        A(f"v_add_u32 v{a}, s40, v{a}")
    A(f"v_add_u32 v{a+1}, 4, v{a}")
    A(f"v_add_u32 v{a+2}, 8, v{a}")
    for it in range(nits):
        A(f"buffer_load_dwordx4 {v(HL+12*it,4)}, v{a}, s[44:47], 0 offen offset:{1024*it}")
        A(f"buffer_load_dwordx4 {v(HL+12*it+4,4)}, v{a+1}, s[44:47], 0 offen offset:{1024*it}")
        A(f"buffer_load_dwordx4 {v(HL+12*it+8,4)}, v{a+2}, s[44:47], 0 offen offset:{1024*it}")
    A(f"v_mov_b32 v{a+3}, 0")
    A(f"buffer_load_dwordx2 {v(HL+12*nits,2)}, v{a+3}, s[44:47], 0 offen")

def b2_h_stage(A, HL, T, nits=2):
    a = HL + 12 * nits + 2
    A(f"v_add_u32 v{a+1}, s36, v{a}")
    for it in range(nits):
        b = HL + 12 * it
        for i in range(4): A(f"v_alignbit_b32 v{T+i}, v{b+4+i}, v{b+i}, 16")
        for i in range(4): A(f"v_alignbit_b32 v{T+4+i}, v{b+8+i}, v{b+4+i}, 16")
        off = 32 + 1024 * it
        A(f"ds_write_b128 v{a+1}, {v(b,4)} offset:{off}")
        A(f"ds_write_b128 v{a+1}, {v(T,4)} offset:{off+HC}")
        A(f"ds_write_b128 v{a+1}, {v(b+4,4)} offset:{off+2*HC}")
        A(f"ds_write_b128 v{a+1}, {v(T+4,4)} offset:{off+3*HC}")
    d0, d1 = HL + 12*nits, HL + 12*nits + 1
    A(f"v_lshlrev_b32 v{T+8}, 16, v{d0}")
    A(f"v_alignbit_b32 v{T+9}, v{d1}, v{d0}, 16")
    Z = T + 10
    for r in range(0, 8, 2): A(f"v_mov_b64 {v(Z+r,2)}, 0")
    A("v_cmp_eq_u32 s[60:61], 1, v1")
    A("v_cmp_eq_u32 s[62:63], 2, v1")
    A("v_cmp_eq_u32 s[64:65], 3, v1")
    A(f"v_cndmask_b32 v{Z+7}, v{Z+7}, v{T+8}, s[60:61]")
    A(f"v_cndmask_b32 v{Z+7}, v{Z+7}, v{d0}, s[62:63]")
    A(f"v_cndmask_b32 v{Z+7}, v{Z+7}, v{T+9}, s[64:65]")
    A(f"v_cndmask_b32 v{Z+6}, v{Z+6}, v{T+8}, s[64:65]")
    A(f"v_mul_u32_u24 v{a+2}, {HC}, v1")
    A(f"v_add_u32 v{a+2}, s36, v{a+2}")
    A("s_mov_b64 exec, 0xf")
    A(f"ds_write_b128 v{a+2}, {v(Z,4)}")
    A(f"ds_write_b128 v{a+2}, {v(Z+4,4)} offset:16")
    A("s_mov_b64 exec, 0xffffffff")
    A(f"v_lshlrev_b32 v{a+2}, 4, v1")
    A(f"v_add_u32 v{a+2}, s36, v{a+2}")
    A(f"ds_write_b128 v{a+2}, {v(Z,4)} offset:{URB+4096}")
    A("s_mov_b64 exec, -1")

def b2_main(A, s_grp, sb, resolved):
    make_srd(A, 48, P_WS, 4096, WS_UR, add_s=35)
    make_srd(A, 52, P_Q, SZ_T)
    make_srd(A, 56, P_OUT, 2048 * 2304)
    A("v_and_b32 v3, 15, v1")
    A("v_lshrrev_b32 v4, 4, v1")
    A("v_lshlrev_b32 v5, 4, v1")
    A("s_lshl_b32 s40, s33, 11")
    A("v_add_u32 v5, s40, v5")
    A("v_add_u32 v10, s36, v5")
    A("v_lshlrev_b32 v9, 5, v3")
    A("v_lshl_add_u32 v9, v4, 3, v9")
    A(f"s_lshl_b32 s41, s{S_WAVE}, 8")
    A("v_add_u32 v8, s41, v1")
    A("s_movk_i32 s42, 1152")
    A("v_mul_lo_u32 v8, v8, s42")
    A(f"s_lshl_b32 s43, s{s_grp}, 3")
    A("v_add_u32 v8, s43, v8")
    A("v_add_u32 v12, 1, v3")
    A("v_and_b32 v13, 3, v12")
    A("v_lshrrev_b32 v12, 2, v12")
    A(f"v_mul_u32_u24 v13, {HC}, v13")
    A("v_lshl_add_u32 v13, v4, 4, v13")
    A("v_lshl_add_u32 v13, v12, 3, v13")
    A("s_lshl_b32 s41, s33, 8")
    A("s_add_u32 s41, s41, s36")
    A("v_add_u32 v13, s41, v13")
    A("v_lshlrev_b32 v14, 4, v4")
    A("v_lshlrev_b32 v15, 5, v3")
    A("v_sub_u32 v14, v14, v15")
    A(f"v_add_u32 v14, {URB+480}, v14")
    A("v_add_u32 v14, s41, v14")
    stamp(A, sb + 0)
    lab = A.newlabel("b2w")
    A(f"s_cmp_lg_u32 s{S_WAVE}, 0")
    A(f"s_cbranch_scc1 {lab}")
    if not resolved:
        A("s_waitcnt vmcnt(0)")
        nonce_resolve(A, "B")
    A(f"s_lshr_b32 s41, s{s_grp}, 4")
    A("s_lshl_b32 s41, s41, 8")
    flag_poll(A, "B", 41)
    A.label(lab)
    A("s_barrier")
    stamp(A, sb + 1)
    U = 68
    for it in range(2):
        A(f"buffer_load_dwordx4 {v(U+4*it,4)}, v5, s[48:51], 0 offen offset:{1024*it} sc1")
    Q = 84
    A(f"s_lshl_b32 s41, s{S_WAVE}, 12")
    A("v_lshlrev_b32 v6, 4, v1")
    A(f"v_add_u32 v6, {XCH}, v6")
    A("v_add_u32 v7, s41, v6")
    A(f"s_xor_b32 s42, s{S_WAVE}, 4")
    A("s_lshl_b32 s42, s42, 12")
    A("v_add_u32 v6, s42, v6")
    A(f"v_sub_u32 v11, {URB+504}, v9")
    A("s_lshl_b32 s41, s33, 11")
    A("s_sub_u32 s42, s36, s41")
    A("v_add_u32 v11, s42, v11")
    A(f"s_mul_i32 s42, s32, {ZS}")
    A("s_add_u32 s42, s42, s41")
    A("v_add_u32 v9, s42, v9")
    A("s_waitcnt vmcnt(0)")
    for it in range(2):
        A(f"ds_write_b128 v10, {v(U+4*it,4)} offset:{URB+1024*it}")
    for it in range(4): A(f"s_mov_b32 s{60+it}, {64*1152*it}")
    A("s_waitcnt lgkmcnt(0)")
    A("s_barrier")
    stamp(A, sb + 2)
    ACC = 208
    FA = [104, 16]
    def frag_reads(rho, base):
        lst = []
        for b in range(8):
            lst.append(f"ds_read_b128 {v(base+32+4*b,4)}, v14 offset:{64*rho+512*(7-b)}")
        aa_l = []
        for aa in range(8):
            aa_l.append(f"ds_read_b64 {v(base+4*aa,2)}, v13 offset:{512*aa+64*rho}")
            aa_l.append(f"ds_read_b64 {v(base+4*aa+2,2)}, v13 offset:{512*aa+64*rho+8}")
        return aa_l[:2] + lst + aa_l[2:]
    for r_ in frag_reads(0, FA[0]): A(r_)
    UU = 88
    UU = 92
    for rho in range(4):
        base = FA[rho & 1]
        A("s_waitcnt lgkmcnt(0)")
        rd = frag_reads(rho + 1, FA[(rho + 1) & 1]) if rho < 3 else [f"ds_read_b64 {v(UU+2*c,2)}, v11 offset:{512*(7-c)}" for c in range(4)]
        i = 0
        A(f"buffer_load_dwordx2 {v(Q+2*rho,2)}, v8, s[52:55], s{60+rho} offen")
        for aa in range(8):
            for b in range(8 - aa):
                c = aa + b
                src = "0" if (rho == 0 and aa == 0) else v(ACC+4*c, 4)
                A(f"v_mfma_f32_16x16x32_bf16 {v(ACC+4*c,4)}, {v(base+4*aa,4)}, {v(base+32+4*b,4)}, {src}")
                if i < len(rd): A(rd[i]); i += 1
    stamp(A, sb + 3)
    l1 = A.newlabel("b2h1"); l2 = A.newlabel("b2x")
    KP = 192
    A("s_cmp_eq_u32 s33, 1")
    A(f"s_cbranch_scc1 {l1}")
    for c in range(4): A(f"ds_write_b128 v7, {v(ACC+16+4*c,4)} offset:{1024*c}")
    for c in range(8): A(f"v_mov_b64 {v(KP+2*c,2)}, {v(ACC+2*c,2)}")
    A(f"s_branch {l2}")
    A.label(l1)
    for c in range(4): A(f"ds_write_b128 v7, {v(ACC+4*c,4)} offset:{1024*c}")
    for c in range(8): A(f"v_mov_b64 {v(KP+2*c,2)}, {v(ACC+16+2*c,2)}")
    A.label(l2)
    A("s_and_b32 s37, s37, 2")
    A("s_lshl_b32 s37, s37, 3")
    A("s_waitcnt lgkmcnt(0)")
    A("s_lshr_b32 s39, s39, s37")
    A("s_lshl_b32 s39, s39, 16")
    TT = 16
    for c in range(4):
        A(f"v_and_b32 v{TT+4*c+0}, 0xffff0000, v{UU+2*c+1}")
        A(f"v_lshlrev_b32 v{TT+4*c+1}, 16, v{UU+2*c+1}")
        A(f"v_and_b32 v{TT+4*c+2}, 0xffff0000, v{UU+2*c}")
        A(f"v_lshlrev_b32 v{TT+4*c+3}, 16, v{UU+2*c}")
    for e in range(16): A(f"v_fma_f32 v{KP+e}, v{TT+e}, s39, v{KP+e}")
    A("s_barrier")
    for c in range(4): A(f"ds_read_b128 {v(48+4*c,4)}, v6 offset:{1024*c}")
    for c in range(4):
        A(f"s_waitcnt lgkmcnt({3-c})")
        for r in range(4): A(f"v_add_f32 v{KP+4*c+r}, v{KP+4*c+r}, v{48+4*c+r}")
        A(f"v_cvt_pk_bf16_f32 v{64+2*c}, v{KP+4*c}, v{KP+4*c+1}")
        A(f"v_cvt_pk_bf16_f32 v{65+2*c}, v{KP+4*c+2}, v{KP+4*c+3}")
        A(f"ds_write_b64 v9, {v(64+2*c,2)} offset:{512*c}")
    A("s_waitcnt vmcnt(0)")
    QF = 32
    for it in range(4):
        A(f"v_lshlrev_b32 v{QF+4*it+0}, 16, v{Q+2*it}")
        A(f"v_and_b32 v{QF+4*it+1}, 0xffff0000, v{Q+2*it}")
        A(f"v_lshlrev_b32 v{QF+4*it+2}, 16, v{Q+2*it+1}")
        A(f"v_and_b32 v{QF+4*it+3}, 0xffff0000, v{Q+2*it+1}")
    A("v_lshrrev_b32 v12, 2, v3")
    A(f"v_mul_u32_u24 v12, {ZS}, v12")
    A("v_and_b32 v13, 3, v3")
    A("v_lshl_add_u32 v12, v13, 3, v12")
    A("v_lshl_add_u32 v12, v4, 5, v12")
    A(f"s_lshl_b32 s41, s{S_WAVE}, 9")
    A("v_add_u32 v12, s41, v12")
    A(f"s_lshl_b32 s41, s{S_WAVE}, 8")
    A("v_add_u32 v13, s41, v1")
    A("s_movk_i32 s42, 2304")
    A(f"s_lshl_b32 s43, s{s_grp}, 3")
    A("s_add_u32 s43, s43, 1152")
    A("v_mul_lo_u32 v13, v13, s42")
    A("v_add_u32 v13, s43, v13")
    for it in range(4): A(f"s_mov_b32 s{60+it}, {64*2304*it}")
    A("s_waitcnt lgkmcnt(0)")
    A("s_barrier")
    for it in range(4):
        A(f"ds_read_b64_tr_b16 {v(16+2*it,2)}, v12 offset:{128*it}")
    for it in range(4):
        A(f"s_waitcnt lgkmcnt({3-it})")
        t = 48 + 4 * it
        A(f"v_lshlrev_b32 v{t+0}, 16, v{16+2*it}")
        A(f"v_and_b32 v{t+1}, 0xffff0000, v{16+2*it}")
        A(f"v_lshlrev_b32 v{t+2}, 16, v{16+2*it+1}")
        A(f"v_and_b32 v{t+3}, 0xffff0000, v{16+2*it+1}")
        for r in range(4): A(f"v_mul_f32 v{t+r}, v{t+r}, v{QF+4*it+r}")
        A(f"v_cvt_pk_bf16_f32 v{64+2*it}, v{t}, v{t+1}")
        A(f"v_cvt_pk_bf16_f32 v{65+2*it}, v{t+2}, v{t+3}")
        A(f"buffer_store_dwordx2 {v(64+2*it,2)}, v13, s[56:59], s{60+it} offen" + (" sc1" if OPT.get("b2sc1") else ""))
    stamp(A, sb + 4)

def b1_addr(A, s_tile, vt):
    A(f"s_mul_hi_u32 s66, s{s_tile}, 0x1c71c71d")
    A("s_mul_i32 s67, s66, 9")
    A(f"s_sub_u32 s67, s{s_tile}, s67")
    A(f"v_and_b32 v2, 7, v{vt}")
    A(f"v_lshrrev_b32 v3, 3, v{vt}")
    A("s_lshl_b32 s40, s66, 8")
    A("v_lshl_add_u32 v4, v3, 3, s40")
    A("s_lshl_b32 s41, s67, 7")
    A("v_lshl_add_u32 v5, v2, 4, s41")
    A("s_movk_i32 s42, 1152")
    A("v_mad_u32_u24 v6, v4, s42, v5")
    A("v_add_u32 v7, 4608, v6")

def gen_b1_kv(A, s_tile):
    A.comment("===== B1 kv (waves 0-3) =====")
    b1_addr(A, s_tile, 0)
    A("v_subrev_u32 v8, 3456, v6")
    A("v_subrev_u32 v9, 2304, v6")
    A("v_subrev_u32 v10, 1152, v6")
    make_srd(A, 48, P_K, SZ_T)
    make_srd(A, 52, P_V, SZ_T)
    make_srd(A, 56, P_SH, 576 * 8)
    KR, VR, SH, W = 16, 60, 92, 108
    KF, VF, ACC, OUT = 140, 162, 178, 194
    for j, vo in enumerate((8, 9, 10)):
        A(f"buffer_load_dwordx4 {v(KR+4*j,4)}, v{vo}, s[48:51], 0 offen")
    for i in range(8):
        A(f"buffer_load_dwordx4 {v(KR+4*(3+i),4)}, v{6 if i < 4 else 7}, s[48:51], 0 offen offset:{1152*(i%4)}")
    for i in range(8):
        A(f"buffer_load_dwordx4 {v(VR+4*i,4)}, v{6 if i < 4 else 7}, s[52:55], 0 offen offset:{1152*(i%4)}")
    A("s_lshl_b32 s43, s67, 9")
    A("v_lshl_add_u32 v11, v2, 6, s43")
    for i in range(4):
        A(f"buffer_load_dwordx4 {v(SH+4*i,4)}, v11, s[56:59], 0 offen offset:{16*i}")
    stamp(A, 2)
    make_srd(A, 52+8, P_WS, SZ_T, WS_UR)
    A("s_lshl_b32 s43, s67, 18")
    A("v_lshl_add_u32 v12, v2, 15, s43")
    A("v_lshlrev_b32 v14, 1, v4")
    A("v_sub_u32 v12, v12, v14")
    A("v_add_u32 v12, 4080, v12")
    for ch in range(8): A(f"s_mov_b32 s{68+ch}, {ch*4096}")
    A("s_waitcnt vmcnt(0)")
    A("s_barrier")
    stamp(A, 3)
    for ch in range(8):
        A(f"v_lshlrev_b32 v{W+0*8+ch}, 16, v{SH+2*ch}")
        A(f"v_and_b32 v{W+1*8+ch}, 0xffff0000, v{SH+2*ch}")
        A(f"v_lshlrev_b32 v{W+2*8+ch}, 16, v{SH+2*ch+1}")
        A(f"v_and_b32 v{W+3*8+ch}, 0xffff0000, v{SH+2*ch+1}")
    for m in range(4):
        for j in range(11):
            A(f"v_lshlrev_b32 v{KF+2*j}, 16, v{KR+4*j+m}")
            A(f"v_and_b32 v{KF+2*j+1}, 0xffff0000, v{KR+4*j+m}")
        for i in range(8):
            A(f"v_lshlrev_b32 v{VF+2*i}, 16, v{VR+4*i+m}")
            A(f"v_and_b32 v{VF+2*i+1}, 0xffff0000, v{VR+4*i+m}")
        for i in range(8):
            A(f"v_pk_mul_f32 {v(ACC+2*i,2)}, {v(W+3*8+2*m,2)}, {v(KF+2*i,2)}")
        for t in (2, 1, 0):
            for i in range(8):
                A(f"v_pk_fma_f32 {v(ACC+2*i,2)}, {v(W+t*8+2*m,2)}, {v(KF+2*(i+3-t),2)}, {v(ACC+2*i,2)}")
        for i in range(8):
            A(f"v_pk_mul_f32 {v(ACC+2*i,2)}, {v(ACC+2*i,2)}, {v(VF+2*i,2)}")
        o = OUT + 8 * (m & 1)
        for h in range(2):
            for q in range(4):
                A(f"v_cvt_pk_bf16_f32 v{o+4*h+q}, v{ACC+2*(7-2*q)+h}, v{ACC+2*(6-2*q)+h}")
        for h in range(2):
            A(f"buffer_store_dwordx4 {v(o+4*h,4)}, v12, s[60:63], s{68+2*m+h} offen sc1")
    stamp(A, 4)

def tlb_warm(A):
    items = []
    for p, size in ((P_K, SZ_T), (P_V, SZ_T), (P_Q, SZ_T), (P_H, SZ_T), (P_WO, 576*1152), (P_OUT, 2048*2304), (P_SH, 64), (P_D, 64)):
        offs = list(range(0, size, 2 << 20))
        offs.append(size - 128 if size > 128 else 0)
        for o in sorted(set(offs)): items.append((p, o))
    for o in (0, (2 << 20) + (1 << 20), (4 << 20), (6 << 20) + (1 << 20), (8 << 20), (10 << 20) + (1 << 20), (12 << 20)):
        items.append((P_WS, o))
    assert len(items) <= 64
    A(f"v_mov_b32 v20, s{P_WS}")
    A(f"v_mov_b32 v21, s{P_WS+1}")
    for i, (p, o) in enumerate(items):
        A(f"s_add_u32 s96, s{p}, {o}")
        A(f"s_addc_u32 s97, s{p+1}, 0")
        A(f"v_writelane_b32 v20, s96, {i}")
        A(f"v_writelane_b32 v21, s97, {i}")
    A("global_load_dword v245, v[20:21], off")

def b_prefetch(A):
    make_srd(A, 48, P_X, SZ_T)
    make_srd(A, 52, P_W, 576 * 3456)
    lab = A.newlabel("bpf"); lab1 = A.newlabel("bpf1")
    if OPT.get("r1", 1):
        A(f"s_cmp_ge_u32 s{S_WAVE}, 5")
        A(f"s_cbranch_scc1 {lab1}")
        A("s_lshr_b32 s40, s2, 3")
        a_prefetch_setup(A, 10, 12, 4, 40, 32)
        a_prefetch_issue(A, 10, 12, S_WAVE, 48, 52, 240)
        A(f"s_branch {lab}")
        A.label(lab1)
        A(f"s_cmp_ge_u32 s{S_WAVE}, {OPT.get('af', 7)}")
        A(f"s_cbranch_scc1 {lab}")
        A("s_lshr_b32 s40, s91, 3")
        a_prefetch_setup(A, 10, 12, 4, 40, 10)
        a_prefetch_issue(A, 10, 12, S_WAVE, 48, 52, 240, two=True)
    else:
        A(f"s_cmp_ge_u32 s{S_WAVE}, {OPT.get('af', 7) - 1}")
        A(f"s_cbranch_scc1 {lab}")
        A("s_lshr_b32 s40, s91, 3")
        a_prefetch_setup(A, 10, 12, 4, 40, 10)
        A(f"s_add_u32 s40, s{S_WAVE}, 1")
        a_prefetch_issue(A, 10, 12, 40, 48, 52, 240, two=True)
    A.label(lab)
    if OPT.get("tlb"):
        lab2 = A.newlabel("tlb")
        A(f"s_cmp_lg_u32 s{S_WAVE}, 7")
        A(f"s_cbranch_scc1 {lab2}")
        tlb_warm(A)
        A.label(lab2)
    get_nonce_issue(A, "B")

def gen_b1_aux(A, s_tile, has_tile):
    A.comment("===== B1 aux (waves 4-7) =====")
    HL = 130
    if has_tile:
        A("s_barrier")
    b2_h_loads(A, HL, 4)
    make_srd(A, 48, P_Q, SZ_T)
    A("s_lshr_b32 s40, s91, 3")
    A("s_lshl_b32 s40, s40, 2")
    A("s_add_u32 s40, s40, s32")
    A("s_mul_i32 s40, s40, 52")
    A("v_add_u32 v10, s40, v1")
    A("s_and_b32 s41, s2, 7")
    if OPT.get("gmap", 1):
        A("s_lshl_b32 s41, s41, 7")
    else:
        A("s_mul_i32 s41, s41, 144")
        A("s_and_b32 s41, s41, 0xffffff80")
    A("s_movk_i32 s42, 1152")
    A("v_mul_lo_u32 v11, v10, s42")
    A("v_add_u32 v11, s41, v11")
    A(f"v_mov_b32 v12, 0x{BIGOFF:x}")
    A("v_cmp_le_u32 vcc, 52, v1")
    A("v_cndmask_b32 v11, v11, v12, vcc")
    A("buffer_load_dword v243, v11, s[48:51], 0 offen")
    if OPT.get("gmap", 1):
        A("v_subrev_u32 v12, s41, v11")
        A("v_add_u32 v12, 1024, v12")
        A("buffer_load_dword v244, v12, s[48:51], 0 offen")
    else:
        A("buffer_load_dword v244, v11, s[48:51], 0 offen offset:128")
    stamp(A, 2)
    A("s_waitcnt vmcnt(2)")
    stamp(A, 4)
    b2_h_stage(A, HL, 100, 4)

WO_B = 72 * 1024

def gen_a2(A, s_x, s_a, sb):
    A.comment("===== A2 =====")
    A(f"s_sub_u32 s34, s{s_a}, 4")
    A("s_lshr_b32 s33, s34, 1")
    A("s_add_u32 s33, s33, 4")
    A("s_and_b32 s34, s34, 1")
    A(f"s_cmp_lt_u32 s{s_a}, 4")
    A(f"s_cselect_b32 s33, s{s_a}, s33")
    A("s_cselect_b32 s34, 0, s34")
    A("s_cselect_b32 s42, 2, 1")
    A(f"s_lshl_b32 s32, s{s_x}, 1")
    A("s_add_u32 s32, s32, s34")
    make_srd(A, 44, P_WO, 576 * 1152)
    A("v_lshrrev_b32 v2, 3, v1")
    A("v_and_b32 v3, 7, v1")
    A("v_bfe_u32 v4, v1, 4, 1")
    A("v_lshlrev_b32 v4, 1, v4")
    A("v_xor_b32 v4, v4, v3")
    A("v_mul_u32_u24 v5, 1152, v2")
    A("v_lshl_add_u32 v5, v4, 4, v5")
    A("s_lshl_b32 s34, s33, 7")
    A("v_add_u32 v10, s34, v5")
    A("v_xor_b32 v11, 64, v10")
    A(f"s_mul_i32 s35, s{S_WAVE}, 9")
    A("s_and_b32 s36, s35, 1")
    A("s_cmp_eq_u32 s36, 1")
    A("s_cselect_b64 s[56:57], -1, 0")
    A("v_cndmask_b32 v12, v10, v11, s[56:57]")
    A("v_cndmask_b32 v13, v11, v10, s[56:57]")
    A("s_lshl_b32 s36, s33, 3")
    A("s_add_u32 s36, s36, s35")
    A("s_lshl_b32 s37, s35, 10")
    for j in range(9):
        A(f"s_add_u32 s38, s36, {j}")
        A("s_sub_u32 s39, s38, 72")
        A("s_cmp_ge_u32 s38, 72")
        A("s_cselect_b32 s38, s39, s38")
        A("s_mul_i32 s38, s38, 9216")
        A(f"s_add_u32 m0, s37, {1024*j}")
        A(f"buffer_load_dwordx4 v{12+(j&1)}, s[44:47], s38 offen lds")
    make_srd(A, 48, P_WS, SZ_T, WS_OF)
    make_srd(A, 52, P_OUT, 2048 * 2304)
    A("s_lshl_b32 s38, s32, 3")
    A(f"s_add_u32 s38, s38, s{S_WAVE}")
    A("s_mul_i32 s39, s38, 18432")
    A("v_lshlrev_b32 v2, 4, v1")
    A("v_add_u32 v2, s39, v2")
    A("v_add_u32 v3, 4096, v2"); A("v_add_u32 v4, 8192, v2"); A("v_add_u32 v5, 12288, v2"); A("v_add_u32 v6, 16384, v2")
    A("v_and_b32 v7, 15, v1")
    A("v_lshrrev_b32 v8, 4, v1")
    A("v_lshrrev_b32 v9, 2, v7")
    A("v_lshl_add_u32 v9, v8, 3, v9")
    A("v_lshlrev_b32 v9, 7, v9")
    A("v_and_b32 v10, 1, v7")
    A("v_lshl_add_u32 v9, v10, 3, v9")
    A("v_bfe_u32 v10, v7, 3, 1")
    A("v_and_b32 v11, 1, v8")
    A("v_lshl_add_u32 v10, v11, 1, v10")
    A("v_lshlrev_b32 v10, 1, v10")
    A("v_bfe_u32 v11, v7, 1, 1")
    for nt in range(4):
        A(f"v_add_u32 v14, {2*nt}, v11")
        A("v_xor_b32 v14, v14, v10")
        A(f"v_lshl_add_u32 v{16+nt}, v14, 4, v9")
        A(f"v_add_u32 v{20+nt}, 36864, v{16+nt}")
    A(f"s_mul_i32 s40, s{S_WAVE}, 2304")
    A(f"s_add_u32 s40, s40, {WO_B}")
    A("v_mul_u32_u24 v9, 144, v7")
    A("v_lshl_add_u32 v9, v8, 3, v9")
    A("v_add_u32 v9, s40, v9")
    A("v_lshrrev_b32 v10, 3, v1")
    A("v_and_b32 v11, 7, v1")
    A("v_mul_u32_u24 v12, 144, v10")
    A("v_lshl_add_u32 v12, v11, 4, v12")
    A("v_add_u32 v12, s40, v12")
    A("s_mul_i32 s39, s38, 36864")
    A("s_lshl_b32 s41, s33, 7")
    A("s_add_u32 s39, s39, s41")
    A("v_mul_u32_u24 v13, 2304, v10")
    A("v_lshl_add_u32 v13, v11, 4, v13")
    A("v_add_u32 v13, s39, v13")
    A("v_add_u32 v14, 18432, v13")
    stamp(A, sb + 0)
    lab = A.newlabel("a2w")
    A(f"s_cmp_lg_u32 s{S_WAVE}, 0")
    A(f"s_cbranch_scc1 {lab}")
    A("s_lshl_b32 s39, s32, 7")
    A("s_mul_hi_u32 s40, s39, 0x2aaaaab")
    A("s_lshl_b32 s41, s42, 7")
    A("s_add_u32 s39, s39, s41")
    A("s_sub_u32 s39, s39, 1")
    A("s_mul_hi_u32 s41, s39, 0x2aaaaab")
    make_srd(A, 92, P_WS, 65536, WS_FA)
    A("v_lshrrev_b32 v250, 3, v1")
    A("v_add_u32 v250, s40, v250")
    A("v_min_u32 v250, s41, v250")
    A("v_lshlrev_b32 v250, 8, v250")
    A("v_and_b32 v249, 7, v1")
    A("v_lshl_add_u32 v250, v249, 2, v250")
    A("s_mov_b64 exec, 0xffffffff")
    lp = A.newlabel("poll"); done = A.newlabel("polld")
    A("s_mov_b32 s88, 100000")
    A.label(lp)
    A("buffer_load_dword v251, v250, s[92:95], 0 offen sc1")
    A("s_waitcnt vmcnt(0)")
    A(f"v_cmp_ne_u32 vcc, s{S_NA}, v251")
    A("s_nop 4")
    A(f"s_cbranch_vccz {done}")
    A(f"s_sleep {OPT.get('slp', 2)}")
    A("s_sub_u32 s88, s88, 1")
    A("s_cmp_lg_u32 s88, 0")
    A(f"s_cbranch_scc1 {lp}")
    A.label(done)
    A("s_mov_b64 exec, -1")
    A.label(lab)
    A("s_waitcnt vmcnt(0)")
    A("s_barrier")
    stamp(A, sb + 1)
    BF = [24, 136]
    ACC = 96
    AF = [112, 120]
    AF = [112, 208, 224]
    def oloads(base, extra):
        A("s_lshl_b32 s44, s33, 1")
        for j in range(18):
            A("s_lshl_b32 s45, s44, 10")
            if extra: A("s_add_u32 s45, s45, s43")
            A(f"buffer_load_dwordx4 {v(base+4*j,4)}, v2, s[48:51], s45 offen sc1")
            A("s_add_u32 s44, s44, 1")
            A("s_cmp_eq_u32 s44, 18")
            A("s_cselect_b32 s44, 0, s44")
    def reads(ks, base):
        lst = []
        for nt in range(4):
            va = (16 if ks < 9 else 20) + nt
            for h in range(2):
                lst.append(f"ds_read_b64_tr_b16 {v(base+4*nt+2*h,2)}, v{va} offset:{(ks%9)*4096 + h*512}")
        return lst
    def tile(bf, mode, soff):
        for r_ in reads(0, AF[0]): A(r_)
        for r_ in reads(1, AF[1]): A(r_)
        if mode == 1: A("s_lshl_b32 s44, s33, 1")
        for ks in range(18):
            rd = reads(ks + 2, AF[(ks+2) % 3]) if ks < 16 else []
            cnt = {0: 17 - ks, 1: 17, 2: 17 - ks + 2}[mode]
            A(f"s_waitcnt vmcnt({cnt}) lgkmcnt({8 if ks < 17 else 0})")
            i = 0
            for nt in range(4):
                c = "0" if ks == 0 else v(ACC+4*nt, 4)
                A(f"v_mfma_f32_16x16x32_bf16 {v(ACC+4*nt,4)}, {v(AF[ks%3]+4*nt,4)}, {v(bf+4*ks,4)}, {c}")
                for _ in range(2):
                    if i < len(rd): A(rd[i]); i += 1
            if mode == 1:
                A("s_lshl_b32 s45, s44, 10")
                A("s_add_u32 s45, s45, s43")
                A(f"buffer_load_dwordx4 {v(BF[1]+4*ks,4)}, v2, s[48:51], s45 offen sc1")
                A("s_add_u32 s44, s44, 1")
                A("s_cmp_eq_u32 s44, 18")
                A("s_cselect_b32 s44, 0, s44")
        for nt in range(4):
            A(f"v_cvt_pk_bf16_f32 v{128+2*nt}, v{ACC+4*nt}, v{ACC+4*nt+1}")
            A(f"v_cvt_pk_bf16_f32 v{129+2*nt}, v{ACC+4*nt+2}, v{ACC+4*nt+3}")
            A(f"ds_write_b64 v9, {v(128+2*nt,2)} offset:{32*nt}")
        A("s_waitcnt lgkmcnt(0)")
        A("ds_read_b128 v[128:131], v12")
        A("ds_read_b128 v[132:135], v12 offset:1152")
        A("s_waitcnt lgkmcnt(1)")
        A(f"buffer_store_dwordx4 v[128:131], v13, s[52:55], {soff} offen" + (" sc1" if OPT.get("a2sc1") else ""))
        A("s_waitcnt lgkmcnt(0)")
        A(f"buffer_store_dwordx4 v[132:135], v14, s[52:55], {soff} offen" + (" sc1" if OPT.get("a2sc1") else ""))
    oloads(BF[0], False)
    l2 = A.newlabel("a2two"); lend = A.newlabel("a2end")
    A("s_cmp_eq_u32 s42, 2")
    A(f"s_cbranch_scc1 {l2}")
    tile(BF[0], 0, "0")
    A(f"s_branch {lend}")
    A.label(l2)
    A(f"s_mov_b32 s43, {8*18432}")
    tile(BF[0], 1, "0")
    stamp(A, sb + 2)
    A(f"s_mov_b32 s43, {128*2304}")
    tile(BF[1], 2, "s43")
    A.label(lend)
    stamp(A, sb + 3)

def build(path, stamps=False):
    global STAMPS
    STAMPS = stamps
    A = Asm()
    A.raw(f".globl {NAME}\n.p2align 8\n.type {NAME},@function\n{NAME}:")
    A("s_cmp_ge_u32 s2, 256")
    A("s_cbranch_scc1 L_end")
    A("s_load_dwordx16 s[4:19], s[0:1], 0")
    A("s_load_dwordx8 s[20:27], s[0:1], 64")
    A("s_memrealtime s[30:31]")
    if OPT.get("codepf", 1):
        A("s_getpc_b64 s[32:33]")
        A.label("L_pc")
        A("s_lshr_b32 s34, s2, 3")
        A("s_mul_i32 s34, s34, CODE_LPW*128")
        A("v_and_b32 v3, 63, v0")
        A("v_lshlrev_b32 v3, 7, v3")
        A("v_add_u32 v3, s34, v3")
        A("v_cmp_gt_u32 vcc, (L_end-L_pc), v3")
        A("v_cmp_gt_u32 s[36:37], CODE_LPW, v0")
        A("s_and_b64 vcc, vcc, s[36:37]")
        A("s_and_saveexec_b64 s[36:37], vcc")
        labc = A.newlabel("cpf")
        A(f"s_cbranch_execz {labc}")
        A("global_load_dword v247, v3, s[32:33]")
        A.label(labc)
        A("s_mov_b64 exec, s[36:37]")
    A("v_lshrrev_b32 v2, 6, v0")
    A("v_and_b32 v1, 63, v0")
    A(f"v_readfirstlane_b32 s{S_WAVE}, v2")
    A("s_waitcnt lgkmcnt(0)")
    A(f"s_or_b32 s{S_MY}, s30, 1")
    if STAMPS: A("v_mov_b32 v246, -1")
    stamp(A, 0)
    if STAMPS:
        A("s_memtime s[100:101]")
        A("s_waitcnt lgkmcnt(0)")
        A("v_writelane_b32 v246, s100, 16")
    A("s_cmp_ge_u32 s2, 176")
    A("s_cbranch_scc1 L_bset")
    gen_a1(A)
    A("s_cmp_lt_u32 s2, 64")
    A("s_cbranch_scc1 L_a_b2")
    A("s_and_b32 s90, s2, 7")
    A("s_sub_u32 s91, s2, 64")
    A("s_lshr_b32 s91, s91, 3")
    gen_a2(A, 90, 91, 8)
    A("s_branch L_fin")
    A.label("L_a_b2")
    A("s_and_b32 s89, s2, 7")
    A("s_lshr_b32 s91, s2, 3")
    A("s_add_u32 s91, s91, 10")
    grp_of(A, 90, 89, 91, 40)
    get_nonce_issue(A, "B")
    b2_common(A, 90)
    if not OPT.get("hearly", 1):
        b2_h_loads(A, 170, 2)
    A("s_waitcnt vmcnt(0)")
    b2_h_stage(A, 170, 112, 2)
    b2_main(A, 90, 8, resolved=False)
    A("s_branch L_fin")
    A.label("L_bset")
    A("s_sub_u32 s91, s2, 176")
    A("s_and_b32 s40, s91, 7")
    A("s_lshr_b32 s89, s91, 3")
    grp_of(A, 90, 40, 89, 41)
    b_prefetch(A)
    b2_common(A, 90)
    if OPT.get("bwait", 1):
        A("s_waitcnt vmcnt(0)")
        A("s_barrier")
    stamp(A, 1)
    A("s_cmp_ge_u32 s91, 72")
    A("s_cbranch_scc1 L_b_nob1")
    A(f"s_cmp_ge_u32 s{S_WAVE}, 4")
    A("s_cbranch_scc1 L_b_aux")
    gen_b1_kv(A, 91)
    A("s_branch L_b_join")
    A.label("L_b_aux")
    gen_b1_aux(A, 91, True)
    A.label("L_b_join")
    A("s_waitcnt vmcnt(0) lgkmcnt(0)")
    A("s_barrier")
    lab = A.newlabel("b1f")
    A(f"s_cmp_lg_u32 s{S_WAVE}, 0")
    A(f"s_cbranch_scc1 {lab}")
    nonce_resolve(A, "B")
    A("s_lshl_b32 s40, s67, 8")
    A("s_lshl_b32 s41, s66, 2")
    A("s_add_u32 s40, s40, s41")
    flag_store(A, "B", 40)
    A.label(lab)
    A("s_branch L_b_b2")
    A.label("L_b_nob1")
    lab = A.newlabel("bnx")
    A(f"s_cmp_lt_u32 s{S_WAVE}, 4")
    A(f"s_cbranch_scc1 {lab}")
    gen_b1_aux(A, 91, False)
    A.label(lab)
    A("s_waitcnt vmcnt(0)")
    lab = A.newlabel("bz")
    A(f"s_cmp_lg_u32 s{S_WAVE}, 0")
    A(f"s_cbranch_scc1 {lab}")
    nonce_resolve(A, "B")
    A.label(lab)
    A.label("L_b_b2")
    b2_main(A, 90, 5, resolved=True)
    A.label("L_fin")
    stamp_flush(A)
    A.label("L_end")
    A("s_endpgm")
    body = A.finalize()
    lds = 3 * ST1 + 64
    out = HEADER + f"; @launch grid=(256,1,1) block=(512,1,1) lds={lds}\n"
    out += '.amdgcn_target "amdgcn-amd-amdhsa--gfx950"\n.text\n.set CODE_LPW, 16\n' + body
    out += '.section .rodata,"a"\n.p2align 6\n' + kd(NAME, 256)
    open(path, "w").write(out)

if __name__ == "__main__":
    for a in sys.argv[3:]:
        k, x = a.split("="); OPT[k] = int(x)
    build(sys.argv[1], stamps=(len(sys.argv) > 2 and sys.argv[2] == "stamps"))
```

```python
import sys, struct, math
from asmlib import *
from gen_common import HEADER, kd

NAME = "concat_heads__sliding_local_dilated__ssm_conv_h3__prompt_kernel"
SZ_T = 576 * 2048 * 2
WS_UR = 4096
WS_QT = (4 << 20) + 4096
WS_OF = (8 << 20) + 4096
WS_FA = (12 << 20) + 4096
WS_FB = WS_FA + 65536
STAMP_OFF = 16 << 20
BIGOFF = 0x7FFF0000
PL = 141312
PC = 141328

P_X, P_W, P_WO, P_Q, P_K, P_V, P_SH, P_H, P_D, P_OUT, P_DBG, P_WS = 4, 6, 8, 10, 12, 14, 16, 18, 20, 22, 24, 26
S_MY, S_WAVE, S_NA, S_NB = 28, 29, 30, 31
V_NA, V_NB = 252, 254
STAMPS = False
OPT = {}

def make_srd(A, dst, ptr, nbytes, add=0, add_s=None):
    if add_s is not None:
        A(f"s_add_u32 s{dst}, s{ptr}, s{add_s}")
        A(f"s_addc_u32 s{dst+1}, s{ptr+1}, 0")
        if add:
            A(f"s_add_u32 s{dst}, s{dst}, {add}")
            A(f"s_addc_u32 s{dst+1}, s{dst+1}, 0")
        A(f"s_and_b32 s{dst+1}, s{dst+1}, 0xffff")
    elif add:
        A(f"s_add_u32 s{dst}, s{ptr}, {add}")
        A(f"s_addc_u32 s{dst+1}, s{ptr+1}, 0")
        A(f"s_and_b32 s{dst+1}, s{dst+1}, 0xffff")
    else:
        A(f"s_mov_b32 s{dst}, s{ptr}")
        A(f"s_and_b32 s{dst+1}, s{ptr+1}, 0xffff")
    A(f"s_mov_b32 s{dst+2}, {nbytes}")
    A(f"s_mov_b32 s{dst+3}, 0x00020000")

def stamp(A, idx):
    if not STAMPS: return
    if OPT.get("dbgl") and idx >= 5: return
    A("s_memrealtime s[100:101]")
    A("s_waitcnt lgkmcnt(0)")
    A(f"v_writelane_b32 v246, s100, {idx}")

def stamp_flush(A):
    if not STAMPS: return
    A("s_memtime s[100:101]")
    A("s_waitcnt lgkmcnt(0)")
    A("v_writelane_b32 v246, s100, 17")
    A("s_memrealtime s[100:101]")
    A("s_waitcnt lgkmcnt(0)")
    A("v_writelane_b32 v246, s100, 18")
    lab = A.newlabel("stf")
    A(f"s_and_b32 s96, s{S_WAVE}, 3")
    A("s_cmp_lg_u32 s96, 0")
    A(f"s_cbranch_scc1 {lab}")
    A(f"s_lshr_b32 s100, s{S_WAVE}, 2")
    A("s_lshl_b32 s100, s100, 8")
    A("s_add_u32 s100, s100, s2")
    A("s_lshl_b32 s100, s100, 7")
    A(f"s_add_u32 s96, s{P_WS}, {STAMP_OFF}")
    A(f"s_addc_u32 s97, s{P_WS+1}, 0")
    A("s_and_b32 s97, s97, 0xffff")
    A("s_mov_b32 s98, 0x100000")
    A("s_mov_b32 s99, 0x00020000")
    A("v_lshlrev_b32 v250, 2, v1")
    A("v_add_u32 v250, s100, v250")
    A("s_mov_b64 exec, 0xffffffff")
    A("buffer_store_dword v246, v250, s[96:99], 0 offen")
    A("s_mov_b64 exec, -1")
    A.label(lab)

def get_nonce_issue(A, which):
    vn = V_NA if which == "A" else V_NB
    lab = A.newlabel("nz")
    A(f"s_cmp_lg_u32 s{S_WAVE}, 0")
    A(f"s_cbranch_scc1 {lab}")
    make_srd(A, 92, P_DBG, 256)
    A(f"v_mov_b32 v{vn}, s{S_MY}")
    A(f"v_mov_b32 v{vn+1}, 0")
    A(f"v_mov_b32 v251, {0 if which == 'A' else 128}")
    A("s_mov_b64 exec, 1")
    A(f"buffer_atomic_cmpswap v[{vn}:{vn+1}], v251, s[92:95], 0 offen sc0 sc1")
    A("s_mov_b64 exec, -1")
    A.label(lab)

def nonce_resolve(A, which):
    vn = V_NA if which == "A" else V_NB
    sn = S_NA if which == "A" else S_NB
    A(f"v_readfirstlane_b32 s{sn}, v{vn}")
    A(f"s_cmp_eq_u32 s{sn}, 0")
    A(f"s_cselect_b32 s{sn}, s{S_MY}, s{sn}")

def flag_store(A, which, s_off):
    sn = S_NA if which == "A" else S_NB
    make_srd(A, 92, P_WS, 65536, WS_FA if which == "A" else WS_FB)
    A(f"v_mov_b32 v250, s{s_off}")
    A(f"v_mov_b32 v251, s{sn}")
    A("s_mov_b64 exec, 1")
    A("buffer_store_dword v251, v250, s[92:95], 0 offen sc1")
    A("s_mov_b64 exec, -1")

def flag_poll(A, which, s_off0, s_off1=None):
    sn = S_NA if which == "A" else S_NB
    make_srd(A, 92, P_WS, 65536, WS_FA if which == "A" else WS_FB)
    A("v_and_b32 v250, 7, v1")
    A("v_lshlrev_b32 v250, 2, v250")
    if s_off1 is not None:
        A(f"v_mov_b32 v249, s{s_off0}")
        A(f"v_mov_b32 v248, s{s_off1}")
        A("v_cmp_gt_u32 vcc, 8, v1")
        A("v_cndmask_b32 v249, v248, v249, vcc")
        A("v_add_u32 v250, v250, v249")
        A("s_mov_b64 exec, 0xffff")
    else:
        A(f"v_add_u32 v250, s{s_off0}, v250")
        A("s_mov_b64 exec, 0xff")
    lp = A.newlabel("poll"); done = A.newlabel("polld")
    A("s_mov_b32 s88, 100000")
    A.label(lp)
    A("buffer_load_dword v251, v250, s[92:95], 0 offen sc1")
    A("s_waitcnt vmcnt(0)")
    A(f"v_cmp_ne_u32 vcc, s{sn}, v251")
    A("s_nop 4")
    A(f"s_cbranch_vccz {done}")
    A(f"s_sleep {OPT.get('slp', 2)}")
    A("s_sub_u32 s88, s88, 1")
    A("s_cmp_lg_u32 s88, 0")
    A(f"s_cbranch_scc1 {lp}")
    A.label(done)
    A("s_mov_b64 exec, -1")

def lds_poll(A, vaddr, vd, s_tmp, target, s_cnt, pre_read=False):
    lp = A.newlabel("lpl"); chk = A.newlabel("lpc"); done = A.newlabel("lpd")
    A(f"s_mov_b32 s{s_cnt}, 2000000")
    if pre_read: A(f"s_branch {chk}")
    A.label(lp)
    A(f"ds_read_b128 {v(vd,4)}, v{vaddr}")
    A("s_waitcnt lgkmcnt(0)")
    A.label(chk)
    A(f"v_min_u32 v{vd}, v{vd}, v{vd+1}")
    A(f"v_min3_u32 v{vd}, v{vd}, v{vd+2}, v{vd+3}")
    A(f"v_readfirstlane_b32 s{s_tmp}, v{vd}")
    A(f"s_cmp_ge_u32 s{s_tmp}, {target}")
    A(f"s_cbranch_scc1 {done}")
    A(f"s_sub_u32 s{s_cnt}, s{s_cnt}, 1")
    A(f"s_cmp_lg_u32 s{s_cnt}, 0")
    A(f"s_cbranch_scc1 {lp}")
    A.label(done)

def grp_of(A, sd, sx, si, st):
    if OPT.get("gmap", 1):
        A(f"s_lshl_b32 s{sd}, s{sx}, 4")
        A(f"s_add_u32 s{sd}, s{sd}, s{si}")
        A(f"s_lshl_b32 s{st}, s{sx}, 1")
        A(f"s_add_u32 s{st}, s{st}, s{si}")
        A(f"s_add_u32 s{st}, s{st}, 112")
        A(f"s_cmp_lt_u32 s{si}, 16")
        A(f"s_cselect_b32 s{sd}, s{sd}, s{st}")
    else:
        A(f"s_mul_i32 s{sd}, s{sx}, 18")
        A(f"s_add_u32 s{sd}, s{sd}, s{si}")

def a_prefetch_setup(A, vx, vw, t0, s_idx, nshare):
    px = -(-1072 // nshare); pw = -(-576 // nshare)
    A("s_and_b32 s96, s2, 7")
    A("s_lshr_b32 s98, s96, 2")
    A("s_and_b32 s96, s96, 3")
    A("s_mul_i32 s98, s98, 1056")
    A(f"s_mul_i32 s99, s{s_idx}, {px}")
    A("s_add_u32 s98, s98, s99")
    A("s_sub_u32 s98, s98, 16")
    A(f"v_mov_b32 v{t0+1}, 0x{BIGOFF:x}")
    A("s_movk_i32 s99, 1152")
    for e in range(2 if px > 64 else 1):
        A(f"v_add_u32 v{t0}, s98, v1")
        if e: A(f"v_add_u32 v{t0}, 64, v{t0}")
        A(f"v_mul_lo_u32 v{vx+e}, v{t0}, s99")
        A(f"v_cmp_gt_i32 vcc, 0, v{t0}")
        A(f"v_cndmask_b32 v{vx+e}, v{vx+e}, v{t0+1}, vcc")
        lim = min(px - 64*e, 64)
        if lim < 64:
            A(f"v_cmp_le_u32 vcc, {lim}, v1")
            A(f"v_cndmask_b32 v{vx+e}, v{vx+e}, v{t0+1}, vcc")
    A(f"s_mul_i32 s99, s{s_idx}, {pw}")
    A(f"v_add_u32 v{t0}, s99, v1")
    A(f"v_mul_u32_u24 v{t0+2}, 7282, v{t0}")
    A(f"v_lshrrev_b32 v{t0+2}, 16, v{t0+2}")
    A(f"v_mul_u32_u24 v{t0+3}, 9, v{t0+2}")
    A(f"v_sub_u32 v{t0+3}, v{t0}, v{t0+3}")
    A(f"v_mul_u32_u24 v{t0+4}, 21846, v{t0+3}")
    A(f"v_lshrrev_b32 v{t0+4}, 16, v{t0+4}")
    A(f"v_mul_u32_u24 v{vw}, 3456, v{t0+2}")
    A(f"v_mul_u32_u24 v{t0+2}, 1152, v{t0+4}")
    A(f"v_add_u32 v{vw}, v{vw}, v{t0+2}")
    A(f"v_mul_u32_u24 v{t0+4}, 3, v{t0+4}")
    A(f"v_sub_u32 v{t0+3}, v{t0+3}, v{t0+4}")
    A(f"v_lshl_add_u32 v{vw}, v{t0+3}, 7, v{vw}")
    A("s_lshl_b32 s96, s96, 8")
    A(f"v_add_u32 v{vw}, s96, v{vw}")
    A(f"v_cmp_le_u32 vcc, {pw}, v1")
    A(f"v_cndmask_b32 v{vw}, v{vw}, v{t0+1}, vcc")
    A(f"v_cmp_le_u32 vcc, 576, v{t0}")
    A(f"v_cndmask_b32 v{vw}, v{vw}, v{t0+1}, vcc")

def a_prefetch_issue(A, vx, vw, s_kc, srd_x, srd_w, vd, two=False):
    A(f"s_lshl_b32 s96, s{s_kc}, 7")
    A(f"s_mul_i32 s97, s{s_kc}, 221184")
    A(f"buffer_load_dword v{vd}, v{vw}, s[{srd_w}:{srd_w+3}], s97 offen")
    A(f"buffer_load_dword v{vd+1}, v{vx}, s[{srd_x}:{srd_x+3}], s96 offen")
    if two:
        A(f"buffer_load_dword v{vd+2}, v{vx+1}, s[{srd_x}:{srd_x+3}], s96 offen")

XS = 14 * 1024
W1 = 32 * 1024
ST1 = XS + W1
HHS = 112 * 48
OB = 13 * HHS
V_KQ, V_VT, V_OW, V_NINF, V_OG, V_OL = 220, 221, 222, 225, 226, 228

def attn_setup(A, t0=4):
    a, b, c, d = t0, t0+1, t0+2, t0+3
    A(f"s_and_b32 s56, s{S_WAVE}, 3")
    A(f"s_lshr_b32 s57, s{S_WAVE}, 2")
    A("s_mul_i32 s57, s57, 3")
    A(f"v_lshlrev_b32 v{a}, 2, v3")
    A(f"v_sub_u32 v{a}, v2, v{a}")
    for tl in range(2):
        for r in range(4):
            dd = (16 if tl == 0 else 0) - r
            A(f"v_add_u32 v{b}, {dd}, v{a}" if dd >= 0 else f"v_subrev_u32 v{b}, {-dd}, v{a}")
            A(f"v_and_b32 v{b}, 0xfffffff1, v{b}")
            A(f"v_cmp_eq_u32 s[{64+2*(4*tl+r)}:{65+2*(4*tl+r)}], 0, v{b}")
    A("v_cmp_gt_u32 s[80:81], 2, v3")
    A("v_cmp_gt_u32 s[82:83], 3, v3")
    A("s_or_b32 s58, s32, s57")
    for r in range(4):
        A(f"s_cmp_eq_u32 s58, 0")
        A(f"s_cselect_b64 s[{84+2*r}:{85+2*r}], 0, s[{64+2*r}:{65+2*r}]")
    A(f"v_min_u32 v{b}, 2, v3")
    A(f"v_mul_u32_u24 v{c}, 48, v2")
    A(f"v_lshl_add_u32 v{c}, v{b}, 4, v{c}")
    A(f"s_mul_i32 s58, s56, {HHS}")
    A("s_mul_i32 s59, s57, 768")
    A("s_add_u32 s58, s58, s59")
    A(f"v_add_u32 v{V_KQ}, s58, v{c}")
    A(f"v_lshrrev_b32 v{b}, 2, v2")
    A(f"v_lshl_add_u32 v{b}, v3, 2, v{b}")
    A(f"v_mul_u32_u24 v{b}, 48, v{b}")
    A(f"v_and_b32 v{c}, 3, v2")
    A(f"v_lshl_add_u32 v{b}, v{c}, 3, v{b}")
    A(f"v_add_u32 v{V_VT}, s58, v{b}")
    A(f"v_mul_u32_u24 v{b}, 144, v2")
    A(f"v_lshl_add_u32 v{b}, v3, 3, v{b}")
    A("s_mul_i32 s58, s56, 36")
    A("s_mul_i32 s59, s57, 2304")
    A("s_add_u32 s58, s58, s59")
    A(f"s_add_u32 s58, s58, {OB}")
    A(f"v_add_u32 v{V_OW}, s58, v{b}")
    A(f"v_add_u32 v{V_OW+1}, 2304, v{V_OW}")
    A(f"v_add_u32 v{V_OW+2}, 4608, v{V_OW}")
    A(f"v_mov_b32 v{V_NINF}, 0xff800000")
    A("s_mul_i32 s58, s32, 110592")
    A("s_mul_i32 s59, s33, 2304")
    A("s_add_u32 s58, s58, s59")
    for rnd in range(2):
        A(f"v_add_u32 v{a}, {512*rnd}, v0")
        A(f"v_and_b32 v{b}, 15, v{a}")
        A(f"v_lshrrev_b32 v{c}, 4, v{a}")
        A(f"v_mul_u32_u24 v{d}, 7282, v{c}")
        A(f"v_lshrrev_b32 v{d}, 16, v{d}")
        A(f"v_mul_u32_u24 v{d+1}, 9, v{d}")
        A(f"v_sub_u32 v{c}, v{c}, v{d+1}")
        A(f"v_lshl_add_u32 v{d+1}, v{d}, 4, v{b}")
        A(f"v_mul_u32_u24 v{d+1}, 144, v{d+1}")
        A(f"v_lshl_add_u32 v{d+1}, v{c}, 4, v{d+1}")
        A(f"v_add_u32 v{V_OL+rnd}, {OB}, v{d+1}")
        A(f"v_mul_u32_u24 v{d}, 18432, v{d}")
        A(f"v_lshl_add_u32 v{d}, v{c}, 8, v{d}")
        A(f"v_lshl_add_u32 v{d}, v{b}, 4, v{d}")
        A(f"v_add_u32 v{V_OG+rnd}, s58, v{d}")
        if rnd == 1:
            A(f"v_mov_b32 v{b}, 0x{BIGOFF:x}")
            A(f"v_cmp_gt_u32 vcc, 864, v{a}")
            A(f"v_cndmask_b32 v{V_OG+rnd}, v{b}, v{V_OG+rnd}, vcc")

def gen_a1(A):
    n = "a1"
    A("s_and_b32 s36, s2, 7")
    A("s_lshr_b32 s37, s2, 3")
    A("s_lshr_b32 s38, s36, 2")
    A("s_and_b32 s39, s36, 3")
    A("s_mul_i32 s32, s38, 11")
    A("s_lshr_b32 s40, s37, 1")
    A("s_add_u32 s32, s32, s40")
    A("s_and_b32 s40, s37, 1")
    A("s_lshl_b32 s33, s39, 1")
    A("s_add_u32 s33, s33, s40")
    A("s_mul_i32 s34, s32, 96")
    make_srd(A, 44, P_X, SZ_T)
    make_srd(A, 48, P_W, 576 * 3456)
    if OPT.get("r1", 1):
        labr = A.newlabel("r1")
        A(f"s_cmp_ge_u32 s{S_WAVE}, 5")
        A(f"s_cbranch_scc1 {labr}")
        a_prefetch_setup(A, 232, 233, 4, 37, 32)
        a_prefetch_issue(A, 232, 233, S_WAVE, 44, 48, 240)
        A.label(labr)
    A(f"s_cmp_ge_u32 s{S_WAVE}, 4")
    A(f"s_cbranch_scc1 {n}_loader")
    a_prefetch_setup(A, 230, 231, 4, 37, 22)
    if OPT.get("tlba"):
        labt = A.newlabel("tlba")
        A(f"s_cmp_lg_u32 s{S_WAVE}, 3")
        A(f"s_cbranch_scc1 {labt}")
        tlb_warm(A)
        A.label(labt)
    get_nonce_issue(A, "A")
    A("v_and_b32 v2, 15, v1")
    A("v_lshrrev_b32 v3, 4, v1")
    attn_setup(A)
    A("v_lshrrev_b32 v6, 2, v2")
    A("v_lshl_add_u32 v7, v3, 3, v6")
    A("v_lshlrev_b32 v7, 9, v7")
    A("v_and_b32 v8, 3, v2")
    A("v_lshl_add_u32 v7, v8, 3, v7")
    A(f"v_add_u32 v7, {XS}, v7")
    A("v_and_b32 v8, 1, v3")
    A("v_lshl_add_u32 v8, v8, 2, v6")
    A("v_lshrrev_b32 v9, 1, v2")
    A("v_xor_b32 v9, v9, v3")
    A("v_lshlrev_b32 v9, 4, v9")
    XA = 14
    A(f"v_lshl_add_u32 v{XA}, v2, 7, v9")
    A(f"v_xor_b32 v{XA+1}, 64, v{XA}")
    for w in range(3):
        A(f"s_cmp_eq_u32 s{S_WAVE}, {w}")
        A(f"s_cbranch_scc1 {n}_c{w}")
    for w in [3, 0, 1, 2]:
        A.label(f"{n}_c{w}")
        if w < 3:
            nts = [3*w, 3*w+1, 3*w+2]
            units = [(t, st) for t in nts for st in range(7)] + [(13, 2*w+1), (13, 2*w+2)]
            ants = nts + [13]
            sts = list(range(7))
        else:
            nts = [9, 10, 11, 12]
            units = [(t, st) for t in nts for st in range(1, 7)]
            ants = nts
            sts = list(range(1, 7))
        WA = 10
        for ai, t in enumerate(ants):
            A(f"v_xor_b32 v9, {t}, v8")
            A(f"v_lshl_add_u32 v{WA+ai}, v9, 5, v7")
        A("v_mul_u32_u24 v4, 48, v2")
        for ai, t in enumerate(ants):
            for p in range(2):
                va = 212 + 2*ai + p
                A("v_lshlrev_b32 v5, 2, v3")
                A(f"v_add_u32 v5, {16*t + 2*p}, v5")
                A("v_mul_u32_u24 v6, 3641, v5")
                A("v_lshrrev_b32 v6, 16, v6")
                A("v_mul_u32_u24 v6, 5340, v6")
                A(f"v_lshl_add_u32 v{va}, v5, 1, v6")
                A(f"v_add_u32 v{va}, v{va}, v4")
        ACC = 28
        acc = {u: ACC + 4*i for i, u in enumerate(units)}
        FR = [124, 168]
        def reads(ks, base):
            lst = []
            for ai, t in enumerate(ants):
                for h in range(2):
                    lst.append(f"ds_read_b64_tr_b16 {v(base+4*ai+2*h,2)}, v{WA+ai} offset:{ks*16384 + h*2048}")
            for bi, st in enumerate(sts):
                lst.append(f"ds_read_b128 {v(base+16+4*bi,4)}, v{XA+ks} offset:{st*2048}")
            return lst
        def mfmas(base, first):
            lst = []
            for (t, st) in units:
                ai = ants.index(t); bi = sts.index(st)
                c = "0" if first else v(acc[(t, st)], 4)
                lst.append(f"v_mfma_f32_16x16x32_bf16 {v(acc[(t,st)],4)}, {v(base+4*ai,4)}, {v(base+16+4*bi,4)}, {c}")
            return lst
        def interleave(mf, rd):
            i = 0
            for m in mf:
                A(m)
                if i < len(rd): A(rd[i]); i += 1
            while i < len(rd): A(rd[i]); i += 1
        for u in units:
            for r in range(0, 4, 2): A(f"v_mov_b64 {v(acc[u]+r,2)}, 0")
        A("s_mov_b32 s60, 0")
        A("s_mov_b32 s61, 0")
        A(f"s_mov_b32 s52, {ST1}")
        A(f"s_mov_b32 s53, {(-2*ST1) & 0xffffffff}")
        LF = OPT.get("lf", 0)
        if LF:
            A(f"v_mov_b32 v235, {PL}")
            A(f"v_mov_b32 v234, {PC + 4*w}")
            if w == 0:
                A("v_mov_b64 v[236:237], 0"); A("v_mov_b64 v[238:239], 0")
                A("ds_write_b128 v235, v[236:239]")
                A("ds_write_b128 v235, v[236:239] offset:16")
                A("s_waitcnt lgkmcnt(0)")
            A("s_barrier")
            lds_poll(A, 235, 236, 63, "1", 55)
        else:
            if OPT.get("r1", 1):
                A("s_waitcnt vmcnt(0)")
                A("s_barrier")
            A("s_barrier")
        stamp(A, 1)
        for r_ in reads(0, FR[0]): A(r_)
        A("s_waitcnt lgkmcnt(0)")
        A(f"s_branch {n}_q{w}")
        A.label(f"{n}_l{w}")
        if LF:
            A("s_add_u32 s54, s60, 1")
            lds_poll(A, 235, 236, 63, "s54", 55, pre_read=True)
        else:
            A("s_barrier")
        interleave(mfmas(FR[1], False), reads(0, FR[0]))
        A("s_waitcnt lgkmcnt(0)")
        A.label(f"{n}_q{w}")
        labp = A.newlabel("lpf")
        A(f"s_cmp_lg_u32 s60, {w}")
        A(f"s_cbranch_scc1 {labp}")
        A(f"s_add_u32 s63, s60, {OPT.get('af', 7)}")
        A("s_cmp_gt_u32 s63, 8")
        A(f"s_cbranch_scc1 {labp}")
        a_prefetch_issue(A, 230, 231, 63, 44, 48, 240)
        A.label(labp)
        if w == 3 and OPT.get("hpf", 1):
            labh = A.newlabel("hpf")
            A("s_cmp_lg_u32 s60, 3")
            A(f"s_cbranch_scc1 {labh}")
            A("s_cmp_ge_u32 s2, 64")
            A(f"s_cbranch_scc1 {labh}")
            A("s_and_b32 s98, s2, 7")
            A("s_lshr_b32 s97, s2, 3")
            A("s_add_u32 s97, s97, 10")
            grp_of(A, 96, 98, 97, 99)
            A("s_lshl_b32 s96, s96, 14")
            A(f"s_add_u32 s92, s{P_H}, s96")
            A(f"s_addc_u32 s93, s{P_H+1}, 0")
            A("s_and_b32 s93, s93, 0xffff")
            A("s_mov_b32 s94, 16384")
            A("s_mov_b32 s95, 0x00020000")
            A("v_lshlrev_b32 v232, 7, v1")
            A("buffer_load_dword v242, v232, s[92:95], 0 offen")
            A("v_add_u32 v232, 8192, v232")
            A("buffer_load_dword v243, v232, s[92:95], 0 offen")
            A.label(labh)
        A("s_add_u32 s61, s61, 1")
        A("s_cmp_eq_u32 s61, 3")
        A("s_cselect_b32 s62, s53, s52")
        A("s_cselect_b32 s61, 0, s61")
        if LF:
            mf = mfmas(FR[0], False); rd = reads(1, FR[1])
            i = 0
            for idx, m in enumerate(mf):
                A(m)
                if i < len(rd): A(rd[i]); i += 1
                if idx == len(mf) - 5:
                    A("s_add_u32 s54, s60, 1")
                    A("v_mov_b32 v242, s54") if False else None
                    A("s_waitcnt lgkmcnt(0)")
                    A("v_mov_b32 v233, s54")
                    A("ds_write_b32 v234, v233")
                    A("ds_read_b128 v[236:239], v235")
            for r in range(6): A(f"v_add_u32 v{10+r}, s62, v{10+r}")
            A("s_add_u32 s60, s60, 1")
            A("s_cmp_lt_u32 s60, 9")
            A("s_waitcnt lgkmcnt(0)")
            A(f"s_cbranch_scc1 {n}_l{w}")
        else:
            interleave(mfmas(FR[0], False), reads(1, FR[1]))
            for r in range(6): A(f"v_add_u32 v{10+r}, s62, v{10+r}")
            A("s_add_u32 s60, s60, 1")
            A("s_cmp_lt_u32 s60, 9")
            A("s_waitcnt lgkmcnt(0)")
            A(f"s_cbranch_scc1 {n}_l{w}")
        A("s_barrier")
        last = mfmas(FR[1], False)
        pend = []
        k = 0
        def flush_one(u):
            nonlocal k
            (t, st) = u
            ai = ants.index(t); a0 = acc[(t, st)]
            tmp = 124 + 2*(k % 8); k += 1
            A(f"v_cvt_pk_bf16_f32 v{tmp}, v{a0}, v{a0+1}")
            A(f"v_cvt_pk_bf16_f32 v{tmp+1}, v{a0+2}, v{a0+3}")
            A(f"ds_write_b32 v{212+2*ai}, v{tmp} offset:{768*st}")
            A(f"ds_write_b32 v{212+2*ai+1}, v{tmp+1} offset:{768*st}")
        for m, u in zip(last, units):
            A(m)
            pend.append(u)
            if len(pend) > 3: flush_one(pend.pop(0))
        for u in pend: flush_one(u)
        stamp(A, 4)
        A(f"s_branch {n}_attn")
    A.label(f"{n}_loader")
    if OPT.get("prio"): A(f"s_setprio {OPT['prio']}")
    A(f"s_sub_u32 s35, s{S_WAVE}, 4")
    A("v_lshrrev_b32 v2, 3, v1")
    A("v_and_b32 v3, 7, v1")
    A("v_lshrrev_b32 v4, 4, v1")
    A("v_mul_u32_u24 v5, 1152, v2")
    A("v_xor_b32 v6, v3, v4")
    A("v_lshl_add_u32 v10, v6, 4, v5")
    A("v_xor_b32 v11, 64, v10")
    A("s_lshl_b32 s36, s35, 2")
    A("s_cmp_eq_u32 s35, 3")
    A("s_cselect_b32 s36, 11, s36")
    A("s_cselect_b64 s[54:55], -1, 0")
    A("v_cndmask_b32 v16, v10, v11, s[54:55]")
    A("v_cndmask_b32 v17, v11, v10, s[54:55]")
    A("s_sub_u32 s37, s34, 16")
    A("s_mul_i32 s37, s37, 1152")
    A("s_mul_i32 s38, s36, 9216")
    A("s_add_u32 s37, s37, s38")
    A("s_lshl_b32 s38, s36, 10")
    WV = 12
    A("v_lshrrev_b32 v2, 5, v1")
    A("v_and_b32 v3, 31, v1")
    A("v_mul_u32_u24 v4, 3456, v2")
    A("s_mul_i32 s40, s33, 144")
    A("v_add_u32 v4, s40, v4")
    A(f"v_mov_b32 v9, 0x{BIGOFF:x}")
    for var in range(4):
        j1, j4 = var & 1, var >> 1
        A(f"v_add_u32 v5, {2*j1+4*j4}, v2")
        A("v_lshlrev_b32 v5, 1, v5")
        A("v_xor_b32 v5, v5, v3")
        A("v_mov_b32 v6, 1152")
        A("v_mov_b32 v7, 2160")
        A("v_cmp_le_u32 vcc, 9, v5")
        A("v_cndmask_b32 v6, v6, v7, vcc")
        A("v_mov_b32 v7, -288")
        A("v_cmp_le_u32 vcc, 18, v5")
        A("v_cndmask_b32 v6, v6, v7, vcc")
        A("v_lshl_add_u32 v6, v5, 4, v6")
        A(f"v_add_u32 v{WV+var}, v4, v6")
        A("v_cmp_le_u32 vcc, 27, v5")
        A(f"v_cndmask_b32 v{WV+var}, v{WV+var}, v9, vcc")
    A("s_mul_i32 s40, s35, 55296")
    A("s_lshl_b32 s41, s35, 13")
    A(f"s_add_u32 s41, s41, {XS}")
    def issue_block():
        A(f"s_mul_i32 s62, s61, {ST1}")
        A("s_add_u32 s63, s38, s62")
        A("s_add_u32 s62, s41, s62")
        for j in range(4):
            lab = None
            if j == 3:
                lab = A.newlabel(f"{n}_sk")
                A("s_cmp_ge_u32 s35, 2")
                A(f"s_cbranch_scc1 {lab}")
            A(f"s_add_u32 m0, s63, {1024*j}")
            A(f"s_add_u32 s52, s37, {9216*j}")
            if j < 2:
                A("s_cmp_lt_i32 s52, 0")
                A(f"s_cselect_b32 s52, 0x{BIGOFF:x}, s52")
            A(f"buffer_load_dwordx4 v{16+(j&1)}, s[44:47], s52 offen lds")
            if lab: A.label(lab)
        for j in range(8):
            var = (j & 1) + 2 * (j >> 2)
            A(f"s_add_u32 m0, s62, {1024*j}")
            A(f"s_add_u32 s52, s40, {6912*j}")
            A(f"buffer_load_dwordx4 v{WV+var}, s[48:51], s52 offen lds")
        A("s_add_u32 s37, s37, 128")
        A("s_add_u32 s40, s40, 221184")
        A("s_add_u32 s61, s61, 1")
        A("s_cmp_eq_u32 s61, 3")
        A("s_cselect_b32 s61, 0, s61")
    if OPT.get("lf", 0):
        A("s_mov_b32 s61, 0")
        issue_block()
        stamp(A, 1)
        A("v_and_b32 v2, 15, v1")
        A("v_lshrrev_b32 v3, 4, v1")
        attn_setup(A)
        A(f"v_mov_b32 v24, {PC}")
        A("s_lshl_b32 s53, s35, 2")
        A(f"s_add_u32 s53, s53, {PL}")
        A("v_mov_b32 v25, s53")
        A("s_barrier")
        A("s_waitcnt vmcnt(0)")
        A("v_mov_b32 v26, 1")
        A("ds_write_b32 v25, v26")
        stamp(A, 2)
        A("s_mov_b32 s60, 1")
        A.label(f"{n}_ll")
        labn = A.newlabel("nw")
        A("s_cmp_lt_u32 s60, 3")
        A(f"s_cbranch_scc1 {labn}")
        A("s_sub_u32 s54, s60, 2")
        lds_poll(A, 24, 28, 53, "s54", 55)
        A.label(labn)
        issue_block()
        if STAMPS and OPT.get("dbgl"):
            A("s_memrealtime s[100:101]")
            A("s_waitcnt lgkmcnt(0)")
            A("s_add_u32 s99, s60, 5")
            A("s_mov_b32 m0, s99")
            A("s_nop 4")
            A("v_writelane_b32 v246, s100, m0")
        A("s_waitcnt vmcnt(11)")
        A("v_mov_b32 v26, s60")
        A("ds_write_b32 v25, v26")
        A("s_add_u32 s60, s60, 1")
        A("s_cmp_lt_u32 s60, 9")
        A(f"s_cbranch_scc1 {n}_ll")
        A("s_waitcnt vmcnt(0)")
        A("v_mov_b32 v26, 9")
        A("ds_write_b32 v25, v26")
        A("s_waitcnt lgkmcnt(0)")
    else:
        A("s_mov_b32 s61, 0")
        if OPT.get("r1", 1):
            A("v_and_b32 v2, 15, v1")
            A("v_lshrrev_b32 v3, 4, v1")
            attn_setup(A)
            A("s_waitcnt vmcnt(0)")
            A("s_barrier")
            stamp(A, 1)
            A("s_mov_b32 s60, 0")
            A.label(f"{n}_lp")
            issue_block()
            A("s_add_u32 s60, s60, 1")
            A("s_cmp_lt_u32 s60, 2")
            A(f"s_cbranch_scc1 {n}_lp")
            A("s_waitcnt vmcnt(11)")
            stamp(A, 2)
            A("s_barrier")
            issue_block()
        else:
            issue_block()
            stamp(A, 1)
            A("v_and_b32 v2, 15, v1")
            A("v_lshrrev_b32 v3, 4, v1")
            attn_setup(A)
            A("s_waitcnt vmcnt(0)")
            stamp(A, 2)
            A("s_barrier")
            A("s_mov_b32 s60, 0")
            A.label(f"{n}_lp")
            issue_block()
            A("s_add_u32 s60, s60, 1")
            A("s_cmp_lt_u32 s60, 2")
            A(f"s_cbranch_scc1 {n}_lp")
        stamp(A, 3)
        A("s_mov_b32 s60, 0")
        A.label(f"{n}_ll")
        A("s_waitcnt vmcnt(11)")
        A("s_barrier")
        issue_block()
        A("s_add_u32 s60, s60, 1")
        A("s_cmp_lt_u32 s60, 6")
        A(f"s_cbranch_scc1 {n}_ll")
        A("s_waitcnt vmcnt(11)")
        A("s_barrier")
        A("s_waitcnt vmcnt(0)")
        A("s_barrier")
    A("s_barrier")
    A.label(f"{n}_attn")
    if OPT.get("prio"): A("s_setprio 0")
    A("s_waitcnt lgkmcnt(0)")
    A("s_barrier")
    stamp(A, 5)
    if OPT.get("hearly", 1):
        labh = A.newlabel("hea")
        A("s_cmp_ge_u32 s2, 64")
        A(f"s_cbranch_scc1 {labh}")
        A("s_and_b32 s38, s2, 7")
        A("s_lshr_b32 s37, s2, 3")
        A("s_add_u32 s37, s37, 10")
        grp_of(A, 36, 38, 37, 39)
        A(f"s_and_b32 s37, s{S_WAVE}, 3")
        A("s_lshl_b32 s36, s36, 2")
        A("s_add_u32 s36, s36, s37")
        A("s_lshl_b32 s36, s36, 12")
        make_srd(A, 48, P_H, 4096, add_s=36)
        HL = 170; a = HL + 26
        A(f"v_lshlrev_b32 v{a}, 4, v1")
        A(f"s_lshr_b32 s37, s{S_WAVE}, 2")
        A("s_lshl_b32 s37, s37, 11")
        A(f"v_add_u32 v{a}, s37, v{a}")
        A(f"v_add_u32 v{a+1}, 4, v{a}")
        A(f"v_add_u32 v{a+2}, 8, v{a}")
        for it in range(2):
            A(f"buffer_load_dwordx4 {v(HL+12*it,4)}, v{a}, s[48:51], 0 offen offset:{1024*it}")
            A(f"buffer_load_dwordx4 {v(HL+12*it+4,4)}, v{a+1}, s[48:51], 0 offen offset:{1024*it}")
            A(f"buffer_load_dwordx4 {v(HL+12*it+8,4)}, v{a+2}, s[48:51], 0 offen offset:{1024*it}")
        A(f"v_mov_b32 v{a+3}, 0")
        A(f"buffer_load_dwordx2 {v(HL+24,2)}, v{a+3}, s[48:51], 0 offen")
        A.label(labh)
    cst = struct.unpack("<I", struct.pack("<f", (18 ** -0.5) * math.log2(math.e)))[0]
    A(f"s_mov_b32 s42, 0x{cst:08x}")
    B = 24
    def regs(b): return B + 40 * b
    for b in range(3):
        R = regs(b)
        A(f"ds_read_b128 {v(R,4)}, v{V_KQ} offset:{8*HHS + 768*(b+1)}")
        A(f"ds_read_b128 {v(R+4,4)}, v{V_KQ} offset:{768*b}")
        A(f"ds_read_b128 {v(R+8,4)}, v{V_KQ} offset:{768*(b+1)}")
    for b in range(3):
        R = regs(b)
        A(f"ds_read_b64_tr_b16 {v(R+12,2)}, v{V_VT} offset:{4*HHS + 768*b}")
        A(f"ds_read_b64_tr_b16 {v(R+14,2)}, v{V_VT} offset:{4*HHS + 768*(b+1)}")
        A(f"ds_read_b64_tr_b16 {v(R+16,2)}, v{V_VT} offset:{4*HHS + 768*b + 32}")
        A(f"ds_read_b64_tr_b16 {v(R+18,2)}, v{V_VT} offset:{4*HHS + 768*(b+1) + 32}")
    for b in range(3):
        R = regs(b)
        A(f"s_waitcnt lgkmcnt({12 + 3*(2-b)})" if 12 + 3*(2-b) <= 15 else "s_waitcnt lgkmcnt(15)")
        A(f"v_cndmask_b32 v{R}, 0, v{R}, s[82:83]")
        for r in range(1, 4):
            A(f"v_cndmask_b32 v{R+r}, 0, v{R+r}, s[80:81]")
        A(f"v_mfma_f32_16x16x32_bf16 {v(R+20,4)}, {v(R+4,4)}, {v(R,4)}, 0")
        A(f"v_mfma_f32_16x16x32_bf16 {v(R+24,4)}, {v(R+8,4)}, {v(R,4)}, 0")
    for b in range(3):
        R = regs(b); S = R + 20
        for e in range(8):
            m = (84 + 2*e) if (b == 0 and e < 4) else (64 + 2*e)
            A(f"v_cndmask_b32 v{S+e}, v{V_NINF}, v{S+e}, s[{m}:{m+1}]")
        M = R + 28
        A(f"v_max3_f32 v{M}, v{S}, v{S+1}, v{S+2}")
        A(f"v_max3_f32 v{M}, v{M}, v{S+3}, v{S+4}")
        A(f"v_max3_f32 v{M}, v{M}, v{S+5}, v{S+6}")
        A(f"v_max_f32 v{M}, v{M}, v{S+7}")
    def xlane(op, b_regs):
        for kind in ("16", "32"):
            for (M, T) in b_regs: A(f"v_mov_b32 v{T}, v{M}")
            for (M, T) in b_regs: A(f"v_permlane{kind}_swap_b32 v{M}, v{T}")
            for (M, T) in b_regs: A(f"{op} v{M}, v{M}, v{T}")
    xlane("v_max_f32", [(regs(b)+28, regs(b)+29) for b in range(3)])
    for b in range(3):
        R = regs(b); M = R + 28
        A(f"v_mul_f32 v{M}, s42, v{M}")
    for b in range(3):
        R = regs(b); S = R + 20; M = R + 28
        for e in range(8): A(f"v_fma_f32 v{S+e}, v{S+e}, s42, -v{M}")
        for e in range(8): A(f"v_exp_f32 v{S+e}, v{S+e}")
    for b in range(3):
        R = regs(b); S = R + 20; M = R + 30
        A(f"v_add_f32 v{M}, v{S}, v{S+1}")
        A(f"v_add_f32 v{M+1}, v{S+2}, v{S+3}")
        A(f"v_add_f32 v{M}, v{M}, v{S+4}")
        A(f"v_add_f32 v{M+1}, v{M+1}, v{S+5}")
        A(f"v_add_f32 v{M}, v{M}, v{S+6}")
        A(f"v_add_f32 v{M+1}, v{M+1}, v{S+7}")
        A(f"v_add_f32 v{M}, v{M}, v{M+1}")
    xlane("v_add_f32", [(regs(b)+30, regs(b)+31) for b in range(3)])
    for b in range(3):
        A(f"v_rcp_f32 v{regs(b)+30}, v{regs(b)+30}")
    A("s_waitcnt lgkmcnt(0)")
    for b in range(3):
        R = regs(b); S = R + 20; M = R + 30
        for e in range(8): A(f"v_mul_f32 v{S+e}, v{S+e}, v{M}")
        for q in range(4): A(f"v_cvt_pk_bf16_f32 v{R+q}, v{S+2*q}, v{S+2*q+1}")
        A(f"v_mfma_f32_16x16x32_bf16 {v(R+32,4)}, {v(R+12,4)}, {v(R,4)}, 0")
        A(f"v_mfma_f32_16x16x32_bf16 {v(R+36,4)}, {v(R+16,4)}, {v(R,4)}, 0")
    for b in range(3):
        R = regs(b)
        A(f"v_cvt_pk_bf16_f32 v{R+4}, v{R+32}, v{R+33}")
        A(f"v_cvt_pk_bf16_f32 v{R+5}, v{R+34}, v{R+35}")
        A(f"v_cvt_pk_bf16_f32 v{R+6}, v{R+36}, v{R+37}")
        A(f"ds_write2_b32 v{V_OW+b}, v{R+4}, v{R+5} offset0:0 offset1:1")
    A("s_mov_b64 exec, 0xffff")
    for b in range(3):
        A(f"ds_write_b32 v{V_OW+b}, v{regs(b)+6} offset:32")
    A("s_mov_b64 exec, -1")
    make_srd(A, 44, P_WS, SZ_T, WS_OF)
    A("s_waitcnt lgkmcnt(0)")
    A("s_barrier")
    stamp(A, 6)
    for rnd in range(2):
        A(f"ds_read_b128 {v(20+4*rnd,4)}, v{V_OL+rnd}")
    for rnd in range(2):
        A(f"s_waitcnt lgkmcnt({1-rnd})")
        A(f"buffer_store_dwordx4 {v(20+4*rnd,4)}, v{V_OG+rnd}, s[44:47], 0 offen sc1")
    A("s_waitcnt vmcnt(0)")
    A("s_barrier")
    lab = A.newlabel("a1f")
    A(f"s_cmp_lg_u32 s{S_WAVE}, 0")
    A(f"s_cbranch_scc1 {lab}")
    nonce_resolve(A, "A")
    A("s_lshl_b32 s36, s32, 8")
    A("s_lshl_b32 s37, s33, 2")
    A("s_add_u32 s36, s36, s37")
    flag_store(A, "A", 36)
    A.label(lab)
    stamp(A, 7)

HC = 4160
URB = 4 * HC
WB = URB + 4608
XCH = 4 * WB
ZS = 4160

def b2_common(A, s_grp):
    A(f"s_and_b32 s32, s{S_WAVE}, 3")
    A(f"s_lshr_b32 s33, s{S_WAVE}, 2")
    A(f"s_lshl_b32 s34, s{s_grp}, 2")
    A("s_add_u32 s34, s34, s32")
    A("s_lshl_b32 s35, s34, 12")
    A(f"s_mul_i32 s36, s32, {WB}")
    make_srd(A, 44, P_H, 4096, add_s=35)
    A("s_lshl_b32 s37, s34, 1")
    A("s_and_b32 s38, s37, 0xfffffffc")
    A(f"s_load_dword s39, s[{P_D}:{P_D+1}], s38")

def b2_h_loads(A, HL, nits=2):
    a = HL + 12 * nits + 2
    A(f"v_lshlrev_b32 v{a}, 4, v1")
    if nits == 2:
        A("s_lshl_b32 s40, s33, 11")
        A(f"v_add_u32 v{a}, s40, v{a}")
    A(f"v_add_u32 v{a+1}, 4, v{a}")
    A(f"v_add_u32 v{a+2}, 8, v{a}")
    for it in range(nits):
        A(f"buffer_load_dwordx4 {v(HL+12*it,4)}, v{a}, s[44:47], 0 offen offset:{1024*it}")
        A(f"buffer_load_dwordx4 {v(HL+12*it+4,4)}, v{a+1}, s[44:47], 0 offen offset:{1024*it}")
        A(f"buffer_load_dwordx4 {v(HL+12*it+8,4)}, v{a+2}, s[44:47], 0 offen offset:{1024*it}")
    A(f"v_mov_b32 v{a+3}, 0")
    A(f"buffer_load_dwordx2 {v(HL+12*nits,2)}, v{a+3}, s[44:47], 0 offen")

def b2_h_stage(A, HL, T, nits=2):
    a = HL + 12 * nits + 2
    A(f"v_add_u32 v{a+1}, s36, v{a}")
    for it in range(nits):
        b = HL + 12 * it
        for i in range(4): A(f"v_alignbit_b32 v{T+i}, v{b+4+i}, v{b+i}, 16")
        for i in range(4): A(f"v_alignbit_b32 v{T+4+i}, v{b+8+i}, v{b+4+i}, 16")
        off = 32 + 1024 * it
        A(f"ds_write_b128 v{a+1}, {v(b,4)} offset:{off}")
        A(f"ds_write_b128 v{a+1}, {v(T,4)} offset:{off+HC}")
        A(f"ds_write_b128 v{a+1}, {v(b+4,4)} offset:{off+2*HC}")
        A(f"ds_write_b128 v{a+1}, {v(T+4,4)} offset:{off+3*HC}")
    d0, d1 = HL + 12*nits, HL + 12*nits + 1
    A(f"v_lshlrev_b32 v{T+8}, 16, v{d0}")
    A(f"v_alignbit_b32 v{T+9}, v{d1}, v{d0}, 16")
    Z = T + 10
    for r in range(0, 8, 2): A(f"v_mov_b64 {v(Z+r,2)}, 0")
    A("v_cmp_eq_u32 s[60:61], 1, v1")
    A("v_cmp_eq_u32 s[62:63], 2, v1")
    A("v_cmp_eq_u32 s[64:65], 3, v1")
    A(f"v_cndmask_b32 v{Z+7}, v{Z+7}, v{T+8}, s[60:61]")
    A(f"v_cndmask_b32 v{Z+7}, v{Z+7}, v{d0}, s[62:63]")
    A(f"v_cndmask_b32 v{Z+7}, v{Z+7}, v{T+9}, s[64:65]")
    A(f"v_cndmask_b32 v{Z+6}, v{Z+6}, v{T+8}, s[64:65]")
    A(f"v_mul_u32_u24 v{a+2}, {HC}, v1")
    A(f"v_add_u32 v{a+2}, s36, v{a+2}")
    A("s_mov_b64 exec, 0xf")
    A(f"ds_write_b128 v{a+2}, {v(Z,4)}")
    A(f"ds_write_b128 v{a+2}, {v(Z+4,4)} offset:16")
    A("s_mov_b64 exec, 0xffffffff")
    A(f"v_lshlrev_b32 v{a+2}, 4, v1")
    A(f"v_add_u32 v{a+2}, s36, v{a+2}")
    A(f"ds_write_b128 v{a+2}, {v(Z,4)} offset:{URB+4096}")
    A("s_mov_b64 exec, -1")

def b2_main(A, s_grp, sb, resolved):
    make_srd(A, 48, P_WS, 4096, WS_UR, add_s=35)
    make_srd(A, 52, P_Q, SZ_T)
    make_srd(A, 56, P_OUT, 2048 * 2304)
    A("v_and_b32 v3, 15, v1")
    A("v_lshrrev_b32 v4, 4, v1")
    A("v_lshlrev_b32 v5, 4, v1")
    A("s_lshl_b32 s40, s33, 11")
    A("v_add_u32 v5, s40, v5")
    A("v_add_u32 v10, s36, v5")
    A("v_lshlrev_b32 v9, 5, v3")
    A("v_lshl_add_u32 v9, v4, 3, v9")
    A(f"s_lshl_b32 s41, s{S_WAVE}, 8")
    A("v_add_u32 v8, s41, v1")
    A("s_movk_i32 s42, 1152")
    A("v_mul_lo_u32 v8, v8, s42")
    A(f"s_lshl_b32 s43, s{s_grp}, 3")
    A("v_add_u32 v8, s43, v8")
    A("v_add_u32 v12, 1, v3")
    A("v_and_b32 v13, 3, v12")
    A("v_lshrrev_b32 v12, 2, v12")
    A(f"v_mul_u32_u24 v13, {HC}, v13")
    A("v_lshl_add_u32 v13, v4, 4, v13")
    A("v_lshl_add_u32 v13, v12, 3, v13")
    A("s_lshl_b32 s41, s33, 8")
    A("s_add_u32 s41, s41, s36")
    A("v_add_u32 v13, s41, v13")
    A("v_lshlrev_b32 v14, 4, v4")
    A("v_lshlrev_b32 v15, 5, v3")
    A("v_sub_u32 v14, v14, v15")
    A(f"v_add_u32 v14, {URB+480}, v14")
    A("v_add_u32 v14, s41, v14")
    stamp(A, sb + 0)
    lab = A.newlabel("b2w")
    A(f"s_cmp_lg_u32 s{S_WAVE}, 0")
    A(f"s_cbranch_scc1 {lab}")
    if not resolved:
        A("s_waitcnt vmcnt(0)")
        nonce_resolve(A, "B")
    A(f"s_lshr_b32 s41, s{s_grp}, 4")
    A("s_lshl_b32 s41, s41, 8")
    flag_poll(A, "B", 41)
    A.label(lab)
    A("s_barrier")
    stamp(A, sb + 1)
    U = 68
    for it in range(2):
        A(f"buffer_load_dwordx4 {v(U+4*it,4)}, v5, s[48:51], 0 offen offset:{1024*it} sc1")
    Q = 84
    A(f"s_lshl_b32 s41, s{S_WAVE}, 12")
    A("v_lshlrev_b32 v6, 4, v1")
    A(f"v_add_u32 v6, {XCH}, v6")
    A("v_add_u32 v7, s41, v6")
    A(f"s_xor_b32 s42, s{S_WAVE}, 4")
    A("s_lshl_b32 s42, s42, 12")
    A("v_add_u32 v6, s42, v6")
    A(f"v_sub_u32 v11, {URB+504}, v9")
    A("s_lshl_b32 s41, s33, 11")
    A("s_sub_u32 s42, s36, s41")
    A("v_add_u32 v11, s42, v11")
    A(f"s_mul_i32 s42, s32, {ZS}")
    A("s_add_u32 s42, s42, s41")
    A("v_add_u32 v9, s42, v9")
    A("s_waitcnt vmcnt(0)")
    for it in range(2):
        A(f"ds_write_b128 v10, {v(U+4*it,4)} offset:{URB+1024*it}")
    for it in range(4): A(f"s_mov_b32 s{60+it}, {64*1152*it}")
    A("s_waitcnt lgkmcnt(0)")
    A("s_barrier")
    stamp(A, sb + 2)
    ACC = 208
    FA = [104, 16]
    def frag_reads(rho, base):
        lst = []
        for b in range(8):
            lst.append(f"ds_read_b128 {v(base+32+4*b,4)}, v14 offset:{64*rho+512*(7-b)}")
        aa_l = []
        for aa in range(8):
            aa_l.append(f"ds_read_b64 {v(base+4*aa,2)}, v13 offset:{512*aa+64*rho}")
            aa_l.append(f"ds_read_b64 {v(base+4*aa+2,2)}, v13 offset:{512*aa+64*rho+8}")
        return aa_l[:2] + lst + aa_l[2:]
    for r_ in frag_reads(0, FA[0]): A(r_)
    UU = 88
    UU = 92
    for rho in range(4):
        base = FA[rho & 1]
        A("s_waitcnt lgkmcnt(0)")
        rd = frag_reads(rho + 1, FA[(rho + 1) & 1]) if rho < 3 else [f"ds_read_b64 {v(UU+2*c,2)}, v11 offset:{512*(7-c)}" for c in range(4)]
        i = 0
        A(f"buffer_load_dwordx2 {v(Q+2*rho,2)}, v8, s[52:55], s{60+rho} offen")
        for aa in range(8):
            for b in range(8 - aa):
                c = aa + b
                src = "0" if (rho == 0 and aa == 0) else v(ACC+4*c, 4)
                A(f"v_mfma_f32_16x16x32_bf16 {v(ACC+4*c,4)}, {v(base+4*aa,4)}, {v(base+32+4*b,4)}, {src}")
                if i < len(rd): A(rd[i]); i += 1
    stamp(A, sb + 3)
    l1 = A.newlabel("b2h1"); l2 = A.newlabel("b2x")
    KP = 192
    A("s_cmp_eq_u32 s33, 1")
    A(f"s_cbranch_scc1 {l1}")
    for c in range(4): A(f"ds_write_b128 v7, {v(ACC+16+4*c,4)} offset:{1024*c}")
    for c in range(8): A(f"v_mov_b64 {v(KP+2*c,2)}, {v(ACC+2*c,2)}")
    A(f"s_branch {l2}")
    A.label(l1)
    for c in range(4): A(f"ds_write_b128 v7, {v(ACC+4*c,4)} offset:{1024*c}")
    for c in range(8): A(f"v_mov_b64 {v(KP+2*c,2)}, {v(ACC+16+2*c,2)}")
    A.label(l2)
    A("s_and_b32 s37, s37, 2")
    A("s_lshl_b32 s37, s37, 3")
    A("s_waitcnt lgkmcnt(0)")
    A("s_lshr_b32 s39, s39, s37")
    A("s_lshl_b32 s39, s39, 16")
    TT = 16
    for c in range(4):
        A(f"v_and_b32 v{TT+4*c+0}, 0xffff0000, v{UU+2*c+1}")
        A(f"v_lshlrev_b32 v{TT+4*c+1}, 16, v{UU+2*c+1}")
        A(f"v_and_b32 v{TT+4*c+2}, 0xffff0000, v{UU+2*c}")
        A(f"v_lshlrev_b32 v{TT+4*c+3}, 16, v{UU+2*c}")
    for e in range(16): A(f"v_fma_f32 v{KP+e}, v{TT+e}, s39, v{KP+e}")
    A("s_barrier")
    for c in range(4): A(f"ds_read_b128 {v(48+4*c,4)}, v6 offset:{1024*c}")
    for c in range(4):
        A(f"s_waitcnt lgkmcnt({3-c})")
        for r in range(4): A(f"v_add_f32 v{KP+4*c+r}, v{KP+4*c+r}, v{48+4*c+r}")
        A(f"v_cvt_pk_bf16_f32 v{64+2*c}, v{KP+4*c}, v{KP+4*c+1}")
        A(f"v_cvt_pk_bf16_f32 v{65+2*c}, v{KP+4*c+2}, v{KP+4*c+3}")
        A(f"ds_write_b64 v9, {v(64+2*c,2)} offset:{512*c}")
    A("s_waitcnt vmcnt(0)")
    QF = 32
    for it in range(4):
        A(f"v_lshlrev_b32 v{QF+4*it+0}, 16, v{Q+2*it}")
        A(f"v_and_b32 v{QF+4*it+1}, 0xffff0000, v{Q+2*it}")
        A(f"v_lshlrev_b32 v{QF+4*it+2}, 16, v{Q+2*it+1}")
        A(f"v_and_b32 v{QF+4*it+3}, 0xffff0000, v{Q+2*it+1}")
    A("v_lshrrev_b32 v12, 2, v3")
    A(f"v_mul_u32_u24 v12, {ZS}, v12")
    A("v_and_b32 v13, 3, v3")
    A("v_lshl_add_u32 v12, v13, 3, v12")
    A("v_lshl_add_u32 v12, v4, 5, v12")
    A(f"s_lshl_b32 s41, s{S_WAVE}, 9")
    A("v_add_u32 v12, s41, v12")
    A(f"s_lshl_b32 s41, s{S_WAVE}, 8")
    A("v_add_u32 v13, s41, v1")
    A("s_movk_i32 s42, 2304")
    A(f"s_lshl_b32 s43, s{s_grp}, 3")
    A("s_add_u32 s43, s43, 1152")
    A("v_mul_lo_u32 v13, v13, s42")
    A("v_add_u32 v13, s43, v13")
    for it in range(4): A(f"s_mov_b32 s{60+it}, {64*2304*it}")
    A("s_waitcnt lgkmcnt(0)")
    A("s_barrier")
    for it in range(4):
        A(f"ds_read_b64_tr_b16 {v(16+2*it,2)}, v12 offset:{128*it}")
    for it in range(4):
        A(f"s_waitcnt lgkmcnt({3-it})")
        t = 48 + 4 * it
        A(f"v_lshlrev_b32 v{t+0}, 16, v{16+2*it}")
        A(f"v_and_b32 v{t+1}, 0xffff0000, v{16+2*it}")
        A(f"v_lshlrev_b32 v{t+2}, 16, v{16+2*it+1}")
        A(f"v_and_b32 v{t+3}, 0xffff0000, v{16+2*it+1}")
        for r in range(4): A(f"v_mul_f32 v{t+r}, v{t+r}, v{QF+4*it+r}")
        A(f"v_cvt_pk_bf16_f32 v{64+2*it}, v{t}, v{t+1}")
        A(f"v_cvt_pk_bf16_f32 v{65+2*it}, v{t+2}, v{t+3}")
        A(f"buffer_store_dwordx2 {v(64+2*it,2)}, v13, s[56:59], s{60+it} offen" + (" sc1" if OPT.get("b2sc1") else ""))
    stamp(A, sb + 4)

def b1_addr(A, s_tile, vt):
    A(f"s_mul_hi_u32 s66, s{s_tile}, 0x1c71c71d")
    A("s_mul_i32 s67, s66, 9")
    A(f"s_sub_u32 s67, s{s_tile}, s67")
    A(f"v_and_b32 v2, 7, v{vt}")
    A(f"v_lshrrev_b32 v3, 3, v{vt}")
    A("s_lshl_b32 s40, s66, 8")
    A("v_lshl_add_u32 v4, v3, 3, s40")
    A("s_lshl_b32 s41, s67, 7")
    A("v_lshl_add_u32 v5, v2, 4, s41")
    A("s_movk_i32 s42, 1152")
    A("v_mad_u32_u24 v6, v4, s42, v5")
    A("v_add_u32 v7, 4608, v6")

def gen_b1_kv(A, s_tile):
    A.comment("===== B1 kv (waves 0-3) =====")
    b1_addr(A, s_tile, 0)
    A("v_subrev_u32 v8, 3456, v6")
    A("v_subrev_u32 v9, 2304, v6")
    A("v_subrev_u32 v10, 1152, v6")
    make_srd(A, 48, P_K, SZ_T)
    make_srd(A, 52, P_V, SZ_T)
    make_srd(A, 56, P_SH, 576 * 8)
    KR, VR, SH, W = 16, 60, 92, 108
    KF, VF, ACC, OUT = 140, 162, 178, 194
    for j, vo in enumerate((8, 9, 10)):
        A(f"buffer_load_dwordx4 {v(KR+4*j,4)}, v{vo}, s[48:51], 0 offen")
    for i in range(8):
        A(f"buffer_load_dwordx4 {v(KR+4*(3+i),4)}, v{6 if i < 4 else 7}, s[48:51], 0 offen offset:{1152*(i%4)}")
    for i in range(8):
        A(f"buffer_load_dwordx4 {v(VR+4*i,4)}, v{6 if i < 4 else 7}, s[52:55], 0 offen offset:{1152*(i%4)}")
    A("s_lshl_b32 s43, s67, 9")
    A("v_lshl_add_u32 v11, v2, 6, s43")
    for i in range(4):
        A(f"buffer_load_dwordx4 {v(SH+4*i,4)}, v11, s[56:59], 0 offen offset:{16*i}")
    stamp(A, 2)
    make_srd(A, 52+8, P_WS, SZ_T, WS_UR)
    A("s_lshl_b32 s43, s67, 18")
    A("v_lshl_add_u32 v12, v2, 15, s43")
    A("v_lshlrev_b32 v14, 1, v4")
    A("v_sub_u32 v12, v12, v14")
    A("v_add_u32 v12, 4080, v12")
    for ch in range(8): A(f"s_mov_b32 s{68+ch}, {ch*4096}")
    A("s_waitcnt vmcnt(0)")
    A("s_barrier")
    stamp(A, 3)
    for ch in range(8):
        A(f"v_lshlrev_b32 v{W+0*8+ch}, 16, v{SH+2*ch}")
        A(f"v_and_b32 v{W+1*8+ch}, 0xffff0000, v{SH+2*ch}")
        A(f"v_lshlrev_b32 v{W+2*8+ch}, 16, v{SH+2*ch+1}")
        A(f"v_and_b32 v{W+3*8+ch}, 0xffff0000, v{SH+2*ch+1}")
    for m in range(4):
        for j in range(11):
            A(f"v_lshlrev_b32 v{KF+2*j}, 16, v{KR+4*j+m}")
            A(f"v_and_b32 v{KF+2*j+1}, 0xffff0000, v{KR+4*j+m}")
        for i in range(8):
            A(f"v_lshlrev_b32 v{VF+2*i}, 16, v{VR+4*i+m}")
            A(f"v_and_b32 v{VF+2*i+1}, 0xffff0000, v{VR+4*i+m}")
        for i in range(8):
            A(f"v_pk_mul_f32 {v(ACC+2*i,2)}, {v(W+3*8+2*m,2)}, {v(KF+2*i,2)}")
        for t in (2, 1, 0):
            for i in range(8):
                A(f"v_pk_fma_f32 {v(ACC+2*i,2)}, {v(W+t*8+2*m,2)}, {v(KF+2*(i+3-t),2)}, {v(ACC+2*i,2)}")
        for i in range(8):
            A(f"v_pk_mul_f32 {v(ACC+2*i,2)}, {v(ACC+2*i,2)}, {v(VF+2*i,2)}")
        o = OUT + 8 * (m & 1)
        for h in range(2):
            for q in range(4):
                A(f"v_cvt_pk_bf16_f32 v{o+4*h+q}, v{ACC+2*(7-2*q)+h}, v{ACC+2*(6-2*q)+h}")
        for h in range(2):
            A(f"buffer_store_dwordx4 {v(o+4*h,4)}, v12, s[60:63], s{68+2*m+h} offen sc1")
    stamp(A, 4)

def tlb_warm(A):
    items = []
    for p, size in ((P_K, SZ_T), (P_V, SZ_T), (P_Q, SZ_T), (P_H, SZ_T), (P_WO, 576*1152), (P_OUT, 2048*2304), (P_SH, 64), (P_D, 64)):
        offs = list(range(0, size, 2 << 20))
        offs.append(size - 128 if size > 128 else 0)
        for o in sorted(set(offs)): items.append((p, o))
    for o in (0, (2 << 20) + (1 << 20), (4 << 20), (6 << 20) + (1 << 20), (8 << 20), (10 << 20) + (1 << 20), (12 << 20)):
        items.append((P_WS, o))
    assert len(items) <= 64
    A(f"v_mov_b32 v20, s{P_WS}")
    A(f"v_mov_b32 v21, s{P_WS+1}")
    for i, (p, o) in enumerate(items):
        A(f"s_add_u32 s96, s{p}, {o}")
        A(f"s_addc_u32 s97, s{p+1}, 0")
        A(f"v_writelane_b32 v20, s96, {i}")
        A(f"v_writelane_b32 v21, s97, {i}")
    A("global_load_dword v245, v[20:21], off")

def tlb_warm64(A, s_idx10):
    regions = [(P_WS, WS_UR - 4096, SZ_T + 4096), (P_WS, WS_OF - 4096, SZ_T + 4096), (P_OUT, 0, 2048 * 2304), (P_Q, 0, SZ_T), (P_H, 0, SZ_T), (P_WO, 0, 576 * 1152), (P_K, 0, SZ_T), (P_V, 0, SZ_T)]
    vd = 236
    for r, (p, base, size) in enumerate(regions):
        n = -(-size // 65536)
        per = -(-n // 10)
        make_srd(A, 92, p, size, base)
        A(f"s_mul_i32 s96, s{s_idx10}, {per}")
        A("v_add_u32 v22, s96, v1")
        A("v_lshlrev_b32 v22, 16, v22")
        A(f"v_mov_b32 v23, 0x{BIGOFF:x}")
        A(f"v_cmp_le_u32 vcc, {per}, v1")
        A("v_cndmask_b32 v22, v22, v23, vcc")
        A(f"buffer_load_dword v{vd + (r & 3)}, v22, s[92:95], 0 offen sc1")

def b_prefetch(A):
    make_srd(A, 48, P_X, SZ_T)
    make_srd(A, 52, P_W, 576 * 3456)
    lab = A.newlabel("bpf"); lab1 = A.newlabel("bpf1")
    if OPT.get("r1", 1):
        A(f"s_cmp_ge_u32 s{S_WAVE}, 5")
        A(f"s_cbranch_scc1 {lab1}")
        A("s_lshr_b32 s40, s2, 3")
        a_prefetch_setup(A, 10, 12, 4, 40, 32)
        a_prefetch_issue(A, 10, 12, S_WAVE, 48, 52, 240)
        A(f"s_branch {lab}")
        A.label(lab1)
        A(f"s_cmp_ge_u32 s{S_WAVE}, {OPT.get('af', 7)}")
        A(f"s_cbranch_scc1 {lab}")
        A("s_lshr_b32 s40, s91, 3")
        a_prefetch_setup(A, 10, 12, 4, 40, 10)
        a_prefetch_issue(A, 10, 12, S_WAVE, 48, 52, 240, two=True)
    else:
        A(f"s_cmp_ge_u32 s{S_WAVE}, {OPT.get('af', 7) - 1}")
        A(f"s_cbranch_scc1 {lab}")
        A("s_lshr_b32 s40, s91, 3")
        a_prefetch_setup(A, 10, 12, 4, 40, 10)
        A(f"s_add_u32 s40, s{S_WAVE}, 1")
        a_prefetch_issue(A, 10, 12, 40, 48, 52, 240, two=True)
    A.label(lab)
    if OPT.get("tlb"):
        lab2 = A.newlabel("tlb")
        A(f"s_cmp_lg_u32 s{S_WAVE}, 7")
        A(f"s_cbranch_scc1 {lab2}")
        tlb_warm(A)
        if OPT.get("tlb64"):
            A("s_lshr_b32 s97, s91, 3")
            tlb_warm64(A, 97)
        A.label(lab2)
    get_nonce_issue(A, "B")

def gen_b1_aux(A, s_tile, has_tile):
    A.comment("===== B1 aux (waves 4-7) =====")
    HL = 130
    if has_tile:
        A("s_barrier")
    b2_h_loads(A, HL, 4)
    make_srd(A, 48, P_Q, SZ_T)
    A("s_lshr_b32 s40, s91, 3")
    A("s_lshl_b32 s40, s40, 2")
    A("s_add_u32 s40, s40, s32")
    A("s_mul_i32 s40, s40, 52")
    A("v_add_u32 v10, s40, v1")
    A("s_and_b32 s41, s2, 7")
    if OPT.get("gmap", 1):
        A("s_lshl_b32 s41, s41, 7")
    else:
        A("s_mul_i32 s41, s41, 144")
        A("s_and_b32 s41, s41, 0xffffff80")
    A("s_movk_i32 s42, 1152")
    A("v_mul_lo_u32 v11, v10, s42")
    A("v_add_u32 v11, s41, v11")
    A(f"v_mov_b32 v12, 0x{BIGOFF:x}")
    A("v_cmp_le_u32 vcc, 52, v1")
    A("v_cndmask_b32 v11, v11, v12, vcc")
    A("buffer_load_dword v243, v11, s[48:51], 0 offen")
    if OPT.get("gmap", 1):
        A("v_subrev_u32 v12, s41, v11")
        A("v_add_u32 v12, 1024, v12")
        A("buffer_load_dword v244, v12, s[48:51], 0 offen")
    else:
        A("buffer_load_dword v244, v11, s[48:51], 0 offen offset:128")
    stamp(A, 2)
    A("s_waitcnt vmcnt(2)")
    stamp(A, 4)
    b2_h_stage(A, HL, 100, 4)

WO_B = 72 * 1024

def gen_a2(A, s_x, s_a, sb):
    A.comment("===== A2 =====")
    A(f"s_sub_u32 s34, s{s_a}, 4")
    A("s_lshr_b32 s33, s34, 1")
    A("s_add_u32 s33, s33, 4")
    A("s_and_b32 s34, s34, 1")
    A(f"s_cmp_lt_u32 s{s_a}, 4")
    A(f"s_cselect_b32 s33, s{s_a}, s33")
    A("s_cselect_b32 s34, 0, s34")
    A("s_cselect_b32 s42, 2, 1")
    A(f"s_lshl_b32 s32, s{s_x}, 1")
    A("s_add_u32 s32, s32, s34")
    make_srd(A, 44, P_WO, 576 * 1152)
    A("v_lshrrev_b32 v2, 3, v1")
    A("v_and_b32 v3, 7, v1")
    A("v_bfe_u32 v4, v1, 4, 1")
    A("v_lshlrev_b32 v4, 1, v4")
    A("v_xor_b32 v4, v4, v3")
    A("v_mul_u32_u24 v5, 1152, v2")
    A("v_lshl_add_u32 v5, v4, 4, v5")
    A("s_lshl_b32 s34, s33, 7")
    A("v_add_u32 v10, s34, v5")
    A("v_xor_b32 v11, 64, v10")
    A(f"s_mul_i32 s35, s{S_WAVE}, 9")
    A("s_and_b32 s36, s35, 1")
    A("s_cmp_eq_u32 s36, 1")
    A("s_cselect_b64 s[56:57], -1, 0")
    A("v_cndmask_b32 v12, v10, v11, s[56:57]")
    A("v_cndmask_b32 v13, v11, v10, s[56:57]")
    A("s_lshl_b32 s36, s33, 3")
    A("s_add_u32 s36, s36, s35")
    A("s_lshl_b32 s37, s35, 10")
    for j in range(9):
        A(f"s_add_u32 s38, s36, {j}")
        A("s_sub_u32 s39, s38, 72")
        A("s_cmp_ge_u32 s38, 72")
        A("s_cselect_b32 s38, s39, s38")
        A("s_mul_i32 s38, s38, 9216")
        A(f"s_add_u32 m0, s37, {1024*j}")
        A(f"buffer_load_dwordx4 v{12+(j&1)}, s[44:47], s38 offen lds")
    make_srd(A, 48, P_WS, SZ_T, WS_OF)
    make_srd(A, 52, P_OUT, 2048 * 2304)
    A("s_lshl_b32 s38, s32, 3")
    A(f"s_add_u32 s38, s38, s{S_WAVE}")
    A("s_mul_i32 s39, s38, 18432")
    A("v_lshlrev_b32 v2, 4, v1")
    A("v_add_u32 v2, s39, v2")
    A("v_add_u32 v3, 4096, v2"); A("v_add_u32 v4, 8192, v2"); A("v_add_u32 v5, 12288, v2"); A("v_add_u32 v6, 16384, v2")
    A("v_and_b32 v7, 15, v1")
    A("v_lshrrev_b32 v8, 4, v1")
    A("v_lshrrev_b32 v9, 2, v7")
    A("v_lshl_add_u32 v9, v8, 3, v9")
    A("v_lshlrev_b32 v9, 7, v9")
    A("v_and_b32 v10, 1, v7")
    A("v_lshl_add_u32 v9, v10, 3, v9")
    A("v_bfe_u32 v10, v7, 3, 1")
    A("v_and_b32 v11, 1, v8")
    A("v_lshl_add_u32 v10, v11, 1, v10")
    A("v_lshlrev_b32 v10, 1, v10")
    A("v_bfe_u32 v11, v7, 1, 1")
    for nt in range(4):
        A(f"v_add_u32 v14, {2*nt}, v11")
        A("v_xor_b32 v14, v14, v10")
        A(f"v_lshl_add_u32 v{16+nt}, v14, 4, v9")
        A(f"v_add_u32 v{20+nt}, 36864, v{16+nt}")
    A(f"s_mul_i32 s40, s{S_WAVE}, 2304")
    A(f"s_add_u32 s40, s40, {WO_B}")
    A("v_mul_u32_u24 v9, 144, v7")
    A("v_lshl_add_u32 v9, v8, 3, v9")
    A("v_add_u32 v9, s40, v9")
    A("v_lshrrev_b32 v10, 3, v1")
    A("v_and_b32 v11, 7, v1")
    A("v_mul_u32_u24 v12, 144, v10")
    A("v_lshl_add_u32 v12, v11, 4, v12")
    A("v_add_u32 v12, s40, v12")
    A("s_mul_i32 s39, s38, 36864")
    A("s_lshl_b32 s41, s33, 7")
    A("s_add_u32 s39, s39, s41")
    A("v_mul_u32_u24 v13, 2304, v10")
    A("v_lshl_add_u32 v13, v11, 4, v13")
    A("v_add_u32 v13, s39, v13")
    A("v_add_u32 v14, 18432, v13")
    stamp(A, sb + 0)
    lab = A.newlabel("a2w")
    A(f"s_cmp_lg_u32 s{S_WAVE}, 0")
    A(f"s_cbranch_scc1 {lab}")
    A("s_lshl_b32 s39, s32, 7")
    A("s_mul_hi_u32 s40, s39, 0x2aaaaab")
    A("s_lshl_b32 s41, s42, 7")
    A("s_add_u32 s39, s39, s41")
    A("s_sub_u32 s39, s39, 1")
    A("s_mul_hi_u32 s41, s39, 0x2aaaaab")
    make_srd(A, 92, P_WS, 65536, WS_FA)
    A("v_lshrrev_b32 v250, 3, v1")
    A("v_add_u32 v250, s40, v250")
    A("v_min_u32 v250, s41, v250")
    A("v_lshlrev_b32 v250, 8, v250")
    A("v_and_b32 v249, 7, v1")
    A("v_lshl_add_u32 v250, v249, 2, v250")
    A("s_mov_b64 exec, 0xffffffff")
    lp = A.newlabel("poll"); done = A.newlabel("polld")
    A("s_mov_b32 s88, 100000")
    A.label(lp)
    A("buffer_load_dword v251, v250, s[92:95], 0 offen sc1")
    A("s_waitcnt vmcnt(0)")
    A(f"v_cmp_ne_u32 vcc, s{S_NA}, v251")
    A("s_nop 4")
    A(f"s_cbranch_vccz {done}")
    A(f"s_sleep {OPT.get('slp', 2)}")
    A("s_sub_u32 s88, s88, 1")
    A("s_cmp_lg_u32 s88, 0")
    A(f"s_cbranch_scc1 {lp}")
    A.label(done)
    A("s_mov_b64 exec, -1")
    A.label(lab)
    A("s_waitcnt vmcnt(0)")
    A("s_barrier")
    stamp(A, sb + 1)
    BF = [24, 136]
    ACC = 96
    AF = [112, 120]
    AF = [112, 208, 224]
    def oloads(base, extra):
        A("s_lshl_b32 s44, s33, 1")
        for j in range(18):
            A("s_lshl_b32 s45, s44, 10")
            if extra: A("s_add_u32 s45, s45, s43")
            A(f"buffer_load_dwordx4 {v(base+4*j,4)}, v2, s[48:51], s45 offen sc1")
            A("s_add_u32 s44, s44, 1")
            A("s_cmp_eq_u32 s44, 18")
            A("s_cselect_b32 s44, 0, s44")
    def reads(ks, base):
        lst = []
        for nt in range(4):
            va = (16 if ks < 9 else 20) + nt
            for h in range(2):
                lst.append(f"ds_read_b64_tr_b16 {v(base+4*nt+2*h,2)}, v{va} offset:{(ks%9)*4096 + h*512}")
        return lst
    def tile(bf, mode, soff):
        for r_ in reads(0, AF[0]): A(r_)
        for r_ in reads(1, AF[1]): A(r_)
        if mode == 1: A("s_lshl_b32 s44, s33, 1")
        for ks in range(18):
            rd = reads(ks + 2, AF[(ks+2) % 3]) if ks < 16 else []
            cnt = {0: 17 - ks, 1: 17, 2: 17 - ks + 2}[mode]
            A(f"s_waitcnt vmcnt({cnt}) lgkmcnt({8 if ks < 17 else 0})")
            i = 0
            for nt in range(4):
                c = "0" if ks == 0 else v(ACC+4*nt, 4)
                A(f"v_mfma_f32_16x16x32_bf16 {v(ACC+4*nt,4)}, {v(AF[ks%3]+4*nt,4)}, {v(bf+4*ks,4)}, {c}")
                for _ in range(2):
                    if i < len(rd): A(rd[i]); i += 1
            if mode == 1:
                A("s_lshl_b32 s45, s44, 10")
                A("s_add_u32 s45, s45, s43")
                A(f"buffer_load_dwordx4 {v(BF[1]+4*ks,4)}, v2, s[48:51], s45 offen sc1")
                A("s_add_u32 s44, s44, 1")
                A("s_cmp_eq_u32 s44, 18")
                A("s_cselect_b32 s44, 0, s44")
        for nt in range(4):
            A(f"v_cvt_pk_bf16_f32 v{128+2*nt}, v{ACC+4*nt}, v{ACC+4*nt+1}")
            A(f"v_cvt_pk_bf16_f32 v{129+2*nt}, v{ACC+4*nt+2}, v{ACC+4*nt+3}")
            A(f"ds_write_b64 v9, {v(128+2*nt,2)} offset:{32*nt}")
        A("s_waitcnt lgkmcnt(0)")
        A("ds_read_b128 v[128:131], v12")
        A("ds_read_b128 v[132:135], v12 offset:1152")
        A("s_waitcnt lgkmcnt(1)")
        A(f"buffer_store_dwordx4 v[128:131], v13, s[52:55], {soff} offen" + (" sc1" if OPT.get("a2sc1") else ""))
        A("s_waitcnt lgkmcnt(0)")
        A(f"buffer_store_dwordx4 v[132:135], v14, s[52:55], {soff} offen" + (" sc1" if OPT.get("a2sc1") else ""))
    oloads(BF[0], False)
    l2 = A.newlabel("a2two"); lend = A.newlabel("a2end")
    A("s_cmp_eq_u32 s42, 2")
    A(f"s_cbranch_scc1 {l2}")
    tile(BF[0], 0, "0")
    A(f"s_branch {lend}")
    A.label(l2)
    A(f"s_mov_b32 s43, {8*18432}")
    tile(BF[0], 1, "0")
    stamp(A, sb + 2)
    A(f"s_mov_b32 s43, {128*2304}")
    tile(BF[1], 2, "s43")
    A.label(lend)
    stamp(A, sb + 3)

def build(path, stamps=False):
    global STAMPS
    STAMPS = stamps
    A = Asm()
    A.raw(f".globl {NAME}\n.p2align 8\n.type {NAME},@function\n{NAME}:")
    A("s_cmp_ge_u32 s2, 256")
    A("s_cbranch_scc1 L_end")
    A("s_load_dwordx16 s[4:19], s[0:1], 0")
    A("s_load_dwordx8 s[20:27], s[0:1], 64")
    A("s_memrealtime s[30:31]")
    if OPT.get("codepf", 1):
        A("s_getpc_b64 s[32:33]")
        A.label("L_pc")
        A("s_lshr_b32 s34, s2, 3")
        A("s_mul_i32 s34, s34, CODE_LPW*128")
        A("v_and_b32 v3, 63, v0")
        A("v_lshlrev_b32 v3, 7, v3")
        A("v_add_u32 v3, s34, v3")
        A("v_cmp_gt_u32 vcc, (L_end-L_pc), v3")
        A("v_cmp_gt_u32 s[36:37], CODE_LPW, v0")
        A("s_and_b64 vcc, vcc, s[36:37]")
        A("s_and_saveexec_b64 s[36:37], vcc")
        labc = A.newlabel("cpf")
        A(f"s_cbranch_execz {labc}")
        A("global_load_dword v247, v3, s[32:33]")
        A.label(labc)
        A("s_mov_b64 exec, s[36:37]")
    A("v_lshrrev_b32 v2, 6, v0")
    A("v_and_b32 v1, 63, v0")
    A(f"v_readfirstlane_b32 s{S_WAVE}, v2")
    A("s_waitcnt lgkmcnt(0)")
    A(f"s_or_b32 s{S_MY}, s30, 1")
    if STAMPS: A("v_mov_b32 v246, -1")
    stamp(A, 0)
    if STAMPS:
        A("s_memtime s[100:101]")
        A("s_waitcnt lgkmcnt(0)")
        A("v_writelane_b32 v246, s100, 16")
    A("s_cmp_ge_u32 s2, 176")
    A("s_cbranch_scc1 L_bset")
    gen_a1(A)
    A("s_cmp_lt_u32 s2, 64")
    A("s_cbranch_scc1 L_a_b2")
    A("s_and_b32 s90, s2, 7")
    A("s_sub_u32 s91, s2, 64")
    A("s_lshr_b32 s91, s91, 3")
    gen_a2(A, 90, 91, 8)
    A("s_branch L_fin")
    A.label("L_a_b2")
    A("s_and_b32 s89, s2, 7")
    A("s_lshr_b32 s91, s2, 3")
    A("s_add_u32 s91, s91, 10")
    grp_of(A, 90, 89, 91, 40)
    get_nonce_issue(A, "B")
    b2_common(A, 90)
    if not OPT.get("hearly", 1):
        b2_h_loads(A, 170, 2)
    A("s_waitcnt vmcnt(0)")
    b2_h_stage(A, 170, 112, 2)
    b2_main(A, 90, 8, resolved=False)
    A("s_branch L_fin")
    A.label("L_bset")
    A("s_sub_u32 s91, s2, 176")
    A("s_and_b32 s40, s91, 7")
    A("s_lshr_b32 s89, s91, 3")
    grp_of(A, 90, 40, 89, 41)
    b_prefetch(A)
    b2_common(A, 90)
    if OPT.get("bwait", 1):
        A("s_waitcnt vmcnt(0)")
        A("s_barrier")
    stamp(A, 1)
    A("s_cmp_ge_u32 s91, 72")
    A("s_cbranch_scc1 L_b_nob1")
    A(f"s_cmp_ge_u32 s{S_WAVE}, 4")
    A("s_cbranch_scc1 L_b_aux")
    gen_b1_kv(A, 91)
    A("s_branch L_b_join")
    A.label("L_b_aux")
    gen_b1_aux(A, 91, True)
    A.label("L_b_join")
    A("s_waitcnt vmcnt(0) lgkmcnt(0)")
    A("s_barrier")
    lab = A.newlabel("b1f")
    A(f"s_cmp_lg_u32 s{S_WAVE}, 0")
    A(f"s_cbranch_scc1 {lab}")
    nonce_resolve(A, "B")
    A("s_lshl_b32 s40, s67, 8")
    A("s_lshl_b32 s41, s66, 2")
    A("s_add_u32 s40, s40, s41")
    flag_store(A, "B", 40)
    A.label(lab)
    A("s_branch L_b_b2")
    A.label("L_b_nob1")
    lab = A.newlabel("bnx")
    A(f"s_cmp_lt_u32 s{S_WAVE}, 4")
    A(f"s_cbranch_scc1 {lab}")
    gen_b1_aux(A, 91, False)
    A.label(lab)
    A("s_waitcnt vmcnt(0)")
    lab = A.newlabel("bz")
    A(f"s_cmp_lg_u32 s{S_WAVE}, 0")
    A(f"s_cbranch_scc1 {lab}")
    nonce_resolve(A, "B")
    A.label(lab)
    A.label("L_b_b2")
    b2_main(A, 90, 5, resolved=True)
    A.label("L_fin")
    stamp_flush(A)
    A.label("L_end")
    A("s_endpgm")
    body = A.finalize()
    lds = 3 * ST1 + 64
    out = HEADER + f"; @launch grid=(256,1,1) block=(512,1,1) lds={lds}\n"
    out += '.amdgcn_target "amdgcn-amd-amdhsa--gfx950"\n.text\n.set CODE_LPW, 16\n' + body
    out += '.section .rodata,"a"\n.p2align 6\n' + kd(NAME, 256)
    open(path, "w").write(out)

if __name__ == "__main__":
    for a in sys.argv[3:]:
        k, x = a.split("="); OPT[k] = int(x)
    build(sys.argv[1], stamps=(len(sys.argv) > 2 and sys.argv[2] == "stamps"))
```

```python
import sys, struct, math
from asmlib import *
from gen_common import HEADER, kd

NAME = "concat_heads__sliding_local_dilated__ssm_conv_h3__prompt_kernel"
SZ_T = 576 * 2048 * 2
WS_UR = 4096
WS_QT = (4 << 20) + 4096
WS_OF = (8 << 20) + 4096
WS_FA = (12 << 20) + 4096
WS_FB = WS_FA + 65536
STAMP_OFF = 16 << 20
BIGOFF = 0x7FFF0000
PL = 141312
PC = 141328

P_X, P_W, P_WO, P_Q, P_K, P_V, P_SH, P_H, P_D, P_OUT, P_DBG, P_WS = 4, 6, 8, 10, 12, 14, 16, 18, 20, 22, 24, 26
S_MY, S_WAVE, S_NA, S_NB = 28, 29, 30, 31
V_NA, V_NB = 252, 254
STAMPS = False
OPT = {}

def make_srd(A, dst, ptr, nbytes, add=0, add_s=None):
    if add_s is not None:
        A(f"s_add_u32 s{dst}, s{ptr}, s{add_s}")
        A(f"s_addc_u32 s{dst+1}, s{ptr+1}, 0")
        if add:
            A(f"s_add_u32 s{dst}, s{dst}, {add}")
            A(f"s_addc_u32 s{dst+1}, s{dst+1}, 0")
        A(f"s_and_b32 s{dst+1}, s{dst+1}, 0xffff")
    elif add:
        A(f"s_add_u32 s{dst}, s{ptr}, {add}")
        A(f"s_addc_u32 s{dst+1}, s{ptr+1}, 0")
        A(f"s_and_b32 s{dst+1}, s{dst+1}, 0xffff")
    else:
        A(f"s_mov_b32 s{dst}, s{ptr}")
        A(f"s_and_b32 s{dst+1}, s{ptr+1}, 0xffff")
    A(f"s_mov_b32 s{dst+2}, {nbytes}")
    A(f"s_mov_b32 s{dst+3}, 0x00020000")

def stamp(A, idx):
    if not STAMPS: return
    if OPT.get("dbgl") and idx >= 5: return
    A("s_memrealtime s[100:101]")
    A("s_waitcnt lgkmcnt(0)")
    A(f"v_writelane_b32 v246, s100, {idx}")

def stamp_flush(A):
    if not STAMPS: return
    A("s_memtime s[100:101]")
    A("s_waitcnt lgkmcnt(0)")
    A("v_writelane_b32 v246, s100, 17")
    A("s_memrealtime s[100:101]")
    A("s_waitcnt lgkmcnt(0)")
    A("v_writelane_b32 v246, s100, 18")
    lab = A.newlabel("stf")
    A(f"s_and_b32 s96, s{S_WAVE}, 3")
    A("s_cmp_lg_u32 s96, 0")
    A(f"s_cbranch_scc1 {lab}")
    A(f"s_lshr_b32 s100, s{S_WAVE}, 2")
    A("s_lshl_b32 s100, s100, 8")
    A("s_add_u32 s100, s100, s2")
    A("s_lshl_b32 s100, s100, 7")
    A(f"s_add_u32 s96, s{P_WS}, {STAMP_OFF}")
    A(f"s_addc_u32 s97, s{P_WS+1}, 0")
    A("s_and_b32 s97, s97, 0xffff")
    A("s_mov_b32 s98, 0x100000")
    A("s_mov_b32 s99, 0x00020000")
    A("v_lshlrev_b32 v250, 2, v1")
    A("v_add_u32 v250, s100, v250")
    A("s_mov_b64 exec, 0xffffffff")
    A("buffer_store_dword v246, v250, s[96:99], 0 offen")
    A("s_mov_b64 exec, -1")
    A.label(lab)

def get_nonce_issue(A, which):
    vn = V_NA if which == "A" else V_NB
    lab = A.newlabel("nz")
    A(f"s_cmp_lg_u32 s{S_WAVE}, 0")
    A(f"s_cbranch_scc1 {lab}")
    make_srd(A, 92, P_DBG, 256)
    A(f"v_mov_b32 v{vn}, s{S_MY}")
    A(f"v_mov_b32 v{vn+1}, 0")
    A(f"v_mov_b32 v251, {0 if which == 'A' else 128}")
    A("s_mov_b64 exec, 1")
    A(f"buffer_atomic_cmpswap v[{vn}:{vn+1}], v251, s[92:95], 0 offen sc0 sc1")
    A("s_mov_b64 exec, -1")
    A.label(lab)

def nonce_resolve(A, which):
    vn = V_NA if which == "A" else V_NB
    sn = S_NA if which == "A" else S_NB
    A(f"v_readfirstlane_b32 s{sn}, v{vn}")
    A(f"s_cmp_eq_u32 s{sn}, 0")
    A(f"s_cselect_b32 s{sn}, s{S_MY}, s{sn}")

def flag_store(A, which, s_off):
    sn = S_NA if which == "A" else S_NB
    make_srd(A, 92, P_WS, 65536, WS_FA if which == "A" else WS_FB)
    A(f"v_mov_b32 v250, s{s_off}")
    A(f"v_mov_b32 v251, s{sn}")
    A("s_mov_b64 exec, 1")
    A("buffer_store_dword v251, v250, s[92:95], 0 offen sc1")
    A("s_mov_b64 exec, -1")

def flag_poll(A, which, s_off0, s_off1=None):
    sn = S_NA if which == "A" else S_NB
    make_srd(A, 92, P_WS, 65536, WS_FA if which == "A" else WS_FB)
    A("v_and_b32 v250, 7, v1")
    A("v_lshlrev_b32 v250, 2, v250")
    if s_off1 is not None:
        A(f"v_mov_b32 v249, s{s_off0}")
        A(f"v_mov_b32 v248, s{s_off1}")
        A("v_cmp_gt_u32 vcc, 8, v1")
        A("v_cndmask_b32 v249, v248, v249, vcc")
        A("v_add_u32 v250, v250, v249")
        A("s_mov_b64 exec, 0xffff")
    else:
        A(f"v_add_u32 v250, s{s_off0}, v250")
        A("s_mov_b64 exec, 0xff")
    lp = A.newlabel("poll"); done = A.newlabel("polld")
    A("s_mov_b32 s88, 100000")
    A.label(lp)
    A("buffer_load_dword v251, v250, s[92:95], 0 offen sc1")
    A("s_waitcnt vmcnt(0)")
    A(f"v_cmp_ne_u32 vcc, s{sn}, v251")
    A("s_nop 4")
    A(f"s_cbranch_vccz {done}")
    A(f"s_sleep {OPT.get('slp', 2)}")
    A("s_sub_u32 s88, s88, 1")
    A("s_cmp_lg_u32 s88, 0")
    A(f"s_cbranch_scc1 {lp}")
    A.label(done)
    A("s_mov_b64 exec, -1")

def lds_poll(A, vaddr, vd, s_tmp, target, s_cnt, pre_read=False):
    lp = A.newlabel("lpl"); chk = A.newlabel("lpc"); done = A.newlabel("lpd")
    A(f"s_mov_b32 s{s_cnt}, 2000000")
    if pre_read: A(f"s_branch {chk}")
    A.label(lp)
    A(f"ds_read_b128 {v(vd,4)}, v{vaddr}")
    A("s_waitcnt lgkmcnt(0)")
    A.label(chk)
    A(f"v_min_u32 v{vd}, v{vd}, v{vd+1}")
    A(f"v_min3_u32 v{vd}, v{vd}, v{vd+2}, v{vd+3}")
    A(f"v_readfirstlane_b32 s{s_tmp}, v{vd}")
    A(f"s_cmp_ge_u32 s{s_tmp}, {target}")
    A(f"s_cbranch_scc1 {done}")
    A(f"s_sub_u32 s{s_cnt}, s{s_cnt}, 1")
    A(f"s_cmp_lg_u32 s{s_cnt}, 0")
    A(f"s_cbranch_scc1 {lp}")
    A.label(done)

def grp_of(A, sd, sx, si, st):
    if OPT.get("gmap", 1):
        A(f"s_lshl_b32 s{sd}, s{sx}, 4")
        A(f"s_add_u32 s{sd}, s{sd}, s{si}")
        A(f"s_lshl_b32 s{st}, s{sx}, 1")
        A(f"s_add_u32 s{st}, s{st}, s{si}")
        A(f"s_add_u32 s{st}, s{st}, 112")
        A(f"s_cmp_lt_u32 s{si}, 16")
        A(f"s_cselect_b32 s{sd}, s{sd}, s{st}")
    else:
        A(f"s_mul_i32 s{sd}, s{sx}, 18")
        A(f"s_add_u32 s{sd}, s{sd}, s{si}")

def a_prefetch_setup(A, vx, vw, t0, s_idx, nshare):
    px = -(-1072 // nshare); pw = -(-576 // nshare)
    A("s_and_b32 s96, s2, 7")
    A("s_lshr_b32 s98, s96, 2")
    A("s_and_b32 s96, s96, 3")
    A("s_mul_i32 s98, s98, 1056")
    A(f"s_mul_i32 s99, s{s_idx}, {px}")
    A("s_add_u32 s98, s98, s99")
    A("s_sub_u32 s98, s98, 16")
    A(f"v_mov_b32 v{t0+1}, 0x{BIGOFF:x}")
    A("s_movk_i32 s99, 1152")
    for e in range(2 if px > 64 else 1):
        A(f"v_add_u32 v{t0}, s98, v1")
        if e: A(f"v_add_u32 v{t0}, 64, v{t0}")
        A(f"v_mul_lo_u32 v{vx+e}, v{t0}, s99")
        A(f"v_cmp_gt_i32 vcc, 0, v{t0}")
        A(f"v_cndmask_b32 v{vx+e}, v{vx+e}, v{t0+1}, vcc")
        lim = min(px - 64*e, 64)
        if lim < 64:
            A(f"v_cmp_le_u32 vcc, {lim}, v1")
            A(f"v_cndmask_b32 v{vx+e}, v{vx+e}, v{t0+1}, vcc")
    A(f"s_mul_i32 s99, s{s_idx}, {pw}")
    A(f"v_add_u32 v{t0}, s99, v1")
    A(f"v_mul_u32_u24 v{t0+2}, 7282, v{t0}")
    A(f"v_lshrrev_b32 v{t0+2}, 16, v{t0+2}")
    A(f"v_mul_u32_u24 v{t0+3}, 9, v{t0+2}")
    A(f"v_sub_u32 v{t0+3}, v{t0}, v{t0+3}")
    A(f"v_mul_u32_u24 v{t0+4}, 21846, v{t0+3}")
    A(f"v_lshrrev_b32 v{t0+4}, 16, v{t0+4}")
    A(f"v_mul_u32_u24 v{vw}, 3456, v{t0+2}")
    A(f"v_mul_u32_u24 v{t0+2}, 1152, v{t0+4}")
    A(f"v_add_u32 v{vw}, v{vw}, v{t0+2}")
    A(f"v_mul_u32_u24 v{t0+4}, 3, v{t0+4}")
    A(f"v_sub_u32 v{t0+3}, v{t0+3}, v{t0+4}")
    A(f"v_lshl_add_u32 v{vw}, v{t0+3}, 7, v{vw}")
    A("s_lshl_b32 s96, s96, 8")
    A(f"v_add_u32 v{vw}, s96, v{vw}")
    A(f"v_cmp_le_u32 vcc, {pw}, v1")
    A(f"v_cndmask_b32 v{vw}, v{vw}, v{t0+1}, vcc")
    A(f"v_cmp_le_u32 vcc, 576, v{t0}")
    A(f"v_cndmask_b32 v{vw}, v{vw}, v{t0+1}, vcc")

def a_prefetch_issue(A, vx, vw, s_kc, srd_x, srd_w, vd, two=False):
    A(f"s_lshl_b32 s96, s{s_kc}, 7")
    A(f"s_mul_i32 s97, s{s_kc}, 221184")
    A(f"buffer_load_dword v{vd}, v{vw}, s[{srd_w}:{srd_w+3}], s97 offen")
    A(f"buffer_load_dword v{vd+1}, v{vx}, s[{srd_x}:{srd_x+3}], s96 offen")
    if two:
        A(f"buffer_load_dword v{vd+2}, v{vx+1}, s[{srd_x}:{srd_x+3}], s96 offen")

XS = 14 * 1024
W1 = 32 * 1024
ST1 = XS + W1
HHS = 112 * 48
OB = 13 * HHS
V_KQ, V_VT, V_OW, V_NINF, V_OG, V_OL = 220, 221, 222, 225, 226, 228

def attn_setup(A, t0=4):
    a, b, c, d = t0, t0+1, t0+2, t0+3
    A(f"s_and_b32 s56, s{S_WAVE}, 3")
    A(f"s_lshr_b32 s57, s{S_WAVE}, 2")
    A("s_mul_i32 s57, s57, 3")
    A(f"v_lshlrev_b32 v{a}, 2, v3")
    A(f"v_sub_u32 v{a}, v2, v{a}")
    for tl in range(2):
        for r in range(4):
            dd = (16 if tl == 0 else 0) - r
            A(f"v_add_u32 v{b}, {dd}, v{a}" if dd >= 0 else f"v_subrev_u32 v{b}, {-dd}, v{a}")
            A(f"v_and_b32 v{b}, 0xfffffff1, v{b}")
            A(f"v_cmp_eq_u32 s[{64+2*(4*tl+r)}:{65+2*(4*tl+r)}], 0, v{b}")
    A("v_cmp_gt_u32 s[80:81], 2, v3")
    A("v_cmp_gt_u32 s[82:83], 3, v3")
    A("s_or_b32 s58, s32, s57")
    for r in range(4):
        A(f"s_cmp_eq_u32 s58, 0")
        A(f"s_cselect_b64 s[{84+2*r}:{85+2*r}], 0, s[{64+2*r}:{65+2*r}]")
    A(f"v_min_u32 v{b}, 2, v3")
    A(f"v_mul_u32_u24 v{c}, 48, v2")
    A(f"v_lshl_add_u32 v{c}, v{b}, 4, v{c}")
    A(f"s_mul_i32 s58, s56, {HHS}")
    A("s_mul_i32 s59, s57, 768")
    A("s_add_u32 s58, s58, s59")
    A(f"v_add_u32 v{V_KQ}, s58, v{c}")
    A(f"v_lshrrev_b32 v{b}, 2, v2")
    A(f"v_lshl_add_u32 v{b}, v3, 2, v{b}")
    A(f"v_mul_u32_u24 v{b}, 48, v{b}")
    A(f"v_and_b32 v{c}, 3, v2")
    A(f"v_lshl_add_u32 v{b}, v{c}, 3, v{b}")
    A(f"v_add_u32 v{V_VT}, s58, v{b}")
    A(f"v_mul_u32_u24 v{b}, 144, v2")
    A(f"v_lshl_add_u32 v{b}, v3, 3, v{b}")
    A("s_mul_i32 s58, s56, 36")
    A("s_mul_i32 s59, s57, 2304")
    A("s_add_u32 s58, s58, s59")
    A(f"s_add_u32 s58, s58, {OB}")
    A(f"v_add_u32 v{V_OW}, s58, v{b}")
    A(f"v_add_u32 v{V_OW+1}, 2304, v{V_OW}")
    A(f"v_add_u32 v{V_OW+2}, 4608, v{V_OW}")
    A(f"v_mov_b32 v{V_NINF}, 0xff800000")
    A("s_mul_i32 s58, s32, 110592")
    A("s_mul_i32 s59, s33, 2304")
    A("s_add_u32 s58, s58, s59")
    for rnd in range(2):
        A(f"v_add_u32 v{a}, {512*rnd}, v0")
        A(f"v_and_b32 v{b}, 15, v{a}")
        A(f"v_lshrrev_b32 v{c}, 4, v{a}")
        A(f"v_mul_u32_u24 v{d}, 7282, v{c}")
        A(f"v_lshrrev_b32 v{d}, 16, v{d}")
        A(f"v_mul_u32_u24 v{d+1}, 9, v{d}")
        A(f"v_sub_u32 v{c}, v{c}, v{d+1}")
        A(f"v_lshl_add_u32 v{d+1}, v{d}, 4, v{b}")
        A(f"v_mul_u32_u24 v{d+1}, 144, v{d+1}")
        A(f"v_lshl_add_u32 v{d+1}, v{c}, 4, v{d+1}")
        A(f"v_add_u32 v{V_OL+rnd}, {OB}, v{d+1}")
        A(f"v_mul_u32_u24 v{d}, 18432, v{d}")
        A(f"v_lshl_add_u32 v{d}, v{c}, 8, v{d}")
        A(f"v_lshl_add_u32 v{d}, v{b}, 4, v{d}")
        A(f"v_add_u32 v{V_OG+rnd}, s58, v{d}")
        if rnd == 1:
            A(f"v_mov_b32 v{b}, 0x{BIGOFF:x}")
            A(f"v_cmp_gt_u32 vcc, 864, v{a}")
            A(f"v_cndmask_b32 v{V_OG+rnd}, v{b}, v{V_OG+rnd}, vcc")

def gen_a1(A):
    n = "a1"
    A("s_and_b32 s36, s2, 7")
    A("s_lshr_b32 s37, s2, 3")
    A("s_lshr_b32 s38, s36, 2")
    A("s_and_b32 s39, s36, 3")
    A("s_mul_i32 s32, s38, 11")
    A("s_lshr_b32 s40, s37, 1")
    A("s_add_u32 s32, s32, s40")
    A("s_and_b32 s40, s37, 1")
    A("s_lshl_b32 s33, s39, 1")
    A("s_add_u32 s33, s33, s40")
    A("s_mul_i32 s34, s32, 96")
    make_srd(A, 44, P_X, SZ_T)
    make_srd(A, 48, P_W, 576 * 3456)
    if OPT.get("r1", 1):
        labr = A.newlabel("r1")
        A(f"s_cmp_ge_u32 s{S_WAVE}, 5")
        A(f"s_cbranch_scc1 {labr}")
        a_prefetch_setup(A, 232, 233, 4, 37, 32)
        a_prefetch_issue(A, 232, 233, S_WAVE, 44, 48, 240)
        A.label(labr)
    A(f"s_cmp_ge_u32 s{S_WAVE}, 4")
    A(f"s_cbranch_scc1 {n}_loader")
    a_prefetch_setup(A, 230, 231, 4, 37, 22)
    if OPT.get("tlba"):
        labt = A.newlabel("tlba")
        A(f"s_cmp_lg_u32 s{S_WAVE}, 3")
        A(f"s_cbranch_scc1 {labt}")
        tlb_warm(A)
        A.label(labt)
    get_nonce_issue(A, "A")
    A("v_and_b32 v2, 15, v1")
    A("v_lshrrev_b32 v3, 4, v1")
    attn_setup(A)
    A("v_lshrrev_b32 v6, 2, v2")
    A("v_lshl_add_u32 v7, v3, 3, v6")
    A("v_lshlrev_b32 v7, 9, v7")
    A("v_and_b32 v8, 3, v2")
    A("v_lshl_add_u32 v7, v8, 3, v7")
    A(f"v_add_u32 v7, {XS}, v7")
    A("v_and_b32 v8, 1, v3")
    A("v_lshl_add_u32 v8, v8, 2, v6")
    A("v_lshrrev_b32 v9, 1, v2")
    A("v_xor_b32 v9, v9, v3")
    A("v_lshlrev_b32 v9, 4, v9")
    XA = 14
    A(f"v_lshl_add_u32 v{XA}, v2, 7, v9")
    A(f"v_xor_b32 v{XA+1}, 64, v{XA}")
    for w in range(3):
        A(f"s_cmp_eq_u32 s{S_WAVE}, {w}")
        A(f"s_cbranch_scc1 {n}_c{w}")
    for w in [3, 0, 1, 2]:
        A.label(f"{n}_c{w}")
        if w < 3:
            nts = [3*w, 3*w+1, 3*w+2]
            units = [(t, st) for t in nts for st in range(7)] + [(13, 2*w+1), (13, 2*w+2)]
            ants = nts + [13]
            sts = list(range(7))
        else:
            nts = [9, 10, 11, 12]
            units = [(t, st) for t in nts for st in range(1, 7)]
            ants = nts
            sts = list(range(1, 7))
        WA = 10
        for ai, t in enumerate(ants):
            A(f"v_xor_b32 v9, {t}, v8")
            A(f"v_lshl_add_u32 v{WA+ai}, v9, 5, v7")
        A("v_mul_u32_u24 v4, 48, v2")
        for ai, t in enumerate(ants):
            for p in range(2):
                va = 212 + 2*ai + p
                A("v_lshlrev_b32 v5, 2, v3")
                A(f"v_add_u32 v5, {16*t + 2*p}, v5")
                A("v_mul_u32_u24 v6, 3641, v5")
                A("v_lshrrev_b32 v6, 16, v6")
                A("v_mul_u32_u24 v6, 5340, v6")
                A(f"v_lshl_add_u32 v{va}, v5, 1, v6")
                A(f"v_add_u32 v{va}, v{va}, v4")
        ACC = 28
        acc = {u: ACC + 4*i for i, u in enumerate(units)}
        FR = [124, 168]
        def reads(ks, base):
            lst = []
            for ai, t in enumerate(ants):
                for h in range(2):
                    lst.append(f"ds_read_b64_tr_b16 {v(base+4*ai+2*h,2)}, v{WA+ai} offset:{ks*16384 + h*2048}")
            for bi, st in enumerate(sts):
                lst.append(f"ds_read_b128 {v(base+16+4*bi,4)}, v{XA+ks} offset:{st*2048}")
            return lst
        def mfmas(base, first):
            lst = []
            for (t, st) in units:
                ai = ants.index(t); bi = sts.index(st)
                c = "0" if first else v(acc[(t, st)], 4)
                lst.append(f"v_mfma_f32_16x16x32_bf16 {v(acc[(t,st)],4)}, {v(base+4*ai,4)}, {v(base+16+4*bi,4)}, {c}")
            return lst
        def interleave(mf, rd):
            i = 0
            for m in mf:
                A(m)
                if i < len(rd): A(rd[i]); i += 1
            while i < len(rd): A(rd[i]); i += 1
        for u in units:
            for r in range(0, 4, 2): A(f"v_mov_b64 {v(acc[u]+r,2)}, 0")
        A("s_mov_b32 s60, 0")
        A("s_mov_b32 s61, 0")
        A(f"s_mov_b32 s52, {ST1}")
        A(f"s_mov_b32 s53, {(-2*ST1) & 0xffffffff}")
        LF = OPT.get("lf", 0)
        if LF:
            A(f"v_mov_b32 v235, {PL}")
            A(f"v_mov_b32 v234, {PC + 4*w}")
            if w == 0:
                A("v_mov_b64 v[236:237], 0"); A("v_mov_b64 v[238:239], 0")
                A("ds_write_b128 v235, v[236:239]")
                A("ds_write_b128 v235, v[236:239] offset:16")
                A("s_waitcnt lgkmcnt(0)")
            A("s_barrier")
            lds_poll(A, 235, 236, 63, "1", 55)
        else:
            if OPT.get("r1", 1):
                A("s_waitcnt vmcnt(0)")
                A("s_barrier")
            A("s_barrier")
        stamp(A, 1)
        for r_ in reads(0, FR[0]): A(r_)
        A("s_waitcnt lgkmcnt(0)")
        A(f"s_branch {n}_q{w}")
        A.label(f"{n}_l{w}")
        if LF:
            A("s_add_u32 s54, s60, 1")
            lds_poll(A, 235, 236, 63, "s54", 55, pre_read=True)
        else:
            A("s_barrier")
        interleave(mfmas(FR[1], False), reads(0, FR[0]))
        A("s_waitcnt lgkmcnt(0)")
        A.label(f"{n}_q{w}")
        labp = A.newlabel("lpf")
        A(f"s_cmp_lg_u32 s60, {w}")
        A(f"s_cbranch_scc1 {labp}")
        A(f"s_add_u32 s63, s60, {OPT.get('af', 7)}")
        A("s_cmp_gt_u32 s63, 8")
        A(f"s_cbranch_scc1 {labp}")
        a_prefetch_issue(A, 230, 231, 63, 44, 48, 240)
        A.label(labp)
        if w == 3 and OPT.get("hpf", 1):
            labh = A.newlabel("hpf")
            A("s_cmp_lg_u32 s60, 3")
            A(f"s_cbranch_scc1 {labh}")
            A("s_cmp_ge_u32 s2, 64")
            A(f"s_cbranch_scc1 {labh}")
            A("s_and_b32 s98, s2, 7")
            A("s_lshr_b32 s97, s2, 3")
            A("s_add_u32 s97, s97, 10")
            grp_of(A, 96, 98, 97, 99)
            A("s_lshl_b32 s96, s96, 14")
            A(f"s_add_u32 s92, s{P_H}, s96")
            A(f"s_addc_u32 s93, s{P_H+1}, 0")
            A("s_and_b32 s93, s93, 0xffff")
            A("s_mov_b32 s94, 16384")
            A("s_mov_b32 s95, 0x00020000")
            A("v_lshlrev_b32 v232, 7, v1")
            A("buffer_load_dword v242, v232, s[92:95], 0 offen")
            A("v_add_u32 v232, 8192, v232")
            A("buffer_load_dword v243, v232, s[92:95], 0 offen")
            A.label(labh)
        A("s_add_u32 s61, s61, 1")
        A("s_cmp_eq_u32 s61, 3")
        A("s_cselect_b32 s62, s53, s52")
        A("s_cselect_b32 s61, 0, s61")
        if LF:
            mf = mfmas(FR[0], False); rd = reads(1, FR[1])
            i = 0
            for idx, m in enumerate(mf):
                A(m)
                if i < len(rd): A(rd[i]); i += 1
                if idx == len(mf) - 5:
                    A("s_add_u32 s54, s60, 1")
                    A("v_mov_b32 v242, s54") if False else None
                    A("s_waitcnt lgkmcnt(0)")
                    A("v_mov_b32 v233, s54")
                    A("ds_write_b32 v234, v233")
                    A("ds_read_b128 v[236:239], v235")
            for r in range(6): A(f"v_add_u32 v{10+r}, s62, v{10+r}")
            A("s_add_u32 s60, s60, 1")
            A("s_cmp_lt_u32 s60, 9")
            A("s_waitcnt lgkmcnt(0)")
            A(f"s_cbranch_scc1 {n}_l{w}")
        else:
            interleave(mfmas(FR[0], False), reads(1, FR[1]))
            for r in range(6): A(f"v_add_u32 v{10+r}, s62, v{10+r}")
            A("s_add_u32 s60, s60, 1")
            A("s_cmp_lt_u32 s60, 9")
            A("s_waitcnt lgkmcnt(0)")
            A(f"s_cbranch_scc1 {n}_l{w}")
        A("s_barrier")
        last = mfmas(FR[1], False)
        pend = []
        k = 0
        def flush_one(u):
            nonlocal k
            (t, st) = u
            ai = ants.index(t); a0 = acc[(t, st)]
            tmp = 124 + 2*(k % 8); k += 1
            A(f"v_cvt_pk_bf16_f32 v{tmp}, v{a0}, v{a0+1}")
            A(f"v_cvt_pk_bf16_f32 v{tmp+1}, v{a0+2}, v{a0+3}")
            A(f"ds_write_b32 v{212+2*ai}, v{tmp} offset:{768*st}")
            A(f"ds_write_b32 v{212+2*ai+1}, v{tmp+1} offset:{768*st}")
        for m, u in zip(last, units):
            A(m)
            pend.append(u)
            if len(pend) > 3: flush_one(pend.pop(0))
        for u in pend: flush_one(u)
        stamp(A, 4)
        A(f"s_branch {n}_attn")
    A.label(f"{n}_loader")
    if OPT.get("prio"): A(f"s_setprio {OPT['prio']}")
    A(f"s_sub_u32 s35, s{S_WAVE}, 4")
    A("v_lshrrev_b32 v2, 3, v1")
    A("v_and_b32 v3, 7, v1")
    A("v_lshrrev_b32 v4, 4, v1")
    A("v_mul_u32_u24 v5, 1152, v2")
    A("v_xor_b32 v6, v3, v4")
    A("v_lshl_add_u32 v10, v6, 4, v5")
    A("v_xor_b32 v11, 64, v10")
    A("s_lshl_b32 s36, s35, 2")
    A("s_cmp_eq_u32 s35, 3")
    A("s_cselect_b32 s36, 11, s36")
    A("s_cselect_b64 s[54:55], -1, 0")
    A("v_cndmask_b32 v16, v10, v11, s[54:55]")
    A("v_cndmask_b32 v17, v11, v10, s[54:55]")
    A("s_sub_u32 s37, s34, 16")
    A("s_mul_i32 s37, s37, 1152")
    A("s_mul_i32 s38, s36, 9216")
    A("s_add_u32 s37, s37, s38")
    A("s_lshl_b32 s38, s36, 10")
    WV = 12
    A("v_lshrrev_b32 v2, 5, v1")
    A("v_and_b32 v3, 31, v1")
    A("v_mul_u32_u24 v4, 3456, v2")
    A("s_mul_i32 s40, s33, 144")
    A("v_add_u32 v4, s40, v4")
    A(f"v_mov_b32 v9, 0x{BIGOFF:x}")
    for var in range(4):
        j1, j4 = var & 1, var >> 1
        A(f"v_add_u32 v5, {2*j1+4*j4}, v2")
        A("v_lshlrev_b32 v5, 1, v5")
        A("v_xor_b32 v5, v5, v3")
        A("v_mov_b32 v6, 1152")
        A("v_mov_b32 v7, 2160")
        A("v_cmp_le_u32 vcc, 9, v5")
        A("v_cndmask_b32 v6, v6, v7, vcc")
        A("v_mov_b32 v7, -288")
        A("v_cmp_le_u32 vcc, 18, v5")
        A("v_cndmask_b32 v6, v6, v7, vcc")
        A("v_lshl_add_u32 v6, v5, 4, v6")
        A(f"v_add_u32 v{WV+var}, v4, v6")
        A("v_cmp_le_u32 vcc, 27, v5")
        A(f"v_cndmask_b32 v{WV+var}, v{WV+var}, v9, vcc")
    A("s_mul_i32 s40, s35, 55296")
    A("s_lshl_b32 s41, s35, 13")
    A(f"s_add_u32 s41, s41, {XS}")
    def issue_block():
        A(f"s_mul_i32 s62, s61, {ST1}")
        A("s_add_u32 s63, s38, s62")
        A("s_add_u32 s62, s41, s62")
        for j in range(4):
            lab = None
            if j == 3:
                lab = A.newlabel(f"{n}_sk")
                A("s_cmp_ge_u32 s35, 2")
                A(f"s_cbranch_scc1 {lab}")
            A(f"s_add_u32 m0, s63, {1024*j}")
            A(f"s_add_u32 s52, s37, {9216*j}")
            if j < 2:
                A("s_cmp_lt_i32 s52, 0")
                A(f"s_cselect_b32 s52, 0x{BIGOFF:x}, s52")
            A(f"buffer_load_dwordx4 v{16+(j&1)}, s[44:47], s52 offen lds")
            if lab: A.label(lab)
        for j in range(8):
            var = (j & 1) + 2 * (j >> 2)
            A(f"s_add_u32 m0, s62, {1024*j}")
            A(f"s_add_u32 s52, s40, {6912*j}")
            A(f"buffer_load_dwordx4 v{WV+var}, s[48:51], s52 offen lds")
        A("s_add_u32 s37, s37, 128")
        A("s_add_u32 s40, s40, 221184")
        A("s_add_u32 s61, s61, 1")
        A("s_cmp_eq_u32 s61, 3")
        A("s_cselect_b32 s61, 0, s61")
    if OPT.get("lf", 0):
        A("s_mov_b32 s61, 0")
        issue_block()
        stamp(A, 1)
        A("v_and_b32 v2, 15, v1")
        A("v_lshrrev_b32 v3, 4, v1")
        attn_setup(A)
        A(f"v_mov_b32 v24, {PC}")
        A("s_lshl_b32 s53, s35, 2")
        A(f"s_add_u32 s53, s53, {PL}")
        A("v_mov_b32 v25, s53")
        A("s_barrier")
        A("s_waitcnt vmcnt(0)")
        A("v_mov_b32 v26, 1")
        A("ds_write_b32 v25, v26")
        stamp(A, 2)
        A("s_mov_b32 s60, 1")
        A.label(f"{n}_ll")
        labn = A.newlabel("nw")
        A("s_cmp_lt_u32 s60, 3")
        A(f"s_cbranch_scc1 {labn}")
        A("s_sub_u32 s54, s60, 2")
        lds_poll(A, 24, 28, 53, "s54", 55)
        A.label(labn)
        issue_block()
        if STAMPS and OPT.get("dbgl"):
            A("s_memrealtime s[100:101]")
            A("s_waitcnt lgkmcnt(0)")
            A("s_add_u32 s99, s60, 5")
            A("s_mov_b32 m0, s99")
            A("s_nop 4")
            A("v_writelane_b32 v246, s100, m0")
        A("s_waitcnt vmcnt(11)")
        A("v_mov_b32 v26, s60")
        A("ds_write_b32 v25, v26")
        A("s_add_u32 s60, s60, 1")
        A("s_cmp_lt_u32 s60, 9")
        A(f"s_cbranch_scc1 {n}_ll")
        A("s_waitcnt vmcnt(0)")
        A("v_mov_b32 v26, 9")
        A("ds_write_b32 v25, v26")
        A("s_waitcnt lgkmcnt(0)")
    else:
        A("s_mov_b32 s61, 0")
        if OPT.get("r1", 1):
            A("v_and_b32 v2, 15, v1")
            A("v_lshrrev_b32 v3, 4, v1")
            attn_setup(A)
            A("s_waitcnt vmcnt(0)")
            A("s_barrier")
            stamp(A, 1)
            A("s_mov_b32 s60, 0")
            A.label(f"{n}_lp")
            issue_block()
            A("s_add_u32 s60, s60, 1")
            A("s_cmp_lt_u32 s60, 2")
            A(f"s_cbranch_scc1 {n}_lp")
            A("s_waitcnt vmcnt(11)")
            stamp(A, 2)
            A("s_barrier")
            issue_block()
        else:
            issue_block()
            stamp(A, 1)
            A("v_and_b32 v2, 15, v1")
            A("v_lshrrev_b32 v3, 4, v1")
            attn_setup(A)
            A("s_waitcnt vmcnt(0)")
            stamp(A, 2)
            A("s_barrier")
            A("s_mov_b32 s60, 0")
            A.label(f"{n}_lp")
            issue_block()
            A("s_add_u32 s60, s60, 1")
            A("s_cmp_lt_u32 s60, 2")
            A(f"s_cbranch_scc1 {n}_lp")
        stamp(A, 3)
        A("s_mov_b32 s60, 0")
        A.label(f"{n}_ll")
        A("s_waitcnt vmcnt(11)")
        A("s_barrier")
        issue_block()
        A("s_add_u32 s60, s60, 1")
        A("s_cmp_lt_u32 s60, 6")
        A(f"s_cbranch_scc1 {n}_ll")
        A("s_waitcnt vmcnt(11)")
        A("s_barrier")
        A("s_waitcnt vmcnt(0)")
        A("s_barrier")
    A("s_barrier")
    A.label(f"{n}_attn")
    if OPT.get("prio"): A("s_setprio 0")
    A("s_waitcnt lgkmcnt(0)")
    A("s_barrier")
    stamp(A, 5)
    if OPT.get("hearly", 1):
        labh = A.newlabel("hea")
        A("s_cmp_ge_u32 s2, 64")
        A(f"s_cbranch_scc1 {labh}")
        A("s_and_b32 s38, s2, 7")
        A("s_lshr_b32 s37, s2, 3")
        A("s_add_u32 s37, s37, 10")
        grp_of(A, 36, 38, 37, 39)
        A(f"s_and_b32 s37, s{S_WAVE}, 3")
        A("s_lshl_b32 s36, s36, 2")
        A("s_add_u32 s36, s36, s37")
        A("s_lshl_b32 s36, s36, 12")
        make_srd(A, 48, P_H, 4096, add_s=36)
        HL = 170; a = HL + 26
        A(f"v_lshlrev_b32 v{a}, 4, v1")
        A(f"s_lshr_b32 s37, s{S_WAVE}, 2")
        A("s_lshl_b32 s37, s37, 11")
        A(f"v_add_u32 v{a}, s37, v{a}")
        A(f"v_add_u32 v{a+1}, 4, v{a}")
        A(f"v_add_u32 v{a+2}, 8, v{a}")
        for it in range(2):
            A(f"buffer_load_dwordx4 {v(HL+12*it,4)}, v{a}, s[48:51], 0 offen offset:{1024*it}")
            A(f"buffer_load_dwordx4 {v(HL+12*it+4,4)}, v{a+1}, s[48:51], 0 offen offset:{1024*it}")
            A(f"buffer_load_dwordx4 {v(HL+12*it+8,4)}, v{a+2}, s[48:51], 0 offen offset:{1024*it}")
        A(f"v_mov_b32 v{a+3}, 0")
        A(f"buffer_load_dwordx2 {v(HL+24,2)}, v{a+3}, s[48:51], 0 offen")
        A.label(labh)
    cst = struct.unpack("<I", struct.pack("<f", (18 ** -0.5) * math.log2(math.e)))[0]
    A(f"s_mov_b32 s42, 0x{cst:08x}")
    B = 24
    def regs(b): return B + 40 * b
    for b in range(3):
        R = regs(b)
        A(f"ds_read_b128 {v(R,4)}, v{V_KQ} offset:{8*HHS + 768*(b+1)}")
        A(f"ds_read_b128 {v(R+4,4)}, v{V_KQ} offset:{768*b}")
        A(f"ds_read_b128 {v(R+8,4)}, v{V_KQ} offset:{768*(b+1)}")
    for b in range(3):
        R = regs(b)
        A(f"ds_read_b64_tr_b16 {v(R+12,2)}, v{V_VT} offset:{4*HHS + 768*b}")
        A(f"ds_read_b64_tr_b16 {v(R+14,2)}, v{V_VT} offset:{4*HHS + 768*(b+1)}")
        A(f"ds_read_b64_tr_b16 {v(R+16,2)}, v{V_VT} offset:{4*HHS + 768*b + 32}")
        A(f"ds_read_b64_tr_b16 {v(R+18,2)}, v{V_VT} offset:{4*HHS + 768*(b+1) + 32}")
    for b in range(3):
        R = regs(b)
        A(f"s_waitcnt lgkmcnt({12 + 3*(2-b)})" if 12 + 3*(2-b) <= 15 else "s_waitcnt lgkmcnt(15)")
        A(f"v_cndmask_b32 v{R}, 0, v{R}, s[82:83]")
        for r in range(1, 4):
            A(f"v_cndmask_b32 v{R+r}, 0, v{R+r}, s[80:81]")
        A(f"v_mfma_f32_16x16x32_bf16 {v(R+20,4)}, {v(R+4,4)}, {v(R,4)}, 0")
        A(f"v_mfma_f32_16x16x32_bf16 {v(R+24,4)}, {v(R+8,4)}, {v(R,4)}, 0")
    for b in range(3):
        R = regs(b); S = R + 20
        for e in range(8):
            m = (84 + 2*e) if (b == 0 and e < 4) else (64 + 2*e)
            A(f"v_cndmask_b32 v{S+e}, v{V_NINF}, v{S+e}, s[{m}:{m+1}]")
        M = R + 28
        A(f"v_max3_f32 v{M}, v{S}, v{S+1}, v{S+2}")
        A(f"v_max3_f32 v{M}, v{M}, v{S+3}, v{S+4}")
        A(f"v_max3_f32 v{M}, v{M}, v{S+5}, v{S+6}")
        A(f"v_max_f32 v{M}, v{M}, v{S+7}")
    def xlane(op, b_regs):
        for kind in ("16", "32"):
            for (M, T) in b_regs: A(f"v_mov_b32 v{T}, v{M}")
            for (M, T) in b_regs: A(f"v_permlane{kind}_swap_b32 v{M}, v{T}")
            for (M, T) in b_regs: A(f"{op} v{M}, v{M}, v{T}")
    xlane("v_max_f32", [(regs(b)+28, regs(b)+29) for b in range(3)])
    for b in range(3):
        R = regs(b); M = R + 28
        A(f"v_mul_f32 v{M}, s42, v{M}")
    for b in range(3):
        R = regs(b); S = R + 20; M = R + 28
        for e in range(8): A(f"v_fma_f32 v{S+e}, v{S+e}, s42, -v{M}")
        for e in range(8): A(f"v_exp_f32 v{S+e}, v{S+e}")
    for b in range(3):
        R = regs(b); S = R + 20; M = R + 30
        A(f"v_add_f32 v{M}, v{S}, v{S+1}")
        A(f"v_add_f32 v{M+1}, v{S+2}, v{S+3}")
        A(f"v_add_f32 v{M}, v{M}, v{S+4}")
        A(f"v_add_f32 v{M+1}, v{M+1}, v{S+5}")
        A(f"v_add_f32 v{M}, v{M}, v{S+6}")
        A(f"v_add_f32 v{M+1}, v{M+1}, v{S+7}")
        A(f"v_add_f32 v{M}, v{M}, v{M+1}")
    xlane("v_add_f32", [(regs(b)+30, regs(b)+31) for b in range(3)])
    for b in range(3):
        A(f"v_rcp_f32 v{regs(b)+30}, v{regs(b)+30}")
    A("s_waitcnt lgkmcnt(0)")
    for b in range(3):
        R = regs(b); S = R + 20; M = R + 30
        for e in range(8): A(f"v_mul_f32 v{S+e}, v{S+e}, v{M}")
        for q in range(4): A(f"v_cvt_pk_bf16_f32 v{R+q}, v{S+2*q}, v{S+2*q+1}")
        A(f"v_mfma_f32_16x16x32_bf16 {v(R+32,4)}, {v(R+12,4)}, {v(R,4)}, 0")
        A(f"v_mfma_f32_16x16x32_bf16 {v(R+36,4)}, {v(R+16,4)}, {v(R,4)}, 0")
    for b in range(3):
        R = regs(b)
        A(f"v_cvt_pk_bf16_f32 v{R+4}, v{R+32}, v{R+33}")
        A(f"v_cvt_pk_bf16_f32 v{R+5}, v{R+34}, v{R+35}")
        A(f"v_cvt_pk_bf16_f32 v{R+6}, v{R+36}, v{R+37}")
        A(f"ds_write2_b32 v{V_OW+b}, v{R+4}, v{R+5} offset0:0 offset1:1")
    A("s_mov_b64 exec, 0xffff")
    for b in range(3):
        A(f"ds_write_b32 v{V_OW+b}, v{regs(b)+6} offset:32")
    A("s_mov_b64 exec, -1")
    make_srd(A, 44, P_WS, SZ_T, WS_OF)
    A("s_waitcnt lgkmcnt(0)")
    A("s_barrier")
    stamp(A, 6)
    for rnd in range(2):
        A(f"ds_read_b128 {v(20+4*rnd,4)}, v{V_OL+rnd}")
    for rnd in range(2):
        A(f"s_waitcnt lgkmcnt({1-rnd})")
        A(f"buffer_store_dwordx4 {v(20+4*rnd,4)}, v{V_OG+rnd}, s[44:47], 0 offen sc1")
    A("s_waitcnt vmcnt(0)")
    A("s_barrier")
    lab = A.newlabel("a1f")
    A(f"s_cmp_lg_u32 s{S_WAVE}, 0")
    A(f"s_cbranch_scc1 {lab}")
    nonce_resolve(A, "A")
    A("s_lshl_b32 s36, s32, 8")
    A("s_lshl_b32 s37, s33, 2")
    A("s_add_u32 s36, s36, s37")
    flag_store(A, "A", 36)
    A.label(lab)
    stamp(A, 7)

HC = 4160
URB = 4 * HC
WB = URB + 4608
XCH = 4 * WB
ZS = 4160

def b2_common(A, s_grp):
    A(f"s_and_b32 s32, s{S_WAVE}, 3")
    A(f"s_lshr_b32 s33, s{S_WAVE}, 2")
    A(f"s_lshl_b32 s34, s{s_grp}, 2")
    A("s_add_u32 s34, s34, s32")
    A("s_lshl_b32 s35, s34, 12")
    A(f"s_mul_i32 s36, s32, {WB}")
    make_srd(A, 44, P_H, 4096, add_s=35)
    A("s_lshl_b32 s37, s34, 1")
    A("s_and_b32 s38, s37, 0xfffffffc")
    A(f"s_load_dword s39, s[{P_D}:{P_D+1}], s38")

def b2_h_loads(A, HL, nits=2):
    a = HL + 12 * nits + 2
    A(f"v_lshlrev_b32 v{a}, 4, v1")
    if nits == 2:
        A("s_lshl_b32 s40, s33, 11")
        A(f"v_add_u32 v{a}, s40, v{a}")
    A(f"v_add_u32 v{a+1}, 4, v{a}")
    A(f"v_add_u32 v{a+2}, 8, v{a}")
    for it in range(nits):
        A(f"buffer_load_dwordx4 {v(HL+12*it,4)}, v{a}, s[44:47], 0 offen offset:{1024*it}")
        A(f"buffer_load_dwordx4 {v(HL+12*it+4,4)}, v{a+1}, s[44:47], 0 offen offset:{1024*it}")
        A(f"buffer_load_dwordx4 {v(HL+12*it+8,4)}, v{a+2}, s[44:47], 0 offen offset:{1024*it}")
    A(f"v_mov_b32 v{a+3}, 0")
    A(f"buffer_load_dwordx2 {v(HL+12*nits,2)}, v{a+3}, s[44:47], 0 offen")

def b2_h_stage(A, HL, T, nits=2):
    a = HL + 12 * nits + 2
    A(f"v_add_u32 v{a+1}, s36, v{a}")
    for it in range(nits):
        b = HL + 12 * it
        for i in range(4): A(f"v_alignbit_b32 v{T+i}, v{b+4+i}, v{b+i}, 16")
        for i in range(4): A(f"v_alignbit_b32 v{T+4+i}, v{b+8+i}, v{b+4+i}, 16")
        off = 32 + 1024 * it
        A(f"ds_write_b128 v{a+1}, {v(b,4)} offset:{off}")
        A(f"ds_write_b128 v{a+1}, {v(T,4)} offset:{off+HC}")
        A(f"ds_write_b128 v{a+1}, {v(b+4,4)} offset:{off+2*HC}")
        A(f"ds_write_b128 v{a+1}, {v(T+4,4)} offset:{off+3*HC}")
    d0, d1 = HL + 12*nits, HL + 12*nits + 1
    A(f"v_lshlrev_b32 v{T+8}, 16, v{d0}")
    A(f"v_alignbit_b32 v{T+9}, v{d1}, v{d0}, 16")
    Z = T + 10
    for r in range(0, 8, 2): A(f"v_mov_b64 {v(Z+r,2)}, 0")
    A("v_cmp_eq_u32 s[60:61], 1, v1")
    A("v_cmp_eq_u32 s[62:63], 2, v1")
    A("v_cmp_eq_u32 s[64:65], 3, v1")
    A(f"v_cndmask_b32 v{Z+7}, v{Z+7}, v{T+8}, s[60:61]")
    A(f"v_cndmask_b32 v{Z+7}, v{Z+7}, v{d0}, s[62:63]")
    A(f"v_cndmask_b32 v{Z+7}, v{Z+7}, v{T+9}, s[64:65]")
    A(f"v_cndmask_b32 v{Z+6}, v{Z+6}, v{T+8}, s[64:65]")
    A(f"v_mul_u32_u24 v{a+2}, {HC}, v1")
    A(f"v_add_u32 v{a+2}, s36, v{a+2}")
    A("s_mov_b64 exec, 0xf")
    A(f"ds_write_b128 v{a+2}, {v(Z,4)}")
    A(f"ds_write_b128 v{a+2}, {v(Z+4,4)} offset:16")
    A("s_mov_b64 exec, 0xffffffff")
    A(f"v_lshlrev_b32 v{a+2}, 4, v1")
    A(f"v_add_u32 v{a+2}, s36, v{a+2}")
    A(f"ds_write_b128 v{a+2}, {v(Z,4)} offset:{URB+4096}")
    A("s_mov_b64 exec, -1")

def b2_main(A, s_grp, sb, resolved):
    make_srd(A, 48, P_WS, 4096, WS_UR, add_s=35)
    make_srd(A, 52, P_Q, SZ_T)
    make_srd(A, 56, P_OUT, 2048 * 2304)
    A("v_and_b32 v3, 15, v1")
    A("v_lshrrev_b32 v4, 4, v1")
    A("v_lshlrev_b32 v5, 4, v1")
    A("s_lshl_b32 s40, s33, 11")
    A("v_add_u32 v5, s40, v5")
    A("v_add_u32 v10, s36, v5")
    A("v_lshlrev_b32 v9, 5, v3")
    A("v_lshl_add_u32 v9, v4, 3, v9")
    A(f"s_lshl_b32 s41, s{S_WAVE}, 8")
    A("v_add_u32 v8, s41, v1")
    A("s_movk_i32 s42, 1152")
    A("v_mul_lo_u32 v8, v8, s42")
    A(f"s_lshl_b32 s43, s{s_grp}, 3")
    A("v_add_u32 v8, s43, v8")
    A("v_add_u32 v12, 1, v3")
    A("v_and_b32 v13, 3, v12")
    A("v_lshrrev_b32 v12, 2, v12")
    A(f"v_mul_u32_u24 v13, {HC}, v13")
    A("v_lshl_add_u32 v13, v4, 4, v13")
    A("v_lshl_add_u32 v13, v12, 3, v13")
    A("s_lshl_b32 s41, s33, 8")
    A("s_add_u32 s41, s41, s36")
    A("v_add_u32 v13, s41, v13")
    A("v_lshlrev_b32 v14, 4, v4")
    A("v_lshlrev_b32 v15, 5, v3")
    A("v_sub_u32 v14, v14, v15")
    A(f"v_add_u32 v14, {URB+480}, v14")
    A("v_add_u32 v14, s41, v14")
    stamp(A, sb + 0)
    lab = A.newlabel("b2w")
    A(f"s_cmp_lg_u32 s{S_WAVE}, 0")
    A(f"s_cbranch_scc1 {lab}")
    if not resolved:
        A("s_waitcnt vmcnt(0)")
        nonce_resolve(A, "B")
    A(f"s_lshr_b32 s41, s{s_grp}, 4")
    A("s_lshl_b32 s41, s41, 8")
    flag_poll(A, "B", 41)
    A.label(lab)
    A("s_barrier")
    stamp(A, sb + 1)
    U = 68
    for it in range(2):
        A(f"buffer_load_dwordx4 {v(U+4*it,4)}, v5, s[48:51], 0 offen offset:{1024*it} sc1")
    Q = 84
    A(f"s_lshl_b32 s41, s{S_WAVE}, 12")
    A("v_lshlrev_b32 v6, 4, v1")
    A(f"v_add_u32 v6, {XCH}, v6")
    A("v_add_u32 v7, s41, v6")
    A(f"s_xor_b32 s42, s{S_WAVE}, 4")
    A("s_lshl_b32 s42, s42, 12")
    A("v_add_u32 v6, s42, v6")
    A(f"v_sub_u32 v11, {URB+504}, v9")
    A("s_lshl_b32 s41, s33, 11")
    A("s_sub_u32 s42, s36, s41")
    A("v_add_u32 v11, s42, v11")
    A(f"s_mul_i32 s42, s32, {ZS}")
    A("s_add_u32 s42, s42, s41")
    A("v_add_u32 v9, s42, v9")
    A("s_waitcnt vmcnt(0)")
    for it in range(2):
        A(f"ds_write_b128 v10, {v(U+4*it,4)} offset:{URB+1024*it}")
    for it in range(4): A(f"s_mov_b32 s{60+it}, {64*1152*it}")
    A("s_waitcnt lgkmcnt(0)")
    A("s_barrier")
    stamp(A, sb + 2)
    ACC = 208
    FA = [104, 16]
    def frag_reads(rho, base):
        lst = []
        for b in range(8):
            lst.append(f"ds_read_b128 {v(base+32+4*b,4)}, v14 offset:{64*rho+512*(7-b)}")
        aa_l = []
        for aa in range(8):
            aa_l.append(f"ds_read_b64 {v(base+4*aa,2)}, v13 offset:{512*aa+64*rho}")
            aa_l.append(f"ds_read_b64 {v(base+4*aa+2,2)}, v13 offset:{512*aa+64*rho+8}")
        return aa_l[:2] + lst + aa_l[2:]
    for r_ in frag_reads(0, FA[0]): A(r_)
    UU = 88
    UU = 92
    for rho in range(4):
        base = FA[rho & 1]
        A("s_waitcnt lgkmcnt(0)")
        rd = frag_reads(rho + 1, FA[(rho + 1) & 1]) if rho < 3 else [f"ds_read_b64 {v(UU+2*c,2)}, v11 offset:{512*(7-c)}" for c in range(4)]
        i = 0
        A(f"buffer_load_dwordx2 {v(Q+2*rho,2)}, v8, s[52:55], s{60+rho} offen")
        for aa in range(8):
            for b in range(8 - aa):
                c = aa + b
                src = "0" if (rho == 0 and aa == 0) else v(ACC+4*c, 4)
                A(f"v_mfma_f32_16x16x32_bf16 {v(ACC+4*c,4)}, {v(base+4*aa,4)}, {v(base+32+4*b,4)}, {src}")
                if i < len(rd): A(rd[i]); i += 1
    stamp(A, sb + 3)
    l1 = A.newlabel("b2h1"); l2 = A.newlabel("b2x")
    KP = 192
    A("s_cmp_eq_u32 s33, 1")
    A(f"s_cbranch_scc1 {l1}")
    for c in range(4): A(f"ds_write_b128 v7, {v(ACC+16+4*c,4)} offset:{1024*c}")
    for c in range(8): A(f"v_mov_b64 {v(KP+2*c,2)}, {v(ACC+2*c,2)}")
    A(f"s_branch {l2}")
    A.label(l1)
    for c in range(4): A(f"ds_write_b128 v7, {v(ACC+4*c,4)} offset:{1024*c}")
    for c in range(8): A(f"v_mov_b64 {v(KP+2*c,2)}, {v(ACC+16+2*c,2)}")
    A.label(l2)
    A("s_and_b32 s37, s37, 2")
    A("s_lshl_b32 s37, s37, 3")
    A("s_waitcnt lgkmcnt(0)")
    A("s_lshr_b32 s39, s39, s37")
    A("s_lshl_b32 s39, s39, 16")
    TT = 16
    for c in range(4):
        A(f"v_and_b32 v{TT+4*c+0}, 0xffff0000, v{UU+2*c+1}")
        A(f"v_lshlrev_b32 v{TT+4*c+1}, 16, v{UU+2*c+1}")
        A(f"v_and_b32 v{TT+4*c+2}, 0xffff0000, v{UU+2*c}")
        A(f"v_lshlrev_b32 v{TT+4*c+3}, 16, v{UU+2*c}")
    for e in range(16): A(f"v_fma_f32 v{KP+e}, v{TT+e}, s39, v{KP+e}")
    A("s_barrier")
    for c in range(4): A(f"ds_read_b128 {v(48+4*c,4)}, v6 offset:{1024*c}")
    for c in range(4):
        A(f"s_waitcnt lgkmcnt({3-c})")
        for r in range(4): A(f"v_add_f32 v{KP+4*c+r}, v{KP+4*c+r}, v{48+4*c+r}")
        A(f"v_cvt_pk_bf16_f32 v{64+2*c}, v{KP+4*c}, v{KP+4*c+1}")
        A(f"v_cvt_pk_bf16_f32 v{65+2*c}, v{KP+4*c+2}, v{KP+4*c+3}")
        A(f"ds_write_b64 v9, {v(64+2*c,2)} offset:{512*c}")
    A("s_waitcnt vmcnt(0)")
    QF = 32
    for it in range(4):
        A(f"v_lshlrev_b32 v{QF+4*it+0}, 16, v{Q+2*it}")
        A(f"v_and_b32 v{QF+4*it+1}, 0xffff0000, v{Q+2*it}")
        A(f"v_lshlrev_b32 v{QF+4*it+2}, 16, v{Q+2*it+1}")
        A(f"v_and_b32 v{QF+4*it+3}, 0xffff0000, v{Q+2*it+1}")
    A("v_lshrrev_b32 v12, 2, v3")
    A(f"v_mul_u32_u24 v12, {ZS}, v12")
    A("v_and_b32 v13, 3, v3")
    A("v_lshl_add_u32 v12, v13, 3, v12")
    A("v_lshl_add_u32 v12, v4, 5, v12")
    A(f"s_lshl_b32 s41, s{S_WAVE}, 9")
    A("v_add_u32 v12, s41, v12")
    A(f"s_lshl_b32 s41, s{S_WAVE}, 8")
    A("v_add_u32 v13, s41, v1")
    A("s_movk_i32 s42, 2304")
    A(f"s_lshl_b32 s43, s{s_grp}, 3")
    A("s_add_u32 s43, s43, 1152")
    A("v_mul_lo_u32 v13, v13, s42")
    A("v_add_u32 v13, s43, v13")
    for it in range(4): A(f"s_mov_b32 s{60+it}, {64*2304*it}")
    A("s_waitcnt lgkmcnt(0)")
    A("s_barrier")
    for it in range(4):
        A(f"ds_read_b64_tr_b16 {v(16+2*it,2)}, v12 offset:{128*it}")
    for it in range(4):
        A(f"s_waitcnt lgkmcnt({3-it})")
        t = 48 + 4 * it
        A(f"v_lshlrev_b32 v{t+0}, 16, v{16+2*it}")
        A(f"v_and_b32 v{t+1}, 0xffff0000, v{16+2*it}")
        A(f"v_lshlrev_b32 v{t+2}, 16, v{16+2*it+1}")
        A(f"v_and_b32 v{t+3}, 0xffff0000, v{16+2*it+1}")
        for r in range(4): A(f"v_mul_f32 v{t+r}, v{t+r}, v{QF+4*it+r}")
        A(f"v_cvt_pk_bf16_f32 v{64+2*it}, v{t}, v{t+1}")
        A(f"v_cvt_pk_bf16_f32 v{65+2*it}, v{t+2}, v{t+3}")
        A(f"buffer_store_dwordx2 {v(64+2*it,2)}, v13, s[56:59], s{60+it} offen" + (" sc1" if OPT.get("b2sc1") else ""))
    stamp(A, sb + 4)

def b1_addr(A, s_tile, vt):
    A(f"s_mul_hi_u32 s66, s{s_tile}, 0x1c71c71d")
    A("s_mul_i32 s67, s66, 9")
    A(f"s_sub_u32 s67, s{s_tile}, s67")
    A(f"v_and_b32 v2, 7, v{vt}")
    A(f"v_lshrrev_b32 v3, 3, v{vt}")
    A("s_lshl_b32 s40, s66, 8")
    A("v_lshl_add_u32 v4, v3, 3, s40")
    A("s_lshl_b32 s41, s67, 7")
    A("v_lshl_add_u32 v5, v2, 4, s41")
    A("s_movk_i32 s42, 1152")
    A("v_mad_u32_u24 v6, v4, s42, v5")
    A("v_add_u32 v7, 4608, v6")

def gen_b1_kv(A, s_tile):
    A.comment("===== B1 kv (waves 0-3) =====")
    b1_addr(A, s_tile, 0)
    A("v_subrev_u32 v8, 3456, v6")
    A("v_subrev_u32 v9, 2304, v6")
    A("v_subrev_u32 v10, 1152, v6")
    make_srd(A, 48, P_K, SZ_T)
    make_srd(A, 52, P_V, SZ_T)
    make_srd(A, 56, P_SH, 576 * 8)
    KR, VR, SH, W = 16, 60, 92, 108
    KF, VF, ACC, OUT = 140, 162, 178, 194
    for j, vo in enumerate((8, 9, 10)):
        A(f"buffer_load_dwordx4 {v(KR+4*j,4)}, v{vo}, s[48:51], 0 offen")
    for i in range(8):
        A(f"buffer_load_dwordx4 {v(KR+4*(3+i),4)}, v{6 if i < 4 else 7}, s[48:51], 0 offen offset:{1152*(i%4)}")
    for i in range(8):
        A(f"buffer_load_dwordx4 {v(VR+4*i,4)}, v{6 if i < 4 else 7}, s[52:55], 0 offen offset:{1152*(i%4)}")
    A("s_lshl_b32 s43, s67, 9")
    A("v_lshl_add_u32 v11, v2, 6, s43")
    for i in range(4):
        A(f"buffer_load_dwordx4 {v(SH+4*i,4)}, v11, s[56:59], 0 offen offset:{16*i}")
    stamp(A, 2)
    make_srd(A, 52+8, P_WS, SZ_T, WS_UR)
    A("s_lshl_b32 s43, s67, 18")
    A("v_lshl_add_u32 v12, v2, 15, s43")
    A("v_lshlrev_b32 v14, 1, v4")
    A("v_sub_u32 v12, v12, v14")
    A("v_add_u32 v12, 4080, v12")
    for ch in range(8): A(f"s_mov_b32 s{68+ch}, {ch*4096}")
    A("s_waitcnt vmcnt(0)")
    A("s_barrier")
    stamp(A, 3)
    for ch in range(8):
        A(f"v_lshlrev_b32 v{W+0*8+ch}, 16, v{SH+2*ch}")
        A(f"v_and_b32 v{W+1*8+ch}, 0xffff0000, v{SH+2*ch}")
        A(f"v_lshlrev_b32 v{W+2*8+ch}, 16, v{SH+2*ch+1}")
        A(f"v_and_b32 v{W+3*8+ch}, 0xffff0000, v{SH+2*ch+1}")
    for m in range(4):
        for j in range(11):
            A(f"v_lshlrev_b32 v{KF+2*j}, 16, v{KR+4*j+m}")
            A(f"v_and_b32 v{KF+2*j+1}, 0xffff0000, v{KR+4*j+m}")
        for i in range(8):
            A(f"v_lshlrev_b32 v{VF+2*i}, 16, v{VR+4*i+m}")
            A(f"v_and_b32 v{VF+2*i+1}, 0xffff0000, v{VR+4*i+m}")
        for i in range(8):
            A(f"v_pk_mul_f32 {v(ACC+2*i,2)}, {v(W+3*8+2*m,2)}, {v(KF+2*i,2)}")
        for t in (2, 1, 0):
            for i in range(8):
                A(f"v_pk_fma_f32 {v(ACC+2*i,2)}, {v(W+t*8+2*m,2)}, {v(KF+2*(i+3-t),2)}, {v(ACC+2*i,2)}")
        for i in range(8):
            A(f"v_pk_mul_f32 {v(ACC+2*i,2)}, {v(ACC+2*i,2)}, {v(VF+2*i,2)}")
        o = OUT + 8 * (m & 1)
        for h in range(2):
            for q in range(4):
                A(f"v_cvt_pk_bf16_f32 v{o+4*h+q}, v{ACC+2*(7-2*q)+h}, v{ACC+2*(6-2*q)+h}")
        for h in range(2):
            A(f"buffer_store_dwordx4 {v(o+4*h,4)}, v12, s[60:63], s{68+2*m+h} offen sc1")
    stamp(A, 4)

def tlb_warm(A):
    items = []
    for p, size in ((P_K, SZ_T), (P_V, SZ_T), (P_Q, SZ_T), (P_H, SZ_T), (P_WO, 576*1152), (P_OUT, 2048*2304), (P_SH, 64), (P_D, 64)):
        offs = list(range(0, size, 2 << 20))
        offs.append(size - 128 if size > 128 else 0)
        for o in sorted(set(offs)): items.append((p, o))
    for o in (0, (2 << 20) + (1 << 20), (4 << 20), (6 << 20) + (1 << 20), (8 << 20), (10 << 20) + (1 << 20), (12 << 20)):
        items.append((P_WS, o))
    assert len(items) <= 64
    A(f"v_mov_b32 v20, s{P_WS}")
    A(f"v_mov_b32 v21, s{P_WS+1}")
    for i, (p, o) in enumerate(items):
        A(f"s_add_u32 s96, s{p}, {o}")
        A(f"s_addc_u32 s97, s{p+1}, 0")
        A(f"v_writelane_b32 v20, s96, {i}")
        A(f"v_writelane_b32 v21, s97, {i}")
    A("global_load_dword v245, v[20:21], off")

def tlb_warm64(A, s_idx10):
    regions = [(P_WS, WS_UR - 4096, SZ_T + 4096), (P_WS, WS_OF - 4096, SZ_T + 4096), (P_OUT, 0, 2048 * 2304), (P_Q, 0, SZ_T), (P_H, 0, SZ_T), (P_WO, 0, 576 * 1152), (P_K, 0, SZ_T), (P_V, 0, SZ_T)]
    vd = 236
    for r, (p, base, size) in enumerate(regions):
        n = -(-size // 65536)
        per = -(-n // 10)
        make_srd(A, 92, p, size, base)
        A(f"s_mul_i32 s96, s{s_idx10}, {per}")
        A("v_add_u32 v22, s96, v1")
        A("v_lshlrev_b32 v22, 16, v22")
        A(f"v_mov_b32 v23, 0x{BIGOFF:x}")
        A(f"v_cmp_le_u32 vcc, {per}, v1")
        A("v_cndmask_b32 v22, v22, v23, vcc")
        A(f"buffer_load_dword v{vd + (r & 3)}, v22, s[92:95], 0 offen sc1")

def b_prefetch(A):
    make_srd(A, 48, P_X, SZ_T)
    make_srd(A, 52, P_W, 576 * 3456)
    lab = A.newlabel("bpf"); lab1 = A.newlabel("bpf1")
    if OPT.get("r1", 1):
        A(f"s_cmp_ge_u32 s{S_WAVE}, 5")
        A(f"s_cbranch_scc1 {lab1}")
        A("s_lshr_b32 s40, s2, 3")
        a_prefetch_setup(A, 10, 12, 4, 40, 32)
        a_prefetch_issue(A, 10, 12, S_WAVE, 48, 52, 240)
        A(f"s_branch {lab}")
        A.label(lab1)
        A(f"s_cmp_ge_u32 s{S_WAVE}, {OPT.get('af', 7)}")
        A(f"s_cbranch_scc1 {lab}")
        A("s_lshr_b32 s40, s91, 3")
        a_prefetch_setup(A, 10, 12, 4, 40, 10)
        a_prefetch_issue(A, 10, 12, S_WAVE, 48, 52, 240, two=True)
    else:
        A(f"s_cmp_ge_u32 s{S_WAVE}, {OPT.get('af', 7) - 1}")
        A(f"s_cbranch_scc1 {lab}")
        A("s_lshr_b32 s40, s91, 3")
        a_prefetch_setup(A, 10, 12, 4, 40, 10)
        A(f"s_add_u32 s40, s{S_WAVE}, 1")
        a_prefetch_issue(A, 10, 12, 40, 48, 52, 240, two=True)
    A.label(lab)
    if OPT.get("tlb"):
        lab2 = A.newlabel("tlb")
        A(f"s_cmp_lg_u32 s{S_WAVE}, 7")
        A(f"s_cbranch_scc1 {lab2}")
        tlb_warm(A)
        if OPT.get("tlb64"):
            A("s_lshr_b32 s97, s91, 3")
            tlb_warm64(A, 97)
        A.label(lab2)
    get_nonce_issue(A, "B")

def gen_b1_aux(A, s_tile, has_tile):
    A.comment("===== B1 aux (waves 4-7) =====")
    HL = 130
    if has_tile:
        A("s_barrier")
    b2_h_loads(A, HL, 4)
    make_srd(A, 48, P_Q, SZ_T)
    A("s_lshr_b32 s40, s91, 3")
    A("s_lshl_b32 s40, s40, 2")
    A("s_add_u32 s40, s40, s32")
    A("s_mul_i32 s40, s40, 52")
    A("v_add_u32 v10, s40, v1")
    A("s_and_b32 s41, s2, 7")
    if OPT.get("gmap", 1):
        A("s_lshl_b32 s41, s41, 7")
    else:
        A("s_mul_i32 s41, s41, 144")
        A("s_and_b32 s41, s41, 0xffffff80")
    A("s_movk_i32 s42, 1152")
    A("v_mul_lo_u32 v11, v10, s42")
    A("v_add_u32 v11, s41, v11")
    A(f"v_mov_b32 v12, 0x{BIGOFF:x}")
    A("v_cmp_le_u32 vcc, 52, v1")
    A("v_cndmask_b32 v11, v11, v12, vcc")
    A("buffer_load_dword v243, v11, s[48:51], 0 offen")
    if OPT.get("gmap", 1):
        A("v_subrev_u32 v12, s41, v11")
        A("v_add_u32 v12, 1024, v12")
        A("buffer_load_dword v244, v12, s[48:51], 0 offen")
    else:
        A("buffer_load_dword v244, v11, s[48:51], 0 offen offset:128")
    stamp(A, 2)
    A("s_waitcnt vmcnt(2)")
    stamp(A, 4)
    b2_h_stage(A, HL, 100, 4)

WO_B = 72 * 1024

def gen_a2(A, s_x, s_a, sb):
    A.comment("===== A2 =====")
    A(f"s_sub_u32 s34, s{s_a}, 4")
    A("s_lshr_b32 s33, s34, 1")
    A("s_add_u32 s33, s33, 4")
    A("s_and_b32 s34, s34, 1")
    A(f"s_cmp_lt_u32 s{s_a}, 4")
    A(f"s_cselect_b32 s33, s{s_a}, s33")
    A("s_cselect_b32 s34, 0, s34")
    A("s_cselect_b32 s42, 2, 1")
    A(f"s_lshl_b32 s32, s{s_x}, 1")
    A("s_add_u32 s32, s32, s34")
    make_srd(A, 44, P_WO, 576 * 1152)
    A("v_lshrrev_b32 v2, 3, v1")
    A("v_and_b32 v3, 7, v1")
    A("v_bfe_u32 v4, v1, 4, 1")
    A("v_lshlrev_b32 v4, 1, v4")
    A("v_xor_b32 v4, v4, v3")
    A("v_mul_u32_u24 v5, 1152, v2")
    A("v_lshl_add_u32 v5, v4, 4, v5")
    A("s_lshl_b32 s34, s33, 7")
    A("v_add_u32 v10, s34, v5")
    A("v_xor_b32 v11, 64, v10")
    A(f"s_mul_i32 s35, s{S_WAVE}, 9")
    A("s_and_b32 s36, s35, 1")
    A("s_cmp_eq_u32 s36, 1")
    A("s_cselect_b64 s[56:57], -1, 0")
    A("v_cndmask_b32 v12, v10, v11, s[56:57]")
    A("v_cndmask_b32 v13, v11, v10, s[56:57]")
    A("s_lshl_b32 s36, s33, 3")
    A("s_add_u32 s36, s36, s35")
    A("s_lshl_b32 s37, s35, 10")
    for j in range(9):
        A(f"s_add_u32 s38, s36, {j}")
        A("s_sub_u32 s39, s38, 72")
        A("s_cmp_ge_u32 s38, 72")
        A("s_cselect_b32 s38, s39, s38")
        A("s_mul_i32 s38, s38, 9216")
        A(f"s_add_u32 m0, s37, {1024*j}")
        A(f"buffer_load_dwordx4 v{12+(j&1)}, s[44:47], s38 offen lds")
    make_srd(A, 48, P_WS, SZ_T, WS_OF)
    make_srd(A, 52, P_OUT, 2048 * 2304)
    A("s_lshl_b32 s38, s32, 3")
    A(f"s_add_u32 s38, s38, s{S_WAVE}")
    A("s_mul_i32 s39, s38, 18432")
    A("v_lshlrev_b32 v2, 4, v1")
    A("v_add_u32 v2, s39, v2")
    A("v_add_u32 v3, 4096, v2"); A("v_add_u32 v4, 8192, v2"); A("v_add_u32 v5, 12288, v2"); A("v_add_u32 v6, 16384, v2")
    A("v_and_b32 v7, 15, v1")
    A("v_lshrrev_b32 v8, 4, v1")
    A("v_lshrrev_b32 v9, 2, v7")
    A("v_lshl_add_u32 v9, v8, 3, v9")
    A("v_lshlrev_b32 v9, 7, v9")
    A("v_and_b32 v10, 1, v7")
    A("v_lshl_add_u32 v9, v10, 3, v9")
    A("v_bfe_u32 v10, v7, 3, 1")
    A("v_and_b32 v11, 1, v8")
    A("v_lshl_add_u32 v10, v11, 1, v10")
    A("v_lshlrev_b32 v10, 1, v10")
    A("v_bfe_u32 v11, v7, 1, 1")
    for nt in range(4):
        A(f"v_add_u32 v14, {2*nt}, v11")
        A("v_xor_b32 v14, v14, v10")
        A(f"v_lshl_add_u32 v{16+nt}, v14, 4, v9")
        A(f"v_add_u32 v{20+nt}, 36864, v{16+nt}")
    A(f"s_mul_i32 s40, s{S_WAVE}, 2304")
    A(f"s_add_u32 s40, s40, {WO_B}")
    A("v_mul_u32_u24 v9, 144, v7")
    A("v_lshl_add_u32 v9, v8, 3, v9")
    A("v_add_u32 v9, s40, v9")
    A("v_lshrrev_b32 v10, 3, v1")
    A("v_and_b32 v11, 7, v1")
    A("v_mul_u32_u24 v12, 144, v10")
    A("v_lshl_add_u32 v12, v11, 4, v12")
    A("v_add_u32 v12, s40, v12")
    A("s_mul_i32 s39, s38, 36864")
    A("s_lshl_b32 s41, s33, 7")
    A("s_add_u32 s39, s39, s41")
    A("v_mul_u32_u24 v13, 2304, v10")
    A("v_lshl_add_u32 v13, v11, 4, v13")
    A("v_add_u32 v13, s39, v13")
    A("v_add_u32 v14, 18432, v13")
    stamp(A, sb + 0)
    lab = A.newlabel("a2w")
    A(f"s_cmp_lg_u32 s{S_WAVE}, 0")
    A(f"s_cbranch_scc1 {lab}")
    A("s_lshl_b32 s39, s32, 7")
    A("s_mul_hi_u32 s40, s39, 0x2aaaaab")
    A("s_lshl_b32 s41, s42, 7")
    A("s_add_u32 s39, s39, s41")
    A("s_sub_u32 s39, s39, 1")
    A("s_mul_hi_u32 s41, s39, 0x2aaaaab")
    make_srd(A, 92, P_WS, 65536, WS_FA)
    A("v_lshrrev_b32 v250, 3, v1")
    A("v_add_u32 v250, s40, v250")
    A("v_min_u32 v250, s41, v250")
    A("v_lshlrev_b32 v250, 8, v250")
    A("v_and_b32 v249, 7, v1")
    A("v_lshl_add_u32 v250, v249, 2, v250")
    A("s_mov_b64 exec, 0xffffffff")
    lp = A.newlabel("poll"); done = A.newlabel("polld")
    A("s_mov_b32 s88, 100000")
    A.label(lp)
    A("buffer_load_dword v251, v250, s[92:95], 0 offen sc1")
    A("s_waitcnt vmcnt(0)")
    A(f"v_cmp_ne_u32 vcc, s{S_NA}, v251")
    A("s_nop 4")
    A(f"s_cbranch_vccz {done}")
    A(f"s_sleep {OPT.get('slp', 2)}")
    A("s_sub_u32 s88, s88, 1")
    A("s_cmp_lg_u32 s88, 0")
    A(f"s_cbranch_scc1 {lp}")
    A.label(done)
    A("s_mov_b64 exec, -1")
    A.label(lab)
    A("s_waitcnt vmcnt(0)")
    A("s_barrier")
    stamp(A, sb + 1)
    BF = [24, 136]
    ACC = 96
    AF = [112, 120]
    AF = [112, 208, 224]
    def oloads(base, extra):
        A("s_lshl_b32 s44, s33, 1")
        for j in range(18):
            A("s_lshl_b32 s45, s44, 10")
            if extra: A("s_add_u32 s45, s45, s43")
            A(f"buffer_load_dwordx4 {v(base+4*j,4)}, v2, s[48:51], s45 offen sc1")
            A("s_add_u32 s44, s44, 1")
            A("s_cmp_eq_u32 s44, 18")
            A("s_cselect_b32 s44, 0, s44")
    def reads(ks, base):
        lst = []
        for nt in range(4):
            va = (16 if ks < 9 else 20) + nt
            for h in range(2):
                lst.append(f"ds_read_b64_tr_b16 {v(base+4*nt+2*h,2)}, v{va} offset:{(ks%9)*4096 + h*512}")
        return lst
    def tile(bf, mode, soff):
        for r_ in reads(0, AF[0]): A(r_)
        for r_ in reads(1, AF[1]): A(r_)
        if mode == 1: A("s_lshl_b32 s44, s33, 1")
        for ks in range(18):
            rd = reads(ks + 2, AF[(ks+2) % 3]) if ks < 16 else []
            cnt = {0: 17 - ks, 1: 17, 2: 17 - ks + 2}[mode]
            A(f"s_waitcnt vmcnt({cnt}) lgkmcnt({8 if ks < 17 else 0})")
            i = 0
            for nt in range(4):
                c = "0" if ks == 0 else v(ACC+4*nt, 4)
                A(f"v_mfma_f32_16x16x32_bf16 {v(ACC+4*nt,4)}, {v(AF[ks%3]+4*nt,4)}, {v(bf+4*ks,4)}, {c}")
                for _ in range(2):
                    if i < len(rd): A(rd[i]); i += 1
            if mode == 1:
                A("s_lshl_b32 s45, s44, 10")
                A("s_add_u32 s45, s45, s43")
                A(f"buffer_load_dwordx4 {v(BF[1]+4*ks,4)}, v2, s[48:51], s45 offen sc1")
                A("s_add_u32 s44, s44, 1")
                A("s_cmp_eq_u32 s44, 18")
                A("s_cselect_b32 s44, 0, s44")
        for nt in range(4):
            A(f"v_cvt_pk_bf16_f32 v{128+2*nt}, v{ACC+4*nt}, v{ACC+4*nt+1}")
            A(f"v_cvt_pk_bf16_f32 v{129+2*nt}, v{ACC+4*nt+2}, v{ACC+4*nt+3}")
            A(f"ds_write_b64 v9, {v(128+2*nt,2)} offset:{32*nt}")
        A("s_waitcnt lgkmcnt(0)")
        A("ds_read_b128 v[128:131], v12")
        A("ds_read_b128 v[132:135], v12 offset:1152")
        A("s_waitcnt lgkmcnt(1)")
        A(f"buffer_store_dwordx4 v[128:131], v13, s[52:55], {soff} offen" + (" sc1" if OPT.get("a2sc1") else ""))
        A("s_waitcnt lgkmcnt(0)")
        A(f"buffer_store_dwordx4 v[132:135], v14, s[52:55], {soff} offen" + (" sc1" if OPT.get("a2sc1") else ""))
    oloads(BF[0], False)
    l2 = A.newlabel("a2two"); lend = A.newlabel("a2end")
    A("s_cmp_eq_u32 s42, 2")
    A(f"s_cbranch_scc1 {l2}")
    tile(BF[0], 0, "0")
    A(f"s_branch {lend}")
    A.label(l2)
    A(f"s_mov_b32 s43, {8*18432}")
    tile(BF[0], 1, "0")
    stamp(A, sb + 2)
    A(f"s_mov_b32 s43, {128*2304}")
    tile(BF[1], 2, "s43")
    A.label(lend)
    stamp(A, sb + 3)

def build(path, stamps=False):
    global STAMPS
    STAMPS = stamps
    A = Asm()
    A.raw(f".globl {NAME}\n.p2align 8\n.type {NAME},@function\n{NAME}:")
    A("s_cmp_ge_u32 s2, 256")
    A("s_cbranch_scc1 L_end")
    A("s_load_dwordx16 s[4:19], s[0:1], 0")
    A("s_load_dwordx8 s[20:27], s[0:1], 64")
    A("s_memrealtime s[30:31]")
    if OPT.get("codepf", 1):
        A("s_getpc_b64 s[32:33]")
        A.label("L_pc")
        A("s_lshr_b32 s34, s2, 3")
        A("s_mul_i32 s34, s34, CODE_LPW*128")
        A("v_and_b32 v3, 63, v0")
        A("v_lshlrev_b32 v3, 7, v3")
        A("v_add_u32 v3, s34, v3")
        A("v_cmp_gt_u32 vcc, (L_end-L_pc), v3")
        A("v_cmp_gt_u32 s[36:37], CODE_LPW, v0")
        A("s_and_b64 vcc, vcc, s[36:37]")
        A("s_and_saveexec_b64 s[36:37], vcc")
        labc = A.newlabel("cpf")
        A(f"s_cbranch_execz {labc}")
        A("global_load_dword v247, v3, s[32:33]")
        A.label(labc)
        A("s_mov_b64 exec, s[36:37]")
    A("v_lshrrev_b32 v2, 6, v0")
    A("v_and_b32 v1, 63, v0")
    A(f"v_readfirstlane_b32 s{S_WAVE}, v2")
    A("s_waitcnt lgkmcnt(0)")
    A(f"s_or_b32 s{S_MY}, s30, 1")
    if OPT.get("touch"):
        A("s_mov_b32 s31, 0x200000")
        A(f"s_load_dword s3, s[{P_X}:{P_X+1}], 0")
        A(f"s_load_dword s3, s[{P_W}:{P_W+1}], 0")
        A(f"s_load_dword s3, s[{P_X}:{P_X+1}], s31")
        A(f"s_load_dword s3, s[{P_K}:{P_K+1}], 0")
        A(f"s_load_dword s3, s[{P_V}:{P_V+1}], 0")
        A(f"s_load_dword s3, s[{P_K}:{P_K+1}], s31")
        A(f"s_load_dword s3, s[{P_V}:{P_V+1}], s31")
    if STAMPS: A("v_mov_b32 v246, -1")
    stamp(A, 0)
    if STAMPS:
        A("s_memtime s[100:101]")
        A("s_waitcnt lgkmcnt(0)")
        A("v_writelane_b32 v246, s100, 16")
    A("s_cmp_ge_u32 s2, 176")
    A("s_cbranch_scc1 L_bset")
    gen_a1(A)
    A("s_cmp_lt_u32 s2, 64")
    A("s_cbranch_scc1 L_a_b2")
    A("s_and_b32 s90, s2, 7")
    A("s_sub_u32 s91, s2, 64")
    A("s_lshr_b32 s91, s91, 3")
    gen_a2(A, 90, 91, 8)
    A("s_branch L_fin")
    A.label("L_a_b2")
    A("s_and_b32 s89, s2, 7")
    A("s_lshr_b32 s91, s2, 3")
    A("s_add_u32 s91, s91, 10")
    grp_of(A, 90, 89, 91, 40)
    get_nonce_issue(A, "B")
    b2_common(A, 90)
    if not OPT.get("hearly", 1):
        b2_h_loads(A, 170, 2)
    A("s_waitcnt vmcnt(0)")
    b2_h_stage(A, 170, 112, 2)
    b2_main(A, 90, 8, resolved=False)
    A("s_branch L_fin")
    A.label("L_bset")
    A("s_sub_u32 s91, s2, 176")
    A("s_and_b32 s40, s91, 7")
    A("s_lshr_b32 s89, s91, 3")
    grp_of(A, 90, 40, 89, 41)
    b_prefetch(A)
    b2_common(A, 90)
    if OPT.get("bwait", 1):
        A("s_waitcnt vmcnt(0)")
        A("s_barrier")
    stamp(A, 1)
    A("s_cmp_ge_u32 s91, 72")
    A("s_cbranch_scc1 L_b_nob1")
    A(f"s_cmp_ge_u32 s{S_WAVE}, 4")
    A("s_cbranch_scc1 L_b_aux")
    gen_b1_kv(A, 91)
    A("s_branch L_b_join")
    A.label("L_b_aux")
    gen_b1_aux(A, 91, True)
    A.label("L_b_join")
    A("s_waitcnt vmcnt(0) lgkmcnt(0)")
    A("s_barrier")
    lab = A.newlabel("b1f")
    A(f"s_cmp_lg_u32 s{S_WAVE}, 0")
    A(f"s_cbranch_scc1 {lab}")
    nonce_resolve(A, "B")
    A("s_lshl_b32 s40, s67, 8")
    A("s_lshl_b32 s41, s66, 2")
    A("s_add_u32 s40, s40, s41")
    flag_store(A, "B", 40)
    A.label(lab)
    A("s_branch L_b_b2")
    A.label("L_b_nob1")
    lab = A.newlabel("bnx")
    A(f"s_cmp_lt_u32 s{S_WAVE}, 4")
    A(f"s_cbranch_scc1 {lab}")
    gen_b1_aux(A, 91, False)
    A.label(lab)
    A("s_waitcnt vmcnt(0)")
    lab = A.newlabel("bz")
    A(f"s_cmp_lg_u32 s{S_WAVE}, 0")
    A(f"s_cbranch_scc1 {lab}")
    nonce_resolve(A, "B")
    A.label(lab)
    A.label("L_b_b2")
    b2_main(A, 90, 5, resolved=True)
    A.label("L_fin")
    stamp_flush(A)
    A.label("L_end")
    A("s_endpgm")
    body = A.finalize()
    lds = 3 * ST1 + 64
    out = HEADER + f"; @launch grid=(256,1,1) block=(512,1,1) lds={lds}\n"
    out += '.amdgcn_target "amdgcn-amd-amdhsa--gfx950"\n.text\n.set CODE_LPW, 16\n' + body
    out += '.section .rodata,"a"\n.p2align 6\n' + kd(NAME, 256)
    open(path, "w").write(out)

if __name__ == "__main__":
    for a in sys.argv[3:]:
        k, x = a.split("="); OPT[k] = int(x)
    build(sys.argv[1], stamps=(len(sys.argv) > 2 and sys.argv[2] == "stamps"))
```

```python
import sys, struct, math
from asmlib import *
from gen_common import HEADER, kd

NAME = "concat_heads__sliding_local_dilated__ssm_conv_h3__prompt_kernel"
SZ_T = 576 * 2048 * 2
WS_UR = 4096
WS_QT = (4 << 20) + 4096
WS_OF = (8 << 20) + 4096
WS_FA = (12 << 20) + 4096
WS_FB = WS_FA + 65536
STAMP_OFF = 16 << 20
BIGOFF = 0x7FFF0000
PL = 141312
PC = 141328

P_X, P_W, P_WO, P_Q, P_K, P_V, P_SH, P_H, P_D, P_OUT, P_DBG, P_WS = 4, 6, 8, 10, 12, 14, 16, 18, 20, 22, 24, 26
S_MY, S_WAVE, S_NA, S_NB = 28, 29, 30, 31
V_NA, V_NB = 252, 254
STAMPS = False
OPT = {}

def make_srd(A, dst, ptr, nbytes, add=0, add_s=None):
    if add_s is not None:
        A(f"s_add_u32 s{dst}, s{ptr}, s{add_s}")
        A(f"s_addc_u32 s{dst+1}, s{ptr+1}, 0")
        if add:
            A(f"s_add_u32 s{dst}, s{dst}, {add}")
            A(f"s_addc_u32 s{dst+1}, s{dst+1}, 0")
        A(f"s_and_b32 s{dst+1}, s{dst+1}, 0xffff")
    elif add:
        A(f"s_add_u32 s{dst}, s{ptr}, {add}")
        A(f"s_addc_u32 s{dst+1}, s{ptr+1}, 0")
        A(f"s_and_b32 s{dst+1}, s{dst+1}, 0xffff")
    else:
        A(f"s_mov_b32 s{dst}, s{ptr}")
        A(f"s_and_b32 s{dst+1}, s{ptr+1}, 0xffff")
    A(f"s_mov_b32 s{dst+2}, {nbytes}")
    A(f"s_mov_b32 s{dst+3}, 0x00020000")

def stamp(A, idx):
    if not STAMPS: return
    if OPT.get("dbgl") and idx >= 5: return
    A("s_memrealtime s[100:101]")
    A("s_waitcnt lgkmcnt(0)")
    A(f"v_writelane_b32 v246, s100, {idx}")

def stamp_flush(A):
    if not STAMPS: return
    A("s_memtime s[100:101]")
    A("s_waitcnt lgkmcnt(0)")
    A("v_writelane_b32 v246, s100, 17")
    A("s_memrealtime s[100:101]")
    A("s_waitcnt lgkmcnt(0)")
    A("v_writelane_b32 v246, s100, 18")
    lab = A.newlabel("stf")
    A(f"s_and_b32 s96, s{S_WAVE}, 3")
    A("s_cmp_lg_u32 s96, 0")
    A(f"s_cbranch_scc1 {lab}")
    A(f"s_lshr_b32 s100, s{S_WAVE}, 2")
    A("s_lshl_b32 s100, s100, 8")
    A("s_add_u32 s100, s100, s2")
    A("s_lshl_b32 s100, s100, 7")
    A(f"s_add_u32 s96, s{P_WS}, {STAMP_OFF}")
    A(f"s_addc_u32 s97, s{P_WS+1}, 0")
    A("s_and_b32 s97, s97, 0xffff")
    A("s_mov_b32 s98, 0x100000")
    A("s_mov_b32 s99, 0x00020000")
    A("v_lshlrev_b32 v250, 2, v1")
    A("v_add_u32 v250, s100, v250")
    A("s_mov_b64 exec, 0xffffffff")
    A("buffer_store_dword v246, v250, s[96:99], 0 offen")
    A("s_mov_b64 exec, -1")
    A.label(lab)

def get_nonce_issue(A, which):
    vn = V_NA if which == "A" else V_NB
    lab = A.newlabel("nz")
    A(f"s_cmp_lg_u32 s{S_WAVE}, 0")
    A(f"s_cbranch_scc1 {lab}")
    make_srd(A, 92, P_DBG, 256)
    A(f"v_mov_b32 v{vn}, s{S_MY}")
    A(f"v_mov_b32 v{vn+1}, 0")
    A(f"v_mov_b32 v251, {0 if which == 'A' else 128}")
    A("s_mov_b64 exec, 1")
    A(f"buffer_atomic_cmpswap v[{vn}:{vn+1}], v251, s[92:95], 0 offen sc0 sc1")
    A("s_mov_b64 exec, -1")
    A.label(lab)

def nonce_resolve(A, which):
    vn = V_NA if which == "A" else V_NB
    sn = S_NA if which == "A" else S_NB
    A(f"v_readfirstlane_b32 s{sn}, v{vn}")
    A(f"s_cmp_eq_u32 s{sn}, 0")
    A(f"s_cselect_b32 s{sn}, s{S_MY}, s{sn}")

def flag_store(A, which, s_off):
    sn = S_NA if which == "A" else S_NB
    make_srd(A, 92, P_WS, 65536, WS_FA if which == "A" else WS_FB)
    A(f"v_mov_b32 v250, s{s_off}")
    A(f"v_mov_b32 v251, s{sn}")
    A("s_mov_b64 exec, 1")
    A("buffer_store_dword v251, v250, s[92:95], 0 offen sc1")
    A("s_mov_b64 exec, -1")

def flag_poll(A, which, s_off0, s_off1=None):
    sn = S_NA if which == "A" else S_NB
    make_srd(A, 92, P_WS, 65536, WS_FA if which == "A" else WS_FB)
    A("v_and_b32 v250, 7, v1")
    A("v_lshlrev_b32 v250, 2, v250")
    if s_off1 is not None:
        A(f"v_mov_b32 v249, s{s_off0}")
        A(f"v_mov_b32 v248, s{s_off1}")
        A("v_cmp_gt_u32 vcc, 8, v1")
        A("v_cndmask_b32 v249, v248, v249, vcc")
        A("v_add_u32 v250, v250, v249")
        A("s_mov_b64 exec, 0xffff")
    else:
        A(f"v_add_u32 v250, s{s_off0}, v250")
        A("s_mov_b64 exec, 0xff")
    lp = A.newlabel("poll"); done = A.newlabel("polld")
    A("s_mov_b32 s88, 1000000")
    A.label(lp)
    A("buffer_load_dword v251, v250, s[92:95], 0 offen sc1")
    A("s_waitcnt vmcnt(0)")
    A(f"v_cmp_ne_u32 vcc, s{sn}, v251")
    A("s_nop 4")
    A(f"s_cbranch_vccz {done}")
    A(f"s_sleep {OPT.get('slp', 2)}")
    A("s_sub_u32 s88, s88, 1")
    A("s_cmp_lg_u32 s88, 0")
    A(f"s_cbranch_scc1 {lp}")
    A.label(done)
    A("s_mov_b64 exec, -1")

def lds_poll(A, vaddr, vd, s_tmp, target, s_cnt, pre_read=False):
    lp = A.newlabel("lpl"); chk = A.newlabel("lpc"); done = A.newlabel("lpd")
    A(f"s_mov_b32 s{s_cnt}, 2000000")
    if pre_read: A(f"s_branch {chk}")
    A.label(lp)
    A(f"ds_read_b128 {v(vd,4)}, v{vaddr}")
    A("s_waitcnt lgkmcnt(0)")
    A.label(chk)
    A(f"v_min_u32 v{vd}, v{vd}, v{vd+1}")
    A(f"v_min3_u32 v{vd}, v{vd}, v{vd+2}, v{vd+3}")
    A(f"v_readfirstlane_b32 s{s_tmp}, v{vd}")
    A(f"s_cmp_ge_u32 s{s_tmp}, {target}")
    A(f"s_cbranch_scc1 {done}")
    A(f"s_sub_u32 s{s_cnt}, s{s_cnt}, 1")
    A(f"s_cmp_lg_u32 s{s_cnt}, 0")
    A(f"s_cbranch_scc1 {lp}")
    A.label(done)

def grp_of(A, sd, sx, si, st):
    if OPT.get("gmap", 1):
        A(f"s_lshl_b32 s{sd}, s{sx}, 4")
        A(f"s_add_u32 s{sd}, s{sd}, s{si}")
        A(f"s_lshl_b32 s{st}, s{sx}, 1")
        A(f"s_add_u32 s{st}, s{st}, s{si}")
        A(f"s_add_u32 s{st}, s{st}, 112")
        A(f"s_cmp_lt_u32 s{si}, 16")
        A(f"s_cselect_b32 s{sd}, s{sd}, s{st}")
    else:
        A(f"s_mul_i32 s{sd}, s{sx}, 18")
        A(f"s_add_u32 s{sd}, s{sd}, s{si}")

def a_prefetch_setup(A, vx, vw, t0, s_idx, nshare):
    px = -(-1072 // nshare); pw = -(-576 // nshare)
    A("s_and_b32 s96, s2, 7")
    A("s_lshr_b32 s98, s96, 2")
    A("s_and_b32 s96, s96, 3")
    A("s_mul_i32 s98, s98, 1056")
    A(f"s_mul_i32 s99, s{s_idx}, {px}")
    A("s_add_u32 s98, s98, s99")
    A("s_sub_u32 s98, s98, 16")
    A(f"v_mov_b32 v{t0+1}, 0x{BIGOFF:x}")
    A("s_movk_i32 s99, 1152")
    for e in range(2 if px > 64 else 1):
        A(f"v_add_u32 v{t0}, s98, v1")
        if e: A(f"v_add_u32 v{t0}, 64, v{t0}")
        A(f"v_mul_lo_u32 v{vx+e}, v{t0}, s99")
        A(f"v_cmp_gt_i32 vcc, 0, v{t0}")
        A(f"v_cndmask_b32 v{vx+e}, v{vx+e}, v{t0+1}, vcc")
        lim = min(px - 64*e, 64)
        if lim < 64:
            A(f"v_cmp_le_u32 vcc, {lim}, v1")
            A(f"v_cndmask_b32 v{vx+e}, v{vx+e}, v{t0+1}, vcc")
    A(f"s_mul_i32 s99, s{s_idx}, {pw}")
    A(f"v_add_u32 v{t0}, s99, v1")
    A(f"v_mul_u32_u24 v{t0+2}, 7282, v{t0}")
    A(f"v_lshrrev_b32 v{t0+2}, 16, v{t0+2}")
    A(f"v_mul_u32_u24 v{t0+3}, 9, v{t0+2}")
    A(f"v_sub_u32 v{t0+3}, v{t0}, v{t0+3}")
    A(f"v_mul_u32_u24 v{t0+4}, 21846, v{t0+3}")
    A(f"v_lshrrev_b32 v{t0+4}, 16, v{t0+4}")
    A(f"v_mul_u32_u24 v{vw}, 3456, v{t0+2}")
    A(f"v_mul_u32_u24 v{t0+2}, 1152, v{t0+4}")
    A(f"v_add_u32 v{vw}, v{vw}, v{t0+2}")
    A(f"v_mul_u32_u24 v{t0+4}, 3, v{t0+4}")
    A(f"v_sub_u32 v{t0+3}, v{t0+3}, v{t0+4}")
    A(f"v_lshl_add_u32 v{vw}, v{t0+3}, 7, v{vw}")
    A("s_lshl_b32 s96, s96, 8")
    A(f"v_add_u32 v{vw}, s96, v{vw}")
    A(f"v_cmp_le_u32 vcc, {pw}, v1")
    A(f"v_cndmask_b32 v{vw}, v{vw}, v{t0+1}, vcc")
    A(f"v_cmp_le_u32 vcc, 576, v{t0}")
    A(f"v_cndmask_b32 v{vw}, v{vw}, v{t0+1}, vcc")

def a_prefetch_issue(A, vx, vw, s_kc, srd_x, srd_w, vd, two=False):
    A(f"s_lshl_b32 s96, s{s_kc}, 7")
    A(f"s_mul_i32 s97, s{s_kc}, 221184")
    A(f"buffer_load_dword v{vd}, v{vw}, s[{srd_w}:{srd_w+3}], s97 offen")
    A(f"buffer_load_dword v{vd+1}, v{vx}, s[{srd_x}:{srd_x+3}], s96 offen")
    if two:
        A(f"buffer_load_dword v{vd+2}, v{vx+1}, s[{srd_x}:{srd_x+3}], s96 offen")

XS = 14 * 1024
W1 = 28 * 1024
ST1 = XS + W1
HHS = 112 * 48
OB = 13 * HHS
V_KQ, V_VT, V_OW, V_NINF, V_OG, V_OL = 220, 221, 222, 225, 226, 228

def attn_setup(A, t0=4):
    a, b, c, d = t0, t0+1, t0+2, t0+3
    A(f"s_and_b32 s56, s{S_WAVE}, 3")
    A(f"s_lshr_b32 s57, s{S_WAVE}, 2")
    A("s_mul_i32 s57, s57, 3")
    A(f"v_lshlrev_b32 v{a}, 2, v3")
    A(f"v_sub_u32 v{a}, v2, v{a}")
    for tl in range(2):
        for r in range(4):
            dd = (16 if tl == 0 else 0) - r
            A(f"v_add_u32 v{b}, {dd}, v{a}" if dd >= 0 else f"v_subrev_u32 v{b}, {-dd}, v{a}")
            A(f"v_and_b32 v{b}, 0xfffffff1, v{b}")
            A(f"v_cmp_eq_u32 s[{64+2*(4*tl+r)}:{65+2*(4*tl+r)}], 0, v{b}")
    A("v_cmp_gt_u32 s[80:81], 2, v3")
    A("v_cmp_gt_u32 s[82:83], 3, v3")
    A("s_or_b32 s58, s32, s57")
    for r in range(4):
        A(f"s_cmp_eq_u32 s58, 0")
        A(f"s_cselect_b64 s[{84+2*r}:{85+2*r}], 0, s[{64+2*r}:{65+2*r}]")
    A(f"v_min_u32 v{b}, 2, v3")
    A(f"v_mul_u32_u24 v{c}, 48, v2")
    A(f"v_lshl_add_u32 v{c}, v{b}, 4, v{c}")
    A(f"s_mul_i32 s58, s56, {HHS}")
    A("s_mul_i32 s59, s57, 768")
    A("s_add_u32 s58, s58, s59")
    A(f"v_add_u32 v{V_KQ}, s58, v{c}")
    A(f"v_lshrrev_b32 v{b}, 2, v2")
    A(f"v_lshl_add_u32 v{b}, v3, 2, v{b}")
    A(f"v_mul_u32_u24 v{b}, 48, v{b}")
    A(f"v_and_b32 v{c}, 3, v2")
    A(f"v_lshl_add_u32 v{b}, v{c}, 3, v{b}")
    A(f"v_add_u32 v{V_VT}, s58, v{b}")
    A(f"v_mul_u32_u24 v{b}, 144, v2")
    A(f"v_lshl_add_u32 v{b}, v3, 3, v{b}")
    A("s_mul_i32 s58, s56, 36")
    A("s_mul_i32 s59, s57, 2304")
    A("s_add_u32 s58, s58, s59")
    A(f"s_add_u32 s58, s58, {OB}")
    A(f"v_add_u32 v{V_OW}, s58, v{b}")
    A(f"v_add_u32 v{V_OW+1}, 2304, v{V_OW}")
    A(f"v_add_u32 v{V_OW+2}, 4608, v{V_OW}")
    A(f"v_mov_b32 v{V_NINF}, 0xff800000")
    A("s_mul_i32 s58, s32, 110592")
    A("s_mul_i32 s59, s33, 2304")
    A("s_add_u32 s58, s58, s59")
    for rnd in range(2):
        A(f"v_add_u32 v{a}, {512*rnd}, v0")
        A(f"v_and_b32 v{b}, 15, v{a}")
        A(f"v_lshrrev_b32 v{c}, 4, v{a}")
        A(f"v_mul_u32_u24 v{d}, 7282, v{c}")
        A(f"v_lshrrev_b32 v{d}, 16, v{d}")
        A(f"v_mul_u32_u24 v{d+1}, 9, v{d}")
        A(f"v_sub_u32 v{c}, v{c}, v{d+1}")
        A(f"v_lshl_add_u32 v{d+1}, v{d}, 4, v{b}")
        A(f"v_mul_u32_u24 v{d+1}, 144, v{d+1}")
        A(f"v_lshl_add_u32 v{d+1}, v{c}, 4, v{d+1}")
        A(f"v_add_u32 v{V_OL+rnd}, {OB}, v{d+1}")
        A(f"v_mul_u32_u24 v{d}, 18432, v{d}")
        A(f"v_lshl_add_u32 v{d}, v{c}, 8, v{d}")
        A(f"v_lshl_add_u32 v{d}, v{b}, 4, v{d}")
        A(f"v_add_u32 v{V_OG+rnd}, s58, v{d}")
        if rnd == 1:
            A(f"v_mov_b32 v{b}, 0x{BIGOFF:x}")
            A(f"v_cmp_gt_u32 vcc, 864, v{a}")
            A(f"v_cndmask_b32 v{V_OG+rnd}, v{b}, v{V_OG+rnd}, vcc")

def gen_a1(A):
    n = "a1"
    A("s_and_b32 s36, s2, 7")
    A("s_lshr_b32 s37, s2, 3")
    A("s_lshr_b32 s38, s36, 2")
    A("s_and_b32 s39, s36, 3")
    A("s_mul_i32 s32, s38, 11")
    A("s_lshr_b32 s40, s37, 1")
    A("s_add_u32 s32, s32, s40")
    A("s_and_b32 s40, s37, 1")
    A("s_lshl_b32 s33, s39, 1")
    A("s_add_u32 s33, s33, s40")
    A("s_mul_i32 s34, s32, 96")
    make_srd(A, 44, P_X, SZ_T)
    make_srd(A, 48, P_W, 576 * 3456)
    if OPT.get("r1", 1):
        labr = A.newlabel("r1")
        A(f"s_cmp_ge_u32 s{S_WAVE}, 5")
        A(f"s_cbranch_scc1 {labr}")
        a_prefetch_setup(A, 232, 233, 4, 37, 32)
        a_prefetch_issue(A, 232, 233, S_WAVE, 44, 48, 240)
        A.label(labr)
    A(f"s_cmp_ge_u32 s{S_WAVE}, 4")
    A(f"s_cbranch_scc1 {n}_loader")
    a_prefetch_setup(A, 230, 231, 4, 37, 22)
    if OPT.get("tlba"):
        labt = A.newlabel("tlba")
        A(f"s_cmp_lg_u32 s{S_WAVE}, 3")
        A(f"s_cbranch_scc1 {labt}")
        tlb_warm(A)
        A.label(labt)
    get_nonce_issue(A, "A")
    A("v_and_b32 v2, 15, v1")
    A("v_lshrrev_b32 v3, 4, v1")
    attn_setup(A)
    A("v_lshrrev_b32 v6, 2, v2")
    A("v_lshl_add_u32 v7, v3, 3, v6")
    A("v_mul_u32_u24 v7, 448, v7")
    A("v_and_b32 v8, 3, v2")
    A("v_lshl_add_u32 v7, v8, 3, v7")
    A(f"v_add_u32 v7, {XS}, v7")
    A("v_and_b32 v8, 1, v3")
    A("v_lshlrev_b32 v8, 5, v8")
    A("v_lshrrev_b32 v9, 1, v2")
    A("v_xor_b32 v9, v9, v3")
    A("v_lshlrev_b32 v9, 4, v9")
    XA = 14
    A(f"v_lshl_add_u32 v{XA}, v2, 7, v9")
    A(f"v_xor_b32 v{XA+1}, 64, v{XA}")
    for w in range(3):
        A(f"s_cmp_eq_u32 s{S_WAVE}, {w}")
        A(f"s_cbranch_scc1 {n}_c{w}")
    for w in [3, 0, 1, 2]:
        A.label(f"{n}_c{w}")
        if w < 3:
            nts = [3*w, 3*w+1, 3*w+2]
            units = [(t, st) for t in nts for st in range(7)] + [(13, 2*w+1), (13, 2*w+2)]
            ants = nts + [13]
            sts = list(range(7))
        else:
            nts = [9, 10, 11, 12]
            units = [(t, st) for t in nts for st in range(1, 7)]
            ants = nts
            sts = list(range(1, 7))
        WA = 10
        A("v_add_u32 v10, v7, v8")
        A("v_sub_u32 v11, v7, v8")
        A("v_mov_b32 v12, v10"); A("v_mov_b32 v13, v10")
        A("v_mul_u32_u24 v4, 48, v2")
        for ai, t in enumerate(ants):
            for p in range(2):
                va = 212 + 2*ai + p
                A("v_lshlrev_b32 v5, 2, v3")
                A(f"v_add_u32 v5, {16*t + 2*p}, v5")
                A("v_mul_u32_u24 v6, 3641, v5")
                A("v_lshrrev_b32 v6, 16, v6")
                A("v_mul_u32_u24 v6, 5340, v6")
                A(f"v_lshl_add_u32 v{va}, v5, 1, v6")
                A(f"v_add_u32 v{va}, v{va}, v4")
        ACC = 28
        acc = {u: ACC + 4*i for i, u in enumerate(units)}
        FR = [124, 168]
        def reads(ks, base):
            lst = []
            for ai, t in enumerate(ants):
                for h in range(2):
                    lst.append(f"ds_read_b64_tr_b16 {v(base+4*ai+2*h,2)}, v{WA+(t&1)} offset:{ks*32*448 + h*4*448 + 32*t}")
            for bi, st in enumerate(sts):
                lst.append(f"ds_read_b128 {v(base+16+4*bi,4)}, v{XA+ks} offset:{st*2048}")
            return lst
        def mfmas(base, first):
            lst = []
            for (t, st) in units:
                ai = ants.index(t); bi = sts.index(st)
                c = "0" if first else v(acc[(t, st)], 4)
                lst.append(f"v_mfma_f32_16x16x32_bf16 {v(acc[(t,st)],4)}, {v(base+4*ai,4)}, {v(base+16+4*bi,4)}, {c}")
            return lst
        def interleave(mf, rd):
            i = 0
            for m in mf:
                A(m)
                if i < len(rd): A(rd[i]); i += 1
            while i < len(rd): A(rd[i]); i += 1
        for u in units:
            for r in range(0, 4, 2): A(f"v_mov_b64 {v(acc[u]+r,2)}, 0")
        A("s_mov_b32 s60, 0")
        A("s_mov_b32 s61, 0")
        A(f"s_mov_b32 s52, {ST1}")
        A(f"s_mov_b32 s53, {(-2*ST1) & 0xffffffff}")
        LF = OPT.get("lf", 0)
        if LF:
            A(f"v_mov_b32 v235, {PL}")
            A(f"v_mov_b32 v234, {PC + 4*w}")
            if w == 0:
                A("v_mov_b64 v[236:237], 0"); A("v_mov_b64 v[238:239], 0")
                A("ds_write_b128 v235, v[236:239]")
                A("ds_write_b128 v235, v[236:239] offset:16")
                A("s_waitcnt lgkmcnt(0)")
            A("s_barrier")
            lds_poll(A, 235, 236, 63, "1", 55)
        else:
            if OPT.get("r1", 1):
                A("s_waitcnt vmcnt(0)")
                A("s_barrier")
            A("s_barrier")
        stamp(A, 1)
        for r_ in reads(0, FR[0]): A(r_)
        A("s_waitcnt lgkmcnt(0)")
        A(f"s_branch {n}_q{w}")
        A.label(f"{n}_l{w}")
        if LF:
            A("s_add_u32 s54, s60, 1")
            lds_poll(A, 235, 236, 63, "s54", 55, pre_read=True)
        else:
            A("s_barrier")
        interleave(mfmas(FR[1], False), reads(0, FR[0]))
        A("s_waitcnt lgkmcnt(0)")
        A.label(f"{n}_q{w}")
        labp = A.newlabel("lpf")
        A(f"s_cmp_lg_u32 s60, {w}")
        A(f"s_cbranch_scc1 {labp}")
        A(f"s_add_u32 s63, s60, {OPT.get('af', 7)}")
        A("s_cmp_gt_u32 s63, 8")
        A(f"s_cbranch_scc1 {labp}")
        a_prefetch_issue(A, 230, 231, 63, 44, 48, 240)
        A.label(labp)
        if w == 3 and OPT.get("hpf", 1):
            labh = A.newlabel("hpf")
            A("s_cmp_lg_u32 s60, 3")
            A(f"s_cbranch_scc1 {labh}")
            A("s_cmp_ge_u32 s2, 64")
            A(f"s_cbranch_scc1 {labh}")
            A("s_and_b32 s98, s2, 7")
            A("s_lshr_b32 s97, s2, 3")
            A("s_add_u32 s97, s97, 10")
            grp_of(A, 96, 98, 97, 99)
            A("s_lshl_b32 s96, s96, 14")
            A(f"s_add_u32 s92, s{P_H}, s96")
            A(f"s_addc_u32 s93, s{P_H+1}, 0")
            A("s_and_b32 s93, s93, 0xffff")
            A("s_mov_b32 s94, 16384")
            A("s_mov_b32 s95, 0x00020000")
            A("v_lshlrev_b32 v232, 7, v1")
            A("buffer_load_dword v242, v232, s[92:95], 0 offen")
            A("v_add_u32 v232, 8192, v232")
            A("buffer_load_dword v243, v232, s[92:95], 0 offen")
            A.label(labh)
        A("s_add_u32 s61, s61, 1")
        A("s_cmp_eq_u32 s61, 3")
        A("s_cselect_b32 s62, s53, s52")
        A("s_cselect_b32 s61, 0, s61")
        if LF:
            mf = mfmas(FR[0], False); rd = reads(1, FR[1])
            i = 0
            for idx, m in enumerate(mf):
                A(m)
                if i < len(rd): A(rd[i]); i += 1
                if idx == len(mf) - 5:
                    A("s_add_u32 s54, s60, 1")
                    A("v_mov_b32 v242, s54") if False else None
                    A("s_waitcnt lgkmcnt(0)")
                    A("v_mov_b32 v233, s54")
                    A("ds_write_b32 v234, v233")
                    A("ds_read_b128 v[236:239], v235")
            for r in range(6): A(f"v_add_u32 v{10+r}, s62, v{10+r}")
            A("s_add_u32 s60, s60, 1")
            A("s_cmp_lt_u32 s60, 9")
            A("s_waitcnt lgkmcnt(0)")
            A(f"s_cbranch_scc1 {n}_l{w}")
        else:
            interleave(mfmas(FR[0], False), reads(1, FR[1]))
            for r in range(6): A(f"v_add_u32 v{10+r}, s62, v{10+r}")
            A("s_add_u32 s60, s60, 1")
            A("s_cmp_lt_u32 s60, 9")
            A("s_waitcnt lgkmcnt(0)")
            A(f"s_cbranch_scc1 {n}_l{w}")
        A("s_barrier")
        last = mfmas(FR[1], False)
        pend = []
        k = 0
        def flush_one(u):
            nonlocal k
            (t, st) = u
            ai = ants.index(t); a0 = acc[(t, st)]
            tmp = 124 + 2*(k % 8); k += 1
            A(f"v_cvt_pk_bf16_f32 v{tmp}, v{a0}, v{a0+1}")
            A(f"v_cvt_pk_bf16_f32 v{tmp+1}, v{a0+2}, v{a0+3}")
            A(f"ds_write_b32 v{212+2*ai}, v{tmp} offset:{768*st}")
            A(f"ds_write_b32 v{212+2*ai+1}, v{tmp+1} offset:{768*st}")
        for m, u in zip(last, units):
            A(m)
            pend.append(u)
            if len(pend) > 3: flush_one(pend.pop(0))
        for u in pend: flush_one(u)
        stamp(A, 4)
        A(f"s_branch {n}_attn")
    A.label(f"{n}_loader")
    if OPT.get("prio"): A(f"s_setprio {OPT['prio']}")
    A(f"s_sub_u32 s35, s{S_WAVE}, 4")
    A("v_lshrrev_b32 v2, 3, v1")
    A("v_and_b32 v3, 7, v1")
    A("v_lshrrev_b32 v4, 4, v1")
    A("v_mul_u32_u24 v5, 1152, v2")
    A("v_xor_b32 v6, v3, v4")
    A("v_lshl_add_u32 v10, v6, 4, v5")
    A("v_xor_b32 v11, 64, v10")
    A("s_lshl_b32 s36, s35, 2")
    A("s_cmp_eq_u32 s35, 3")
    A("s_cselect_b32 s36, 11, s36")
    A("s_cselect_b64 s[54:55], -1, 0")
    A("v_cndmask_b32 v16, v10, v11, s[54:55]")
    A("v_cndmask_b32 v17, v11, v10, s[54:55]")
    A("s_sub_u32 s37, s34, 16")
    A("s_mul_i32 s37, s37, 1152")
    A("s_mul_i32 s38, s36, 9216")
    A("s_add_u32 s37, s37, s38")
    A("s_lshl_b32 s38, s36, 10")
    WV = 32
    def w_offsets():
        A("s_mul_i32 s40, s35, 448")
        A("s_mul_i32 s41, s33, 144")
        A(f"v_mov_b32 v9, 0x{BIGOFF:x}")
        for j in range(7):
            A(f"s_add_u32 s52, s40, {64*j}")
            A("v_add_u32 v2, s52, v1")
            A("v_mul_u32_u24 v3, 2341, v2")
            A("v_lshrrev_b32 v3, 16, v3")
            A("v_mul_u32_u24 v4, 28, v3")
            A("v_sub_u32 v4, v2, v4")
            A("v_bfe_u32 v5, v3, 3, 1")
            A("v_lshlrev_b32 v5, 1, v5")
            A("v_xor_b32 v4, v4, v5")
            A("v_mov_b32 v6, 1152")
            A("v_mov_b32 v7, 2160")
            A("v_cmp_le_u32 vcc, 9, v4")
            A("v_cndmask_b32 v6, v6, v7, vcc")
            A("v_mov_b32 v7, -288")
            A("v_cmp_le_u32 vcc, 18, v4")
            A("v_cndmask_b32 v6, v6, v7, vcc")
            A("v_lshl_add_u32 v6, v4, 4, v6")
            A("v_add_u32 v6, s41, v6")
            A("v_mul_u32_u24 v3, 3456, v3")
            A(f"v_add_u32 v{WV+j}, v3, v6")
            A("v_cmp_eq_u32 vcc, 27, v4")
            A(f"v_cndmask_b32 v{WV+j}, v{WV+j}, v9, vcc")
        A("s_mov_b32 s40, 0")
        A("s_mul_i32 s41, s35, 7168")
        A(f"s_add_u32 s41, s41, {XS}")
    def issue_block(first=False):
        A(f"s_mul_i32 s62, s61, {ST1}")
        A("s_add_u32 s63, s38, s62")
        if not first: A("s_add_u32 s62, s41, s62")
        for j in range(4):
            lab = None
            if j == 3:
                lab = A.newlabel(f"{n}_sk")
                A("s_cmp_ge_u32 s35, 2")
                A(f"s_cbranch_scc1 {lab}")
            A(f"s_add_u32 m0, s63, {1024*j}")
            A(f"s_add_u32 s52, s37, {9216*j}")
            if j < 2:
                A("s_cmp_lt_i32 s52, 0")
                A(f"s_cselect_b32 s52, 0x{BIGOFF:x}, s52")
            A(f"buffer_load_dwordx4 v{16+(j&1)}, s[44:47], s52 offen lds")
            if lab: A.label(lab)
        if first:
            w_offsets()
            A("s_mov_b32 s62, s41")
        for j in range(7):
            A(f"s_add_u32 m0, s62, {1024*j}")
            A("s_nop 0")
            A(f"buffer_load_dwordx4 v{WV+j}, s[48:51], s40 offen lds")
        A("s_add_u32 s37, s37, 128")
        A("s_add_u32 s40, s40, 221184")
        A("s_add_u32 s61, s61, 1")
        A("s_cmp_eq_u32 s61, 3")
        A("s_cselect_b32 s61, 0, s61")
    if OPT.get("lf", 0):
        A("s_mov_b32 s61, 0")
        issue_block(True)
        stamp(A, 1)
        A("v_and_b32 v2, 15, v1")
        A("v_lshrrev_b32 v3, 4, v1")
        attn_setup(A)
        A(f"v_mov_b32 v24, {PC}")
        A("s_lshl_b32 s53, s35, 2")
        A(f"s_add_u32 s53, s53, {PL}")
        A("v_mov_b32 v25, s53")
        A("s_barrier")
        A("s_waitcnt vmcnt(0)")
        A("v_mov_b32 v26, 1")
        A("ds_write_b32 v25, v26")
        stamp(A, 2)
        A("s_mov_b32 s60, 1")
        A.label(f"{n}_ll")
        labn = A.newlabel("nw")
        A("s_cmp_lt_u32 s60, 3")
        A(f"s_cbranch_scc1 {labn}")
        A("s_sub_u32 s54, s60, 2")
        lds_poll(A, 24, 28, 53, "s54", 55)
        A.label(labn)
        issue_block()
        if STAMPS and OPT.get("dbgl"):
            A("s_memrealtime s[100:101]")
            A("s_waitcnt lgkmcnt(0)")
            A("s_add_u32 s99, s60, 5")
            A("s_mov_b32 m0, s99")
            A("s_nop 4")
            A("v_writelane_b32 v246, s100, m0")
        A("s_waitcnt vmcnt(10)")
        A("v_mov_b32 v26, s60")
        A("ds_write_b32 v25, v26")
        A("s_add_u32 s60, s60, 1")
        A("s_cmp_lt_u32 s60, 9")
        A(f"s_cbranch_scc1 {n}_ll")
        A("s_waitcnt vmcnt(0)")
        A("v_mov_b32 v26, 9")
        A("ds_write_b32 v25, v26")
        A("s_waitcnt lgkmcnt(0)")
    else:
        A("s_mov_b32 s61, 0")
        if OPT.get("r1", 1):
            A("v_and_b32 v2, 15, v1")
            A("v_lshrrev_b32 v3, 4, v1")
            attn_setup(A)
            A("s_waitcnt vmcnt(0)")
            A("s_barrier")
            stamp(A, 1)
            A("s_mov_b32 s60, 0")
            A.label(f"{n}_lp")
            issue_block()
            A("s_add_u32 s60, s60, 1")
            A("s_cmp_lt_u32 s60, 2")
            A(f"s_cbranch_scc1 {n}_lp")
            A("s_waitcnt vmcnt(10)")
            stamp(A, 2)
            A("s_barrier")
            issue_block()
        else:
            issue_block(True)
            stamp(A, 1)
            A("v_and_b32 v2, 15, v1")
            A("v_lshrrev_b32 v3, 4, v1")
            attn_setup(A)
            A("s_waitcnt vmcnt(0)")
            stamp(A, 2)
            A("s_barrier")
            A("s_mov_b32 s60, 0")
            A.label(f"{n}_lp")
            issue_block()
            A("s_add_u32 s60, s60, 1")
            A("s_cmp_lt_u32 s60, 2")
            A(f"s_cbranch_scc1 {n}_lp")
        stamp(A, 3)
        A("s_mov_b32 s60, 0")
        A.label(f"{n}_ll")
        A("s_waitcnt vmcnt(10)")
        A("s_barrier")
        issue_block()
        A("s_add_u32 s60, s60, 1")
        A("s_cmp_lt_u32 s60, 6")
        A(f"s_cbranch_scc1 {n}_ll")
        A("s_waitcnt vmcnt(10)")
        A("s_barrier")
        A("s_waitcnt vmcnt(0)")
        A("s_barrier")
    A("s_barrier")
    A.label(f"{n}_attn")
    if OPT.get("prio"): A("s_setprio 0")
    A("s_waitcnt lgkmcnt(0)")
    A("s_barrier")
    stamp(A, 5)
    if OPT.get("hearly", 1):
        labh = A.newlabel("hea")
        A("s_cmp_ge_u32 s2, 64")
        A(f"s_cbranch_scc1 {labh}")
        A("s_and_b32 s38, s2, 7")
        A("s_lshr_b32 s37, s2, 3")
        A("s_add_u32 s37, s37, 10")
        grp_of(A, 36, 38, 37, 39)
        A(f"s_and_b32 s37, s{S_WAVE}, 3")
        A("s_lshl_b32 s36, s36, 2")
        A("s_add_u32 s36, s36, s37")
        A("s_lshl_b32 s36, s36, 12")
        make_srd(A, 48, P_H, 4096, add_s=36)
        HL = 170; a = HL + 26
        A(f"v_lshlrev_b32 v{a}, 4, v1")
        A(f"s_lshr_b32 s37, s{S_WAVE}, 2")
        A("s_lshl_b32 s37, s37, 11")
        A(f"v_add_u32 v{a}, s37, v{a}")
        A(f"v_add_u32 v{a+1}, 4, v{a}")
        A(f"v_add_u32 v{a+2}, 8, v{a}")
        for it in range(2):
            A(f"buffer_load_dwordx4 {v(HL+12*it,4)}, v{a}, s[48:51], 0 offen offset:{1024*it}")
            A(f"buffer_load_dwordx4 {v(HL+12*it+4,4)}, v{a+1}, s[48:51], 0 offen offset:{1024*it}")
            A(f"buffer_load_dwordx4 {v(HL+12*it+8,4)}, v{a+2}, s[48:51], 0 offen offset:{1024*it}")
        A(f"v_mov_b32 v{a+3}, 0")
        A(f"buffer_load_dwordx2 {v(HL+24,2)}, v{a+3}, s[48:51], 0 offen")
        A.label(labh)
    cst = struct.unpack("<I", struct.pack("<f", (18 ** -0.5) * math.log2(math.e)))[0]
    A(f"s_mov_b32 s42, 0x{cst:08x}")
    B = 24
    def regs(b): return B + 40 * b
    for b in range(3):
        R = regs(b)
        A(f"ds_read_b128 {v(R,4)}, v{V_KQ} offset:{8*HHS + 768*(b+1)}")
        A(f"ds_read_b128 {v(R+4,4)}, v{V_KQ} offset:{768*b}")
        A(f"ds_read_b128 {v(R+8,4)}, v{V_KQ} offset:{768*(b+1)}")
    for b in range(3):
        R = regs(b)
        A(f"ds_read_b64_tr_b16 {v(R+12,2)}, v{V_VT} offset:{4*HHS + 768*b}")
        A(f"ds_read_b64_tr_b16 {v(R+14,2)}, v{V_VT} offset:{4*HHS + 768*(b+1)}")
        A(f"ds_read_b64_tr_b16 {v(R+16,2)}, v{V_VT} offset:{4*HHS + 768*b + 32}")
        A(f"ds_read_b64_tr_b16 {v(R+18,2)}, v{V_VT} offset:{4*HHS + 768*(b+1) + 32}")
    for b in range(3):
        R = regs(b)
        A(f"s_waitcnt lgkmcnt({12 + 3*(2-b)})" if 12 + 3*(2-b) <= 15 else "s_waitcnt lgkmcnt(15)")
        A(f"v_cndmask_b32 v{R}, 0, v{R}, s[82:83]")
        for r in range(1, 4):
            A(f"v_cndmask_b32 v{R+r}, 0, v{R+r}, s[80:81]")
        A(f"v_mfma_f32_16x16x32_bf16 {v(R+20,4)}, {v(R+4,4)}, {v(R,4)}, 0")
        A(f"v_mfma_f32_16x16x32_bf16 {v(R+24,4)}, {v(R+8,4)}, {v(R,4)}, 0")
    for b in range(3):
        R = regs(b); S = R + 20
        for e in range(8):
            m = (84 + 2*e) if (b == 0 and e < 4) else (64 + 2*e)
            A(f"v_cndmask_b32 v{S+e}, v{V_NINF}, v{S+e}, s[{m}:{m+1}]")
        M = R + 28
        A(f"v_max3_f32 v{M}, v{S}, v{S+1}, v{S+2}")
        A(f"v_max3_f32 v{M}, v{M}, v{S+3}, v{S+4}")
        A(f"v_max3_f32 v{M}, v{M}, v{S+5}, v{S+6}")
        A(f"v_max_f32 v{M}, v{M}, v{S+7}")
    def xlane(op, b_regs):
        for kind in ("16", "32"):
            for (M, T) in b_regs: A(f"v_mov_b32 v{T}, v{M}")
            for (M, T) in b_regs: A(f"v_permlane{kind}_swap_b32 v{M}, v{T}")
            for (M, T) in b_regs: A(f"{op} v{M}, v{M}, v{T}")
    xlane("v_max_f32", [(regs(b)+28, regs(b)+29) for b in range(3)])
    for b in range(3):
        R = regs(b); M = R + 28
        A(f"v_mul_f32 v{M}, s42, v{M}")
    for b in range(3):
        R = regs(b); S = R + 20; M = R + 28
        for e in range(8): A(f"v_fma_f32 v{S+e}, v{S+e}, s42, -v{M}")
        for e in range(8): A(f"v_exp_f32 v{S+e}, v{S+e}")
    for b in range(3):
        R = regs(b); S = R + 20; M = R + 30
        A(f"v_add_f32 v{M}, v{S}, v{S+1}")
        A(f"v_add_f32 v{M+1}, v{S+2}, v{S+3}")
        A(f"v_add_f32 v{M}, v{M}, v{S+4}")
        A(f"v_add_f32 v{M+1}, v{M+1}, v{S+5}")
        A(f"v_add_f32 v{M}, v{M}, v{S+6}")
        A(f"v_add_f32 v{M+1}, v{M+1}, v{S+7}")
        A(f"v_add_f32 v{M}, v{M}, v{M+1}")
    xlane("v_add_f32", [(regs(b)+30, regs(b)+31) for b in range(3)])
    for b in range(3):
        A(f"v_rcp_f32 v{regs(b)+30}, v{regs(b)+30}")
    A("s_waitcnt lgkmcnt(0)")
    for b in range(3):
        R = regs(b); S = R + 20; M = R + 30
        for e in range(8): A(f"v_mul_f32 v{S+e}, v{S+e}, v{M}")
        for q in range(4): A(f"v_cvt_pk_bf16_f32 v{R+q}, v{S+2*q}, v{S+2*q+1}")
        A(f"v_mfma_f32_16x16x32_bf16 {v(R+32,4)}, {v(R+12,4)}, {v(R,4)}, 0")
        A(f"v_mfma_f32_16x16x32_bf16 {v(R+36,4)}, {v(R+16,4)}, {v(R,4)}, 0")
    for b in range(3):
        R = regs(b)
        A(f"v_cvt_pk_bf16_f32 v{R+4}, v{R+32}, v{R+33}")
        A(f"v_cvt_pk_bf16_f32 v{R+5}, v{R+34}, v{R+35}")
        A(f"v_cvt_pk_bf16_f32 v{R+6}, v{R+36}, v{R+37}")
        A(f"ds_write2_b32 v{V_OW+b}, v{R+4}, v{R+5} offset0:0 offset1:1")
    A("s_mov_b64 exec, 0xffff")
    for b in range(3):
        A(f"ds_write_b32 v{V_OW+b}, v{regs(b)+6} offset:32")
    A("s_mov_b64 exec, -1")
    make_srd(A, 44, P_WS, SZ_T, WS_OF)
    A("s_waitcnt lgkmcnt(0)")
    A("s_barrier")
    stamp(A, 6)
    for rnd in range(2):
        A(f"ds_read_b128 {v(20+4*rnd,4)}, v{V_OL+rnd}")
    for rnd in range(2):
        A(f"s_waitcnt lgkmcnt({1-rnd})")
        A(f"buffer_store_dwordx4 {v(20+4*rnd,4)}, v{V_OG+rnd}, s[44:47], 0 offen sc1")
    A("s_waitcnt vmcnt(0)")
    A("s_barrier")
    lab = A.newlabel("a1f")
    A(f"s_cmp_lg_u32 s{S_WAVE}, 0")
    A(f"s_cbranch_scc1 {lab}")
    nonce_resolve(A, "A")
    A("s_lshl_b32 s36, s32, 8")
    A("s_lshl_b32 s37, s33, 2")
    A("s_add_u32 s36, s36, s37")
    flag_store(A, "A", 36)
    A.label(lab)
    stamp(A, 7)

HC = 4160
URB = 4 * HC
WB = URB + 4608
XCH = 4 * WB
ZS = 4160

def b2_common(A, s_grp):
    A(f"s_and_b32 s32, s{S_WAVE}, 3")
    A(f"s_lshr_b32 s33, s{S_WAVE}, 2")
    A(f"s_lshl_b32 s34, s{s_grp}, 2")
    A("s_add_u32 s34, s34, s32")
    A("s_lshl_b32 s35, s34, 12")
    A(f"s_mul_i32 s36, s32, {WB}")
    make_srd(A, 44, P_H, 4096, add_s=35)
    A("s_lshl_b32 s37, s34, 1")
    A("s_and_b32 s38, s37, 0xfffffffc")
    A(f"s_load_dword s39, s[{P_D}:{P_D+1}], s38")

def b2_h_loads(A, HL, nits=2):
    a = HL + 12 * nits + 2
    A(f"v_lshlrev_b32 v{a}, 4, v1")
    if nits == 2:
        A("s_lshl_b32 s40, s33, 11")
        A(f"v_add_u32 v{a}, s40, v{a}")
    A(f"v_add_u32 v{a+1}, 4, v{a}")
    A(f"v_add_u32 v{a+2}, 8, v{a}")
    for it in range(nits):
        A(f"buffer_load_dwordx4 {v(HL+12*it,4)}, v{a}, s[44:47], 0 offen offset:{1024*it}")
        A(f"buffer_load_dwordx4 {v(HL+12*it+4,4)}, v{a+1}, s[44:47], 0 offen offset:{1024*it}")
        A(f"buffer_load_dwordx4 {v(HL+12*it+8,4)}, v{a+2}, s[44:47], 0 offen offset:{1024*it}")
    A(f"v_mov_b32 v{a+3}, 0")
    A(f"buffer_load_dwordx2 {v(HL+12*nits,2)}, v{a+3}, s[44:47], 0 offen")

def b2_h_stage(A, HL, T, nits=2):
    a = HL + 12 * nits + 2
    A(f"v_add_u32 v{a+1}, s36, v{a}")
    for it in range(nits):
        b = HL + 12 * it
        for i in range(4): A(f"v_alignbit_b32 v{T+i}, v{b+4+i}, v{b+i}, 16")
        for i in range(4): A(f"v_alignbit_b32 v{T+4+i}, v{b+8+i}, v{b+4+i}, 16")
        off = 32 + 1024 * it
        A(f"ds_write_b128 v{a+1}, {v(b,4)} offset:{off}")
        A(f"ds_write_b128 v{a+1}, {v(T,4)} offset:{off+HC}")
        A(f"ds_write_b128 v{a+1}, {v(b+4,4)} offset:{off+2*HC}")
        A(f"ds_write_b128 v{a+1}, {v(T+4,4)} offset:{off+3*HC}")
    d0, d1 = HL + 12*nits, HL + 12*nits + 1
    A(f"v_lshlrev_b32 v{T+8}, 16, v{d0}")
    A(f"v_alignbit_b32 v{T+9}, v{d1}, v{d0}, 16")
    Z = T + 10
    for r in range(0, 8, 2): A(f"v_mov_b64 {v(Z+r,2)}, 0")
    A("v_cmp_eq_u32 s[60:61], 1, v1")
    A("v_cmp_eq_u32 s[62:63], 2, v1")
    A("v_cmp_eq_u32 s[64:65], 3, v1")
    A(f"v_cndmask_b32 v{Z+7}, v{Z+7}, v{T+8}, s[60:61]")
    A(f"v_cndmask_b32 v{Z+7}, v{Z+7}, v{d0}, s[62:63]")
    A(f"v_cndmask_b32 v{Z+7}, v{Z+7}, v{T+9}, s[64:65]")
    A(f"v_cndmask_b32 v{Z+6}, v{Z+6}, v{T+8}, s[64:65]")
    A(f"v_mul_u32_u24 v{a+2}, {HC}, v1")
    A(f"v_add_u32 v{a+2}, s36, v{a+2}")
    A("s_mov_b64 exec, 0xf")
    A(f"ds_write_b128 v{a+2}, {v(Z,4)}")
    A(f"ds_write_b128 v{a+2}, {v(Z+4,4)} offset:16")
    A("s_mov_b64 exec, 0xffffffff")
    A(f"v_lshlrev_b32 v{a+2}, 4, v1")
    A(f"v_add_u32 v{a+2}, s36, v{a+2}")
    A(f"ds_write_b128 v{a+2}, {v(Z,4)} offset:{URB+4096}")
    A("s_mov_b64 exec, -1")

def b2_main(A, s_grp, sb, resolved):
    make_srd(A, 48, P_WS, 4096, WS_UR, add_s=35)
    make_srd(A, 52, P_Q, SZ_T)
    make_srd(A, 56, P_OUT, 2048 * 2304)
    A("v_and_b32 v3, 15, v1")
    A("v_lshrrev_b32 v4, 4, v1")
    A("v_lshlrev_b32 v5, 4, v1")
    A("s_lshl_b32 s40, s33, 11")
    A("v_add_u32 v5, s40, v5")
    A("v_add_u32 v10, s36, v5")
    A("v_lshlrev_b32 v9, 5, v3")
    A("v_lshl_add_u32 v9, v4, 3, v9")
    A(f"s_lshl_b32 s41, s{S_WAVE}, 8")
    A("v_add_u32 v8, s41, v1")
    A("s_movk_i32 s42, 1152")
    A("v_mul_lo_u32 v8, v8, s42")
    A(f"s_lshl_b32 s43, s{s_grp}, 3")
    A("v_add_u32 v8, s43, v8")
    A("v_add_u32 v12, 1, v3")
    A("v_and_b32 v13, 3, v12")
    A("v_lshrrev_b32 v12, 2, v12")
    A(f"v_mul_u32_u24 v13, {HC}, v13")
    A("v_lshl_add_u32 v13, v4, 4, v13")
    A("v_lshl_add_u32 v13, v12, 3, v13")
    A("s_lshl_b32 s41, s33, 8")
    A("s_add_u32 s41, s41, s36")
    A("v_add_u32 v13, s41, v13")
    A("v_lshlrev_b32 v14, 4, v4")
    A("v_lshlrev_b32 v15, 5, v3")
    A("v_sub_u32 v14, v14, v15")
    A(f"v_add_u32 v14, {URB+480}, v14")
    A("v_add_u32 v14, s41, v14")
    stamp(A, sb + 0)
    lab = A.newlabel("b2w")
    A(f"s_cmp_lg_u32 s{S_WAVE}, 0")
    A(f"s_cbranch_scc1 {lab}")
    if not resolved:
        A("s_waitcnt vmcnt(0)")
        nonce_resolve(A, "B")
    A(f"s_lshr_b32 s41, s{s_grp}, 4")
    A("s_lshl_b32 s41, s41, 8")
    flag_poll(A, "B", 41)
    A.label(lab)
    A("s_barrier")
    stamp(A, sb + 1)
    U = 68
    for it in range(2):
        A(f"buffer_load_dwordx4 {v(U+4*it,4)}, v5, s[48:51], 0 offen offset:{1024*it} sc1")
    Q = 84
    A(f"s_lshl_b32 s41, s{S_WAVE}, 12")
    A("v_lshlrev_b32 v6, 4, v1")
    A(f"v_add_u32 v6, {XCH}, v6")
    A("v_add_u32 v7, s41, v6")
    A(f"s_xor_b32 s42, s{S_WAVE}, 4")
    A("s_lshl_b32 s42, s42, 12")
    A("v_add_u32 v6, s42, v6")
    A(f"v_sub_u32 v11, {URB+504}, v9")
    A("s_lshl_b32 s41, s33, 11")
    A("s_sub_u32 s42, s36, s41")
    A("v_add_u32 v11, s42, v11")
    A(f"s_mul_i32 s42, s32, {ZS}")
    A("s_add_u32 s42, s42, s41")
    A("v_add_u32 v9, s42, v9")
    A("s_waitcnt vmcnt(0)")
    for it in range(2):
        A(f"ds_write_b128 v10, {v(U+4*it,4)} offset:{URB+1024*it}")
    for it in range(4): A(f"s_mov_b32 s{60+it}, {64*1152*it}")
    A("s_waitcnt lgkmcnt(0)")
    A("s_barrier")
    stamp(A, sb + 2)
    ACC = 208
    FA = [104, 16]
    def frag_reads(rho, base):
        lst = []
        for b in range(8):
            lst.append(f"ds_read_b128 {v(base+32+4*b,4)}, v14 offset:{64*rho+512*(7-b)}")
        aa_l = []
        for aa in range(8):
            aa_l.append(f"ds_read_b64 {v(base+4*aa,2)}, v13 offset:{512*aa+64*rho}")
            aa_l.append(f"ds_read_b64 {v(base+4*aa+2,2)}, v13 offset:{512*aa+64*rho+8}")
        return aa_l[:2] + lst + aa_l[2:]
    for r_ in frag_reads(0, FA[0]): A(r_)
    UU = 88
    UU = 92
    for rho in range(4):
        base = FA[rho & 1]
        A("s_waitcnt lgkmcnt(0)")
        rd = frag_reads(rho + 1, FA[(rho + 1) & 1]) if rho < 3 else [f"ds_read_b64 {v(UU+2*c,2)}, v11 offset:{512*(7-c)}" for c in range(4)]
        i = 0
        A(f"buffer_load_dwordx2 {v(Q+2*rho,2)}, v8, s[52:55], s{60+rho} offen")
        for aa in range(8):
            for b in range(8 - aa):
                c = aa + b
                src = "0" if (rho == 0 and aa == 0) else v(ACC+4*c, 4)
                A(f"v_mfma_f32_16x16x32_bf16 {v(ACC+4*c,4)}, {v(base+4*aa,4)}, {v(base+32+4*b,4)}, {src}")
                if i < len(rd): A(rd[i]); i += 1
    stamp(A, sb + 3)
    l1 = A.newlabel("b2h1"); l2 = A.newlabel("b2x")
    KP = 192
    A("s_cmp_eq_u32 s33, 1")
    A(f"s_cbranch_scc1 {l1}")
    for c in range(4): A(f"ds_write_b128 v7, {v(ACC+16+4*c,4)} offset:{1024*c}")
    for c in range(8): A(f"v_mov_b64 {v(KP+2*c,2)}, {v(ACC+2*c,2)}")
    A(f"s_branch {l2}")
    A.label(l1)
    for c in range(4): A(f"ds_write_b128 v7, {v(ACC+4*c,4)} offset:{1024*c}")
    for c in range(8): A(f"v_mov_b64 {v(KP+2*c,2)}, {v(ACC+16+2*c,2)}")
    A.label(l2)
    A("s_and_b32 s37, s37, 2")
    A("s_lshl_b32 s37, s37, 3")
    A("s_waitcnt lgkmcnt(0)")
    A("s_lshr_b32 s39, s39, s37")
    A("s_lshl_b32 s39, s39, 16")
    TT = 16
    for c in range(4):
        A(f"v_and_b32 v{TT+4*c+0}, 0xffff0000, v{UU+2*c+1}")
        A(f"v_lshlrev_b32 v{TT+4*c+1}, 16, v{UU+2*c+1}")
        A(f"v_and_b32 v{TT+4*c+2}, 0xffff0000, v{UU+2*c}")
        A(f"v_lshlrev_b32 v{TT+4*c+3}, 16, v{UU+2*c}")
    for e in range(16): A(f"v_fma_f32 v{KP+e}, v{TT+e}, s39, v{KP+e}")
    A("s_barrier")
    for c in range(4): A(f"ds_read_b128 {v(48+4*c,4)}, v6 offset:{1024*c}")
    for c in range(4):
        A(f"s_waitcnt lgkmcnt({3-c})")
        for r in range(4): A(f"v_add_f32 v{KP+4*c+r}, v{KP+4*c+r}, v{48+4*c+r}")
        A(f"v_cvt_pk_bf16_f32 v{64+2*c}, v{KP+4*c}, v{KP+4*c+1}")
        A(f"v_cvt_pk_bf16_f32 v{65+2*c}, v{KP+4*c+2}, v{KP+4*c+3}")
        A(f"ds_write_b64 v9, {v(64+2*c,2)} offset:{512*c}")
    A("s_waitcnt vmcnt(0)")
    QF = 32
    for it in range(4):
        A(f"v_lshlrev_b32 v{QF+4*it+0}, 16, v{Q+2*it}")
        A(f"v_and_b32 v{QF+4*it+1}, 0xffff0000, v{Q+2*it}")
        A(f"v_lshlrev_b32 v{QF+4*it+2}, 16, v{Q+2*it+1}")
        A(f"v_and_b32 v{QF+4*it+3}, 0xffff0000, v{Q+2*it+1}")
    A("v_lshrrev_b32 v12, 2, v3")
    A(f"v_mul_u32_u24 v12, {ZS}, v12")
    A("v_and_b32 v13, 3, v3")
    A("v_lshl_add_u32 v12, v13, 3, v12")
    A("v_lshl_add_u32 v12, v4, 5, v12")
    A(f"s_lshl_b32 s41, s{S_WAVE}, 9")
    A("v_add_u32 v12, s41, v12")
    A(f"s_lshl_b32 s41, s{S_WAVE}, 8")
    A("v_add_u32 v13, s41, v1")
    A("s_movk_i32 s42, 2304")
    A(f"s_lshl_b32 s43, s{s_grp}, 3")
    A("s_add_u32 s43, s43, 1152")
    A("v_mul_lo_u32 v13, v13, s42")
    A("v_add_u32 v13, s43, v13")
    for it in range(4): A(f"s_mov_b32 s{60+it}, {64*2304*it}")
    A("s_waitcnt lgkmcnt(0)")
    A("s_barrier")
    for it in range(4):
        A(f"ds_read_b64_tr_b16 {v(16+2*it,2)}, v12 offset:{128*it}")
    for it in range(4):
        A(f"s_waitcnt lgkmcnt({3-it})")
        t = 48 + 4 * it
        A(f"v_lshlrev_b32 v{t+0}, 16, v{16+2*it}")
        A(f"v_and_b32 v{t+1}, 0xffff0000, v{16+2*it}")
        A(f"v_lshlrev_b32 v{t+2}, 16, v{16+2*it+1}")
        A(f"v_and_b32 v{t+3}, 0xffff0000, v{16+2*it+1}")
        for r in range(4): A(f"v_mul_f32 v{t+r}, v{t+r}, v{QF+4*it+r}")
        A(f"v_cvt_pk_bf16_f32 v{64+2*it}, v{t}, v{t+1}")
        A(f"v_cvt_pk_bf16_f32 v{65+2*it}, v{t+2}, v{t+3}")
        A(f"buffer_store_dwordx2 {v(64+2*it,2)}, v13, s[56:59], s{60+it} offen" + (" sc1" if OPT.get("b2sc1") else ""))
    stamp(A, sb + 4)

def b1_addr(A, s_tile, vt):
    A(f"s_mul_hi_u32 s66, s{s_tile}, 0x1c71c71d")
    A("s_mul_i32 s67, s66, 9")
    A(f"s_sub_u32 s67, s{s_tile}, s67")
    A(f"v_and_b32 v2, 7, v{vt}")
    A(f"v_lshrrev_b32 v3, 3, v{vt}")
    A("s_lshl_b32 s40, s66, 8")
    A("v_lshl_add_u32 v4, v3, 3, s40")
    A("s_lshl_b32 s41, s67, 7")
    A("v_lshl_add_u32 v5, v2, 4, s41")
    A("s_movk_i32 s42, 1152")
    A("v_mad_u32_u24 v6, v4, s42, v5")
    A("v_add_u32 v7, 4608, v6")

def gen_b1_kv(A, s_tile):
    A.comment("===== B1 kv (waves 0-3) =====")
    b1_addr(A, s_tile, 0)
    A("v_subrev_u32 v8, 3456, v6")
    A("v_subrev_u32 v9, 2304, v6")
    A("v_subrev_u32 v10, 1152, v6")
    make_srd(A, 48, P_K, SZ_T)
    make_srd(A, 52, P_V, SZ_T)
    make_srd(A, 56, P_SH, 576 * 8)
    KR, VR, SH, W = 16, 60, 92, 108
    KF, VF, ACC, OUT = 140, 162, 178, 194
    for j, vo in enumerate((8, 9, 10)):
        A(f"buffer_load_dwordx4 {v(KR+4*j,4)}, v{vo}, s[48:51], 0 offen")
    for i in range(8):
        A(f"buffer_load_dwordx4 {v(KR+4*(3+i),4)}, v{6 if i < 4 else 7}, s[48:51], 0 offen offset:{1152*(i%4)}")
    for i in range(8):
        A(f"buffer_load_dwordx4 {v(VR+4*i,4)}, v{6 if i < 4 else 7}, s[52:55], 0 offen offset:{1152*(i%4)}")
    A("s_lshl_b32 s43, s67, 9")
    A("v_lshl_add_u32 v11, v2, 6, s43")
    for i in range(4):
        A(f"buffer_load_dwordx4 {v(SH+4*i,4)}, v11, s[56:59], 0 offen offset:{16*i}")
    stamp(A, 2)
    make_srd(A, 52+8, P_WS, SZ_T, WS_UR)
    A("s_lshl_b32 s43, s67, 18")
    A("v_lshl_add_u32 v12, v2, 15, s43")
    A("v_lshlrev_b32 v14, 1, v4")
    A("v_sub_u32 v12, v12, v14")
    A("v_add_u32 v12, 4080, v12")
    for ch in range(8): A(f"s_mov_b32 s{68+ch}, {ch*4096}")
    A("s_waitcnt vmcnt(0)")
    A("s_barrier")
    stamp(A, 3)
    for ch in range(8):
        A(f"v_lshlrev_b32 v{W+0*8+ch}, 16, v{SH+2*ch}")
        A(f"v_and_b32 v{W+1*8+ch}, 0xffff0000, v{SH+2*ch}")
        A(f"v_lshlrev_b32 v{W+2*8+ch}, 16, v{SH+2*ch+1}")
        A(f"v_and_b32 v{W+3*8+ch}, 0xffff0000, v{SH+2*ch+1}")
    for m in range(4):
        for j in range(11):
            A(f"v_lshlrev_b32 v{KF+2*j}, 16, v{KR+4*j+m}")
            A(f"v_and_b32 v{KF+2*j+1}, 0xffff0000, v{KR+4*j+m}")
        for i in range(8):
            A(f"v_lshlrev_b32 v{VF+2*i}, 16, v{VR+4*i+m}")
            A(f"v_and_b32 v{VF+2*i+1}, 0xffff0000, v{VR+4*i+m}")
        for i in range(8):
            A(f"v_pk_mul_f32 {v(ACC+2*i,2)}, {v(W+3*8+2*m,2)}, {v(KF+2*i,2)}")
        for t in (2, 1, 0):
            for i in range(8):
                A(f"v_pk_fma_f32 {v(ACC+2*i,2)}, {v(W+t*8+2*m,2)}, {v(KF+2*(i+3-t),2)}, {v(ACC+2*i,2)}")
        for i in range(8):
            A(f"v_pk_mul_f32 {v(ACC+2*i,2)}, {v(ACC+2*i,2)}, {v(VF+2*i,2)}")
        o = OUT + 8 * (m & 1)
        for h in range(2):
            for q in range(4):
                A(f"v_cvt_pk_bf16_f32 v{o+4*h+q}, v{ACC+2*(7-2*q)+h}, v{ACC+2*(6-2*q)+h}")
        for h in range(2):
            A(f"buffer_store_dwordx4 {v(o+4*h,4)}, v12, s[60:63], s{68+2*m+h} offen sc1")
    stamp(A, 4)

def tlb_warm(A):
    items = []
    for p, size in ((P_K, SZ_T), (P_V, SZ_T), (P_Q, SZ_T), (P_H, SZ_T), (P_WO, 576*1152), (P_OUT, 2048*2304), (P_SH, 64), (P_D, 64)):
        offs = list(range(0, size, 2 << 20))
        offs.append(size - 128 if size > 128 else 0)
        for o in sorted(set(offs)): items.append((p, o))
    for o in (0, (2 << 20) + (1 << 20), (4 << 20), (6 << 20) + (1 << 20), (8 << 20), (10 << 20) + (1 << 20), (12 << 20)):
        items.append((P_WS, o))
    assert len(items) <= 64
    A(f"v_mov_b32 v20, s{P_WS}")
    A(f"v_mov_b32 v21, s{P_WS+1}")
    for i, (p, o) in enumerate(items):
        A(f"s_add_u32 s96, s{p}, {o}")
        A(f"s_addc_u32 s97, s{p+1}, 0")
        A(f"v_writelane_b32 v20, s96, {i}")
        A(f"v_writelane_b32 v21, s97, {i}")
    A("global_load_dword v245, v[20:21], off")

def tlb_warm64(A, s_idx10):
    regions = [(P_WS, WS_UR - 4096, SZ_T + 4096), (P_WS, WS_OF - 4096, SZ_T + 4096), (P_OUT, 0, 2048 * 2304), (P_Q, 0, SZ_T), (P_H, 0, SZ_T), (P_WO, 0, 576 * 1152), (P_K, 0, SZ_T), (P_V, 0, SZ_T)]
    vd = 236
    for r, (p, base, size) in enumerate(regions):
        n = -(-size // 65536)
        per = -(-n // 10)
        make_srd(A, 92, p, size, base)
        A(f"s_mul_i32 s96, s{s_idx10}, {per}")
        A("v_add_u32 v22, s96, v1")
        A("v_lshlrev_b32 v22, 16, v22")
        A(f"v_mov_b32 v23, 0x{BIGOFF:x}")
        A(f"v_cmp_le_u32 vcc, {per}, v1")
        A("v_cndmask_b32 v22, v22, v23, vcc")
        A(f"buffer_load_dword v{vd + (r & 3)}, v22, s[92:95], 0 offen sc1")

def b_prefetch(A):
    make_srd(A, 48, P_X, SZ_T)
    make_srd(A, 52, P_W, 576 * 3456)
    lab = A.newlabel("bpf"); lab1 = A.newlabel("bpf1")
    if OPT.get("r1", 1):
        A(f"s_cmp_ge_u32 s{S_WAVE}, 5")
        A(f"s_cbranch_scc1 {lab1}")
        A("s_lshr_b32 s40, s2, 3")
        a_prefetch_setup(A, 10, 12, 4, 40, 32)
        a_prefetch_issue(A, 10, 12, S_WAVE, 48, 52, 240)
        A(f"s_branch {lab}")
        A.label(lab1)
        A(f"s_cmp_ge_u32 s{S_WAVE}, {OPT.get('af', 7)}")
        A(f"s_cbranch_scc1 {lab}")
        A("s_lshr_b32 s40, s91, 3")
        a_prefetch_setup(A, 10, 12, 4, 40, 10)
        a_prefetch_issue(A, 10, 12, S_WAVE, 48, 52, 240, two=True)
    else:
        A(f"s_cmp_ge_u32 s{S_WAVE}, {OPT.get('af', 7) - 1}")
        A(f"s_cbranch_scc1 {lab}")
        A("s_lshr_b32 s40, s91, 3")
        a_prefetch_setup(A, 10, 12, 4, 40, 10)
        A(f"s_add_u32 s40, s{S_WAVE}, 1")
        a_prefetch_issue(A, 10, 12, 40, 48, 52, 240, two=True)
    A.label(lab)
    if OPT.get("tlb"):
        lab2 = A.newlabel("tlb")
        A(f"s_cmp_lg_u32 s{S_WAVE}, 7")
        A(f"s_cbranch_scc1 {lab2}")
        tlb_warm(A)
        if OPT.get("tlb64"):
            A("s_lshr_b32 s97, s91, 3")
            tlb_warm64(A, 97)
        A.label(lab2)
    get_nonce_issue(A, "B")

def gen_b1_aux(A, s_tile, has_tile):
    A.comment("===== B1 aux (waves 4-7) =====")
    HL = 130
    if has_tile:
        A("s_barrier")
    b2_h_loads(A, HL, 4)
    make_srd(A, 48, P_Q, SZ_T)
    A("s_lshr_b32 s40, s91, 3")
    A("s_lshl_b32 s40, s40, 2")
    A("s_add_u32 s40, s40, s32")
    A("s_mul_i32 s40, s40, 52")
    A("v_add_u32 v10, s40, v1")
    A("s_and_b32 s41, s2, 7")
    if OPT.get("gmap", 1):
        A("s_lshl_b32 s41, s41, 7")
    else:
        A("s_mul_i32 s41, s41, 144")
        A("s_and_b32 s41, s41, 0xffffff80")
    A("s_movk_i32 s42, 1152")
    A("v_mul_lo_u32 v11, v10, s42")
    A("v_add_u32 v11, s41, v11")
    A(f"v_mov_b32 v12, 0x{BIGOFF:x}")
    A("v_cmp_le_u32 vcc, 52, v1")
    A("v_cndmask_b32 v11, v11, v12, vcc")
    A("buffer_load_dword v243, v11, s[48:51], 0 offen")
    if OPT.get("gmap", 1):
        A("v_subrev_u32 v12, s41, v11")
        A("v_add_u32 v12, 1024, v12")
        A("buffer_load_dword v244, v12, s[48:51], 0 offen")
    else:
        A("buffer_load_dword v244, v11, s[48:51], 0 offen offset:128")
    stamp(A, 2)
    A("s_waitcnt vmcnt(2)")
    stamp(A, 4)
    b2_h_stage(A, HL, 100, 4)

WO_B = 72 * 1024

def gen_a2(A, s_x, s_a, sb):
    A.comment("===== A2 =====")
    A(f"s_sub_u32 s34, s{s_a}, 4")
    A("s_lshr_b32 s33, s34, 1")
    A("s_add_u32 s33, s33, 4")
    A("s_and_b32 s34, s34, 1")
    A(f"s_cmp_lt_u32 s{s_a}, 4")
    A(f"s_cselect_b32 s33, s{s_a}, s33")
    A("s_cselect_b32 s34, 0, s34")
    A("s_cselect_b32 s42, 2, 1")
    A(f"s_lshl_b32 s32, s{s_x}, 1")
    A("s_add_u32 s32, s32, s34")
    make_srd(A, 44, P_WO, 576 * 1152)
    A("v_lshrrev_b32 v2, 3, v1")
    A("v_and_b32 v3, 7, v1")
    A("v_bfe_u32 v4, v1, 4, 1")
    A("v_lshlrev_b32 v4, 1, v4")
    A("v_xor_b32 v4, v4, v3")
    A("v_mul_u32_u24 v5, 1152, v2")
    A("v_lshl_add_u32 v5, v4, 4, v5")
    A("s_lshl_b32 s34, s33, 7")
    A("v_add_u32 v10, s34, v5")
    A("v_xor_b32 v11, 64, v10")
    A(f"s_mul_i32 s35, s{S_WAVE}, 9")
    A("s_and_b32 s36, s35, 1")
    A("s_cmp_eq_u32 s36, 1")
    A("s_cselect_b64 s[56:57], -1, 0")
    A("v_cndmask_b32 v12, v10, v11, s[56:57]")
    A("v_cndmask_b32 v13, v11, v10, s[56:57]")
    A("s_lshl_b32 s36, s33, 3")
    A("s_add_u32 s36, s36, s35")
    A("s_lshl_b32 s37, s35, 10")
    for j in range(9):
        A(f"s_add_u32 s38, s36, {j}")
        A("s_sub_u32 s39, s38, 72")
        A("s_cmp_ge_u32 s38, 72")
        A("s_cselect_b32 s38, s39, s38")
        A("s_mul_i32 s38, s38, 9216")
        A(f"s_add_u32 m0, s37, {1024*j}")
        A(f"buffer_load_dwordx4 v{12+(j&1)}, s[44:47], s38 offen lds")
    make_srd(A, 48, P_WS, SZ_T, WS_OF)
    make_srd(A, 52, P_OUT, 2048 * 2304)
    A("s_lshl_b32 s38, s32, 3")
    A(f"s_add_u32 s38, s38, s{S_WAVE}")
    A("s_mul_i32 s39, s38, 18432")
    A("v_lshlrev_b32 v2, 4, v1")
    A("v_add_u32 v2, s39, v2")
    A("v_add_u32 v3, 4096, v2"); A("v_add_u32 v4, 8192, v2"); A("v_add_u32 v5, 12288, v2"); A("v_add_u32 v6, 16384, v2")
    A("v_and_b32 v7, 15, v1")
    A("v_lshrrev_b32 v8, 4, v1")
    A("v_lshrrev_b32 v9, 2, v7")
    A("v_lshl_add_u32 v9, v8, 3, v9")
    A("v_lshlrev_b32 v9, 7, v9")
    A("v_and_b32 v10, 1, v7")
    A("v_lshl_add_u32 v9, v10, 3, v9")
    A("v_bfe_u32 v10, v7, 3, 1")
    A("v_and_b32 v11, 1, v8")
    A("v_lshl_add_u32 v10, v11, 1, v10")
    A("v_lshlrev_b32 v10, 1, v10")
    A("v_bfe_u32 v11, v7, 1, 1")
    for nt in range(4):
        A(f"v_add_u32 v14, {2*nt}, v11")
        A("v_xor_b32 v14, v14, v10")
        A(f"v_lshl_add_u32 v{16+nt}, v14, 4, v9")
        A(f"v_add_u32 v{20+nt}, 36864, v{16+nt}")
    A(f"s_mul_i32 s40, s{S_WAVE}, 2304")
    A(f"s_add_u32 s40, s40, {WO_B}")
    A("v_mul_u32_u24 v9, 144, v7")
    A("v_lshl_add_u32 v9, v8, 3, v9")
    A("v_add_u32 v9, s40, v9")
    A("v_lshrrev_b32 v10, 3, v1")
    A("v_and_b32 v11, 7, v1")
    A("v_mul_u32_u24 v12, 144, v10")
    A("v_lshl_add_u32 v12, v11, 4, v12")
    A("v_add_u32 v12, s40, v12")
    A("s_mul_i32 s39, s38, 36864")
    A("s_lshl_b32 s41, s33, 7")
    A("s_add_u32 s39, s39, s41")
    A("v_mul_u32_u24 v13, 2304, v10")
    A("v_lshl_add_u32 v13, v11, 4, v13")
    A("v_add_u32 v13, s39, v13")
    A("v_add_u32 v14, 18432, v13")
    stamp(A, sb + 0)
    lab = A.newlabel("a2w")
    A(f"s_cmp_lg_u32 s{S_WAVE}, 0")
    A(f"s_cbranch_scc1 {lab}")
    A("s_lshl_b32 s39, s32, 7")
    A("s_mul_hi_u32 s40, s39, 0x2aaaaab")
    A("s_lshl_b32 s41, s42, 7")
    A("s_add_u32 s39, s39, s41")
    A("s_sub_u32 s39, s39, 1")
    A("s_mul_hi_u32 s41, s39, 0x2aaaaab")
    make_srd(A, 92, P_WS, 65536, WS_FA)
    A("v_lshrrev_b32 v250, 3, v1")
    A("v_add_u32 v250, s40, v250")
    A("v_min_u32 v250, s41, v250")
    A("v_lshlrev_b32 v250, 8, v250")
    A("v_and_b32 v249, 7, v1")
    A("v_lshl_add_u32 v250, v249, 2, v250")
    A("s_mov_b64 exec, 0xffffffff")
    lp = A.newlabel("poll"); done = A.newlabel("polld")
    A("s_mov_b32 s88, 1000000")
    A.label(lp)
    A("buffer_load_dword v251, v250, s[92:95], 0 offen sc1")
    A("s_waitcnt vmcnt(0)")
    A(f"v_cmp_ne_u32 vcc, s{S_NA}, v251")
    A("s_nop 4")
    A(f"s_cbranch_vccz {done}")
    A(f"s_sleep {OPT.get('slp', 2)}")
    A("s_sub_u32 s88, s88, 1")
    A("s_cmp_lg_u32 s88, 0")
    A(f"s_cbranch_scc1 {lp}")
    A.label(done)
    A("s_mov_b64 exec, -1")
    A.label(lab)
    A("s_waitcnt vmcnt(0)")
    A("s_barrier")
    stamp(A, sb + 1)
    BF = [24, 136]
    ACC = 96
    AF = [112, 120]
    AF = [112, 208, 224]
    def oloads(base, extra):
        A("s_lshl_b32 s44, s33, 1")
        for j in range(18):
            A("s_lshl_b32 s45, s44, 10")
            if extra: A("s_add_u32 s45, s45, s43")
            A(f"buffer_load_dwordx4 {v(base+4*j,4)}, v2, s[48:51], s45 offen sc1")
            A("s_add_u32 s44, s44, 1")
            A("s_cmp_eq_u32 s44, 18")
            A("s_cselect_b32 s44, 0, s44")
    def reads(ks, base):
        lst = []
        for nt in range(4):
            va = (16 if ks < 9 else 20) + nt
            for h in range(2):
                lst.append(f"ds_read_b64_tr_b16 {v(base+4*nt+2*h,2)}, v{va} offset:{(ks%9)*4096 + h*512}")
        return lst
    def tile(bf, mode, soff):
        for r_ in reads(0, AF[0]): A(r_)
        for r_ in reads(1, AF[1]): A(r_)
        if mode == 1: A("s_lshl_b32 s44, s33, 1")
        for ks in range(18):
            rd = reads(ks + 2, AF[(ks+2) % 3]) if ks < 16 else []
            cnt = {0: 17 - ks, 1: 17, 2: 17 - ks + 2}[mode]
            A(f"s_waitcnt vmcnt({cnt}) lgkmcnt({8 if ks < 17 else 0})")
            i = 0
            for nt in range(4):
                c = "0" if ks == 0 else v(ACC+4*nt, 4)
                A(f"v_mfma_f32_16x16x32_bf16 {v(ACC+4*nt,4)}, {v(AF[ks%3]+4*nt,4)}, {v(bf+4*ks,4)}, {c}")
                for _ in range(2):
                    if i < len(rd): A(rd[i]); i += 1
            if mode == 1:
                A("s_lshl_b32 s45, s44, 10")
                A("s_add_u32 s45, s45, s43")
                A(f"buffer_load_dwordx4 {v(BF[1]+4*ks,4)}, v2, s[48:51], s45 offen sc1")
                A("s_add_u32 s44, s44, 1")
                A("s_cmp_eq_u32 s44, 18")
                A("s_cselect_b32 s44, 0, s44")
        for nt in range(4):
            A(f"v_cvt_pk_bf16_f32 v{128+2*nt}, v{ACC+4*nt}, v{ACC+4*nt+1}")
            A(f"v_cvt_pk_bf16_f32 v{129+2*nt}, v{ACC+4*nt+2}, v{ACC+4*nt+3}")
            A(f"ds_write_b64 v9, {v(128+2*nt,2)} offset:{32*nt}")
        A("s_waitcnt lgkmcnt(0)")
        A("ds_read_b128 v[128:131], v12")
        A("ds_read_b128 v[132:135], v12 offset:1152")
        A("s_waitcnt lgkmcnt(1)")
        A(f"buffer_store_dwordx4 v[128:131], v13, s[52:55], {soff} offen" + (" sc1" if OPT.get("a2sc1") else ""))
        A("s_waitcnt lgkmcnt(0)")
        A(f"buffer_store_dwordx4 v[132:135], v14, s[52:55], {soff} offen" + (" sc1" if OPT.get("a2sc1") else ""))
    oloads(BF[0], False)
    l2 = A.newlabel("a2two"); lend = A.newlabel("a2end")
    A("s_cmp_eq_u32 s42, 2")
    A(f"s_cbranch_scc1 {l2}")
    tile(BF[0], 0, "0")
    A(f"s_branch {lend}")
    A.label(l2)
    A(f"s_mov_b32 s43, {8*18432}")
    tile(BF[0], 1, "0")
    stamp(A, sb + 2)
    A(f"s_mov_b32 s43, {128*2304}")
    tile(BF[1], 2, "s43")
    A.label(lend)
    stamp(A, sb + 3)

def build(path, stamps=False):
    global STAMPS
    STAMPS = stamps
    A = Asm()
    A.raw(f".globl {NAME}\n.p2align 8\n.type {NAME},@function\n{NAME}:")
    A("s_cmp_ge_u32 s2, 256")
    A("s_cbranch_scc1 L_end")
    A("s_load_dwordx16 s[4:19], s[0:1], 0")
    A("s_load_dwordx8 s[20:27], s[0:1], 64")
    A("s_memrealtime s[30:31]")
    if OPT.get("codepf", 1):
        A("s_getpc_b64 s[32:33]")
        A.label("L_pc")
        A("s_lshr_b32 s34, s2, 3")
        A("s_mul_i32 s34, s34, CODE_LPW*128")
        A("v_and_b32 v3, 63, v0")
        A("v_lshlrev_b32 v3, 7, v3")
        A("v_add_u32 v3, s34, v3")
        A("v_cmp_gt_u32 vcc, (L_end-L_pc), v3")
        A("v_cmp_gt_u32 s[36:37], CODE_LPW, v0")
        A("s_and_b64 vcc, vcc, s[36:37]")
        A("s_and_saveexec_b64 s[36:37], vcc")
        labc = A.newlabel("cpf")
        A(f"s_cbranch_execz {labc}")
        A("global_load_dword v247, v3, s[32:33]")
        A.label(labc)
        A("s_mov_b64 exec, s[36:37]")
    A("v_lshrrev_b32 v2, 6, v0")
    A("v_and_b32 v1, 63, v0")
    A(f"v_readfirstlane_b32 s{S_WAVE}, v2")
    A("s_waitcnt lgkmcnt(0)")
    A(f"s_or_b32 s{S_MY}, s30, 1")
    if OPT.get("touch"):
        A("s_mov_b32 s31, 0x200000")
        A(f"s_load_dword s3, s[{P_X}:{P_X+1}], 0")
        A(f"s_load_dword s3, s[{P_W}:{P_W+1}], 0")
        A(f"s_load_dword s3, s[{P_X}:{P_X+1}], s31")
        A(f"s_load_dword s3, s[{P_K}:{P_K+1}], 0")
        A(f"s_load_dword s3, s[{P_V}:{P_V+1}], 0")
        A(f"s_load_dword s3, s[{P_K}:{P_K+1}], s31")
        A(f"s_load_dword s3, s[{P_V}:{P_V+1}], s31")
        if OPT["touch"] >= 2:
            labt = A.newlabel("tch")
            A(f"s_cmp_lg_u32 s{S_WAVE}, 1")
            A(f"s_cbranch_scc1 {labt}")
            for (p, offs) in ((P_Q, (0, 1)), (P_H, (0, 1)), (P_WO, (0,)), (P_OUT, (0, 1, 2))):
                for o in offs:
                    A(f"s_mov_b32 s31, {o << 21}")
                    A(f"s_load_dword s3, s[{p}:{p+1}], s31")
            A("s_waitcnt lgkmcnt(0)")
            for o in (0, (2 << 20) + (1 << 20), (8 << 20), (10 << 20) + (1 << 20), (12 << 20)):
                A(f"s_mov_b32 s31, {o}")
                A(f"s_load_dword s3, s[{P_WS}:{P_WS+1}], s31")
            A.label(labt)
    if STAMPS: A("v_mov_b32 v246, -1")
    stamp(A, 0)
    if STAMPS:
        A("s_memtime s[100:101]")
        A("s_waitcnt lgkmcnt(0)")
        A("v_writelane_b32 v246, s100, 16")
    A("s_cmp_ge_u32 s2, 176")
    A("s_cbranch_scc1 L_bset")
    gen_a1(A)
    A("s_cmp_lt_u32 s2, 64")
    A("s_cbranch_scc1 L_a_b2")
    A("s_and_b32 s90, s2, 7")
    A("s_sub_u32 s91, s2, 64")
    A("s_lshr_b32 s91, s91, 3")
    gen_a2(A, 90, 91, 8)
    A("s_branch L_fin")
    A.label("L_a_b2")
    A("s_and_b32 s89, s2, 7")
    A("s_lshr_b32 s91, s2, 3")
    A("s_add_u32 s91, s91, 10")
    grp_of(A, 90, 89, 91, 40)
    get_nonce_issue(A, "B")
    b2_common(A, 90)
    if not OPT.get("hearly", 1):
        b2_h_loads(A, 170, 2)
    A("s_waitcnt vmcnt(0)")
    b2_h_stage(A, 170, 112, 2)
    b2_main(A, 90, 8, resolved=False)
    A("s_branch L_fin")
    A.label("L_bset")
    A("s_sub_u32 s91, s2, 176")
    A("s_and_b32 s40, s91, 7")
    A("s_lshr_b32 s89, s91, 3")
    grp_of(A, 90, 40, 89, 41)
    b_prefetch(A)
    b2_common(A, 90)
    if OPT.get("bwait", 1):
        A("s_waitcnt vmcnt(0)")
        A("s_barrier")
    stamp(A, 1)
    A("s_cmp_ge_u32 s91, 72")
    A("s_cbranch_scc1 L_b_nob1")
    A(f"s_cmp_ge_u32 s{S_WAVE}, 4")
    A("s_cbranch_scc1 L_b_aux")
    gen_b1_kv(A, 91)
    A("s_branch L_b_join")
    A.label("L_b_aux")
    gen_b1_aux(A, 91, True)
    A.label("L_b_join")
    A("s_waitcnt vmcnt(0) lgkmcnt(0)")
    A("s_barrier")
    lab = A.newlabel("b1f")
    A(f"s_cmp_lg_u32 s{S_WAVE}, 0")
    A(f"s_cbranch_scc1 {lab}")
    nonce_resolve(A, "B")
    A("s_lshl_b32 s40, s67, 8")
    A("s_lshl_b32 s41, s66, 2")
    A("s_add_u32 s40, s40, s41")
    flag_store(A, "B", 40)
    A.label(lab)
    A("s_branch L_b_b2")
    A.label("L_b_nob1")
    lab = A.newlabel("bnx")
    A(f"s_cmp_lt_u32 s{S_WAVE}, 4")
    A(f"s_cbranch_scc1 {lab}")
    gen_b1_aux(A, 91, False)
    A.label(lab)
    A("s_waitcnt vmcnt(0)")
    lab = A.newlabel("bz")
    A(f"s_cmp_lg_u32 s{S_WAVE}, 0")
    A(f"s_cbranch_scc1 {lab}")
    nonce_resolve(A, "B")
    A.label(lab)
    A.label("L_b_b2")
    b2_main(A, 90, 5, resolved=True)
    A.label("L_fin")
    stamp_flush(A)
    A.label("L_end")
    A("s_endpgm")
    body = A.finalize()
    lds = 141312 + 64
    out = HEADER + f"; @launch grid=(256,1,1) block=(512,1,1) lds={lds}\n"
    out += '.amdgcn_target "amdgcn-amd-amdhsa--gfx950"\n.text\n.set CODE_LPW, 16\n' + body
    out += '.section .rodata,"a"\n.p2align 6\n' + kd(NAME, 256)
    open(path, "w").write(out)

if __name__ == "__main__":
    for a in sys.argv[3:]:
        k, x = a.split("="); OPT[k] = int(x)
    build(sys.argv[1], stamps=(len(sys.argv) > 2 and sys.argv[2] == "stamps"))
```

```python
import sys, struct, math
from asmlib import *
from gen_common import HEADER, kd

NAME = "concat_heads__sliding_local_dilated__ssm_conv_h3__prompt_kernel"
SZ_T = 576 * 2048 * 2
WS_UR = 4096
WS_QT = (4 << 20) + 4096
WS_OF = (8 << 20) + 4096
WS_FA = (12 << 20) + 4096
WS_FB = WS_FA + 65536
STAMP_OFF = 16 << 20
BIGOFF = 0x7FFF0000
PL = 141312
PC = 141328

P_X, P_W, P_WO, P_Q, P_K, P_V, P_SH, P_H, P_D, P_OUT, P_DBG, P_WS = 4, 6, 8, 10, 12, 14, 16, 18, 20, 22, 24, 26
S_MY, S_WAVE, S_NA, S_NB = 28, 29, 30, 31
V_NA, V_NB = 252, 254
STAMPS = False
OPT = {}

def make_srd(A, dst, ptr, nbytes, add=0, add_s=None):
    if add_s is not None:
        A(f"s_add_u32 s{dst}, s{ptr}, s{add_s}")
        A(f"s_addc_u32 s{dst+1}, s{ptr+1}, 0")
        if add:
            A(f"s_add_u32 s{dst}, s{dst}, {add}")
            A(f"s_addc_u32 s{dst+1}, s{dst+1}, 0")
        A(f"s_and_b32 s{dst+1}, s{dst+1}, 0xffff")
    elif add:
        A(f"s_add_u32 s{dst}, s{ptr}, {add}")
        A(f"s_addc_u32 s{dst+1}, s{ptr+1}, 0")
        A(f"s_and_b32 s{dst+1}, s{dst+1}, 0xffff")
    else:
        A(f"s_mov_b32 s{dst}, s{ptr}")
        A(f"s_and_b32 s{dst+1}, s{ptr+1}, 0xffff")
    A(f"s_mov_b32 s{dst+2}, {nbytes}")
    A(f"s_mov_b32 s{dst+3}, 0x00020000")

def stamp(A, idx):
    if not STAMPS: return
    if OPT.get("dbgl") and idx >= 5: return
    A("s_memrealtime s[100:101]")
    A("s_waitcnt lgkmcnt(0)")
    A(f"v_writelane_b32 v246, s100, {idx}")

def stamp_flush(A):
    if not STAMPS: return
    A("s_memtime s[100:101]")
    A("s_waitcnt lgkmcnt(0)")
    A("v_writelane_b32 v246, s100, 17")
    A("s_memrealtime s[100:101]")
    A("s_waitcnt lgkmcnt(0)")
    A("v_writelane_b32 v246, s100, 18")
    lab = A.newlabel("stf")
    A(f"s_and_b32 s96, s{S_WAVE}, 3")
    A("s_cmp_lg_u32 s96, 0")
    A(f"s_cbranch_scc1 {lab}")
    A(f"s_lshr_b32 s100, s{S_WAVE}, 2")
    A("s_lshl_b32 s100, s100, 8")
    A("s_add_u32 s100, s100, s2")
    A("s_lshl_b32 s100, s100, 7")
    A(f"s_add_u32 s96, s{P_WS}, {STAMP_OFF}")
    A(f"s_addc_u32 s97, s{P_WS+1}, 0")
    A("s_and_b32 s97, s97, 0xffff")
    A("s_mov_b32 s98, 0x100000")
    A("s_mov_b32 s99, 0x00020000")
    A("v_lshlrev_b32 v250, 2, v1")
    A("v_add_u32 v250, s100, v250")
    A("s_mov_b64 exec, 0xffffffff")
    A("buffer_store_dword v246, v250, s[96:99], 0 offen")
    A("s_mov_b64 exec, -1")
    A.label(lab)

def get_nonce_issue(A, which):
    vn = V_NA if which == "A" else V_NB
    lab = A.newlabel("nz")
    A(f"s_cmp_lg_u32 s{S_WAVE}, 0")
    A(f"s_cbranch_scc1 {lab}")
    make_srd(A, 92, P_DBG, 256)
    A(f"v_mov_b32 v{vn}, s{S_MY}")
    A(f"v_mov_b32 v{vn+1}, 0")
    A(f"v_mov_b32 v251, {0 if which == 'A' else 128}")
    A("s_mov_b64 exec, 1")
    A(f"buffer_atomic_cmpswap v[{vn}:{vn+1}], v251, s[92:95], 0 offen sc0 sc1")
    A("s_mov_b64 exec, -1")
    A.label(lab)

def nonce_resolve(A, which):
    vn = V_NA if which == "A" else V_NB
    sn = S_NA if which == "A" else S_NB
    A(f"v_readfirstlane_b32 s{sn}, v{vn}")
    A(f"s_cmp_eq_u32 s{sn}, 0")
    A(f"s_cselect_b32 s{sn}, s{S_MY}, s{sn}")

def flag_store(A, which, s_off):
    sn = S_NA if which == "A" else S_NB
    make_srd(A, 92, P_WS, 65536, WS_FA if which == "A" else WS_FB)
    A(f"v_mov_b32 v250, s{s_off}")
    A(f"v_mov_b32 v251, s{sn}")
    A("s_mov_b64 exec, 1")
    A("buffer_store_dword v251, v250, s[92:95], 0 offen sc1")
    A("s_mov_b64 exec, -1")

def flag_poll(A, which, s_off0, s_off1=None):
    sn = S_NA if which == "A" else S_NB
    make_srd(A, 92, P_WS, 65536, WS_FA if which == "A" else WS_FB)
    A("v_and_b32 v250, 7, v1")
    A("v_lshlrev_b32 v250, 2, v250")
    if s_off1 is not None:
        A(f"v_mov_b32 v249, s{s_off0}")
        A(f"v_mov_b32 v248, s{s_off1}")
        A("v_cmp_gt_u32 vcc, 8, v1")
        A("v_cndmask_b32 v249, v248, v249, vcc")
        A("v_add_u32 v250, v250, v249")
        A("s_mov_b64 exec, 0xffff")
    else:
        A(f"v_add_u32 v250, s{s_off0}, v250")
        A("s_mov_b64 exec, 0xff")
    lp = A.newlabel("poll"); done = A.newlabel("polld")
    A("s_mov_b32 s88, 1000000")
    A.label(lp)
    A("buffer_load_dword v251, v250, s[92:95], 0 offen sc1")
    A("s_waitcnt vmcnt(0)")
    A(f"v_cmp_ne_u32 vcc, s{sn}, v251")
    A("s_nop 4")
    A(f"s_cbranch_vccz {done}")
    A(f"s_sleep {OPT.get('slp', 2)}")
    A("s_sub_u32 s88, s88, 1")
    A("s_cmp_lg_u32 s88, 0")
    A(f"s_cbranch_scc1 {lp}")
    A.label(done)
    A("s_mov_b64 exec, -1")

def lds_poll(A, vaddr, vd, s_tmp, target, s_cnt, pre_read=False):
    lp = A.newlabel("lpl"); chk = A.newlabel("lpc"); done = A.newlabel("lpd")
    A(f"s_mov_b32 s{s_cnt}, 2000000")
    if pre_read: A(f"s_branch {chk}")
    A.label(lp)
    A(f"ds_read_b128 {v(vd,4)}, v{vaddr}")
    A("s_waitcnt lgkmcnt(0)")
    A.label(chk)
    A(f"v_min_u32 v{vd}, v{vd}, v{vd+1}")
    A(f"v_min3_u32 v{vd}, v{vd}, v{vd+2}, v{vd+3}")
    A(f"v_readfirstlane_b32 s{s_tmp}, v{vd}")
    A(f"s_cmp_ge_u32 s{s_tmp}, {target}")
    A(f"s_cbranch_scc1 {done}")
    A(f"s_sub_u32 s{s_cnt}, s{s_cnt}, 1")
    A(f"s_cmp_lg_u32 s{s_cnt}, 0")
    A(f"s_cbranch_scc1 {lp}")
    A.label(done)

def grp_of(A, sd, sx, si, st):
    if OPT.get("gmap", 1):
        A(f"s_lshl_b32 s{sd}, s{sx}, 4")
        A(f"s_add_u32 s{sd}, s{sd}, s{si}")
        A(f"s_lshl_b32 s{st}, s{sx}, 1")
        A(f"s_add_u32 s{st}, s{st}, s{si}")
        A(f"s_add_u32 s{st}, s{st}, 112")
        A(f"s_cmp_lt_u32 s{si}, 16")
        A(f"s_cselect_b32 s{sd}, s{sd}, s{st}")
    else:
        A(f"s_mul_i32 s{sd}, s{sx}, 18")
        A(f"s_add_u32 s{sd}, s{sd}, s{si}")

def a_prefetch_setup(A, vx, vw, t0, s_idx, nshare):
    px = -(-1072 // nshare); pw = -(-576 // nshare)
    A("s_and_b32 s96, s2, 7")
    A("s_lshr_b32 s98, s96, 2")
    A("s_and_b32 s96, s96, 3")
    A("s_mul_i32 s98, s98, 1056")
    A(f"s_mul_i32 s99, s{s_idx}, {px}")
    A("s_add_u32 s98, s98, s99")
    A("s_sub_u32 s98, s98, 16")
    A(f"v_mov_b32 v{t0+1}, 0x{BIGOFF:x}")
    A("s_movk_i32 s99, 1152")
    for e in range(2 if px > 64 else 1):
        A(f"v_add_u32 v{t0}, s98, v1")
        if e: A(f"v_add_u32 v{t0}, 64, v{t0}")
        A(f"v_mul_lo_u32 v{vx+e}, v{t0}, s99")
        A(f"v_cmp_gt_i32 vcc, 0, v{t0}")
        A(f"v_cndmask_b32 v{vx+e}, v{vx+e}, v{t0+1}, vcc")
        lim = min(px - 64*e, 64)
        if lim < 64:
            A(f"v_cmp_le_u32 vcc, {lim}, v1")
            A(f"v_cndmask_b32 v{vx+e}, v{vx+e}, v{t0+1}, vcc")
    A(f"s_mul_i32 s99, s{s_idx}, {pw}")
    A(f"v_add_u32 v{t0}, s99, v1")
    A(f"v_mul_u32_u24 v{t0+2}, 7282, v{t0}")
    A(f"v_lshrrev_b32 v{t0+2}, 16, v{t0+2}")
    A(f"v_mul_u32_u24 v{t0+3}, 9, v{t0+2}")
    A(f"v_sub_u32 v{t0+3}, v{t0}, v{t0+3}")
    A(f"v_mul_u32_u24 v{t0+4}, 21846, v{t0+3}")
    A(f"v_lshrrev_b32 v{t0+4}, 16, v{t0+4}")
    A(f"v_mul_u32_u24 v{vw}, 3456, v{t0+2}")
    A(f"v_mul_u32_u24 v{t0+2}, 1152, v{t0+4}")
    A(f"v_add_u32 v{vw}, v{vw}, v{t0+2}")
    A(f"v_mul_u32_u24 v{t0+4}, 3, v{t0+4}")
    A(f"v_sub_u32 v{t0+3}, v{t0+3}, v{t0+4}")
    A(f"v_lshl_add_u32 v{vw}, v{t0+3}, 7, v{vw}")
    A("s_lshl_b32 s96, s96, 8")
    A(f"v_add_u32 v{vw}, s96, v{vw}")
    A(f"v_cmp_le_u32 vcc, {pw}, v1")
    A(f"v_cndmask_b32 v{vw}, v{vw}, v{t0+1}, vcc")
    A(f"v_cmp_le_u32 vcc, 576, v{t0}")
    A(f"v_cndmask_b32 v{vw}, v{vw}, v{t0+1}, vcc")

def a_prefetch_issue(A, vx, vw, s_kc, srd_x, srd_w, vd, two=False):
    A(f"s_lshl_b32 s96, s{s_kc}, 7")
    A(f"s_mul_i32 s97, s{s_kc}, 221184")
    A(f"buffer_load_dword v{vd}, v{vw}, s[{srd_w}:{srd_w+3}], s97 offen")
    A(f"buffer_load_dword v{vd+1}, v{vx}, s[{srd_x}:{srd_x+3}], s96 offen")
    if two:
        A(f"buffer_load_dword v{vd+2}, v{vx+1}, s[{srd_x}:{srd_x+3}], s96 offen")

XS = 14 * 1024
W1 = 28 * 1024
ST1 = XS + W1
HHS = 112 * 48
OB = 13 * HHS
V_KQ, V_VT, V_OW, V_NINF, V_OG, V_OL = 220, 221, 222, 225, 226, 228

def attn_setup(A, t0=4):
    a, b, c, d = t0, t0+1, t0+2, t0+3
    A(f"s_and_b32 s56, s{S_WAVE}, 3")
    A(f"s_lshr_b32 s57, s{S_WAVE}, 2")
    A("s_mul_i32 s57, s57, 3")
    A(f"v_lshlrev_b32 v{a}, 2, v3")
    A(f"v_sub_u32 v{a}, v2, v{a}")
    for tl in range(2):
        for r in range(4):
            dd = (16 if tl == 0 else 0) - r
            A(f"v_add_u32 v{b}, {dd}, v{a}" if dd >= 0 else f"v_subrev_u32 v{b}, {-dd}, v{a}")
            A(f"v_and_b32 v{b}, 0xfffffff1, v{b}")
            A(f"v_cmp_eq_u32 s[{64+2*(4*tl+r)}:{65+2*(4*tl+r)}], 0, v{b}")
    A("v_cmp_gt_u32 s[80:81], 2, v3")
    A("v_cmp_gt_u32 s[82:83], 3, v3")
    A("s_or_b32 s58, s32, s57")
    for r in range(4):
        A(f"s_cmp_eq_u32 s58, 0")
        A(f"s_cselect_b64 s[{84+2*r}:{85+2*r}], 0, s[{64+2*r}:{65+2*r}]")
    A(f"v_min_u32 v{b}, 2, v3")
    A(f"v_mul_u32_u24 v{c}, 48, v2")
    A(f"v_lshl_add_u32 v{c}, v{b}, 4, v{c}")
    A(f"s_mul_i32 s58, s56, {HHS}")
    A("s_mul_i32 s59, s57, 768")
    A("s_add_u32 s58, s58, s59")
    A(f"v_add_u32 v{V_KQ}, s58, v{c}")
    A(f"v_lshrrev_b32 v{b}, 2, v2")
    A(f"v_lshl_add_u32 v{b}, v3, 2, v{b}")
    A(f"v_mul_u32_u24 v{b}, 48, v{b}")
    A(f"v_and_b32 v{c}, 3, v2")
    A(f"v_lshl_add_u32 v{b}, v{c}, 3, v{b}")
    A(f"v_add_u32 v{V_VT}, s58, v{b}")
    A(f"v_mul_u32_u24 v{b}, 144, v2")
    A(f"v_lshl_add_u32 v{b}, v3, 3, v{b}")
    A("s_mul_i32 s58, s56, 36")
    A("s_mul_i32 s59, s57, 2304")
    A("s_add_u32 s58, s58, s59")
    A(f"s_add_u32 s58, s58, {OB}")
    A(f"v_add_u32 v{V_OW}, s58, v{b}")
    A(f"v_add_u32 v{V_OW+1}, 2304, v{V_OW}")
    A(f"v_add_u32 v{V_OW+2}, 4608, v{V_OW}")
    A(f"v_mov_b32 v{V_NINF}, 0xff800000")
    A("s_mul_i32 s58, s32, 110592")
    A("s_mul_i32 s59, s33, 2304")
    A("s_add_u32 s58, s58, s59")
    for rnd in range(2):
        A(f"v_add_u32 v{a}, {512*rnd}, v0")
        A(f"v_and_b32 v{b}, 15, v{a}")
        A(f"v_lshrrev_b32 v{c}, 4, v{a}")
        A(f"v_mul_u32_u24 v{d}, 7282, v{c}")
        A(f"v_lshrrev_b32 v{d}, 16, v{d}")
        A(f"v_mul_u32_u24 v{d+1}, 9, v{d}")
        A(f"v_sub_u32 v{c}, v{c}, v{d+1}")
        A(f"v_lshl_add_u32 v{d+1}, v{d}, 4, v{b}")
        A(f"v_mul_u32_u24 v{d+1}, 144, v{d+1}")
        A(f"v_lshl_add_u32 v{d+1}, v{c}, 4, v{d+1}")
        A(f"v_add_u32 v{V_OL+rnd}, {OB}, v{d+1}")
        A(f"v_mul_u32_u24 v{d}, 18432, v{d}")
        A(f"v_lshl_add_u32 v{d}, v{c}, 8, v{d}")
        A(f"v_lshl_add_u32 v{d}, v{b}, 4, v{d}")
        A(f"v_add_u32 v{V_OG+rnd}, s58, v{d}")
        if rnd == 1:
            A(f"v_mov_b32 v{b}, 0x{BIGOFF:x}")
            A(f"v_cmp_gt_u32 vcc, 864, v{a}")
            A(f"v_cndmask_b32 v{V_OG+rnd}, v{b}, v{V_OG+rnd}, vcc")

def gen_a1(A):
    n = "a1"
    A("s_and_b32 s36, s2, 7")
    A("s_lshr_b32 s37, s2, 3")
    A("s_lshr_b32 s38, s36, 2")
    A("s_and_b32 s39, s36, 3")
    A("s_mul_i32 s32, s38, 11")
    A("s_lshr_b32 s40, s37, 1")
    A("s_add_u32 s32, s32, s40")
    A("s_and_b32 s40, s37, 1")
    A("s_lshl_b32 s33, s39, 1")
    A("s_add_u32 s33, s33, s40")
    A("s_mul_i32 s34, s32, 96")
    make_srd(A, 44, P_X, SZ_T)
    make_srd(A, 48, P_W, 576 * 3456)
    if OPT.get("r1", 1):
        labr = A.newlabel("r1")
        A(f"s_cmp_ge_u32 s{S_WAVE}, 5")
        A(f"s_cbranch_scc1 {labr}")
        a_prefetch_setup(A, 232, 233, 4, 37, 32)
        a_prefetch_issue(A, 232, 233, S_WAVE, 44, 48, 240)
        A.label(labr)
    A(f"s_cmp_ge_u32 s{S_WAVE}, 4")
    A(f"s_cbranch_scc1 {n}_loader")
    a_prefetch_setup(A, 230, 231, 4, 37, 22)
    if OPT.get("xown"):
        A("s_and_b32 s40, s33, 1")
        A("s_mul_i32 s40, s40, 56")
        A("s_add_u32 s40, s40, s34")
        A("s_sub_u32 s40, s40, 16")
        A("v_add_u32 v4, s40, v1")
        A("s_movk_i32 s41, 1152")
        A("v_mul_lo_u32 v5, v4, s41")
        A(f"v_mov_b32 v6, 0x{BIGOFF:x}")
        A("v_cmp_gt_i32 vcc, 0, v4")
        A("v_cndmask_b32 v5, v5, v6, vcc")
        A("v_cmp_le_u32 vcc, 56, v1")
        A("v_cndmask_b32 v229, v5, v6, vcc") if False else A("v_cndmask_b32 v232, v5, v6, vcc")
    if OPT.get("tlba"):
        labt = A.newlabel("tlba")
        A(f"s_cmp_lg_u32 s{S_WAVE}, 3")
        A(f"s_cbranch_scc1 {labt}")
        tlb_warm(A)
        A.label(labt)
    get_nonce_issue(A, "A")
    A("v_and_b32 v2, 15, v1")
    A("v_lshrrev_b32 v3, 4, v1")
    attn_setup(A)
    A("v_lshrrev_b32 v6, 2, v2")
    A("v_lshl_add_u32 v7, v3, 3, v6")
    A("v_mul_u32_u24 v7, 448, v7")
    A("v_and_b32 v8, 3, v2")
    A("v_lshl_add_u32 v7, v8, 3, v7")
    A(f"v_add_u32 v7, {XS}, v7")
    A("v_and_b32 v8, 1, v3")
    A("v_lshlrev_b32 v8, 5, v8")
    A("v_lshrrev_b32 v9, 1, v2")
    A("v_xor_b32 v9, v9, v3")
    A("v_lshlrev_b32 v9, 4, v9")
    XA = 14
    A(f"v_lshl_add_u32 v{XA}, v2, 7, v9")
    A(f"v_xor_b32 v{XA+1}, 64, v{XA}")
    for w in range(3):
        A(f"s_cmp_eq_u32 s{S_WAVE}, {w}")
        A(f"s_cbranch_scc1 {n}_c{w}")
    for w in [3, 0, 1, 2]:
        A.label(f"{n}_c{w}")
        if w < 3:
            nts = [3*w, 3*w+1, 3*w+2]
            units = [(t, st) for t in nts for st in range(7)] + [(13, 2*w+1), (13, 2*w+2)]
            ants = nts + [13]
            sts = list(range(7))
        else:
            nts = [9, 10, 11, 12]
            units = [(t, st) for t in nts for st in range(1, 7)]
            ants = nts
            sts = list(range(1, 7))
        WA = 10
        A("v_add_u32 v10, v7, v8")
        A("v_sub_u32 v11, v7, v8")
        A("v_mov_b32 v12, v10"); A("v_mov_b32 v13, v10")
        A("v_mul_u32_u24 v4, 48, v2")
        for ai, t in enumerate(ants):
            for p in range(2):
                va = 212 + 2*ai + p
                A("v_lshlrev_b32 v5, 2, v3")
                A(f"v_add_u32 v5, {16*t + 2*p}, v5")
                A("v_mul_u32_u24 v6, 3641, v5")
                A("v_lshrrev_b32 v6, 16, v6")
                A("v_mul_u32_u24 v6, 5340, v6")
                A(f"v_lshl_add_u32 v{va}, v5, 1, v6")
                A(f"v_add_u32 v{va}, v{va}, v4")
        ACC = 28
        acc = {u: ACC + 4*i for i, u in enumerate(units)}
        FR = [124, 168]
        def reads(ks, base):
            lst = []
            for ai, t in enumerate(ants):
                for h in range(2):
                    lst.append(f"ds_read_b64_tr_b16 {v(base+4*ai+2*h,2)}, v{WA+(t&1)} offset:{ks*32*448 + h*4*448 + 32*t}")
            for bi, st in enumerate(sts):
                lst.append(f"ds_read_b128 {v(base+16+4*bi,4)}, v{XA+ks} offset:{st*2048}")
            return lst
        def mfmas(base, first):
            lst = []
            for (t, st) in units:
                ai = ants.index(t); bi = sts.index(st)
                c = "0" if first else v(acc[(t, st)], 4)
                lst.append(f"v_mfma_f32_16x16x32_bf16 {v(acc[(t,st)],4)}, {v(base+4*ai,4)}, {v(base+16+4*bi,4)}, {c}")
            return lst
        def interleave(mf, rd):
            i = 0
            for m in mf:
                A(m)
                if i < len(rd): A(rd[i]); i += 1
            while i < len(rd): A(rd[i]); i += 1
        if OPT.get("xown"):
            A(f"s_mov_b32 s40, {128*(1+w)}")
            A("buffer_load_dword v240, v232, s[44:47], s40 offen")
            A(f"s_mov_b32 s41, {128*(5+w)}")
            A("buffer_load_dword v241, v232, s[44:47], s41 offen")
        for u in units:
            for r in range(0, 4, 2): A(f"v_mov_b64 {v(acc[u]+r,2)}, 0")
        A("s_mov_b32 s60, 0")
        A("s_mov_b32 s61, 0")
        A(f"s_mov_b32 s52, {ST1}")
        A(f"s_mov_b32 s53, {(-2*ST1) & 0xffffffff}")
        LF = OPT.get("lf", 0)
        if LF:
            A(f"v_mov_b32 v235, {PL}")
            A(f"v_mov_b32 v234, {PC + 4*w}")
            if w == 0:
                A("v_mov_b64 v[236:237], 0"); A("v_mov_b64 v[238:239], 0")
                A("ds_write_b128 v235, v[236:239]")
                A("ds_write_b128 v235, v[236:239] offset:16")
                A("s_waitcnt lgkmcnt(0)")
            A("s_barrier")
            lds_poll(A, 235, 236, 63, "1", 55)
        else:
            if OPT.get("r1", 1):
                A("s_waitcnt vmcnt(0)")
                A("s_barrier")
            A("s_barrier")
        stamp(A, 1)
        for r_ in reads(0, FR[0]): A(r_)
        A("s_waitcnt lgkmcnt(0)")
        A(f"s_branch {n}_q{w}")
        A.label(f"{n}_l{w}")
        if LF:
            A("s_add_u32 s54, s60, 1")
            lds_poll(A, 235, 236, 63, "s54", 55, pre_read=True)
        else:
            A("s_barrier")
        interleave(mfmas(FR[1], False), reads(0, FR[0]))
        A("s_waitcnt lgkmcnt(0)")
        A.label(f"{n}_q{w}")
        labp = A.newlabel("lpf")
        A(f"s_cmp_lg_u32 s60, {w}")
        A(f"s_cbranch_scc1 {labp}")
        A(f"s_add_u32 s63, s60, {OPT.get('af', 7)}")
        A("s_cmp_gt_u32 s63, 8")
        A(f"s_cbranch_scc1 {labp}")
        a_prefetch_issue(A, 230, 231, 63, 44, 48, 240)
        A.label(labp)
        if w == 3 and OPT.get("hpf", 1):
            labh = A.newlabel("hpf")
            A("s_cmp_lg_u32 s60, 3")
            A(f"s_cbranch_scc1 {labh}")
            A("s_cmp_ge_u32 s2, 64")
            A(f"s_cbranch_scc1 {labh}")
            A("s_and_b32 s98, s2, 7")
            A("s_lshr_b32 s97, s2, 3")
            A("s_add_u32 s97, s97, 10")
            grp_of(A, 96, 98, 97, 99)
            A("s_lshl_b32 s96, s96, 14")
            A(f"s_add_u32 s92, s{P_H}, s96")
            A(f"s_addc_u32 s93, s{P_H+1}, 0")
            A("s_and_b32 s93, s93, 0xffff")
            A("s_mov_b32 s94, 16384")
            A("s_mov_b32 s95, 0x00020000")
            A("v_lshlrev_b32 v233, 7, v1")
            A("buffer_load_dword v242, v233, s[92:95], 0 offen")
            A("v_add_u32 v233, 8192, v233")
            A("buffer_load_dword v243, v233, s[92:95], 0 offen")
            A.label(labh)
        A("s_add_u32 s61, s61, 1")
        A("s_cmp_eq_u32 s61, 3")
        A("s_cselect_b32 s62, s53, s52")
        A("s_cselect_b32 s61, 0, s61")
        if LF:
            mf = mfmas(FR[0], False); rd = reads(1, FR[1])
            i = 0
            for idx, m in enumerate(mf):
                A(m)
                if i < len(rd): A(rd[i]); i += 1
                if idx == len(mf) - 5:
                    A("s_add_u32 s54, s60, 1")
                    A("v_mov_b32 v242, s54") if False else None
                    A("s_waitcnt lgkmcnt(0)")
                    A("v_mov_b32 v233, s54")
                    A("ds_write_b32 v234, v233")
                    A("ds_read_b128 v[236:239], v235")
            for r in range(6): A(f"v_add_u32 v{10+r}, s62, v{10+r}")
            A("s_add_u32 s60, s60, 1")
            A("s_cmp_lt_u32 s60, 9")
            A("s_waitcnt lgkmcnt(0)")
            A(f"s_cbranch_scc1 {n}_l{w}")
        else:
            interleave(mfmas(FR[0], False), reads(1, FR[1]))
            for r in range(6): A(f"v_add_u32 v{10+r}, s62, v{10+r}")
            A("s_add_u32 s60, s60, 1")
            A("s_cmp_lt_u32 s60, 9")
            A("s_waitcnt lgkmcnt(0)")
            A(f"s_cbranch_scc1 {n}_l{w}")
        A("s_barrier")
        last = mfmas(FR[1], False)
        pend = []
        k = 0
        def flush_one(u):
            nonlocal k
            (t, st) = u
            ai = ants.index(t); a0 = acc[(t, st)]
            tmp = 124 + 2*(k % 8); k += 1
            A(f"v_cvt_pk_bf16_f32 v{tmp}, v{a0}, v{a0+1}")
            A(f"v_cvt_pk_bf16_f32 v{tmp+1}, v{a0+2}, v{a0+3}")
            A(f"ds_write_b32 v{212+2*ai}, v{tmp} offset:{768*st}")
            A(f"ds_write_b32 v{212+2*ai+1}, v{tmp+1} offset:{768*st}")
        for m, u in zip(last, units):
            A(m)
            pend.append(u)
            if len(pend) > 3: flush_one(pend.pop(0))
        for u in pend: flush_one(u)
        stamp(A, 4)
        A(f"s_branch {n}_attn")
    A.label(f"{n}_loader")
    if OPT.get("prio"): A(f"s_setprio {OPT['prio']}")
    A(f"s_sub_u32 s35, s{S_WAVE}, 4")
    A("v_lshrrev_b32 v2, 3, v1")
    A("v_and_b32 v3, 7, v1")
    A("v_lshrrev_b32 v4, 4, v1")
    A("v_mul_u32_u24 v5, 1152, v2")
    A("v_xor_b32 v6, v3, v4")
    A("v_lshl_add_u32 v10, v6, 4, v5")
    A("v_xor_b32 v11, 64, v10")
    A("s_lshl_b32 s36, s35, 2")
    A("s_cmp_eq_u32 s35, 3")
    A("s_cselect_b32 s36, 11, s36")
    A("s_cselect_b64 s[54:55], -1, 0")
    A("v_cndmask_b32 v16, v10, v11, s[54:55]")
    A("v_cndmask_b32 v17, v11, v10, s[54:55]")
    A("s_sub_u32 s37, s34, 16")
    A("s_mul_i32 s37, s37, 1152")
    A("s_mul_i32 s38, s36, 9216")
    A("s_add_u32 s37, s37, s38")
    A("s_lshl_b32 s38, s36, 10")
    WV = 32
    def w_offsets():
        A("s_mul_i32 s40, s35, 448")
        A("s_mul_i32 s41, s33, 144")
        A(f"v_mov_b32 v9, 0x{BIGOFF:x}")
        for j in range(7):
            A(f"s_add_u32 s52, s40, {64*j}")
            A("v_add_u32 v2, s52, v1")
            A("v_mul_u32_u24 v3, 2341, v2")
            A("v_lshrrev_b32 v3, 16, v3")
            A("v_mul_u32_u24 v4, 28, v3")
            A("v_sub_u32 v4, v2, v4")
            A("v_bfe_u32 v5, v3, 3, 1")
            A("v_lshlrev_b32 v5, 1, v5")
            A("v_xor_b32 v4, v4, v5")
            A("v_mov_b32 v6, 1152")
            A("v_mov_b32 v7, 2160")
            A("v_cmp_le_u32 vcc, 9, v4")
            A("v_cndmask_b32 v6, v6, v7, vcc")
            A("v_mov_b32 v7, -288")
            A("v_cmp_le_u32 vcc, 18, v4")
            A("v_cndmask_b32 v6, v6, v7, vcc")
            A("v_lshl_add_u32 v6, v4, 4, v6")
            A("v_add_u32 v6, s41, v6")
            A("v_mul_u32_u24 v3, 3456, v3")
            A(f"v_add_u32 v{WV+j}, v3, v6")
            A("v_cmp_eq_u32 vcc, 27, v4")
            A(f"v_cndmask_b32 v{WV+j}, v{WV+j}, v9, vcc")
        A("s_mov_b32 s40, 0")
        A("s_mul_i32 s41, s35, 7168")
        A(f"s_add_u32 s41, s41, {XS}")
    def issue_block(first=False):
        A(f"s_mul_i32 s62, s61, {ST1}")
        A("s_add_u32 s63, s38, s62")
        if not first: A("s_add_u32 s62, s41, s62")
        for j in range(4):
            lab = None
            if j == 3:
                lab = A.newlabel(f"{n}_sk")
                A("s_cmp_ge_u32 s35, 2")
                A(f"s_cbranch_scc1 {lab}")
            A(f"s_add_u32 m0, s63, {1024*j}")
            A(f"s_add_u32 s52, s37, {9216*j}")
            if j < 2:
                A("s_cmp_lt_i32 s52, 0")
                A(f"s_cselect_b32 s52, 0x{BIGOFF:x}, s52")
            A(f"buffer_load_dwordx4 v{16+(j&1)}, s[44:47], s52 offen lds")
            if lab: A.label(lab)
        if first:
            w_offsets()
            A("s_mov_b32 s62, s41")
        for j in range(7):
            A(f"s_add_u32 m0, s62, {1024*j}")
            A("s_nop 0")
            A(f"buffer_load_dwordx4 v{WV+j}, s[48:51], s40 offen lds")
        A("s_add_u32 s37, s37, 128")
        A("s_add_u32 s40, s40, 221184")
        A("s_add_u32 s61, s61, 1")
        A("s_cmp_eq_u32 s61, 3")
        A("s_cselect_b32 s61, 0, s61")
    if OPT.get("lf", 0):
        A("s_mov_b32 s61, 0")
        issue_block(True)
        stamp(A, 1)
        A("v_and_b32 v2, 15, v1")
        A("v_lshrrev_b32 v3, 4, v1")
        attn_setup(A)
        A(f"v_mov_b32 v24, {PC}")
        A("s_lshl_b32 s53, s35, 2")
        A(f"s_add_u32 s53, s53, {PL}")
        A("v_mov_b32 v25, s53")
        A("s_barrier")
        A("s_waitcnt vmcnt(0)")
        A("v_mov_b32 v26, 1")
        A("ds_write_b32 v25, v26")
        stamp(A, 2)
        A("s_mov_b32 s60, 1")
        A.label(f"{n}_ll")
        labn = A.newlabel("nw")
        A("s_cmp_lt_u32 s60, 3")
        A(f"s_cbranch_scc1 {labn}")
        A("s_sub_u32 s54, s60, 2")
        lds_poll(A, 24, 28, 53, "s54", 55)
        A.label(labn)
        issue_block()
        if STAMPS and OPT.get("dbgl"):
            A("s_memrealtime s[100:101]")
            A("s_waitcnt lgkmcnt(0)")
            A("s_add_u32 s99, s60, 5")
            A("s_mov_b32 m0, s99")
            A("s_nop 4")
            A("v_writelane_b32 v246, s100, m0")
        A("s_waitcnt vmcnt(10)")
        A("v_mov_b32 v26, s60")
        A("ds_write_b32 v25, v26")
        A("s_add_u32 s60, s60, 1")
        A("s_cmp_lt_u32 s60, 9")
        A(f"s_cbranch_scc1 {n}_ll")
        A("s_waitcnt vmcnt(0)")
        A("v_mov_b32 v26, 9")
        A("ds_write_b32 v25, v26")
        A("s_waitcnt lgkmcnt(0)")
    else:
        A("s_mov_b32 s61, 0")
        if OPT.get("r1", 1):
            A("v_and_b32 v2, 15, v1")
            A("v_lshrrev_b32 v3, 4, v1")
            attn_setup(A)
            A("s_waitcnt vmcnt(0)")
            A("s_barrier")
            stamp(A, 1)
            A("s_mov_b32 s60, 0")
            A.label(f"{n}_lp")
            issue_block()
            A("s_add_u32 s60, s60, 1")
            A("s_cmp_lt_u32 s60, 2")
            A(f"s_cbranch_scc1 {n}_lp")
            A("s_waitcnt vmcnt(10)")
            stamp(A, 2)
            A("s_barrier")
            issue_block()
        else:
            issue_block(True)
            stamp(A, 1)
            A("v_and_b32 v2, 15, v1")
            A("v_lshrrev_b32 v3, 4, v1")
            attn_setup(A)
            A("s_waitcnt vmcnt(0)")
            stamp(A, 2)
            A("s_barrier")
            A("s_mov_b32 s60, 0")
            A.label(f"{n}_lp")
            issue_block()
            A("s_add_u32 s60, s60, 1")
            A("s_cmp_lt_u32 s60, 2")
            A(f"s_cbranch_scc1 {n}_lp")
        stamp(A, 3)
        A("s_mov_b32 s60, 0")
        A.label(f"{n}_ll")
        A("s_waitcnt vmcnt(10)")
        A("s_barrier")
        issue_block()
        A("s_add_u32 s60, s60, 1")
        A("s_cmp_lt_u32 s60, 6")
        A(f"s_cbranch_scc1 {n}_ll")
        A("s_waitcnt vmcnt(10)")
        A("s_barrier")
        A("s_waitcnt vmcnt(0)")
        A("s_barrier")
    A("s_barrier")
    A.label(f"{n}_attn")
    if OPT.get("prio"): A("s_setprio 0")
    A("s_waitcnt lgkmcnt(0)")
    A("s_barrier")
    stamp(A, 5)
    if OPT.get("hearly", 1):
        labh = A.newlabel("hea")
        A("s_cmp_ge_u32 s2, 64")
        A(f"s_cbranch_scc1 {labh}")
        A("s_and_b32 s38, s2, 7")
        A("s_lshr_b32 s37, s2, 3")
        A("s_add_u32 s37, s37, 10")
        grp_of(A, 36, 38, 37, 39)
        A(f"s_and_b32 s37, s{S_WAVE}, 3")
        A("s_lshl_b32 s36, s36, 2")
        A("s_add_u32 s36, s36, s37")
        A("s_lshl_b32 s36, s36, 12")
        make_srd(A, 48, P_H, 4096, add_s=36)
        HL = 170; a = HL + 26
        A(f"v_lshlrev_b32 v{a}, 4, v1")
        A(f"s_lshr_b32 s37, s{S_WAVE}, 2")
        A("s_lshl_b32 s37, s37, 11")
        A(f"v_add_u32 v{a}, s37, v{a}")
        A(f"v_add_u32 v{a+1}, 4, v{a}")
        A(f"v_add_u32 v{a+2}, 8, v{a}")
        for it in range(2):
            A(f"buffer_load_dwordx4 {v(HL+12*it,4)}, v{a}, s[48:51], 0 offen offset:{1024*it}")
            A(f"buffer_load_dwordx4 {v(HL+12*it+4,4)}, v{a+1}, s[48:51], 0 offen offset:{1024*it}")
            A(f"buffer_load_dwordx4 {v(HL+12*it+8,4)}, v{a+2}, s[48:51], 0 offen offset:{1024*it}")
        A(f"v_mov_b32 v{a+3}, 0")
        A(f"buffer_load_dwordx2 {v(HL+24,2)}, v{a+3}, s[48:51], 0 offen")
        A.label(labh)
    cst = struct.unpack("<I", struct.pack("<f", (18 ** -0.5) * math.log2(math.e)))[0]
    A(f"s_mov_b32 s42, 0x{cst:08x}")
    B = 24
    def regs(b): return B + 40 * b
    for b in range(3):
        R = regs(b)
        A(f"ds_read_b128 {v(R,4)}, v{V_KQ} offset:{8*HHS + 768*(b+1)}")
        A(f"ds_read_b128 {v(R+4,4)}, v{V_KQ} offset:{768*b}")
        A(f"ds_read_b128 {v(R+8,4)}, v{V_KQ} offset:{768*(b+1)}")
    for b in range(3):
        R = regs(b)
        A(f"ds_read_b64_tr_b16 {v(R+12,2)}, v{V_VT} offset:{4*HHS + 768*b}")
        A(f"ds_read_b64_tr_b16 {v(R+14,2)}, v{V_VT} offset:{4*HHS + 768*(b+1)}")
        A(f"ds_read_b64_tr_b16 {v(R+16,2)}, v{V_VT} offset:{4*HHS + 768*b + 32}")
        A(f"ds_read_b64_tr_b16 {v(R+18,2)}, v{V_VT} offset:{4*HHS + 768*(b+1) + 32}")
    for b in range(3):
        R = regs(b)
        A(f"s_waitcnt lgkmcnt({12 + 3*(2-b)})" if 12 + 3*(2-b) <= 15 else "s_waitcnt lgkmcnt(15)")
        A(f"v_cndmask_b32 v{R}, 0, v{R}, s[82:83]")
        for r in range(1, 4):
            A(f"v_cndmask_b32 v{R+r}, 0, v{R+r}, s[80:81]")
        A(f"v_mfma_f32_16x16x32_bf16 {v(R+20,4)}, {v(R+4,4)}, {v(R,4)}, 0")
        A(f"v_mfma_f32_16x16x32_bf16 {v(R+24,4)}, {v(R+8,4)}, {v(R,4)}, 0")
    for b in range(3):
        R = regs(b); S = R + 20
        for e in range(8):
            m = (84 + 2*e) if (b == 0 and e < 4) else (64 + 2*e)
            A(f"v_cndmask_b32 v{S+e}, v{V_NINF}, v{S+e}, s[{m}:{m+1}]")
        M = R + 28
        A(f"v_max3_f32 v{M}, v{S}, v{S+1}, v{S+2}")
        A(f"v_max3_f32 v{M}, v{M}, v{S+3}, v{S+4}")
        A(f"v_max3_f32 v{M}, v{M}, v{S+5}, v{S+6}")
        A(f"v_max_f32 v{M}, v{M}, v{S+7}")
    def xlane(op, b_regs):
        for kind in ("16", "32"):
            for (M, T) in b_regs: A(f"v_mov_b32 v{T}, v{M}")
            for (M, T) in b_regs: A(f"v_permlane{kind}_swap_b32 v{M}, v{T}")
            for (M, T) in b_regs: A(f"{op} v{M}, v{M}, v{T}")
    xlane("v_max_f32", [(regs(b)+28, regs(b)+29) for b in range(3)])
    for b in range(3):
        R = regs(b); M = R + 28
        A(f"v_mul_f32 v{M}, s42, v{M}")
    for b in range(3):
        R = regs(b); S = R + 20; M = R + 28
        for e in range(8): A(f"v_fma_f32 v{S+e}, v{S+e}, s42, -v{M}")
        for e in range(8): A(f"v_exp_f32 v{S+e}, v{S+e}")
    for b in range(3):
        R = regs(b); S = R + 20; M = R + 30
        A(f"v_add_f32 v{M}, v{S}, v{S+1}")
        A(f"v_add_f32 v{M+1}, v{S+2}, v{S+3}")
        A(f"v_add_f32 v{M}, v{M}, v{S+4}")
        A(f"v_add_f32 v{M+1}, v{M+1}, v{S+5}")
        A(f"v_add_f32 v{M}, v{M}, v{S+6}")
        A(f"v_add_f32 v{M+1}, v{M+1}, v{S+7}")
        A(f"v_add_f32 v{M}, v{M}, v{M+1}")
    xlane("v_add_f32", [(regs(b)+30, regs(b)+31) for b in range(3)])
    for b in range(3):
        A(f"v_rcp_f32 v{regs(b)+30}, v{regs(b)+30}")
    A("s_waitcnt lgkmcnt(0)")
    for b in range(3):
        R = regs(b); S = R + 20; M = R + 30
        for e in range(8): A(f"v_mul_f32 v{S+e}, v{S+e}, v{M}")
        for q in range(4): A(f"v_cvt_pk_bf16_f32 v{R+q}, v{S+2*q}, v{S+2*q+1}")
        A(f"v_mfma_f32_16x16x32_bf16 {v(R+32,4)}, {v(R+12,4)}, {v(R,4)}, 0")
        A(f"v_mfma_f32_16x16x32_bf16 {v(R+36,4)}, {v(R+16,4)}, {v(R,4)}, 0")
    for b in range(3):
        R = regs(b)
        A(f"v_cvt_pk_bf16_f32 v{R+4}, v{R+32}, v{R+33}")
        A(f"v_cvt_pk_bf16_f32 v{R+5}, v{R+34}, v{R+35}")
        A(f"v_cvt_pk_bf16_f32 v{R+6}, v{R+36}, v{R+37}")
        A(f"ds_write2_b32 v{V_OW+b}, v{R+4}, v{R+5} offset0:0 offset1:1")
    A("s_mov_b64 exec, 0xffff")
    for b in range(3):
        A(f"ds_write_b32 v{V_OW+b}, v{regs(b)+6} offset:32")
    A("s_mov_b64 exec, -1")
    make_srd(A, 44, P_WS, SZ_T, WS_OF)
    A("s_waitcnt lgkmcnt(0)")
    A("s_barrier")
    stamp(A, 6)
    for rnd in range(2):
        A(f"ds_read_b128 {v(20+4*rnd,4)}, v{V_OL+rnd}")
    for rnd in range(2):
        A(f"s_waitcnt lgkmcnt({1-rnd})")
        A(f"buffer_store_dwordx4 {v(20+4*rnd,4)}, v{V_OG+rnd}, s[44:47], 0 offen sc1")
    A("s_waitcnt vmcnt(0)")
    A("s_barrier")
    lab = A.newlabel("a1f")
    A(f"s_cmp_lg_u32 s{S_WAVE}, 0")
    A(f"s_cbranch_scc1 {lab}")
    nonce_resolve(A, "A")
    A("s_lshl_b32 s36, s32, 8")
    A("s_lshl_b32 s37, s33, 2")
    A("s_add_u32 s36, s36, s37")
    flag_store(A, "A", 36)
    A.label(lab)
    stamp(A, 7)

HC = 4160
URB = 4 * HC
WB = URB + 4608
XCH = 4 * WB
ZS = 4160

def b2_common(A, s_grp):
    A(f"s_and_b32 s32, s{S_WAVE}, 3")
    A(f"s_lshr_b32 s33, s{S_WAVE}, 2")
    A(f"s_lshl_b32 s34, s{s_grp}, 2")
    A("s_add_u32 s34, s34, s32")
    A("s_lshl_b32 s35, s34, 12")
    A(f"s_mul_i32 s36, s32, {WB}")
    make_srd(A, 44, P_H, 4096, add_s=35)
    A("s_lshl_b32 s37, s34, 1")
    A("s_and_b32 s38, s37, 0xfffffffc")
    A(f"s_load_dword s39, s[{P_D}:{P_D+1}], s38")

def b2_h_loads(A, HL, nits=2):
    a = HL + 12 * nits + 2
    A(f"v_lshlrev_b32 v{a}, 4, v1")
    if nits == 2:
        A("s_lshl_b32 s40, s33, 11")
        A(f"v_add_u32 v{a}, s40, v{a}")
    A(f"v_add_u32 v{a+1}, 4, v{a}")
    A(f"v_add_u32 v{a+2}, 8, v{a}")
    for it in range(nits):
        A(f"buffer_load_dwordx4 {v(HL+12*it,4)}, v{a}, s[44:47], 0 offen offset:{1024*it}")
        A(f"buffer_load_dwordx4 {v(HL+12*it+4,4)}, v{a+1}, s[44:47], 0 offen offset:{1024*it}")
        A(f"buffer_load_dwordx4 {v(HL+12*it+8,4)}, v{a+2}, s[44:47], 0 offen offset:{1024*it}")
    A(f"v_mov_b32 v{a+3}, 0")
    A(f"buffer_load_dwordx2 {v(HL+12*nits,2)}, v{a+3}, s[44:47], 0 offen")

def b2_h_stage(A, HL, T, nits=2):
    a = HL + 12 * nits + 2
    A(f"v_add_u32 v{a+1}, s36, v{a}")
    for it in range(nits):
        b = HL + 12 * it
        for i in range(4): A(f"v_alignbit_b32 v{T+i}, v{b+4+i}, v{b+i}, 16")
        for i in range(4): A(f"v_alignbit_b32 v{T+4+i}, v{b+8+i}, v{b+4+i}, 16")
        off = 32 + 1024 * it
        A(f"ds_write_b128 v{a+1}, {v(b,4)} offset:{off}")
        A(f"ds_write_b128 v{a+1}, {v(T,4)} offset:{off+HC}")
        A(f"ds_write_b128 v{a+1}, {v(b+4,4)} offset:{off+2*HC}")
        A(f"ds_write_b128 v{a+1}, {v(T+4,4)} offset:{off+3*HC}")
    d0, d1 = HL + 12*nits, HL + 12*nits + 1
    A(f"v_lshlrev_b32 v{T+8}, 16, v{d0}")
    A(f"v_alignbit_b32 v{T+9}, v{d1}, v{d0}, 16")
    Z = T + 10
    for r in range(0, 8, 2): A(f"v_mov_b64 {v(Z+r,2)}, 0")
    A("v_cmp_eq_u32 s[60:61], 1, v1")
    A("v_cmp_eq_u32 s[62:63], 2, v1")
    A("v_cmp_eq_u32 s[64:65], 3, v1")
    A(f"v_cndmask_b32 v{Z+7}, v{Z+7}, v{T+8}, s[60:61]")
    A(f"v_cndmask_b32 v{Z+7}, v{Z+7}, v{d0}, s[62:63]")
    A(f"v_cndmask_b32 v{Z+7}, v{Z+7}, v{T+9}, s[64:65]")
    A(f"v_cndmask_b32 v{Z+6}, v{Z+6}, v{T+8}, s[64:65]")
    A(f"v_mul_u32_u24 v{a+2}, {HC}, v1")
    A(f"v_add_u32 v{a+2}, s36, v{a+2}")
    A("s_mov_b64 exec, 0xf")
    A(f"ds_write_b128 v{a+2}, {v(Z,4)}")
    A(f"ds_write_b128 v{a+2}, {v(Z+4,4)} offset:16")
    A("s_mov_b64 exec, 0xffffffff")
    A(f"v_lshlrev_b32 v{a+2}, 4, v1")
    A(f"v_add_u32 v{a+2}, s36, v{a+2}")
    A(f"ds_write_b128 v{a+2}, {v(Z,4)} offset:{URB+4096}")
    A("s_mov_b64 exec, -1")

def b2_main(A, s_grp, sb, resolved):
    make_srd(A, 48, P_WS, 4096, WS_UR, add_s=35)
    make_srd(A, 52, P_Q, SZ_T)
    make_srd(A, 56, P_OUT, 2048 * 2304)
    A("v_and_b32 v3, 15, v1")
    A("v_lshrrev_b32 v4, 4, v1")
    A("v_lshlrev_b32 v5, 4, v1")
    A("s_lshl_b32 s40, s33, 11")
    A("v_add_u32 v5, s40, v5")
    A("v_add_u32 v10, s36, v5")
    A("v_lshlrev_b32 v9, 5, v3")
    A("v_lshl_add_u32 v9, v4, 3, v9")
    A(f"s_lshl_b32 s41, s{S_WAVE}, 8")
    A("v_add_u32 v8, s41, v1")
    A("s_movk_i32 s42, 1152")
    A("v_mul_lo_u32 v8, v8, s42")
    A(f"s_lshl_b32 s43, s{s_grp}, 3")
    A("v_add_u32 v8, s43, v8")
    A("v_add_u32 v12, 1, v3")
    A("v_and_b32 v13, 3, v12")
    A("v_lshrrev_b32 v12, 2, v12")
    A(f"v_mul_u32_u24 v13, {HC}, v13")
    A("v_lshl_add_u32 v13, v4, 4, v13")
    A("v_lshl_add_u32 v13, v12, 3, v13")
    A("s_lshl_b32 s41, s33, 8")
    A("s_add_u32 s41, s41, s36")
    A("v_add_u32 v13, s41, v13")
    A("v_lshlrev_b32 v14, 4, v4")
    A("v_lshlrev_b32 v15, 5, v3")
    A("v_sub_u32 v14, v14, v15")
    A(f"v_add_u32 v14, {URB+480}, v14")
    A("v_add_u32 v14, s41, v14")
    stamp(A, sb + 0)
    lab = A.newlabel("b2w")
    A(f"s_cmp_lg_u32 s{S_WAVE}, 0")
    A(f"s_cbranch_scc1 {lab}")
    if not resolved:
        A("s_waitcnt vmcnt(0)")
        nonce_resolve(A, "B")
    A(f"s_lshr_b32 s41, s{s_grp}, 4")
    A("s_lshl_b32 s41, s41, 8")
    flag_poll(A, "B", 41)
    A.label(lab)
    A("s_barrier")
    stamp(A, sb + 1)
    U = 68
    for it in range(2):
        A(f"buffer_load_dwordx4 {v(U+4*it,4)}, v5, s[48:51], 0 offen offset:{1024*it} sc1")
    Q = 84
    A(f"s_lshl_b32 s41, s{S_WAVE}, 12")
    A("v_lshlrev_b32 v6, 4, v1")
    A(f"v_add_u32 v6, {XCH}, v6")
    A("v_add_u32 v7, s41, v6")
    A(f"s_xor_b32 s42, s{S_WAVE}, 4")
    A("s_lshl_b32 s42, s42, 12")
    A("v_add_u32 v6, s42, v6")
    A(f"v_sub_u32 v11, {URB+504}, v9")
    A("s_lshl_b32 s41, s33, 11")
    A("s_sub_u32 s42, s36, s41")
    A("v_add_u32 v11, s42, v11")
    A(f"s_mul_i32 s42, s32, {ZS}")
    A("s_add_u32 s42, s42, s41")
    A("v_add_u32 v9, s42, v9")
    A("s_waitcnt vmcnt(0)")
    for it in range(2):
        A(f"ds_write_b128 v10, {v(U+4*it,4)} offset:{URB+1024*it}")
    for it in range(4): A(f"s_mov_b32 s{60+it}, {64*1152*it}")
    A("s_waitcnt lgkmcnt(0)")
    A("s_barrier")
    stamp(A, sb + 2)
    ACC = 208
    FA = [104, 16]
    def frag_reads(rho, base):
        lst = []
        for b in range(8):
            lst.append(f"ds_read_b128 {v(base+32+4*b,4)}, v14 offset:{64*rho+512*(7-b)}")
        aa_l = []
        for aa in range(8):
            aa_l.append(f"ds_read_b64 {v(base+4*aa,2)}, v13 offset:{512*aa+64*rho}")
            aa_l.append(f"ds_read_b64 {v(base+4*aa+2,2)}, v13 offset:{512*aa+64*rho+8}")
        return aa_l[:2] + lst + aa_l[2:]
    for r_ in frag_reads(0, FA[0]): A(r_)
    UU = 88
    UU = 92
    for rho in range(4):
        base = FA[rho & 1]
        A("s_waitcnt lgkmcnt(0)")
        rd = frag_reads(rho + 1, FA[(rho + 1) & 1]) if rho < 3 else [f"ds_read_b64 {v(UU+2*c,2)}, v11 offset:{512*(7-c)}" for c in range(4)]
        i = 0
        A(f"buffer_load_dwordx2 {v(Q+2*rho,2)}, v8, s[52:55], s{60+rho} offen")
        for aa in range(8):
            for b in range(8 - aa):
                c = aa + b
                src = "0" if (rho == 0 and aa == 0) else v(ACC+4*c, 4)
                A(f"v_mfma_f32_16x16x32_bf16 {v(ACC+4*c,4)}, {v(base+4*aa,4)}, {v(base+32+4*b,4)}, {src}")
                if i < len(rd): A(rd[i]); i += 1
    stamp(A, sb + 3)
    l1 = A.newlabel("b2h1"); l2 = A.newlabel("b2x")
    KP = 192
    A("s_cmp_eq_u32 s33, 1")
    A(f"s_cbranch_scc1 {l1}")
    for c in range(4): A(f"ds_write_b128 v7, {v(ACC+16+4*c,4)} offset:{1024*c}")
    for c in range(8): A(f"v_mov_b64 {v(KP+2*c,2)}, {v(ACC+2*c,2)}")
    A(f"s_branch {l2}")
    A.label(l1)
    for c in range(4): A(f"ds_write_b128 v7, {v(ACC+4*c,4)} offset:{1024*c}")
    for c in range(8): A(f"v_mov_b64 {v(KP+2*c,2)}, {v(ACC+16+2*c,2)}")
    A.label(l2)
    A("s_and_b32 s37, s37, 2")
    A("s_lshl_b32 s37, s37, 3")
    A("s_waitcnt lgkmcnt(0)")
    A("s_lshr_b32 s39, s39, s37")
    A("s_lshl_b32 s39, s39, 16")
    TT = 16
    for c in range(4):
        A(f"v_and_b32 v{TT+4*c+0}, 0xffff0000, v{UU+2*c+1}")
        A(f"v_lshlrev_b32 v{TT+4*c+1}, 16, v{UU+2*c+1}")
        A(f"v_and_b32 v{TT+4*c+2}, 0xffff0000, v{UU+2*c}")
        A(f"v_lshlrev_b32 v{TT+4*c+3}, 16, v{UU+2*c}")
    for e in range(16): A(f"v_fma_f32 v{KP+e}, v{TT+e}, s39, v{KP+e}")
    A("s_barrier")
    for c in range(4): A(f"ds_read_b128 {v(48+4*c,4)}, v6 offset:{1024*c}")
    for c in range(4):
        A(f"s_waitcnt lgkmcnt({3-c})")
        for r in range(4): A(f"v_add_f32 v{KP+4*c+r}, v{KP+4*c+r}, v{48+4*c+r}")
        A(f"v_cvt_pk_bf16_f32 v{64+2*c}, v{KP+4*c}, v{KP+4*c+1}")
        A(f"v_cvt_pk_bf16_f32 v{65+2*c}, v{KP+4*c+2}, v{KP+4*c+3}")
        A(f"ds_write_b64 v9, {v(64+2*c,2)} offset:{512*c}")
    A("s_waitcnt vmcnt(0)")
    QF = 32
    for it in range(4):
        A(f"v_lshlrev_b32 v{QF+4*it+0}, 16, v{Q+2*it}")
        A(f"v_and_b32 v{QF+4*it+1}, 0xffff0000, v{Q+2*it}")
        A(f"v_lshlrev_b32 v{QF+4*it+2}, 16, v{Q+2*it+1}")
        A(f"v_and_b32 v{QF+4*it+3}, 0xffff0000, v{Q+2*it+1}")
    A("v_lshrrev_b32 v12, 2, v3")
    A(f"v_mul_u32_u24 v12, {ZS}, v12")
    A("v_and_b32 v13, 3, v3")
    A("v_lshl_add_u32 v12, v13, 3, v12")
    A("v_lshl_add_u32 v12, v4, 5, v12")
    A(f"s_lshl_b32 s41, s{S_WAVE}, 9")
    A("v_add_u32 v12, s41, v12")
    A(f"s_lshl_b32 s41, s{S_WAVE}, 8")
    A("v_add_u32 v13, s41, v1")
    A("s_movk_i32 s42, 2304")
    A(f"s_lshl_b32 s43, s{s_grp}, 3")
    A("s_add_u32 s43, s43, 1152")
    A("v_mul_lo_u32 v13, v13, s42")
    A("v_add_u32 v13, s43, v13")
    for it in range(4): A(f"s_mov_b32 s{60+it}, {64*2304*it}")
    A("s_waitcnt lgkmcnt(0)")
    A("s_barrier")
    for it in range(4):
        A(f"ds_read_b64_tr_b16 {v(16+2*it,2)}, v12 offset:{128*it}")
    for it in range(4):
        A(f"s_waitcnt lgkmcnt({3-it})")
        t = 48 + 4 * it
        A(f"v_lshlrev_b32 v{t+0}, 16, v{16+2*it}")
        A(f"v_and_b32 v{t+1}, 0xffff0000, v{16+2*it}")
        A(f"v_lshlrev_b32 v{t+2}, 16, v{16+2*it+1}")
        A(f"v_and_b32 v{t+3}, 0xffff0000, v{16+2*it+1}")
        for r in range(4): A(f"v_mul_f32 v{t+r}, v{t+r}, v{QF+4*it+r}")
        A(f"v_cvt_pk_bf16_f32 v{64+2*it}, v{t}, v{t+1}")
        A(f"v_cvt_pk_bf16_f32 v{65+2*it}, v{t+2}, v{t+3}")
        A(f"buffer_store_dwordx2 {v(64+2*it,2)}, v13, s[56:59], s{60+it} offen" + (" sc1" if OPT.get("b2sc1") else ""))
    stamp(A, sb + 4)

def b1_addr(A, s_tile, vt):
    A(f"s_mul_hi_u32 s66, s{s_tile}, 0x1c71c71d")
    A("s_mul_i32 s67, s66, 9")
    A(f"s_sub_u32 s67, s{s_tile}, s67")
    A(f"v_and_b32 v2, 7, v{vt}")
    A(f"v_lshrrev_b32 v3, 3, v{vt}")
    A("s_lshl_b32 s40, s66, 8")
    A("v_lshl_add_u32 v4, v3, 3, s40")
    A("s_lshl_b32 s41, s67, 7")
    A("v_lshl_add_u32 v5, v2, 4, s41")
    A("s_movk_i32 s42, 1152")
    A("v_mad_u32_u24 v6, v4, s42, v5")
    A("v_add_u32 v7, 4608, v6")

def gen_b1_kv(A, s_tile):
    A.comment("===== B1 kv (waves 0-3) =====")
    b1_addr(A, s_tile, 0)
    A("v_subrev_u32 v8, 3456, v6")
    A("v_subrev_u32 v9, 2304, v6")
    A("v_subrev_u32 v10, 1152, v6")
    make_srd(A, 48, P_K, SZ_T)
    make_srd(A, 52, P_V, SZ_T)
    make_srd(A, 56, P_SH, 576 * 8)
    KR, VR, SH, W = 16, 60, 92, 108
    KF, VF, ACC, OUT = 140, 162, 178, 194
    for j, vo in enumerate((8, 9, 10)):
        A(f"buffer_load_dwordx4 {v(KR+4*j,4)}, v{vo}, s[48:51], 0 offen")
    for i in range(8):
        A(f"buffer_load_dwordx4 {v(KR+4*(3+i),4)}, v{6 if i < 4 else 7}, s[48:51], 0 offen offset:{1152*(i%4)}")
    for i in range(8):
        A(f"buffer_load_dwordx4 {v(VR+4*i,4)}, v{6 if i < 4 else 7}, s[52:55], 0 offen offset:{1152*(i%4)}")
    A("s_lshl_b32 s43, s67, 9")
    A("v_lshl_add_u32 v11, v2, 6, s43")
    for i in range(4):
        A(f"buffer_load_dwordx4 {v(SH+4*i,4)}, v11, s[56:59], 0 offen offset:{16*i}")
    stamp(A, 2)
    make_srd(A, 52+8, P_WS, SZ_T, WS_UR)
    A("s_lshl_b32 s43, s67, 18")
    A("v_lshl_add_u32 v12, v2, 15, s43")
    A("v_lshlrev_b32 v14, 1, v4")
    A("v_sub_u32 v12, v12, v14")
    A("v_add_u32 v12, 4080, v12")
    for ch in range(8): A(f"s_mov_b32 s{68+ch}, {ch*4096}")
    A("s_waitcnt vmcnt(0)")
    A("s_barrier")
    stamp(A, 3)
    for ch in range(8):
        A(f"v_lshlrev_b32 v{W+0*8+ch}, 16, v{SH+2*ch}")
        A(f"v_and_b32 v{W+1*8+ch}, 0xffff0000, v{SH+2*ch}")
        A(f"v_lshlrev_b32 v{W+2*8+ch}, 16, v{SH+2*ch+1}")
        A(f"v_and_b32 v{W+3*8+ch}, 0xffff0000, v{SH+2*ch+1}")
    for m in range(4):
        for j in range(11):
            A(f"v_lshlrev_b32 v{KF+2*j}, 16, v{KR+4*j+m}")
            A(f"v_and_b32 v{KF+2*j+1}, 0xffff0000, v{KR+4*j+m}")
        for i in range(8):
            A(f"v_lshlrev_b32 v{VF+2*i}, 16, v{VR+4*i+m}")
            A(f"v_and_b32 v{VF+2*i+1}, 0xffff0000, v{VR+4*i+m}")
        for i in range(8):
            A(f"v_pk_mul_f32 {v(ACC+2*i,2)}, {v(W+3*8+2*m,2)}, {v(KF+2*i,2)}")
        for t in (2, 1, 0):
            for i in range(8):
                A(f"v_pk_fma_f32 {v(ACC+2*i,2)}, {v(W+t*8+2*m,2)}, {v(KF+2*(i+3-t),2)}, {v(ACC+2*i,2)}")
        for i in range(8):
            A(f"v_pk_mul_f32 {v(ACC+2*i,2)}, {v(ACC+2*i,2)}, {v(VF+2*i,2)}")
        o = OUT + 8 * (m & 1)
        for h in range(2):
            for q in range(4):
                A(f"v_cvt_pk_bf16_f32 v{o+4*h+q}, v{ACC+2*(7-2*q)+h}, v{ACC+2*(6-2*q)+h}")
        for h in range(2):
            A(f"buffer_store_dwordx4 {v(o+4*h,4)}, v12, s[60:63], s{68+2*m+h} offen sc1")
    stamp(A, 4)

def tlb_warm(A):
    items = []
    for p, size in ((P_K, SZ_T), (P_V, SZ_T), (P_Q, SZ_T), (P_H, SZ_T), (P_WO, 576*1152), (P_OUT, 2048*2304), (P_SH, 64), (P_D, 64)):
        offs = list(range(0, size, 2 << 20))
        offs.append(size - 128 if size > 128 else 0)
        for o in sorted(set(offs)): items.append((p, o))
    for o in (0, (2 << 20) + (1 << 20), (4 << 20), (6 << 20) + (1 << 20), (8 << 20), (10 << 20) + (1 << 20), (12 << 20)):
        items.append((P_WS, o))
    assert len(items) <= 64
    A(f"v_mov_b32 v20, s{P_WS}")
    A(f"v_mov_b32 v21, s{P_WS+1}")
    for i, (p, o) in enumerate(items):
        A(f"s_add_u32 s96, s{p}, {o}")
        A(f"s_addc_u32 s97, s{p+1}, 0")
        A(f"v_writelane_b32 v20, s96, {i}")
        A(f"v_writelane_b32 v21, s97, {i}")
    A("global_load_dword v245, v[20:21], off")

def tlb_warm64(A, s_idx10):
    regions = [(P_WS, WS_UR - 4096, SZ_T + 4096), (P_WS, WS_OF - 4096, SZ_T + 4096), (P_OUT, 0, 2048 * 2304), (P_Q, 0, SZ_T), (P_H, 0, SZ_T), (P_WO, 0, 576 * 1152), (P_K, 0, SZ_T), (P_V, 0, SZ_T)]
    vd = 236
    for r, (p, base, size) in enumerate(regions):
        n = -(-size // 65536)
        per = -(-n // 10)
        make_srd(A, 92, p, size, base)
        A(f"s_mul_i32 s96, s{s_idx10}, {per}")
        A("v_add_u32 v22, s96, v1")
        A("v_lshlrev_b32 v22, 16, v22")
        A(f"v_mov_b32 v23, 0x{BIGOFF:x}")
        A(f"v_cmp_le_u32 vcc, {per}, v1")
        A("v_cndmask_b32 v22, v22, v23, vcc")
        A(f"buffer_load_dword v{vd + (r & 3)}, v22, s[92:95], 0 offen sc1")

def b_prefetch(A):
    make_srd(A, 48, P_X, SZ_T)
    make_srd(A, 52, P_W, 576 * 3456)
    lab = A.newlabel("bpf"); lab1 = A.newlabel("bpf1")
    if OPT.get("r1", 1):
        A(f"s_cmp_ge_u32 s{S_WAVE}, 5")
        A(f"s_cbranch_scc1 {lab1}")
        A("s_lshr_b32 s40, s2, 3")
        a_prefetch_setup(A, 10, 12, 4, 40, 32)
        a_prefetch_issue(A, 10, 12, S_WAVE, 48, 52, 240)
        A(f"s_branch {lab}")
        A.label(lab1)
        A(f"s_cmp_ge_u32 s{S_WAVE}, {OPT.get('af', 7)}")
        A(f"s_cbranch_scc1 {lab}")
        A("s_lshr_b32 s40, s91, 3")
        a_prefetch_setup(A, 10, 12, 4, 40, 10)
        a_prefetch_issue(A, 10, 12, S_WAVE, 48, 52, 240, two=True)
    else:
        A(f"s_cmp_ge_u32 s{S_WAVE}, {OPT.get('af', 7) - 1}")
        A(f"s_cbranch_scc1 {lab}")
        A("s_lshr_b32 s40, s91, 3")
        a_prefetch_setup(A, 10, 12, 4, 40, 10)
        A(f"s_add_u32 s40, s{S_WAVE}, 1")
        if OPT.get("xown"):
            A("s_mul_i32 s97, s40, 221184")
            A("buffer_load_dword v240, v12, s[52:55], s97 offen")
        else:
            a_prefetch_issue(A, 10, 12, 40, 48, 52, 240, two=True)
    A.label(lab)
    if OPT.get("tlb"):
        lab2 = A.newlabel("tlb")
        A(f"s_cmp_lg_u32 s{S_WAVE}, 7")
        A(f"s_cbranch_scc1 {lab2}")
        tlb_warm(A)
        if OPT.get("tlb64"):
            A("s_lshr_b32 s97, s91, 3")
            tlb_warm64(A, 97)
        A.label(lab2)
    get_nonce_issue(A, "B")

def gen_b1_aux(A, s_tile, has_tile):
    A.comment("===== B1 aux (waves 4-7) =====")
    HL = 130
    if has_tile:
        A("s_barrier")
    b2_h_loads(A, HL, 4)
    make_srd(A, 48, P_Q, SZ_T)
    A("s_lshr_b32 s40, s91, 3")
    A("s_lshl_b32 s40, s40, 2")
    A("s_add_u32 s40, s40, s32")
    A("s_mul_i32 s40, s40, 52")
    A("v_add_u32 v10, s40, v1")
    A("s_and_b32 s41, s2, 7")
    if OPT.get("gmap", 1):
        A("s_lshl_b32 s41, s41, 7")
    else:
        A("s_mul_i32 s41, s41, 144")
        A("s_and_b32 s41, s41, 0xffffff80")
    A("s_movk_i32 s42, 1152")
    A("v_mul_lo_u32 v11, v10, s42")
    A("v_add_u32 v11, s41, v11")
    A(f"v_mov_b32 v12, 0x{BIGOFF:x}")
    A("v_cmp_le_u32 vcc, 52, v1")
    A("v_cndmask_b32 v11, v11, v12, vcc")
    A("buffer_load_dword v243, v11, s[48:51], 0 offen")
    if OPT.get("gmap", 1):
        A("v_subrev_u32 v12, s41, v11")
        A("v_add_u32 v12, 1024, v12")
        A("buffer_load_dword v244, v12, s[48:51], 0 offen")
    else:
        A("buffer_load_dword v244, v11, s[48:51], 0 offen offset:128")
    stamp(A, 2)
    A("s_waitcnt vmcnt(2)")
    stamp(A, 4)
    b2_h_stage(A, HL, 100, 4)

WO_B = 72 * 1024

def gen_a2(A, s_x, s_a, sb):
    A.comment("===== A2 =====")
    A(f"s_sub_u32 s34, s{s_a}, 4")
    A("s_lshr_b32 s33, s34, 1")
    A("s_add_u32 s33, s33, 4")
    A("s_and_b32 s34, s34, 1")
    A(f"s_cmp_lt_u32 s{s_a}, 4")
    A(f"s_cselect_b32 s33, s{s_a}, s33")
    A("s_cselect_b32 s34, 0, s34")
    A("s_cselect_b32 s42, 2, 1")
    A(f"s_lshl_b32 s32, s{s_x}, 1")
    A("s_add_u32 s32, s32, s34")
    make_srd(A, 44, P_WO, 576 * 1152)
    A("v_lshrrev_b32 v2, 3, v1")
    A("v_and_b32 v3, 7, v1")
    A("v_bfe_u32 v4, v1, 4, 1")
    A("v_lshlrev_b32 v4, 1, v4")
    A("v_xor_b32 v4, v4, v3")
    A("v_mul_u32_u24 v5, 1152, v2")
    A("v_lshl_add_u32 v5, v4, 4, v5")
    A("s_lshl_b32 s34, s33, 7")
    A("v_add_u32 v10, s34, v5")
    A("v_xor_b32 v11, 64, v10")
    A(f"s_mul_i32 s35, s{S_WAVE}, 9")
    A("s_and_b32 s36, s35, 1")
    A("s_cmp_eq_u32 s36, 1")
    A("s_cselect_b64 s[56:57], -1, 0")
    A("v_cndmask_b32 v12, v10, v11, s[56:57]")
    A("v_cndmask_b32 v13, v11, v10, s[56:57]")
    A("s_lshl_b32 s36, s33, 3")
    A("s_add_u32 s36, s36, s35")
    A("s_lshl_b32 s37, s35, 10")
    for j in range(9):
        A(f"s_add_u32 s38, s36, {j}")
        A("s_sub_u32 s39, s38, 72")
        A("s_cmp_ge_u32 s38, 72")
        A("s_cselect_b32 s38, s39, s38")
        A("s_mul_i32 s38, s38, 9216")
        A(f"s_add_u32 m0, s37, {1024*j}")
        A(f"buffer_load_dwordx4 v{12+(j&1)}, s[44:47], s38 offen lds")
    make_srd(A, 48, P_WS, SZ_T, WS_OF)
    make_srd(A, 52, P_OUT, 2048 * 2304)
    A("s_lshl_b32 s38, s32, 3")
    A(f"s_add_u32 s38, s38, s{S_WAVE}")
    A("s_mul_i32 s39, s38, 18432")
    A("v_lshlrev_b32 v2, 4, v1")
    A("v_add_u32 v2, s39, v2")
    A("v_add_u32 v3, 4096, v2"); A("v_add_u32 v4, 8192, v2"); A("v_add_u32 v5, 12288, v2"); A("v_add_u32 v6, 16384, v2")
    A("v_and_b32 v7, 15, v1")
    A("v_lshrrev_b32 v8, 4, v1")
    A("v_lshrrev_b32 v9, 2, v7")
    A("v_lshl_add_u32 v9, v8, 3, v9")
    A("v_lshlrev_b32 v9, 7, v9")
    A("v_and_b32 v10, 1, v7")
    A("v_lshl_add_u32 v9, v10, 3, v9")
    A("v_bfe_u32 v10, v7, 3, 1")
    A("v_and_b32 v11, 1, v8")
    A("v_lshl_add_u32 v10, v11, 1, v10")
    A("v_lshlrev_b32 v10, 1, v10")
    A("v_bfe_u32 v11, v7, 1, 1")
    for nt in range(4):
        A(f"v_add_u32 v14, {2*nt}, v11")
        A("v_xor_b32 v14, v14, v10")
        A(f"v_lshl_add_u32 v{16+nt}, v14, 4, v9")
        A(f"v_add_u32 v{20+nt}, 36864, v{16+nt}")
    A(f"s_mul_i32 s40, s{S_WAVE}, 2304")
    A(f"s_add_u32 s40, s40, {WO_B}")
    A("v_mul_u32_u24 v9, 144, v7")
    A("v_lshl_add_u32 v9, v8, 3, v9")
    A("v_add_u32 v9, s40, v9")
    A("v_lshrrev_b32 v10, 3, v1")
    A("v_and_b32 v11, 7, v1")
    A("v_mul_u32_u24 v12, 144, v10")
    A("v_lshl_add_u32 v12, v11, 4, v12")
    A("v_add_u32 v12, s40, v12")
    A("s_mul_i32 s39, s38, 36864")
    A("s_lshl_b32 s41, s33, 7")
    A("s_add_u32 s39, s39, s41")
    A("v_mul_u32_u24 v13, 2304, v10")
    A("v_lshl_add_u32 v13, v11, 4, v13")
    A("v_add_u32 v13, s39, v13")
    A("v_add_u32 v14, 18432, v13")
    stamp(A, sb + 0)
    lab = A.newlabel("a2w")
    A(f"s_cmp_lg_u32 s{S_WAVE}, 0")
    A(f"s_cbranch_scc1 {lab}")
    A("s_lshl_b32 s39, s32, 7")
    A("s_mul_hi_u32 s40, s39, 0x2aaaaab")
    A("s_lshl_b32 s41, s42, 7")
    A("s_add_u32 s39, s39, s41")
    A("s_sub_u32 s39, s39, 1")
    A("s_mul_hi_u32 s41, s39, 0x2aaaaab")
    make_srd(A, 92, P_WS, 65536, WS_FA)
    A("v_lshrrev_b32 v250, 3, v1")
    A("v_add_u32 v250, s40, v250")
    A("v_min_u32 v250, s41, v250")
    A("v_lshlrev_b32 v250, 8, v250")
    A("v_and_b32 v249, 7, v1")
    A("v_lshl_add_u32 v250, v249, 2, v250")
    A("s_mov_b64 exec, 0xffffffff")
    lp = A.newlabel("poll"); done = A.newlabel("polld")
    A("s_mov_b32 s88, 1000000")
    A.label(lp)
    A("buffer_load_dword v251, v250, s[92:95], 0 offen sc1")
    A("s_waitcnt vmcnt(0)")
    A(f"v_cmp_ne_u32 vcc, s{S_NA}, v251")
    A("s_nop 4")
    A(f"s_cbranch_vccz {done}")
    A(f"s_sleep {OPT.get('slp', 2)}")
    A("s_sub_u32 s88, s88, 1")
    A("s_cmp_lg_u32 s88, 0")
    A(f"s_cbranch_scc1 {lp}")
    A.label(done)
    A("s_mov_b64 exec, -1")
    A.label(lab)
    A("s_waitcnt vmcnt(0)")
    A("s_barrier")
    stamp(A, sb + 1)
    BF = [24, 136]
    ACC = 96
    AF = [112, 120]
    AF = [112, 208, 224]
    def oloads(base, extra):
        A("s_lshl_b32 s44, s33, 1")
        for j in range(18):
            A("s_lshl_b32 s45, s44, 10")
            if extra: A("s_add_u32 s45, s45, s43")
            A(f"buffer_load_dwordx4 {v(base+4*j,4)}, v2, s[48:51], s45 offen sc1")
            A("s_add_u32 s44, s44, 1")
            A("s_cmp_eq_u32 s44, 18")
            A("s_cselect_b32 s44, 0, s44")
    def reads(ks, base):
        lst = []
        for nt in range(4):
            va = (16 if ks < 9 else 20) + nt
            for h in range(2):
                lst.append(f"ds_read_b64_tr_b16 {v(base+4*nt+2*h,2)}, v{va} offset:{(ks%9)*4096 + h*512}")
        return lst
    def tile(bf, mode, soff):
        for r_ in reads(0, AF[0]): A(r_)
        for r_ in reads(1, AF[1]): A(r_)
        if mode == 1: A("s_lshl_b32 s44, s33, 1")
        for ks in range(18):
            rd = reads(ks + 2, AF[(ks+2) % 3]) if ks < 16 else []
            cnt = {0: 17 - ks, 1: 17, 2: 17 - ks + 2}[mode]
            A(f"s_waitcnt vmcnt({cnt}) lgkmcnt({8 if ks < 17 else 0})")
            i = 0
            for nt in range(4):
                c = "0" if ks == 0 else v(ACC+4*nt, 4)
                A(f"v_mfma_f32_16x16x32_bf16 {v(ACC+4*nt,4)}, {v(AF[ks%3]+4*nt,4)}, {v(bf+4*ks,4)}, {c}")
                for _ in range(2):
                    if i < len(rd): A(rd[i]); i += 1
            if mode == 1:
                A("s_lshl_b32 s45, s44, 10")
                A("s_add_u32 s45, s45, s43")
                A(f"buffer_load_dwordx4 {v(BF[1]+4*ks,4)}, v2, s[48:51], s45 offen sc1")
                A("s_add_u32 s44, s44, 1")
                A("s_cmp_eq_u32 s44, 18")
                A("s_cselect_b32 s44, 0, s44")
        for nt in range(4):
            A(f"v_cvt_pk_bf16_f32 v{128+2*nt}, v{ACC+4*nt}, v{ACC+4*nt+1}")
            A(f"v_cvt_pk_bf16_f32 v{129+2*nt}, v{ACC+4*nt+2}, v{ACC+4*nt+3}")
            A(f"ds_write_b64 v9, {v(128+2*nt,2)} offset:{32*nt}")
        A("s_waitcnt lgkmcnt(0)")
        A("ds_read_b128 v[128:131], v12")
        A("ds_read_b128 v[132:135], v12 offset:1152")
        A("s_waitcnt lgkmcnt(1)")
        A(f"buffer_store_dwordx4 v[128:131], v13, s[52:55], {soff} offen" + (" sc1" if OPT.get("a2sc1") else ""))
        A("s_waitcnt lgkmcnt(0)")
        A(f"buffer_store_dwordx4 v[132:135], v14, s[52:55], {soff} offen" + (" sc1" if OPT.get("a2sc1") else ""))
    oloads(BF[0], False)
    l2 = A.newlabel("a2two"); lend = A.newlabel("a2end")
    A("s_cmp_eq_u32 s42, 2")
    A(f"s_cbranch_scc1 {l2}")
    tile(BF[0], 0, "0")
    A(f"s_branch {lend}")
    A.label(l2)
    A(f"s_mov_b32 s43, {8*18432}")
    tile(BF[0], 1, "0")
    stamp(A, sb + 2)
    A(f"s_mov_b32 s43, {128*2304}")
    tile(BF[1], 2, "s43")
    A.label(lend)
    stamp(A, sb + 3)

def build(path, stamps=False):
    global STAMPS
    STAMPS = stamps
    A = Asm()
    A.raw(f".globl {NAME}\n.p2align 8\n.type {NAME},@function\n{NAME}:")
    A("s_cmp_ge_u32 s2, 256")
    A("s_cbranch_scc1 L_end")
    A("s_load_dwordx16 s[4:19], s[0:1], 0")
    A("s_load_dwordx8 s[20:27], s[0:1], 64")
    A("s_memrealtime s[30:31]")
    if OPT.get("codepf", 1):
        A("s_getpc_b64 s[32:33]")
        A.label("L_pc")
        A("s_lshr_b32 s34, s2, 3")
        A("s_mul_i32 s34, s34, CODE_LPW*128")
        A("v_and_b32 v3, 63, v0")
        A("v_lshlrev_b32 v3, 7, v3")
        A("v_add_u32 v3, s34, v3")
        A("v_cmp_gt_u32 vcc, (L_end-L_pc), v3")
        A("v_cmp_gt_u32 s[36:37], CODE_LPW, v0")
        A("s_and_b64 vcc, vcc, s[36:37]")
        A("s_and_saveexec_b64 s[36:37], vcc")
        labc = A.newlabel("cpf")
        A(f"s_cbranch_execz {labc}")
        A("global_load_dword v247, v3, s[32:33]")
        A.label(labc)
        A("s_mov_b64 exec, s[36:37]")
    A("v_lshrrev_b32 v2, 6, v0")
    A("v_and_b32 v1, 63, v0")
    A(f"v_readfirstlane_b32 s{S_WAVE}, v2")
    A("s_waitcnt lgkmcnt(0)")
    A(f"s_or_b32 s{S_MY}, s30, 1")
    if OPT.get("touch"):
        A("s_mov_b32 s31, 0x200000")
        A(f"s_load_dword s3, s[{P_X}:{P_X+1}], 0")
        A(f"s_load_dword s3, s[{P_W}:{P_W+1}], 0")
        A(f"s_load_dword s3, s[{P_X}:{P_X+1}], s31")
        A(f"s_load_dword s3, s[{P_K}:{P_K+1}], 0")
        A(f"s_load_dword s3, s[{P_V}:{P_V+1}], 0")
        A(f"s_load_dword s3, s[{P_K}:{P_K+1}], s31")
        A(f"s_load_dword s3, s[{P_V}:{P_V+1}], s31")
        if OPT["touch"] >= 2:
            labt = A.newlabel("tch")
            A(f"s_cmp_lg_u32 s{S_WAVE}, 1")
            A(f"s_cbranch_scc1 {labt}")
            for (p, offs) in ((P_Q, (0, 1)), (P_H, (0, 1)), (P_WO, (0,)), (P_OUT, (0, 1, 2))):
                for o in offs:
                    A(f"s_mov_b32 s31, {o << 21}")
                    A(f"s_load_dword s3, s[{p}:{p+1}], s31")
            A("s_waitcnt lgkmcnt(0)")
            for o in (0, (2 << 20) + (1 << 20), (8 << 20), (10 << 20) + (1 << 20), (12 << 20)):
                A(f"s_mov_b32 s31, {o}")
                A(f"s_load_dword s3, s[{P_WS}:{P_WS+1}], s31")
            A.label(labt)
    if STAMPS: A("v_mov_b32 v246, -1")
    stamp(A, 0)
    if STAMPS:
        A("s_memtime s[100:101]")
        A("s_waitcnt lgkmcnt(0)")
        A("v_writelane_b32 v246, s100, 16")
    A("s_cmp_ge_u32 s2, 176")
    A("s_cbranch_scc1 L_bset")
    gen_a1(A)
    A("s_cmp_lt_u32 s2, 64")
    A("s_cbranch_scc1 L_a_b2")
    A("s_and_b32 s90, s2, 7")
    A("s_sub_u32 s91, s2, 64")
    A("s_lshr_b32 s91, s91, 3")
    gen_a2(A, 90, 91, 8)
    A("s_branch L_fin")
    A.label("L_a_b2")
    A("s_and_b32 s89, s2, 7")
    A("s_lshr_b32 s91, s2, 3")
    A("s_add_u32 s91, s91, 10")
    grp_of(A, 90, 89, 91, 40)
    get_nonce_issue(A, "B")
    b2_common(A, 90)
    if not OPT.get("hearly", 1):
        b2_h_loads(A, 170, 2)
    A("s_waitcnt vmcnt(0)")
    b2_h_stage(A, 170, 112, 2)
    b2_main(A, 90, 8, resolved=False)
    A("s_branch L_fin")
    A.label("L_bset")
    A("s_sub_u32 s91, s2, 176")
    A("s_and_b32 s40, s91, 7")
    A("s_lshr_b32 s89, s91, 3")
    grp_of(A, 90, 40, 89, 41)
    b_prefetch(A)
    b2_common(A, 90)
    if OPT.get("bwait", 1):
        A("s_waitcnt vmcnt(0)")
        A("s_barrier")
    stamp(A, 1)
    A("s_cmp_ge_u32 s91, 72")
    A("s_cbranch_scc1 L_b_nob1")
    A(f"s_cmp_ge_u32 s{S_WAVE}, 4")
    A("s_cbranch_scc1 L_b_aux")
    gen_b1_kv(A, 91)
    A("s_branch L_b_join")
    A.label("L_b_aux")
    gen_b1_aux(A, 91, True)
    A.label("L_b_join")
    A("s_waitcnt vmcnt(0) lgkmcnt(0)")
    A("s_barrier")
    lab = A.newlabel("b1f")
    A(f"s_cmp_lg_u32 s{S_WAVE}, 0")
    A(f"s_cbranch_scc1 {lab}")
    nonce_resolve(A, "B")
    A("s_lshl_b32 s40, s67, 8")
    A("s_lshl_b32 s41, s66, 2")
    A("s_add_u32 s40, s40, s41")
    flag_store(A, "B", 40)
    A.label(lab)
    A("s_branch L_b_b2")
    A.label("L_b_nob1")
    lab = A.newlabel("bnx")
    A(f"s_cmp_lt_u32 s{S_WAVE}, 4")
    A(f"s_cbranch_scc1 {lab}")
    gen_b1_aux(A, 91, False)
    A.label(lab)
    A("s_waitcnt vmcnt(0)")
    lab = A.newlabel("bz")
    A(f"s_cmp_lg_u32 s{S_WAVE}, 0")
    A(f"s_cbranch_scc1 {lab}")
    nonce_resolve(A, "B")
    A.label(lab)
    A.label("L_b_b2")
    b2_main(A, 90, 5, resolved=True)
    A.label("L_fin")
    stamp_flush(A)
    A.label("L_end")
    A("s_endpgm")
    body = A.finalize()
    lds = 141312 + 64
    out = HEADER + f"; @launch grid=(256,1,1) block=(512,1,1) lds={lds}\n"
    out += '.amdgcn_target "amdgcn-amd-amdhsa--gfx950"\n.text\n.set CODE_LPW, 16\n' + body
    out += '.section .rodata,"a"\n.p2align 6\n' + kd(NAME, 256)
    open(path, "w").write(out)

if __name__ == "__main__":
    for a in sys.argv[3:]:
        k, x = a.split("="); OPT[k] = int(x)
    build(sys.argv[1], stamps=(len(sys.argv) > 2 and sys.argv[2] == "stamps"))
```
